```python
import torch

def _softmax(x, axis=-1):
    return torch.softmax(x, dim=axis)

def _gelu(x):
    return torch.nn.functional.gelu(x, approximate='tanh')

def _silu(x):
    return torch.nn.functional.silu(x)

def _sigmoid(x):
    return torch.sigmoid(x)

def _layernorm(x, axis=-1, eps=1e-05):
    m = x.mean(dim=axis, keepdim=True)
    v = x.var(dim=axis, keepdim=True, unbiased=False)
    return (x - m) / torch.sqrt(v + eps)

def _scatter_add(tgt, idx, src, axis=0):
    return tgt.clone().index_add_(axis, idx, src)

def _segment_sum(src, seg, n):
    out = torch.zeros((n,) + src.shape[1:], dtype=src.dtype)
    return out.index_add_(0, seg, src)

def _pad(x, pw):
    flat = tuple((v for pair in reversed(pw) for v in pair))
    return torch.nn.functional.pad(x, flat)
kernel_name = 'adaLN_cond__linear_kernel_hedgehog__geglu_ffn__prompt'

def setup_inputs():

    _w = lambda a: (lambda t: t.to(torch.bfloat16) if t.is_floating_point() else t)(torch.as_tensor(a))

    def _A_setup():
        B, S, D, H = (1, 2048, 640, 32)
        Dh = D // H
        return {'x': _w((lambda *s: torch.randn(*s, dtype=torch.bfloat16) * 0.05)(B, S, D)), 'wqkv': _w((lambda *s: torch.randn(*s, dtype=torch.bfloat16) * 0.4)(D, 3 * D)), 'w_phi': _w((lambda *s: torch.randn(*s, dtype=torch.bfloat16) * 0.4)(H, Dh, Dh) * Dh ** (-0.5)), 'wo': _w((lambda *s: torch.randn(*s, dtype=torch.bfloat16) * 0.05)(D, D))}
    _A_in = _A_setup()

    def _B_setup():
        B, S, D, F = (1, 2048, 640, 1728)
        return {'x': _w((lambda *s: torch.randn(*s, dtype=torch.bfloat16) * 0.05)(B, S, D)), 'w_gate': _w((lambda *s: torch.randn(*s, dtype=torch.bfloat16) * 0.05)(D, F)), 'w_up': _w((lambda *s: torch.randn(*s, dtype=torch.bfloat16) * 0.05)(D, F)), 'w_down': _w((lambda *s: torch.randn(*s, dtype=torch.bfloat16) * 0.05)(F, D))}
    _B_in = _B_setup()
    return {'A_x': _A_in['x'], 'A_wqkv': _A_in['wqkv'], 'A_w_phi': _A_in['w_phi'], 'A_wo': _A_in['wo'], 'B_x': _B_in['x'], 'B_w_gate': _B_in['w_gate'], 'B_w_up': _B_in['w_up'], 'B_w_down': _B_in['w_down'], 'c': _w((lambda *s: torch.randn(*s, dtype=torch.bfloat16) * 0.1)(1, 640) * 8.0), 'w_mod': _w((lambda *s: torch.randn(*s, dtype=torch.bfloat16) * 0.1)(640, 6 * 640) * 640 ** (-0.5) * 8.0)}

def reference(A_x, A_wqkv, A_w_phi, A_wo, B_x, B_w_gate, B_w_up, B_w_down, c, w_mod):

    def _A_ref(x, wqkv, w_phi, wo):
        B, S, D = x.shape
        H = 32
        Dh = D // H
        qkv = (lambda x, *d: x.permute(*d))((x @ wqkv).reshape(B, S, 3, H, Dh), 2, 0, 3, 1, 4)
        q, k, v = (qkv[0], qkv[1], qkv[2])
        pq = torch.einsum('bhsd,hdf->bhsf', q, w_phi)
        pk = torch.einsum('bhsd,hdf->bhsf', k, w_phi)
        phi_q = torch.concatenate([_softmax(pq, axis=-1), _softmax(-pq, axis=-1)], axis=-1)
        phi_k = torch.concatenate([_softmax(pk, axis=-1), _softmax(-pk, axis=-1)], axis=-1)
        kv = torch.einsum('bhsf,bhsd->bhfd', phi_k, v)
        z = torch.einsum('bhsf->bhf', phi_k)
        num = torch.einsum('bhqf,bhfd->bhqd', phi_q, kv)
        den = torch.einsum('bhqf,bhf->bhq', phi_q, z)[..., None] + 1e-06
        o = num / den
        return (lambda x, *d: x.permute(*d))(o, 0, 2, 1, 3).reshape(B, S, D) @ wo

    def _B_ref(x, w_gate, w_up, w_down):
        return _gelu(x @ w_gate) * (x @ w_up) @ w_down
    x = A_x
    mod = (_silu(c) @ w_mod).reshape(c.shape[0], 6, 1, -1)
    sa, ca, ga, sb, cb, gb = (mod[:, 0].clone(), mod[:, 1].clone(), mod[:, 2].clone(), mod[:, 3].clone(), mod[:, 4].clone(), mod[:, 5].clone())
    h = _layernorm(x, axis=-1) * (1 + ca) + sa
    x = x + ga * _A_ref(h, A_wqkv, A_w_phi, A_wo)
    h = _layernorm(x, axis=-1) * (1 + cb) + sb
    x = x + gb * _B_ref(h, B_w_gate, B_w_up, B_w_down)
    return x
```

```python
import re

TRANS = ('v_exp_f32', 'v_log_f32', 'v_rcp_f32', 'v_rsq_f32', 'v_sqrt_f32', 'v_sin_f32', 'v_cos_f32')

_reg_re = re.compile(r'^(-|\|)?(abs\()?([vsa])(\d+|\[(\d+):(\d+)\])\)?\|?$')


def parse_reg(tok):
    tok = tok.strip()
    if tok in ('vcc',):
        return [('s', 106), ('s', 107)]
    if tok == 'vcc_lo':
        return [('s', 106)]
    if tok == 'vcc_hi':
        return [('s', 107)]
    if tok == 'exec':
        return [('s', 126), ('s', 127)]
    if tok == 'exec_lo':
        return [('s', 126)]
    if tok == 'exec_hi':
        return [('s', 127)]
    if tok == 'm0':
        return [('s', 124)]
    m = _reg_re.match(tok)
    if not m:
        return []
    kind = m.group(3)
    if m.group(5) is not None:
        return [(kind, i) for i in range(int(m.group(5)), int(m.group(6)) + 1)]
    return [(kind, int(m.group(4)))]


class R:
    def __init__(self, kind, base, n):
        self.kind, self.base, self.n = kind, base, n

    def __getitem__(self, i):
        if isinstance(i, slice):
            a = i.start or 0
            b = i.stop if i.stop is not None else self.n
            assert 0 <= a < b <= self.n, (a, b, self.n)
            return R(self.kind, self.base + a, b - a)
        assert 0 <= i < self.n, (i, self.n)
        return R(self.kind, self.base + i, 1)

    def __str__(self):
        if self.n == 1:
            return f'{self.kind}{self.base}'
        return f'{self.kind}[{self.base}:{self.base + self.n - 1}]'

    __repr__ = __str__

    def __format__(self, spec):
        return str(self)


def mfma_passes(op):
    if '32x32x16' in op or '32x32x8' in op:
        return 8
    if '16x16x32' in op or '16x16x16' in op:
        return 4
    if '_4b_' in op:
        return 8
    if '_2b_' in op:
        return 16
    if '_16b_' in op:
        return 2
    raise ValueError(op)


class Kernel:
    def __init__(self, name, max_v=256, max_a=256):
        self.name = name
        self.lines = []
        self.nv = 1
        self.na = 0
        self.ns = 4
        self.max_v, self.max_a = max_v, max_a
        self.hi_v = 1
        self.hi_a = 0
        self.hi_s = 4
        self.reset_state()
        self.nlabel = 0
        self.ninstr = 0

    def v(self, n=1, align=None):
        if align is None:
            align = 1 if n == 1 else (2 if n < 4 else 4)
        b = (self.nv + align - 1) // align * align
        self.nv = b + n
        assert self.nv <= self.max_v, f'{self.name}: out of VGPRs ({self.nv})'
        self.hi_v = max(self.hi_v, self.nv)
        return R('v', b, n)

    def a(self, n=1, align=4):
        b = (self.na + align - 1) // align * align
        self.na = b + n
        assert self.na <= self.max_a, f'{self.name}: out of AGPRs'
        self.hi_a = max(self.hi_a, self.na)
        return R('a', b, n)

    def s(self, n=1, align=None):
        if align is None:
            align = 1 if n == 1 else (2 if n < 4 else 4)
        b = (self.ns + align - 1) // align * align
        self.ns = b + n
        assert self.ns <= 100, f'{self.name}: out of SGPRs'
        self.hi_s = max(self.hi_s, self.ns)
        return R('s', b, n)

    def mark(self):
        return (self.nv, self.na, self.ns)

    def release(self, m):
        self.nv, self.na, self.ns = m

    def reset_state(self):
        self.pos = 0
        self.lastw = {}
        self.mfma_c_read = {}
        self.store_data = {}
        self.vm = []
        self.lg = []
        self.m0w = -100

    def raw(self, s):
        self.lines.append(s)

    def comment(self, s):
        self.lines.append('; ' + s)

    def label(self, name):
        self.lines.append(f'{name}:')
        self._join()

    def _join(self):
        self.lastw = {}
        self.mfma_c_read = {}
        self.store_data = {}

    def newlabel(self, p='L'):
        self.nlabel += 1
        return f'{self.name}_{p}{self.nlabel}'

    def nop(self, n):
        while n > 0:
            k = min(n, 16)
            self.lines.append(f'  s_nop {k - 1}')
            self.pos += k
            self.ninstr += 1
            n -= k

    def _emit_wait(self, vm=None, lg=None):
        parts = []
        if vm is not None:
            parts.append(f'vmcnt({vm})')
            self.vm = self.vm[len(self.vm) - vm:] if vm > 0 else []
        if lg is not None:
            parts.append(f'lgkmcnt({lg})')
            self.lg = self.lg[len(self.lg) - lg:] if lg > 0 else []
        if parts:
            self.lines.append('  s_waitcnt ' + ' '.join(parts))
            self.pos += 1
            self.ninstr += 1

    def wait(self, vm=None, lg=None):
        if vm is not None:
            vm = min(vm, 63)
            if vm >= len(self.vm) and not self.force_wait:
                vm = None
        if lg is not None:
            lg = min(lg, 15)
            if lg >= len(self.lg) and not self.force_wait:
                lg = None
        if vm is not None and vm > len(self.vm):
            self.lines.append(f'  s_waitcnt vmcnt({vm})')
            self.pos += 1
            vm = None
        if lg is not None and lg > len(self.lg):
            self.lines.append(f'  s_waitcnt lgkmcnt({lg})')
            self.pos += 1
            lg = None
        self._emit_wait(vm, lg)

    force_wait = False

    def wait_all(self):
        self.lines.append('  s_waitcnt vmcnt(0) lgkmcnt(0)')
        self.pos += 1
        self.vm = []
        self.lg = []

    def wait_tag(self, tag):
        idx = -1
        for i, e in enumerate(self.vm):
            if e['tag'] == tag:
                idx = i
        if idx >= 0:
            n = len(self.vm) - 1 - idx
            if n <= 63:
                self._emit_wait(vm=n)
            else:
                self.vm = self.vm[idx + 1:]

    def _need_waits(self, regs):
        regs = set(regs)
        vm = lg = None
        idx = -1
        for i, e in enumerate(self.vm):
            if e['regs'] & regs:
                idx = i
        if idx >= 0:
            n = len(self.vm) - 1 - idx
            if n <= 62:
                vm = n
            else:
                self.vm = self.vm[idx + 1:]
        idx = -1
        for i, e in enumerate(self.lg):
            if e['regs'] & regs:
                idx = i
        if idx >= 0:
            if any(e['smem'] for e in self.lg):
                lg = 0
            else:
                n = len(self.lg) - 1 - idx
                if n <= 14:
                    lg = n
                else:
                    lg = 15 if n > 15 else n
                    lg = min(lg, 15)
                    lg = 14 if n > 14 else n
        self._emit_wait(vm, lg)

    def i(self, text, tag=None):
        text = text.strip()
        sp = text.split(None, 1)
        op = sp[0]
        rest = sp[1] if len(sp) > 1 else ''
        ops = [o.strip() for o in rest.split(',')] if rest else []
        mods = ''
        if ops:
            last = ops[-1].split()
            if len(last) > 1:
                ops[-1] = last[0]
                mods = ' '.join(last[1:])
        base = op.replace('_e32', '').replace('_e64', '').replace('_dpp', '').replace('_sdwa', '')
        w, r = [], []
        kind = None
        passes = 0
        is_dpp = ('row_' in mods) or ('quad_perm' in mods) or op.endswith('_dpp') or ('wave_' in mods)
        lds_dma = False
        if base.startswith('v_mfma'):
            kind = 'mfma'
            passes = mfma_passes(base)
            w = parse_reg(ops[0])
            ra, rb, rc = parse_reg(ops[1]), parse_reg(ops[2]), parse_reg(ops[3])
            r = ra + rb + rc
        elif base.startswith('v_cmp'):
            kind = 'valu'
            w = parse_reg(ops[0])
            for o in ops[1:]:
                r += parse_reg(o)
            if base.startswith('v_cmpx'):
                w += parse_reg('exec')
        elif base.startswith('v_'):
            kind = 'trans' if base in TRANS else 'valu'
            w = parse_reg(ops[0])
            k = 1
            if '_co_' in base or base in ('v_mad_u64_u32', 'v_div_scale_f32'):
                w += parse_reg(ops[1])
                k = 2
            for o in ops[k:]:
                r += parse_reg(o)
            if base in ('v_fmac_f32', 'v_pk_fmac_f16', 'v_dot2c_f32_bf16', 'v_writelane_b32') or 'fmac' in base:
                r += parse_reg(ops[0])
            if base.startswith('v_permlane') and 'swap' in base:
                w += parse_reg(ops[1])
                r += parse_reg(ops[0])
            if is_dpp or 'op_sel' in mods and base.startswith('v_cvt'):
                r += parse_reg(ops[0])
        elif base.startswith('s_load') or base.startswith('s_buffer_load') or base in ('s_memtime', 's_memrealtime'):
            kind = 'smem'
            w = parse_reg(ops[0])
            for o in ops[1:]:
                r += parse_reg(o)
        elif base.startswith('s_'):
            kind = 'salu'
            if base.startswith('s_cmp') or base.startswith('s_cbranch') or base in ('s_branch', 's_barrier', 's_endpgm', 's_setprio', 's_sleep', 's_nop', 's_waitcnt', 's_bitcmp1_b32', 's_bitcmp0_b32'):
                for o in ops:
                    r += parse_reg(o)
                if 'vcc' in base:
                    r += parse_reg('vcc')
                if 'exec' in base:
                    r += parse_reg('exec')
            else:
                w = parse_reg(ops[0])
                for o in ops[1:]:
                    r += parse_reg(o)
                if 'saveexec' in base:
                    w += parse_reg('exec')
                    r += parse_reg('exec')
                if base in ('s_addk_i32', 's_mulk_i32', 's_cmov_b32', 's_cmov_b64'):
                    r += parse_reg(ops[0])
        elif base.startswith('ds_'):
            kind = 'ds'
            if base.startswith('ds_read') or base.startswith('ds_bpermute') or base.startswith('ds_permute') or base.startswith('ds_swizzle') or '_rtn' in base:
                w = parse_reg(ops[0])
                for o in ops[1:]:
                    r += parse_reg(o)
            else:
                for o in ops:
                    r += parse_reg(o)
        elif base.startswith('buffer_') or base.startswith('global_'):
            kind = 'vmem'
            allmods = mods.split()
            if 'lds' in allmods or '_lds_' in base:
                lds_dma = True
                for o in ops:
                    r += parse_reg(o)
                r += parse_reg('m0')
            elif '_load' in base:
                w = parse_reg(ops[0])
                for o in ops[1:]:
                    r += parse_reg(o)
            elif 'atomic' in base and 'sc0' in allmods:
                raise NotImplementedError('returning atomics: handle manually')
            else:
                for o in ops:
                    r += parse_reg(o)
        else:
            raise ValueError('unknown op ' + text)

        self._need_waits(r + w)

        need = 0

        def req(p, n):
            nonlocal need
            d = self.pos - p
            have = d - 1
            if have < n:
                need = max(need, n - have)

        isv = kind in ('valu', 'trans')
        for reg in r:
            lw = self.lastw.get(reg)
            if lw is None:
                continue
            p, k2, ps = lw
            if k2 in ('valu', 'trans'):
                if reg[0] in 'va':
                    if kind == 'mfma':
                        req(p, 2)
                    if isv and is_dpp:
                        req(p, 2)
                    if base.startswith('v_permlane'):
                        req(p, 2)
                    if base in ('v_readfirstlane_b32', 'v_readlane_b32'):
                        req(p, 1)
                    if k2 == 'trans' and kind in ('valu', 'mfma', 'vmem', 'ds'):
                        req(p, 1)
                else:
                    if isv:
                        req(p, 4 if base in ('v_readlane_b32', 'v_writelane_b32') else 2)
                    if kind == 'vmem':
                        req(p, 5)
                    if kind in ('salu', 'smem'):
                        req(p, 1)
                    if reg in (('s', 126), ('s', 127)):
                        req(p, 5)
            elif k2 == 'mfma':
                if kind == 'mfma':
                    if reg in rc and not (reg in ra or reg in rb):
                        if set(rc) == self.lastw_set.get(p, None) and ps == passes:
                            req(p, 2 if ps == 2 else 0)
                        else:
                            req(p, ps + 2)
                    else:
                        req(p, ps + 4 if ps > 2 else 5)
                else:
                    req(p, ps + 4 if ps > 2 else 5)
            elif k2 == 'salu':
                if reg == ('s', 124) and lds_dma:
                    req(p, 1)
        for reg in w:
            lw = self.lastw.get(reg)
            if lw is not None:
                p, k2, ps = lw
                if k2 == 'mfma' and kind != 'mfma':
                    req(p, ps + 4 if ps > 2 else 5)
                if k2 == 'mfma' and kind == 'mfma' and reg not in rc:
                    req(p, ps + 2)
            cr = self.mfma_c_read.get(reg)
            if cr is not None and kind != 'mfma':
                req(cr[0], cr[1] - 1)
            sd = self.store_data.get(reg)
            if sd is not None:
                req(sd, 2)
        if need > 0:
            self.nop(need)

        self.lines.append('  ' + text)
        self.ninstr += 1
        p = self.pos
        self.pos += 1
        if kind in ('valu', 'trans', 'mfma', 'salu'):
            for reg in w:
                self.lastw[reg] = (p, kind, passes)
            if kind == 'mfma':
                if not hasattr(self, 'lastw_set'):
                    self.lastw_set = {}
                self.lastw_set[p] = set(w)
                for reg in rc:
                    self.mfma_c_read[reg] = (p, passes)
        else:
            for reg in w:
                self.lastw.pop(reg, None)
        if kind == 'vmem':
            self.vm.append(dict(regs=set(w), tag=tag))
            if ('store' in base or 'atomic' in base) and ('x4' in base or 'x3' in base):
                dreg = parse_reg(ops[0]) if base.startswith('buffer_') else parse_reg(ops[1])
                for reg in dreg:
                    self.store_data[reg] = p
        elif kind == 'ds':
            self.lg.append(dict(regs=set(w), smem=False))
        elif kind == 'smem':
            self.lg.append(dict(regs=set(w), smem=True))
        if base.startswith('s_cbranch') or base == 's_branch':
            pass
        for reg in w + r:
            if reg[0] == 'v':
                self.hi_v = max(self.hi_v, reg[1] + 1)
            elif reg[0] == 'a':
                self.hi_a = max(self.hi_a, reg[1] + 1)
            elif reg[1] < 102:
                self.hi_s = max(self.hi_s, reg[1] + 1)

    lastw_set = {}

    def barrier(self):
        if self.lg:
            self._emit_wait(lg=0)
        self.i('s_barrier')

    def srd(self, base, nbytes):
        d = self.s(4)
        self.i(f's_mov_b32 {d[0]}, {base[0]}')
        self.i(f's_and_b32 {d[1]}, {base[1]}, 0xffff')
        self.i(f's_mov_b32 {d[2]}, {nbytes}')
        self.i(f's_mov_b32 {d[3]}, 0x00020000')
        return d

    def srd_off(self, base, off, nbytes):
        d = self.s(4)
        self.i(f's_add_u32 {d[0]}, {base[0]}, {off}')
        self.i(f's_addc_u32 {d[1]}, {base[1]}, 0')
        self.i(f's_and_b32 {d[1]}, {d[1]}, 0xffff')
        self.i(f's_mov_b32 {d[2]}, {nbytes}')
        self.i(f's_mov_b32 {d[3]}, 0x00020000')
        return d

    def text(self):
        out = [f'.globl {self.name}', '.p2align 8', f'.type {self.name},@function', f'{self.name}:']
        out += self.lines
        return '\n'.join(out)

    def desc(self):
        nv = (self.hi_v + 3) // 4 * 4
        tot = nv + self.hi_a if self.hi_a else self.hi_v
        return '\n'.join([
            '.p2align 6',
            f'.amdhsa_kernel {self.name}',
            f'  .amdhsa_next_free_vgpr {tot}',
            f'  .amdhsa_next_free_sgpr {max(self.hi_s, 8)}',
            f'  .amdhsa_accum_offset {nv}',
            '  .amdhsa_group_segment_fixed_size 0',
            '  .amdhsa_kernarg_size 104',
            '  .amdhsa_user_sgpr_count 2',
            '  .amdhsa_user_sgpr_kernarg_segment_ptr 1',
            '  .amdhsa_system_sgpr_workgroup_id_x 1',
            '.end_amdhsa_kernel'])


def build_file(header_lines, launches, kernels):
    out = list(header_lines)
    for (name, grid, block, lds) in launches:
        out.append(f'; @launch kernel={name} grid=({grid},1,1) block=({block},1,1) lds={lds}')
    out.append('.amdgcn_target "amdgcn-amd-amdhsa--gfx950"')
    out.append('.text')
    for k in kernels:
        out.append(k.text())
    out.append('.section .rodata,"a"')
    for k in kernels:
        out.append(k.desc())
    return '\n'.join(out) + '\n'
```

```python
from gen import *


def common_prologue(k, nwg, endlabel):
    k.i(f's_cmp_ge_u32 s2, {nwg}')
    k.i(f's_cbranch_scc1 {endlabel}')
    ws = k.s(2)
    k.i(f's_load_dwordx2 {ws}, s[0:1], {KA_WS}')
    lane, G, n = k.v(), k.v(), k.v()
    wave = k.s()
    k.i(f'v_lshrrev_b32 {G}, 6, v0')
    k.i(f'v_and_b32 {lane}, 63, v0')
    k.i(f'v_readfirstlane_b32 {wave}, {G}')
    k.i(f'v_lshrrev_b32 {G}, 4, {lane}')
    k.i(f'v_and_b32 {n}, 15, {lane}')
    return ws, lane, G, n, wave


def gen_p1():
    k = Kernel('p1_kernel')
    ws, lane, G, n, wave = common_prologue(k, 256, 'p1_end')
    RING = 8192
    NSLOT = 8
    mt, hp, sx, sy = k.s(), k.s(), k.s(), k.s()
    k.i(f's_and_b32 {sx}, s2, 7')
    k.i(f's_lshr_b32 {sy}, s2, 3')
    k.i(f's_lshr_b32 {mt}, {sx}, 1')
    k.i(f's_lshl_b32 {mt}, {mt}, 2')
    k.i(f's_and_b32 {hp}, {sy}, 3')
    k.i(f's_add_u32 {mt}, {mt}, {hp}')
    k.i(f's_and_b32 {hp}, {sx}, 1')
    k.i(f's_lshl_b32 {hp}, {hp}, 3')
    k.i(f's_lshr_b32 {sy}, {sy}, 2')
    k.i(f's_add_u32 {hp}, {hp}, {sy}')
    sws = k.srd(ws, WS_END)
    l16 = k.v()
    k.i(f'v_lshlrev_b32 {l16}, 4, {lane}')
    so, sxn, swp, sm0 = k.s(), k.s(), k.s(), k.s()
    k.i(f's_lshl_b32 {so}, {wave}, 10')
    k.i(f's_mov_b32 m0, {so}')
    k.i(f'buffer_load_dwordx4 {l16}, {sws}, {so} offen lds', tag='mod')
    k.i(f's_mov_b32 m0, 4096')
    k.i(f's_mov_b32 {so}, 4096')
    k.i(f'buffer_load_dwordx4 {l16}, {sws}, {so} offen lds', tag='mod')
    tt0 = k.s()
    k.i(f's_lshl_b32 {tt0}, {mt}, 3')
    k.i(f's_lshl_b32 {so}, {wave}, 1')
    k.i(f's_add_u32 {tt0}, {tt0}, {so}')
    k.i(f's_mul_i32 {sxn}, {tt0}, 20480')
    k.i(f's_add_u32 {sxn}, {sxn}, {WS_XN}')
    k.i(f's_mul_i32 {swp}, {hp}, 163840')
    k.i(f's_lshl_b32 {so}, {wave}, 12')
    k.i(f's_add_u32 {swp}, {swp}, {so}')
    k.i(f's_add_u32 {swp}, {swp}, {WS_WP}')
    k.i(f's_add_u32 {sm0}, {so}, {RING}')
    X = k.v(160)

    def xfrag(tt, J):
        return X[(tt * 20 + J) * 4:(tt * 20 + J) * 4 + 4]

    st1, st2 = k.s(), k.s()

    def dma_stage(s):
        slot = s % NSLOT
        k.i(f's_add_u32 {st1}, {swp}, {s * 16384}')
        k.i(f's_add_u32 m0, {sm0}, {slot * 16384}')
        for i in range(4):
            k.i(f'buffer_load_dwordx4 {l16}, {sws}, {st1} offen offset:{1024 * i} lds', tag=f'w{s}')

    def x_stage(s):
        for tt in range(2):
            k.i(f's_add_u32 {st2}, {sxn}, {tt * 20480 + s * 2048}')
            for jj in range(2):
                k.i(f'buffer_load_dwordx4 {xfrag(tt, 2 * s + jj)}, {l16}, {sws}, {st2} offen offset:{1024 * jj}')

    for s in range(NSLOT):
        dma_stage(s)
        x_stage(s)
    for s in range(NSLOT, 10):
        x_stage(s)

    accq = k.a(40)
    accv = k.a(24)
    Wf = k.a(64)
    one = k.v(2, align=1)
    k.i(f'v_cmp_eq_u32 vcc, 4, {n}')
    k.i(f'v_cndmask_b32 {one[0]}, 0, 1.0, vcc')
    k.i(f'v_cmp_eq_u32 vcc, 12, {n}')
    k.i(f'v_cndmask_b32 {one[1]}, 0, 1.0, vcc')
    for tt in range(2):
        for r in range(4):
            k.i(f'v_accvgpr_write_b32 {accv[tt * 12 + r]}, 0')
            k.i(f'v_accvgpr_write_b32 {accv[tt * 12 + 4 + r]}, {one[0]}')
            k.i(f'v_accvgpr_write_b32 {accv[tt * 12 + 8 + r]}, {one[1]}')
    cf = k.v(32)
    ca = k.v()
    k.i(f'v_lshlrev_b32 {ca}, 5, {G}')
    wa = k.v()
    k.i(f'v_add_u32 {wa}, {RING}, {l16}')
    wa2 = k.v()
    k.i(f'v_add_u32 {wa2}, {RING + 65536}, {l16}')
    tmp = k.v(8, align=1)

    def prep(J):
        L = []
        s = J // 2
        slot = s % NSLOT
        b = J & 1
        c = cf[b * 16:b * 16 + 16]
        for q in range(2):
            L.append(f'ds_read_b128 {c[4 * q:4 * q + 4]}, {ca} offset:{J * 128 + 16 * q}')
            L.append(f'ds_read_b128 {c[8 + 4 * q:8 + 4 * q + 4]}, {ca} offset:{2560 + J * 128 + 16 * q}')
        for ct in range(8):
            off = slot * 16384 + (J & 1) * 8192 + ct * 1024
            areg = wa if off < 65536 else wa2
            L.append(f'ds_read_b128 {Wf[(b * 8 + ct) * 4:(b * 8 + ct) * 4 + 4]}, {areg} offset:{off % 65536}')
        for tt in range(2):
            x = xfrag(tt, J)
            for q in range(4):
                lo, hi = tmp[(q & 3) * 2], tmp[(q & 3) * 2 + 1]
                L.append(f'v_lshlrev_b32 {lo}, 16, {x[q]}')
                L.append(f'v_and_b32 {hi}, 0xffff0000, {x[q]}')
                L.append(f'v_fma_f32 {lo}, {lo}, {c[8 + 2 * q]}, {c[2 * q]}')
                L.append(f'v_fma_f32 {hi}, {hi}, {c[8 + 2 * q + 1]}, {c[2 * q + 1]}')
                L.append(f'v_cvt_pk_bf16_f32 {x[q]}, {lo}, {hi}')
        return L

    def mfmas(J):
        L = []
        b = J & 1
        for ct in range(8):
            w = Wf[(b * 8 + ct) * 4:(b * 8 + ct) * 4 + 4]
            for tt in range(2):
                x = xfrag(tt, J)
                if ct < 5:
                    a = accq[(tt * 5 + ct) * 4:(tt * 5 + ct) * 4 + 4]
                    L.append(f'v_mfma_f32_16x16x32_bf16 {a}, {w}, {x}, {0 if J == 0 else a}')
                else:
                    a = accv[(tt * 3 + ct - 5) * 4:(tt * 3 + ct - 5) * 4 + 4]
                    L.append(f'v_mfma_f32_16x16x32_bf16 {a}, {x}, {w}, {a}')
        return L

    def sync_stage(s):
        k.wait_tag(f'w{s}')
        k.barrier()
        if s >= 1 and s - 1 + NSLOT < 10:
            dma_stage(s - 1 + NSLOT)

    k.wait_tag('mod')
    sync_stage(0)
    for x in prep(0):
        k.i(x)
    for J in range(20):
        if J + 1 < 20:
            if (J + 1) % 2 == 0:
                sync_stage((J + 1) // 2)
            interleave(k, mfmas(J), prep(J + 1))
        else:
            for x in mfmas(J):
                k.i(x)
    k.barrier()
    P = X[0:20]
    Ep = X[20:40]
    En = X[40:60]
    PH = [X[60:80], X[80:100]]
    mx, mn, sp, sn = tmp[0], tmp[1], tmp[2], tmp[3]
    sl2 = k.s()
    k.i(f's_mov_b32 {sl2}, {fhex(LOG2E)}')
    hq, qa, ql, ka = X[100], X[101], X[102], X[103]
    k.i(f's_lshl_b32 {so}, {hp}, 1')
    k.i(f'v_add_u32 {hq}, {so}, {G}')
    k.i(f'v_subrev_u32 {hq}, 2, {hq}')
    k.i(f'v_lshlrev_b32 {qa}, 10, {hq}')
    k.i(f'v_lshl_add_u32 {qa}, {n}, 4, {qa}')
    k.i(f'v_lshrrev_b32 {ql}, 2, {hq}')
    k.i(f'v_add_u32 {ql}, 32, {ql}')
    k.i(f'v_lshlrev_b32 {ql}, 10, {ql}')
    k.i(f'v_and_b32 {tmp[4]}, 3, {hq}')
    k.i(f'v_lshl_add_u32 {ql}, {tmp[4]}, 8, {ql}')
    k.i(f'v_lshl_add_u32 {ql}, {n}, 4, {ql}')
    SCR = 5632
    k.i(f'v_mul_u32_u24 {ka}, 160, {n}')
    k.i(f'v_mul_u32_u24 {tmp[4]}, 80, {G}')
    k.i(f'v_add_u32 {ka}, {ka}, {tmp[4]}')
    k.i(f's_mul_i32 {so}, {wave}, {SCR}')
    k.i(f'v_add_u32 {ka}, {so}, {ka}')
    sq = k.s()
    k.i(f's_mul_i32 {sq}, {tt0}, 40960')
    k.i(f's_add_u32 {sq}, {sq}, {WS_PHIQ}')
    for tt in range(2):
        for i in range(20):
            k.i(f'v_accvgpr_read_b32 {P[i]}, {accq[tt * 20 + i]}')
        k.i(f'v_max3_f32 {mx}, {P[0]}, {P[1]}, {P[2]}')
        k.i(f'v_min3_f32 {mn}, {P[0]}, {P[1]}, {P[2]}')
        for i in range(3, 19, 2):
            k.i(f'v_max3_f32 {mx}, {mx}, {P[i]}, {P[i + 1]}')
            k.i(f'v_min3_f32 {mn}, {mn}, {P[i]}, {P[i + 1]}')
        k.i(f'v_max_f32 {mx}, {mx}, {P[19]}')
        k.i(f'v_min_f32 {mn}, {mn}, {P[19]}')
        k.i(f'v_mul_f32 {mx}, {sl2}, {mx}')
        k.i(f'v_mul_f32 {mn}, {sl2}, {mn}')
        for i in range(20):
            k.i(f'v_fma_f32 {Ep[i]}, {P[i]}, {sl2}, -{mx}')
            k.i(f'v_fma_f32 {En[i]}, -{P[i]}, {sl2}, {mn}')
        for i in range(20):
            k.i(f'v_exp_f32 {Ep[i]}, {Ep[i]}')
            k.i(f'v_exp_f32 {En[i]}, {En[i]}')
        k.i(f'v_add_f32 {sp}, {Ep[0]}, {Ep[1]}')
        k.i(f'v_add_f32 {sn}, {En[0]}, {En[1]}')
        for i in range(2, 20):
            k.i(f'v_add_f32 {sp}, {sp}, {Ep[i]}')
            k.i(f'v_add_f32 {sn}, {sn}, {En[i]}')
        k.i(f'v_rcp_f32 {sp}, {sp}')
        k.i(f'v_rcp_f32 {sn}, {sn}')
        for i in range(20):
            k.i(f'v_mul_f32 {Ep[i]}, {Ep[i]}, {sp}')
            k.i(f'v_mul_f32 {En[i]}, {En[i]}, {sn}')
        ph = PH[tt]
        for i in range(10):
            k.i(f'v_cvt_pk_bf16_f32 {ph[i]}, {Ep[2 * i]}, {Ep[2 * i + 1]}')
            k.i(f'v_cvt_pk_bf16_f32 {ph[10 + i]}, {En[2 * i]}, {En[2 * i + 1]}')
        k.i('s_mov_b32 exec_lo, -1'); k.i('s_mov_b32 exec_hi, 0')
        for j in range(5):
            k.i(f'ds_write_b128 {ka}, {ph[4 * j:4 * j + 4]} offset:{tt * 2560 + 16 * j}')
        k.i('s_mov_b32 exec_lo, 0')
        k.i('s_mov_b32 exec_hi, -1')
        if tt == 1:
            k.i(f's_add_u32 {sq}, {sq}, 40960')
        for j in range(4):
            k.i(f'buffer_store_dwordx4 {ph[4 * j:4 * j + 4]}, {qa}, {sws}, {sq} offen offset:{256 * j}')
        k.i(f'buffer_store_dwordx4 {ph[16:20]}, {ql}, {sws}, {sq} offen')
        k.i('s_mov_b64 exec, -1')
    Bv = X[104:116]
    vt = X[0:24]
    for i in range(24):
        k.i(f'v_accvgpr_read_b32 {vt[i]}, {accv[i]}')
    for ct in range(3):
        for tt in range(2):
            for hf in range(2):
                k.i(f'v_cvt_pk_bf16_f32 {Bv[ct * 4 + tt * 2 + hf]}, {vt[(tt * 3 + ct) * 4 + 2 * hf]}, {vt[(tt * 3 + ct) * 4 + 2 * hf + 1]}')
    ta = X[116]
    k.i(f'v_lshrrev_b32 {ta}, 2, {lane}')
    k.i(f'v_mul_u32_u24 {ta}, 160, {ta}')
    k.i(f'v_and_b32 {tmp[4]}, 3, {lane}')
    k.i(f'v_lshl_add_u32 {ta}, {tmp[4]}, 3, {ta}')
    k.i(f'v_add_u32 {ta}, {so}, {ta}')
    Af = X[24:48]
    k.wait(lg=0)
    for hh in range(2):
        for ft in range(3):
            for hf in range(2):
                b = (hh * 3 + ft) * 4 + 2 * hf
                k.i(f'ds_read_b64_tr_b16 {Af[b:b + 2]}, {ta} offset:{hf * 2560 + hh * 80 + ft * 32}')
    KVd = X[48:96]
    for hh in range(2):
        for ft in range(3):
            for dt in range(2):
                d = KVd[((hh * 3 + ft) * 2 + dt) * 4:((hh * 3 + ft) * 2 + dt) * 4 + 4]
                ct = hh + dt
                k.i(f'v_mfma_f32_16x16x32_bf16 {d}, {Af[(hh * 3 + ft) * 4:(hh * 3 + ft) * 4 + 4]}, {Bv[ct * 4:ct * 4 + 4]}, 0')
    CB = 32768
    DUMMY = CB + 4 * 6720
    rowad = {}
    dd, g5, s5, rw = X[120], X[121], X[122], X[123]
    scb = k.s()
    k.i(f's_mul_i32 {scb}, {wave}, 6720')
    k.i(f's_add_u32 {scb}, {scb}, {CB}')
    gu = X[124]
    k.i(f'v_mul_u32_u24 {gu}, 336, {G}')
    k.i(f'v_add_u32 {gu}, {scb}, {gu}')
    dum = X[125]
    k.i(f'v_add_u32 {dum}, {DUMMY}, {l16}')
    for hh in range(2):
        for dt in range(2):
            ra = X[128 + hh * 2 + dt]
            ra2 = X[132 + hh * 2 + dt]
            k.i(f'v_add_u32 {dd}, {16 * dt - 8 * hh}, {n}')
            k.i(f'v_min_u32 {s5}, 31, {dd}')
            k.i(f'v_mul_u32_u24 {g5}, 52, {s5}')
            k.i(f'v_lshrrev_b32 {g5}, 8, {g5}')
            k.i(f'v_mul_u32_u24 {rw}, 5, {g5}')
            k.i(f'v_sub_u32 {s5}, {s5}, {rw}')
            k.i(f'v_lshl_add_u32 {rw}, {g5}, 2, {s5}')
            k.i(f'v_add_u32 {g5}, 16, {g5}')
            k.i(f'v_cmp_eq_u32 vcc, 4, {s5}')
            k.i(f'v_cndmask_b32 {rw}, {rw}, {g5}, vcc')
            k.i(f'v_cmp_eq_u32 vcc, 20, {dd}')
            k.i(f'v_cndmask_b32 {rw}, {rw}, {dd}, vcc')
            k.i(f'v_lshl_add_u32 {ra}, {rw}, 4, {gu}')
            k.i(f'v_add_u32 {ra}, {hh * 3360}, {ra}')
            k.i(f'v_cmp_lt_u32 vcc, 20, {dd}')
            k.i(f'v_cndmask_b32 {ra}, {ra}, {dum}, vcc')
            k.i(f'v_add_u32 {ra2}, {2 * 4 * 336}, {ra}')
            k.i(f'v_cmp_lt_u32 vcc, 1, {G}')
            k.i(f'v_cndmask_b32 {ra2}, {ra2}, {dum}, vcc')
            rowad[hh, dt] = (ra, ra2)
    for hh in range(2):
        for ft in range(3):
            for dt in range(2):
                d = KVd[((hh * 3 + ft) * 2 + dt) * 4:((hh * 3 + ft) * 2 + dt) * 4 + 4]
                ra, ra2 = rowad[hh, dt]
                if ft < 2:
                    k.i(f'ds_write_b128 {ra}, {d} offset:{ft * 4 * 336}')
                else:
                    k.i(f'ds_write_b128 {ra2}, {d}')
    k.barrier()
    ra = X[0]
    k.i(f'v_lshlrev_b32 {ra}, 2, v0')
    vals = X[4:32]
    for i in range(7):
        for c in range(4):
            k.i(f'ds_read_b32 {vals[i * 4 + c]}, {ra} offset:{CB + c * 6720 + i * 1024}')
    k.i(f's_mul_i32 {so}, {hp}, 6720')
    k.i(f's_add_u32 {so}, {so}, {WS_KV}')
    sv = k.s(2)
    so4 = k.s()
    k.i(f's_add_u32 {so4}, {so}, 4096')
    for i in range(7):
        v = vals[i * 4:i * 4 + 4]
        k.i(f'v_add_f32 {v[0]}, {v[0]}, {v[1]}')
        k.i(f'v_add_f32 {v[2]}, {v[2]}, {v[3]}')
        k.i(f'v_add_f32 {v[0]}, {v[0]}, {v[2]}')
        if i == 6:
            k.i(f'v_cmp_gt_u32 vcc, {1680 - 1536}, v0')
            k.i(f's_and_saveexec_b64 {sv}, vcc')
            k.i('s_cbranch_execz p1_end')
        k.i(f'buffer_atomic_add_f32 {v[0]}, {ra}, {sws}, {so if i < 4 else so4} offen offset:{(i % 4) * 1024}')
    k.label('p1_end')
    k.i('s_endpgm')
    return k, 256, 256, RING + NSLOT * 16384


def gen_p2():
    k = Kernel('p2_kernel')
    ws, lane, G, n, wave = common_prologue(k, 256, 'p2_end')
    pwo, px, pwg = k.s(2), k.s(2), k.s(2)
    k.i(f's_load_dwordx2 {pwo}, s[0:1], {KA_WO}')
    k.i(f's_load_dwordx2 {px}, s[0:1], {KA_X}')
    cblk, ks, so, st1 = k.s(), k.s(), k.s(), k.s()
    k.i(f's_mul_i32 {ks}, s2, 1214')
    k.i(f's_lshr_b32 {ks}, {ks}, 16')
    k.i(f's_mul_i32 {so}, {ks}, 54')
    k.i(f's_sub_u32 {cblk}, s2, {so}')
    k.i(f's_cmp_ge_u32 {cblk}, 27')
    k.i(f's_cselect_b32 {so}, {KA_WU}, {KA_WG}')
    k.i(f's_load_dwordx2 {pwg}, s[0:1], {so}')
    mt, nt, sx, sy = k.s(), k.s(), k.s(), k.s()
    k.i(f's_and_b32 {sx}, s2, 7')
    k.i(f's_lshr_b32 {sy}, s2, 3')
    k.i(f's_lshl_b32 {mt}, {sx}, 2')
    k.i(f's_and_b32 {nt}, {sy}, 3')
    k.i(f's_add_u32 {mt}, {mt}, {nt}')
    k.i(f's_lshr_b32 {nt}, {sy}, 2')
    sws = k.srd(ws, WS_END)
    swo = k.srd(pwo, D * D * 2)
    sxx = k.srd(px, S * D * 2)
    swg = k.srd(pwg, D * F * 2)
    l16 = k.v()
    k.i(f'v_lshlrev_b32 {l16}, 4, {lane}')
    t1, t2, t3 = k.v(), k.v(), k.v()
    O = k.v(32)
    Xf = k.v(32)
    cw = Xf[0:20]
    cc = O[0:10]
    k.i(f'v_lshrrev_b32 {t1}, 3, v0')
    k.i(f's_mul_i32 {so}, {ks}, 160')
    k.i(f'v_add_u32 {t1}, {so}, {t1}')
    k.i(f'v_mul_u32_u24 {t2}, {F * 2}, {t1}')
    k.i(f'v_and_b32 {t3}, 7, v0')
    k.i(f'v_lshl_add_u32 {t2}, {t3}, 4, {t2}')
    k.i(f's_cmp_ge_u32 {cblk}, 27')
    k.i(f's_cselect_b32 {st1}, 27, 0')
    k.i(f's_sub_u32 {st1}, {cblk}, {st1}')
    k.i(f's_lshl_b32 {st1}, {st1}, 7')
    for i in range(5):
        k.i(f's_add_u32 {so}, {st1}, {32 * i * F * 2}')
        k.i(f'buffer_load_dwordx4 {cw[4 * i:4 * i + 4]}, {t2}, {swg}, {so} offen')
    k.i(f'v_min_u32 {t1}, 511, {t1}')
    k.i(f'v_lshlrev_b32 {t1}, 2, {t1}')
    k.i(f's_mov_b32 {so}, {WS_MOD + 4 * 640 * 4}')
    k.i(f's_mov_b32 {st1}, {WS_MOD + 3 * 640 * 4}')
    for i in range(5):
        k.i(f'buffer_load_dword {cc[2 * i]}, {t1}, {sws}, {so} offen offset:{128 * i}')
        k.i(f'buffer_load_dword {cc[2 * i + 1]}, {t1}, {sws}, {st1} offen offset:{128 * i}')
    h0 = k.s()
    k.i(f's_lshl_b32 {h0}, {wave}, 3')
    skv = k.s()
    k.i(f's_mul_i32 {skv}, {h0}, 3360')
    k.i(f's_add_u32 {skv}, {skv}, {WS_KV}')
    ka0, ka1, kl0, kl1 = k.v(), k.v(), k.v(), k.v()
    k.i(f'v_mul_u32_u24 {t1}, 672, {G}')
    k.i(f'v_lshl_add_u32 {ka0}, {n}, 4, {t1}')
    k.i(f'v_lshrrev_b32 {t2}, 2, {n}')
    k.i(f'v_add_u32 {t2}, 16, {t2}')
    k.i(f'v_and_b32 {t3}, 3, {n}')
    k.i(f'v_cmp_eq_u32 vcc, 0, {t3}')
    k.i(f'v_cndmask_b32 {t2}, 20, {t2}, vcc')
    k.i(f'v_lshl_add_u32 {ka1}, {t2}, 4, {t1}')
    k.i(f'v_mul_u32_u24 {t1}, 3360, {G}')
    k.i(f'v_add_u32 {t1}, {8 * 336}, {t1}')
    k.i(f'v_lshl_add_u32 {kl0}, {n}, 4, {t1}')
    k.i(f'v_lshl_add_u32 {kl1}, {t2}, 4, {t1}')
    KR = k.v(64)
    KL = k.v(16)
    PQ = k.a(128)
    PL = k.a(32)
    acc = k.a(80)
    spq = k.s()
    k.i(f's_mul_i32 {spq}, {mt}, {4 * 40960}')
    k.i(f's_add_u32 {spq}, {spq}, {WS_PHIQ}')
    spl = k.s()
    k.i(f's_lshl_b32 {so}, {wave}, 11')
    k.i(f's_add_u32 {spl}, {spq}, {so}')
    k.i(f's_add_u32 {spl}, {spl}, {32 * 1024}')
    k.i(f's_lshl_b32 {so}, {wave}, 13')
    k.i(f's_add_u32 {spq}, {spq}, {so}')

    def kv_loads(u):
        k.i(f's_add_u32 {so}, {skv}, {u * 4 * 3360}')
        for hf in range(2):
            k.i(f'buffer_load_dwordx4 {KL[4 * hf:4 * hf + 4]}, {kl0}, {sws}, {so} offen offset:{336 * hf}')
            k.i(f'buffer_load_dwordx4 {KL[8 + 4 * hf:8 + 4 * hf + 4]}, {kl1}, {sws}, {so} offen offset:{336 * hf}')
        for h in range(4):
            k.i(f's_add_u32 {so}, {skv}, {(u * 4 + h) * 3360}')
            for hf in range(2):
                k.i(f'buffer_load_dwordx4 {KR[h * 16 + 4 * hf:h * 16 + 4 * hf + 4]}, {ka0}, {sws}, {so} offen offset:{336 * hf}')
                k.i(f'buffer_load_dwordx4 {KR[h * 16 + 8 + 4 * hf:h * 16 + 8 + 4 * hf + 4]}, {ka1}, {sws}, {so} offen offset:{336 * hf}')

    def pq_loads(u):
        for tt in range(4):
            k.i(f's_add_u32 {so}, {spl}, {tt * 40960 + u * 1024}')
            k.i(f'buffer_load_dwordx4 {PL[(u * 4 + tt) * 4:(u * 4 + tt) * 4 + 4]}, {l16}, {sws}, {so} offen')
        for tt in range(4):
            k.i(f's_add_u32 {so}, {spq}, {tt * 40960 + u * 4096}')
            for h in range(4):
                hh = u * 4 + h
                k.i(f'buffer_load_dwordx4 {PQ[(hh * 4 + tt) * 4:(hh * 4 + tt) * 4 + 4]}, {l16}, {sws}, {so} offen offset:{1024 * h}')

    wof = k.v(5, align=1)
    for i in range(5):
        k.i(f'v_add_u32 {t1}, {64 * i}, {lane}')
        k.i(f'v_mul_u32_u24 {t2}, 6554, {t1}')
        k.i(f'v_lshrrev_b32 {t2}, 16, {t2}')
        k.i(f'v_mul_u32_u24 {t3}, 10, {t2}')
        k.i(f'v_sub_u32 {t3}, {t1}, {t3}')
        k.i(f'v_mul_u32_u24 {t2}, 1280, {t2}')
        k.i(f'v_lshl_add_u32 {wof[i]}, {t3}, 4, {t2}')
    swb, slb = k.s(), k.s()
    k.i(f's_mul_i32 {swb}, {wave}, {160 * 1280}')
    k.i(f's_mul_i32 {so}, {nt}, 160')
    k.i(f's_add_u32 {swb}, {swb}, {so}')
    k.i(f's_mul_i32 {slb}, {wave}, 25600')

    def wo_dma(gidx):
        k.i(f's_add_u32 {so}, {swb}, {gidx * 32 * 1280}')
        for i in range(5):
            k.i(f's_add_u32 m0, {slb}, {gidx * 5120 + i * 1024}')
            k.i(f'buffer_load_dwordx4 {wof[i]}, {swo}, {so} offen lds', tag=f'wo{gidx}')

    kv_loads(0)
    pq_loads(0)
    wo_dma(0)
    wo_dma(1)
    wo_dma(2)
    ca = O[12:28]
    for i in range(5):
        for j in range(4):
            w = cw[4 * i + j]
            k.i(f'v_lshlrev_b32 {t1}, 16, {w}')
            k.i(f'v_and_b32 {t2}, 0xffff0000, {w}')
            if i == 0:
                k.i(f'v_mul_f32 {ca[2 * j]}, {t1}, {cc[0]}')
                k.i(f'v_mul_f32 {ca[2 * j + 1]}, {t2}, {cc[0]}')
                k.i(f'v_mul_f32 {ca[8 + 2 * j]}, {t1}, {cc[1]}')
                k.i(f'v_mul_f32 {ca[8 + 2 * j + 1]}, {t2}, {cc[1]}')
            else:
                k.i(f'v_fmac_f32 {ca[2 * j]}, {t1}, {cc[2 * i]}')
                k.i(f'v_fmac_f32 {ca[2 * j + 1]}, {t2}, {cc[2 * i]}')
                k.i(f'v_fmac_f32 {ca[8 + 2 * j]}, {t1}, {cc[2 * i + 1]}')
                k.i(f'v_fmac_f32 {ca[8 + 2 * j + 1]}, {t2}, {cc[2 * i + 1]}')
    for j in range(16):
        k.i(f'v_add_f32 {ca[j]}, {ca[j]}, {ca[j]} row_ror:8 {DPP}')
    for j in range(16):
        xsum4(k, ca[j], t1 if j & 1 else t2)
    CSBL = 102400
    sv = k.s(2)
    k.i(f'v_lshlrev_b32 {t1}, 5, {lane}')
    k.i(f's_lshl_b32 {so}, {wave}, 9')
    k.i(f's_add_u32 {so}, {so}, {CSBL}')
    k.i(f'v_add_u32 {t1}, {so}, {t1}')
    k.i(f'v_cmp_gt_u32 vcc, 8, {lane}')
    k.i(f's_and_saveexec_b64 {sv}, vcc')
    for j in range(16):
        k.i(f'ds_write_b32 {t1}, {ca[j]} offset:{(j >> 3) * 256 + (j & 7) * 4}')
    k.i(f's_mov_b64 exec, {sv}')
    pq_loads(1)
    wo_dma(3)
    wo_dma(4)
    KA = k.v(16)
    KLp = k.v(8)
    carry = k.v(4, align=1)
    WA = k.v(20)
    ov = k.v(8, align=1)
    gm = [k.s(2) for _ in range(4)]
    for g in range(4):
        k.i(f'v_cmp_eq_u32 {gm[g]}, {g}, {G}')
    tra = k.v(10, align=1)
    rp = k.v()
    k.i(f'v_lshrrev_b32 {rp}, 2, {n}')
    k.i(f'v_and_b32 {t3}, 3, {n}')
    base = k.v()
    k.i(f'v_mul_u32_u24 {base}, 800, {G}')
    k.i(f'v_lshl_add_u32 {base}, {t3}, 3, {base}')
    k.i(f'v_add_u32 {base}, {slb}, {base}')
    for jh in range(10):
        k.i(f'v_add_u32 {t1}, {4 * jh}, {rp}')
        k.i(f'v_mul_u32_u24 {t2}, 52, {t1}')
        k.i(f'v_lshrrev_b32 {t2}, 8, {t2}')
        k.i(f'v_mad_u32_u24 {t1}, {t2}, 15, {t1}')
        k.i(f'v_mul_u32_u24 {t1}, 160, {t1}')
        k.i(f'v_add_u32 {tra[jh]}, {t1}, {base}')

    def xf(j, tt):
        return Xf[((j & 1) * 4 + tt) * 4:((j & 1) * 4 + tt) * 4 + 4]

    def wo_step(j):
        maxrow = 20 * ((8 * j + 7) // 5) + 19
        k.wait_tag(f'wo{maxrow // 32}')
        for ct in range(5):
            for hf in range(2):
                k.i(f'ds_read_b64_tr_b16 {WA[ct * 4 + 2 * hf:ct * 4 + 2 * hf + 2]}, {tra[2 * j + hf]} offset:{32 * ct}')
        for ct in range(5):
            for tt in range(4):
                a = acc[(ct * 4 + tt) * 4:(ct * 4 + tt) * 4 + 4]
                k.i(f'v_mfma_f32_16x16x32_bf16 {a}, {WA[ct * 4:ct * 4 + 4]}, {xf(j, tt)}, {0 if j == 0 else a}')

    jdone = 0
    for hh in range(8):
        u, h = hh // 4, hh % 4
        if h == 0:
            for t in range(2):
                for q in range(4):
                    k.i(f'v_cvt_pk_bf16_f32 {KLp[t * 4 + q]}, {KL[t * 8 + 2 * q]}, {KL[t * 8 + 2 * q + 1]}')
        for t in range(2):
            for q in range(4):
                k.i(f'v_cvt_pk_bf16_f32 {KA[t * 4 + q]}, {KR[h * 16 + t * 8 + 2 * q]}, {KR[h * 16 + t * 8 + 2 * q + 1]}')
            for q in range(4):
                k.i(f'v_cndmask_b32 {KA[8 + t * 4 + q]}, 0, {KLp[t * 4 + q]}, {gm[h]}')
        if hh == 3:
            kv_loads(1)
        for tt in range(4):
            for t in range(2):
                o = O[(tt * 2 + t) * 4:(tt * 2 + t) * 4 + 4]
                k.i(f'v_mfma_f32_16x16x32_bf16 {o}, {KA[t * 4:t * 4 + 4]}, {PQ[(hh * 4 + tt) * 4:(hh * 4 + tt) * 4 + 4]}, 0')
        for tt in range(4):
            for t in range(2):
                o = O[(tt * 2 + t) * 4:(tt * 2 + t) * 4 + 4]
                k.i(f'v_mfma_f32_16x16x32_bf16 {o}, {KA[8 + t * 4:8 + t * 4 + 4]}, {PL[(u * 4 + tt) * 4:(u * 4 + tt) * 4 + 4]}, {o}')
        for tt in range(4):
            o = O[tt * 8:tt * 8 + 8]
            k.i(f'v_add_f32 {o[5]}, {fhex(1e-6)}, {o[5]}')
            k.i(f'v_rcp_f32 {o[5]}, {o[5]}')
            for s in range(5):
                k.i(f'v_mul_f32 {o[s]}, {o[s]}, {o[5]}')
            vals = [o[s] for s in range(5)]
            idx0 = 5 * hh
            if hh & 1:
                vals = [carry[tt]] + vals
                idx0 -= 1
            else:
                k.i(f'v_mov_b32 {carry[tt]}, {o[4]}')
                vals = vals[:4]
            for p in range(len(vals) // 2):
                idx = idx0 + 2 * p
                j, e = idx >> 3, idx & 7
                k.i(f'v_cvt_pk_bf16_f32 {xf(j, tt)[e >> 1]}, {vals[2 * p]}, {vals[2 * p + 1]}')
        done = 5 * hh + (5 if hh & 1 else 4)
        while (jdone + 1) * 8 <= done:
            wo_step(jdone)
            jdone += 1
    assert jdone == 5
    xv = KR[0:10]
    gav = KR[12:32]
    cbv = KR[32:52]
    k.i(f's_lshl_b32 {so}, {mt}, 2')
    k.i(f's_add_u32 {so}, {so}, {wave}')
    ttg = k.s()
    k.i(f's_mov_b32 {ttg}, {so}')
    k.i(f's_mul_i32 {so}, {so}, {16 * 1280}')
    k.i(f's_mul_i32 {st1}, {nt}, 160')
    k.i(f's_add_u32 {so}, {so}, {st1}')
    k.i(f'v_mul_u32_u24 {t1}, 1280, {n}')
    k.i(f'v_lshl_add_u32 {t1}, {G}, 3, {t1}')
    for ct in range(5):
        k.i(f'buffer_load_dwordx2 {xv[2 * ct:2 * ct + 2]}, {t1}, {sxx}, {so} offen offset:{32 * ct}')
    k.i(f'v_lshlrev_b32 {t2}, 4, {G}')
    k.i(f's_mul_i32 {st1}, {nt}, 320')
    k.i(f's_add_u32 {so}, {st1}, {WS_MOD + 2 * 2560}')
    k.i(f's_add_u32 {st1}, {st1}, {WS_MOD + 4 * 2560}')
    for ct in range(5):
        k.i(f'buffer_load_dwordx4 {gav[4 * ct:4 * ct + 4]}, {t2}, {sws}, {so} offen offset:{64 * ct}')
        k.i(f'buffer_load_dwordx4 {cbv[4 * ct:4 * ct + 4]}, {t2}, {sws}, {st1} offen offset:{64 * ct}')
    k.barrier()
    k.i(f's_mul_i32 {so}, {wave}, 5120')
    k.i(f'v_add_u32 {t1}, {so}, {l16}')
    k.i(f'v_add_u32 {t3}, 40960, {t1}')
    for tt in range(4):
        for ct in range(5):
            a = acc[(ct * 4 + tt) * 4:(ct * 4 + tt) * 4 + 4]
            k.i(f'ds_write_b128 {t1 if tt < 2 else t3}, {a} offset:{(tt & 1) * 20480 + ct * 1024}')
    k.barrier()
    cs4 = O[0:4]
    k.i(f'v_lshlrev_b32 {t2}, 2, v0')
    k.i(f'v_and_b32 {t2}, 511, {t2}')
    k.i(f'v_add_u32 {t2}, {CSBL}, {t2}')
    for c in range(4):
        k.i(f'ds_read_b32 {cs4[c]}, {t2} offset:{512 * c}')
    k.i(f's_mul_i32 {so}, {wave}, 20480')
    k.i(f'v_add_u32 {t1}, {so}, {l16}')
    P0, P1 = Xf[0:20], WA[0:20]
    for ct in range(5):
        k.i(f'ds_read_b128 {P0[4 * ct:4 * ct + 4]}, {t1} offset:{ct * 1024}')
    for ct in range(5):
        k.i(f'ds_read_b128 {P1[4 * ct:4 * ct + 4]}, {t1} offset:{5120 + ct * 1024}')
    k.i(f'v_add_f32 {cs4[0]}, {cs4[0]}, {cs4[1]}')
    k.i(f'v_add_f32 {cs4[2]}, {cs4[2]}, {cs4[3]}')
    k.i(f'v_add_f32 {cs4[0]}, {cs4[0]}, {cs4[2]}')
    P2 = O[8:28]
    for ct in range(5):
        k.i(f'ds_read_b128 {P2[4 * ct:4 * ct + 4]}, {t1} offset:{10240 + ct * 1024}')
    for i in range(20):
        k.i(f'v_add_f32 {P0[i]}, {P0[i]}, {P1[i]}')
    for ct in range(5):
        k.i(f'ds_read_b128 {P1[4 * ct:4 * ct + 4]}, {t1} offset:{15360 + ct * 1024}')
    k.i(f's_lshl_b32 {so}, {ks}, 1')
    k.i(f's_add_u32 {so}, {so}, {wave}')
    k.i(f's_mul_i32 {so}, {so}, {3456 * 4}')
    k.i(f's_lshl_b32 {st1}, {cblk}, 8')
    k.i(f's_add_u32 {so}, {so}, {st1}')
    k.i(f's_add_u32 {so}, {so}, {WS_CSB}')
    k.i(f'v_lshlrev_b32 {t2}, 2, {lane}')
    k.i(f's_cmp_lt_u32 {wave}, 2')
    k.i(f's_cselect_b32 {st1}, s2, 1000')
    k.i(f's_cmp_ge_u32 {st1}, 216')
    k.i(f's_cbranch_scc1 p2_nocsb')
    k.i(f'buffer_store_dword {cs4[0]}, {t2}, {sws}, {so} offen')
    k.raw('p2_nocsb:')
    k.wait_all()
    for i in range(20):
        k.i(f'v_add_f32 {P2[i]}, {P2[i]}, {P1[i]}')
    for i in range(20):
        k.i(f'v_add_f32 {P0[i]}, {P0[i]}, {P2[i]}')
    s1, s2 = ov[0], ov[1]
    k.i(f'v_mov_b32 {s1}, 0')
    k.i(f'v_mov_b32 {s2}, 0')
    sx1 = k.s()
    k.i(f's_mul_i32 {sx1}, {ttg}, 20480')
    gct = k.s()
    k.i(f's_mul_i32 {gct}, {nt}, 5')
    xo = P1
    for ct in range(5):
        a = P0[4 * ct:4 * ct + 4]
        xe = ov[2:6]
        for q in range(2):
            k.i(f'v_lshlrev_b32 {xe[2 * q]}, 16, {xv[2 * ct + q]}')
            k.i(f'v_and_b32 {xe[2 * q + 1]}, 0xffff0000, {xv[2 * ct + q]}')
        for r in range(4):
            k.i(f'v_fmac_f32 {xe[r]}, {a[r]}, {gav[4 * ct + r]}')
        o1 = xo[4 * ct:4 * ct + 2]
        o2 = xo[4 * ct + 2:4 * ct + 4]
        for q in range(2):
            k.i(f'v_cvt_pk_bf16_f32 {o1[q]}, {xe[2 * q]}, {xe[2 * q + 1]}')
        for q in range(2):
            k.i(f'v_lshlrev_b32 {xe[2 * q]}, 16, {o1[q]}')
            k.i(f'v_and_b32 {xe[2 * q + 1]}, 0xffff0000, {o1[q]}')
        for r in range(4):
            k.i(f'v_add_f32 {s1}, {s1}, {xe[r]}')
            k.i(f'v_fmac_f32 {s2}, {xe[r]}, {xe[r]}')
            k.i(f'v_mul_f32 {xe[r]}, {xe[r]}, {cbv[4 * ct + r]}')
        for q in range(2):
            k.i(f'v_cvt_pk_bf16_f32 {o2[q]}, {xe[2 * q]}, {xe[2 * q + 1]}')
        k.i(f's_add_u32 {so}, {gct}, {ct}')
        k.i(f's_lshr_b32 {st1}, {so}, 1')
        k.i(f's_lshl_b32 {st1}, {st1}, 10')
        k.i(f's_and_b32 {so}, {so}, 1')
        k.i(f's_lshl_b32 {so}, {so}, 3')
        k.i(f's_add_u32 {so}, {so}, {st1}')
        k.i(f's_add_u32 {so}, {so}, {sx1}')
        k.i(f's_add_u32 {st1}, {so}, {WS_Y}')
        k.i(f's_add_u32 {so}, {so}, {WS_X1}')
        k.i(f'buffer_store_dwordx2 {o1}, {l16}, {sws}, {so} offen')
        k.i(f'buffer_store_dwordx2 {o2}, {l16}, {sws}, {st1} offen')
    xsum4(k, s1, t1)
    xsum4(k, s2, t1)
    st2 = O[0:2]
    k.i(f'v_mov_b32 {st2[0]}, {s1}')
    k.i(f'v_mov_b32 {st2[1]}, {s2}')
    k.i(f's_lshl_b32 {so}, {ttg}, 10')
    k.i(f's_lshl_b32 {st1}, {nt}, 3')
    k.i(f's_add_u32 {so}, {so}, {st1}')
    k.i(f's_add_u32 {so}, {so}, {WS_ST}')
    k.i(f'v_lshlrev_b32 {t1}, 6, {n}')
    k.i('s_mov_b32 exec_lo, 0xffff')
    k.i('s_mov_b32 exec_hi, 0')
    k.i(f'buffer_store_dwordx2 {st2}, {t1}, {sws}, {so} offen')
    k.label('p2_end')
    k.i('s_endpgm')
    return k, 256, 256, 102400 + 2048


def gen_p3():
    k = Kernel('p3_kernel')
    ws, lane, G, n, wave = common_prologue(k, 256, 'p3_end')
    NSLOT = 5
    STG = 28672
    CSL = NSLOT * STG
    pw = k.s(2)
    so, st1, st2 = k.s(), k.s(), k.s()
    k.i(f's_cmp_ge_u32 {wave}, 2')
    k.i(f's_cselect_b32 {so}, {KA_WU}, {KA_WG}')
    k.i(f's_load_dwordx2 {pw}, s[0:1], {so}')
    mt, nt, sx, sy = k.s(), k.s(), k.s(), k.s()
    k.i(f's_and_b32 {sx}, s2, 7')
    k.i(f's_lshr_b32 {sy}, s2, 3')
    k.i(f's_and_b32 {mt}, {sx}, 1')
    k.i(f's_lshl_b32 {mt}, {mt}, 3')
    k.i(f's_and_b32 {nt}, {sy}, 7')
    k.i(f's_add_u32 {mt}, {mt}, {nt}')
    k.i(f's_lshr_b32 {nt}, {sx}, 1')
    k.i(f's_lshl_b32 {nt}, {nt}, 2')
    k.i(f's_lshr_b32 {sy}, {sy}, 3')
    k.i(f's_add_u32 {nt}, {nt}, {sy}')
    sws = k.srd(ws, WS_END)
    sw = k.srd(pw, D * F * 2)
    l16 = k.v()
    k.i(f'v_lshlrev_b32 {l16}, 4, {lane}')
    t1, t2, t3 = k.v(), k.v(), k.v()
    wof = k.v(7, align=1)
    k.i(f's_and_b32 {so}, {wave}, 1')
    k.i(f's_mul_i32 {so}, {so}, 448')
    for i in range(7):
        k.i(f'v_add_u32 {t1}, {so}, {lane}')
        k.i(f'v_add_u32 {t1}, {64 * i}, {t1}')
        k.i(f'v_mul_u32_u24 {t2}, 4682, {t1}')
        k.i(f'v_lshrrev_b32 {t2}, 16, {t2}')
        k.i(f'v_mul_u32_u24 {t3}, 14, {t2}')
        k.i(f'v_sub_u32 {t3}, {t1}, {t3}')
        k.i(f'v_mul_u32_u24 {t2}, {F * 2}, {t2}')
        k.i(f'v_lshl_add_u32 {wof[i]}, {t3}, 4, {t2}')
    swb, slb, sy0 = k.s(), k.s(), k.s()
    k.i(f's_mul_i32 {swb}, {nt}, 224')
    k.i(f's_mul_i32 {slb}, {wave}, 7168')
    tt0 = k.s()
    k.i(f's_lshl_b32 {tt0}, {mt}, 3')
    k.i(f's_lshl_b32 {so}, {wave}, 1')
    k.i(f's_add_u32 {tt0}, {tt0}, {so}')
    k.i(f's_mul_i32 {sy0}, {tt0}, 20480')
    k.i(f's_add_u32 {sy0}, {sy0}, {WS_Y}')
    Y = k.a(160)
    acc = k.v(112)
    WfA = k.a(56)
    WfB = k.v(56)

    def yfrag(tt, J):
        return Y[(tt * 20 + J) * 4:(tt * 20 + J) * 4 + 4]

    def dma_stage(s):
        slot = s % NSLOT
        k.i(f's_add_u32 {st1}, {swb}, {s * 64 * F * 2}')
        for i in range(7):
            k.i(f's_add_u32 m0, {slb}, {slot * STG + i * 1024}')
            k.i(f'buffer_load_dwordx4 {wof[i]}, {sw}, {st1} offen lds', tag=f'w{s}')

    def y_stage(s):
        for tt in range(2):
            k.i(f's_add_u32 {st2}, {sy0}, {tt * 20480 + s * 2048}')
            for jj in range(2):
                k.i(f'buffer_load_dwordx4 {yfrag(tt, 2 * s + jj)}, {l16}, {sws}, {st2} offen offset:{1024 * jj}')

    stv = k.v(8)
    k.i(f'v_lshlrev_b32 {t1}, 6, {n}')
    k.i(f'v_lshl_add_u32 {t1}, {G}, 4, {t1}')
    k.i(f's_lshl_b32 {so}, {tt0}, 10')
    k.i(f's_add_u32 {so}, {so}, {WS_ST}')
    for tt in range(2):
        k.i(f'buffer_load_dwordx4 {stv[4 * tt:4 * tt + 4]}, {t1}, {sws}, {so} offen offset:{1024 * tt}')
    cp = WfB[0:8]
    k.i(f'v_cmp_lt_u32 vcc, 111, v0')
    k.i(f'v_mov_b32 {t3}, {1728 - 112}')
    k.i(f'v_cndmask_b32 {t2}, 0, {t3}, vcc')
    k.i(f'v_add_u32 {t2}, {t2}, v0')
    k.i(f's_mul_i32 {so}, {nt}, 112')
    k.i(f'v_add_u32 {t2}, {so}, {t2}')
    k.i(f'v_min_u32 {t2}, 3455, {t2}')
    k.i(f'v_lshlrev_b32 {t2}, 2, {t2}')
    for p in range(8):
        k.i(f's_mov_b32 {so}, {WS_CSB + p * 3456 * 4}')
        k.i(f'buffer_load_dword {cp[p]}, {t2}, {sws}, {so} offen')
    for s in range(NSLOT):
        dma_stage(s)
        y_stage(s)
    k.i(f'v_add_f32 {cp[0]}, {cp[0]}, {cp[2]}')
    k.i(f'v_add_f32 {cp[4]}, {cp[4]}, {cp[6]}')
    k.i(f'v_add_f32 {cp[1]}, {cp[1]}, {cp[3]}')
    k.i(f'v_add_f32 {cp[5]}, {cp[5]}, {cp[7]}')
    k.i(f'v_add_f32 {cp[0]}, {cp[0]}, {cp[4]}')
    k.i(f'v_add_f32 {cp[1]}, {cp[1]}, {cp[5]}')
    k.i(f'v_lshlrev_b32 {t2}, 2, v0')
    k.i(f'v_add_u32 {t2}, {CSL}, {t2}')
    k.i(f'ds_write_b32 {t2}, {cp[0]}')
    k.i(f'ds_write_b32 {t2}, {cp[1]} offset:1024')
    mu, sd, rr = k.v(2, align=1), k.v(2, align=1), k.v(2, align=1)
    for tt in range(2):
        a = stv[4 * tt:4 * tt + 4]
        k.i(f'v_add_f32 {a[0]}, {a[0]}, {a[2]}')
        k.i(f'v_add_f32 {a[1]}, {a[1]}, {a[3]}')
        xsum4(k, a[0], t1)
        xsum4(k, a[1], t1)
        k.i(f'v_mul_f32 {mu[tt]}, {fhex(1.0 / 640)}, {a[0]}')
        k.i(f'v_mul_f32 {a[1]}, {fhex(1.0 / 640)}, {a[1]}')
        k.i(f'v_fma_f32 {a[1]}, -{mu[tt]}, {mu[tt]}, {a[1]}')
        k.i(f'v_max_f32 {a[1]}, 0, {a[1]}')
        k.i(f'v_add_f32 {a[1]}, {fhex(1e-5)}, {a[1]}')
        k.i(f'v_sqrt_f32 {sd[tt]}, {a[1]}')
        k.i(f'v_rsq_f32 {rr[tt]}, {a[1]}')
    for s in range(NSLOT, 10):
        y_stage(s)
    k.barrier()
    k.i(f'v_lshlrev_b32 {t1}, 4, {G}')
    k.i(f'v_add_u32 {t1}, {CSL}, {t1}')
    for ct in range(7):
        for m in range(2):
            c4 = WfB[(ct * 2 + m) % 7 * 8:(ct * 2 + m) % 7 * 8 + 4]
            b4 = WfB[(ct * 2 + m) % 7 * 8 + 4:(ct * 2 + m) % 7 * 8 + 8]
            k.i(f'ds_read_b128 {c4}, {t1} offset:{m * 448 + ct * 64}')
            k.i(f'ds_read_b128 {b4}, {t1} offset:{1024 + m * 448 + ct * 64}')
            for tt in range(2):
                a = acc[((ct * 2 + m) * 2 + tt) * 4:((ct * 2 + m) * 2 + tt) * 4 + 4]
                for r in range(4):
                    k.i(f'v_mul_f32 {a[r]}, {b4[r]}, {sd[tt]}')
                    k.i(f'v_fma_f32 {a[r]}, -{mu[tt]}, {c4[r]}, {a[r]}')
    tra = k.v(3, align=1)
    k.i(f'v_lshrrev_b32 {t1}, 2, {lane}')
    k.i(f'v_mul_u32_u24 {t1}, 224, {t1}')
    k.i(f'v_and_b32 {t2}, 3, {lane}')
    k.i(f'v_lshl_add_u32 {tra[0]}, {t2}, 3, {t1}')
    k.i(f'v_add_u32 {tra[1]}, {2 * STG}, {tra[0]}')
    k.i(f'v_add_u32 {tra[2]}, {4 * STG}, {tra[0]}')

    def wf(J, ct, m):
        W = WfA if (J & 1) == 0 else WfB
        return W[(ct * 2 + m) * 4:(ct * 2 + m) * 4 + 4]

    def prep(J):
        L = []
        s = J // 2
        slot = s % NSLOT
        for ct in range(7):
            for m in range(2):
                for hf in range(2):
                    off = (slot & 1) * STG + m * 14336 + ((J & 1) * 32 + hf * 16) * 224 + ct * 32
                    w = wf(J, ct, m)
                    L.append(f'ds_read_b64_tr_b16 {w[2 * hf:2 * hf + 2]}, {tra[slot >> 1]} offset:{off}')
        return L

    def mfmas(J):
        L = []
        for ct in range(7):
            for m in range(2):
                for tt in range(2):
                    a = acc[((ct * 2 + m) * 2 + tt) * 4:((ct * 2 + m) * 2 + tt) * 4 + 4]
                    L.append(f'v_mfma_f32_16x16x32_bf16 {a}, {wf(J, ct, m)}, {yfrag(tt, J)}, {a}')
        return L

    def sync_stage(s):
        k.wait_tag(f'w{s}')
        k.barrier()
        if s >= 1 and s - 1 + NSLOT < 10:
            dma_stage(s - 1 + NSLOT)

    sync_stage(0)
    for x in prep(0):
        k.i(x)
    for J in range(20):
        if J + 1 < 20:
            if (J + 1) % 2 == 0:
                sync_stage((J + 1) // 2)
            interleave(k, mfmas(J), prep(J + 1))
        else:
            for x in mfmas(J):
                k.i(x)
    KK = -2.0 * 0.7978845608028654 * LOG2E
    c1, c3, ir2 = WfB[0:2], WfB[2:4], WfB[4:6]
    for tt in range(2):
        k.i(f'v_mul_f32 {c1[tt]}, {fhex(KK)}, {rr[tt]}')
        k.i(f'v_mul_f32 {c3[tt]}, {rr[tt]}, {rr[tt]}')
        k.i(f'v_mul_f32 {c3[tt]}, {c3[tt]}, {c1[tt]}')
        k.i(f'v_mul_f32 {c3[tt]}, {fhex(0.044715)}, {c3[tt]}')
        k.i(f'v_mul_f32 {ir2[tt]}, {sd[tt]}, {sd[tt]}')
    sact = k.s()
    k.i(f's_mul_i32 {sact}, {tt0}, {54 * 1024}')
    k.i(f's_add_u32 {sact}, {sact}, {WS_ACT}')
    ft0 = k.s()
    k.i(f's_mul_i32 {ft0}, {nt}, 7')
    T = WfB[8:24]
    OUT = WfB[24:56]
    for ct in range(7):
        if ct == 3:
            k.i(f's_cmp_eq_u32 {nt}, 15')
            k.i(f's_cbranch_scc1 p3_end')
        k.i(f's_add_u32 {so}, {ft0}, {ct}')
        k.i(f's_lshr_b32 {st1}, {so}, 1')
        k.i(f's_lshl_b32 {st1}, {st1}, 10')
        k.i(f's_and_b32 {so}, {so}, 1')
        k.i(f's_lshl_b32 {so}, {so}, 3')
        k.i(f's_add_u32 {so}, {so}, {st1}')
        k.i(f's_add_u32 {so}, {so}, {sact}')
        k.i(f's_add_u32 {st1}, {so}, {54 * 1024}')
        for tt in range(2):
            g = acc[((ct * 2 + 0) * 2 + tt) * 4:((ct * 2 + 0) * 2 + tt) * 4 + 4]
            u = acc[((ct * 2 + 1) * 2 + tt) * 4:((ct * 2 + 1) * 2 + tt) * 4 + 4]
            t = T[tt * 8:tt * 8 + 4]
            for r in range(4):
                k.i(f'v_mul_f32 {t[r]}, {g[r]}, {g[r]}')
            for r in range(4):
                k.i(f'v_fma_f32 {t[r]}, {t[r]}, {c3[tt]}, {c1[tt]}')
            for r in range(4):
                k.i(f'v_mul_f32 {t[r]}, {t[r]}, {g[r]}')
            for r in range(4):
                k.i(f'v_exp_f32 {t[r]}, {t[r]}')
            for r in range(4):
                k.i(f'v_mul_f32 {u[r]}, {u[r]}, {g[r]}')
            for r in range(4):
                k.i(f'v_fma_f32 {t[r]}, {t[r]}, {ir2[tt]}, {ir2[tt]}')
            for r in range(4):
                k.i(f'v_rcp_f32 {t[r]}, {t[r]}')
            for r in range(4):
                k.i(f'v_mul_f32 {u[r]}, {u[r]}, {t[r]}')
            o = OUT[((ct * 2 + tt) % 16) * 2:((ct * 2 + tt) % 16) * 2 + 2]
            k.i(f'v_cvt_pk_bf16_f32 {o[0]}, {u[0]}, {u[1]}')
            k.i(f'v_cvt_pk_bf16_f32 {o[1]}, {u[2]}, {u[3]}')
            k.i(f'buffer_store_dwordx2 {o}, {l16}, {sws}, {so if tt == 0 else st1} offen')
    k.label('p3_end')
    k.i('s_endpgm')
    return k, 256, 256, CSL + 2048


def gen_p4():
    k = Kernel('p4_kernel')
    ws, lane, G, n, wave = common_prologue(k, 256, 'p4_end')
    NSLOT = 7
    NIT = 14
    pw, po = k.s(2), k.s(2)
    k.i(f's_load_dwordx2 {pw}, s[0:1], {KA_WD}')
    k.i(f's_load_dwordx2 {po}, s[0:1], {KA_OUT}')
    so, st1, st2 = k.s(), k.s(), k.s()
    mt, nt, sx, sy = k.s(), k.s(), k.s(), k.s()
    k.i(f's_and_b32 {sx}, s2, 7')
    k.i(f's_lshr_b32 {sy}, s2, 3')
    k.i(f's_lshl_b32 {mt}, {sx}, 2')
    k.i(f's_and_b32 {nt}, {sy}, 3')
    k.i(f's_add_u32 {mt}, {mt}, {nt}')
    k.i(f's_lshr_b32 {nt}, {sy}, 2')
    sws = k.srd(ws, WS_ACT + 128 * 54 * 1024)
    sw = k.srd(pw, F * D * 2)
    sout = k.srd(po, S * D * 2)
    l16 = k.v()
    k.i(f'v_lshlrev_b32 {l16}, 4, {lane}')
    t1, t2, t3 = k.v(), k.v(), k.v()
    wof = k.v(5, align=1)
    for i in range(5):
        k.i(f'v_add_u32 {t1}, {64 * i}, {lane}')
        k.i(f'v_mul_u32_u24 {t2}, 6554, {t1}')
        k.i(f'v_lshrrev_b32 {t2}, 16, {t2}')
        k.i(f'v_mul_u32_u24 {t3}, 10, {t2}')
        k.i(f'v_sub_u32 {t3}, {t1}, {t3}')
        k.i(f'v_mul_u32_u24 {t2}, 1280, {t2}')
        k.i(f'v_lshl_add_u32 {wof[i]}, {t3}, 4, {t2}')
    swb, slb, sa0 = k.s(), k.s(), k.s()
    k.i(f's_mul_i32 {swb}, {wave}, {32 * 1280}')
    k.i(f's_mul_i32 {so}, {nt}, 160')
    k.i(f's_add_u32 {swb}, {swb}, {so}')
    k.i(f's_mul_i32 {slb}, {wave}, {NSLOT * 5120}')
    k.i(f's_mul_i32 {sa0}, {mt}, {4 * 54 * 1024}')
    k.i(f's_lshl_b32 {so}, {wave}, 10')
    k.i(f's_add_u32 {sa0}, {sa0}, {so}')
    k.i(f's_add_u32 {sa0}, {sa0}, {WS_ACT}')
    A = k.a(NSLOT * 16)
    acc = k.a(80)
    WA = k.v(40)

    def loads(it):
        slot = it % NSLOT
        k.i(f's_add_u32 {st1}, {swb}, {it * 128 * 1280}')
        for i in range(5):
            k.i(f's_add_u32 m0, {slb}, {slot * 5120 + i * 1024}')
            k.i(f'buffer_load_dwordx4 {wof[i]}, {sw}, {st1} offen lds', tag=f'w{it}')
        for tt in range(4):
            k.i(f's_add_u32 {st2}, {sa0}, {tt * 54 * 1024 + it * 4096}')
            k.i(f'buffer_load_dwordx4 {A[(slot * 4 + tt) * 4:(slot * 4 + tt) * 4 + 4]}, {l16}, {sws}, {st2} offen')

    for it in range(NSLOT):
        loads(it)
    tra = k.v()
    k.i(f'v_lshrrev_b32 {t1}, 2, {lane}')
    k.i(f'v_mul_u32_u24 {t1}, 160, {t1}')
    k.i(f'v_and_b32 {t2}, 3, {lane}')
    k.i(f'v_lshl_add_u32 {tra}, {t2}, 3, {t1}')
    k.i(f'v_add_u32 {tra}, {slb}, {tra}')

    def prep(it):
        slot = it % NSLOT
        L = [lambda: k.wait_tag(f'w{it}')]
        for ct in range(5):
            for hf in range(2):
                b = ((it & 1) * 5 + ct) * 4 + 2 * hf
                L.append(f'ds_read_b64_tr_b16 {WA[b:b + 2]}, {tra} offset:{slot * 5120 + hf * 2560 + ct * 32}')
        return L

    def mfmas(it):
        slot = it % NSLOT
        L = []
        for ct in range(5):
            for tt in range(4):
                a = acc[(ct * 4 + tt) * 4:(ct * 4 + tt) * 4 + 4]
                w = WA[((it & 1) * 5 + ct) * 4:((it & 1) * 5 + ct) * 4 + 4]
                L.append(f'v_mfma_f32_16x16x32_bf16 {a}, {w}, {A[(slot * 4 + tt) * 4:(slot * 4 + tt) * 4 + 4]}, {0 if it == 0 else a}')
        return L

    for x in prep(0):
        emit(k, x)
    for it in range(NIT):
        if it + 1 < NIT:
            interleave(k, mfmas(it), prep(it + 1))
        else:
            for x in mfmas(it):
                k.i(x)
        if it + NSLOT < NIT:
            loads(it + NSLOT)
    xv = k.v(10)
    gbv = k.v(20)
    ttg = k.s()
    k.i(f's_lshl_b32 {ttg}, {mt}, 2')
    k.i(f's_add_u32 {ttg}, {ttg}, {wave}')
    sx1, gct = k.s(), k.s()
    k.i(f's_mul_i32 {sx1}, {ttg}, 20480')
    k.i(f's_add_u32 {sx1}, {sx1}, {WS_X1}')
    k.i(f's_mul_i32 {gct}, {nt}, 5')
    for ct in range(5):
        k.i(f's_add_u32 {so}, {gct}, {ct}')
        k.i(f's_lshr_b32 {st1}, {so}, 1')
        k.i(f's_lshl_b32 {st1}, {st1}, 10')
        k.i(f's_and_b32 {so}, {so}, 1')
        k.i(f's_lshl_b32 {so}, {so}, 3')
        k.i(f's_add_u32 {so}, {so}, {st1}')
        k.i(f's_add_u32 {so}, {so}, {sx1}')
        k.i(f'buffer_load_dwordx2 {xv[2 * ct:2 * ct + 2]}, {l16}, {sws}, {so} offen')
    k.i(f'v_lshlrev_b32 {t2}, 4, {G}')
    k.i(f's_mul_i32 {st1}, {nt}, 320')
    k.i(f's_add_u32 {so}, {st1}, {WS_MOD + 5 * 2560}')
    for ct in range(5):
        k.i(f'buffer_load_dwordx4 {gbv[4 * ct:4 * ct + 4]}, {t2}, {sws}, {so} offen offset:{64 * ct}')
    k.barrier()
    k.i(f's_mul_i32 {so}, {wave}, 5120')
    k.i(f'v_add_u32 {t1}, {so}, {l16}')
    k.i(f'v_add_u32 {t3}, 40960, {t1}')
    for tt in range(4):
        for ct in range(5):
            a = acc[(ct * 4 + tt) * 4:(ct * 4 + tt) * 4 + 4]
            k.i(f'ds_write_b128 {t1 if tt < 2 else t3}, {a} offset:{(tt & 1) * 20480 + ct * 1024}')
    k.barrier()
    k.i(f's_mul_i32 {so}, {wave}, 20480')
    k.i(f'v_add_u32 {t1}, {so}, {l16}')
    P = k.v(80)
    for c in range(4):
        for ct in range(5):
            k.i(f'ds_read_b128 {P[c * 20 + 4 * ct:c * 20 + 4 * ct + 4]}, {t1} offset:{c * 5120 + ct * 1024}')
    k.i(f's_mul_i32 {so}, {ttg}, {16 * 1280}')
    k.i(f's_mul_i32 {st1}, {nt}, 160')
    k.i(f's_add_u32 {so}, {so}, {st1}')
    k.i(f'v_mul_u32_u24 {t1}, 1280, {n}')
    k.i(f'v_lshl_add_u32 {t1}, {G}, 3, {t1}')
    xe = k.v(4)
    for i in range(20):
        k.i(f'v_add_f32 {P[i]}, {P[i]}, {P[20 + i]}')
    for i in range(20):
        k.i(f'v_add_f32 {P[40 + i]}, {P[40 + i]}, {P[60 + i]}')
    for ct in range(5):
        for r in range(4):
            k.i(f'v_add_f32 {P[4 * ct + r]}, {P[4 * ct + r]}, {P[40 + 4 * ct + r]}')
        for q in range(2):
            k.i(f'v_lshlrev_b32 {xe[2 * q]}, 16, {xv[2 * ct + q]}')
            k.i(f'v_and_b32 {xe[2 * q + 1]}, 0xffff0000, {xv[2 * ct + q]}')
        for r in range(4):
            k.i(f'v_fmac_f32 {xe[r]}, {P[4 * ct + r]}, {gbv[4 * ct + r]}')
        o = P[20 + 2 * ct:20 + 2 * ct + 2]
        for q in range(2):
            k.i(f'v_cvt_pk_bf16_f32 {o[q]}, {xe[2 * q]}, {xe[2 * q + 1]}')
        k.i(f'buffer_store_dwordx2 {o}, {t1}, {sout}, {so} offen offset:{32 * ct}')
    k.label('p4_end')
    k.i('s_endpgm')
    return k, 256, 256, 4 * NSLOT * 5120


GENS = [gen_p1, gen_p2, gen_p3, gen_p4]
```

```python
import sys
from asmgen import *

S, D, H, F = 2048, 640, 32, 1728
KA_X, KA_WQKV, KA_WPHI, KA_WO, KA_BX, KA_WG, KA_WU, KA_WD, KA_C, KA_WMOD, KA_OUT, KA_DBG, KA_WS = [8 * i for i in range(13)]
WS_MOD = 0x0000000
WS_KV = 0x0010000
WS_ST = 0x0040000
WS_CSB = 0x0080000
WS_XN = 0x0100000
WS_WP = 0x0400000
WS_PHIQ = 0x0800000
WS_X1 = 0x0E00000
WS_Y = 0x1100000
WS_ACT = 0x1400000
WS_END = 0x1B00000
LOG2E = 1.4426950408889634

import struct


def f2u(x):
    return struct.unpack('<I', struct.pack('<f', x))[0]


def fhex(x):
    return hex(f2u(x))


DPP = 'row_mask:0xf bank_mask:0xf'


def interleave(k, main, fill, per=None):
    n = len(main)
    nf = len(fill)
    j = 0
    for i, m in enumerate(main):
        emit(k, m)
        tgt = (nf * (i + 1) + n - 1) // n
        while j < tgt:
            emit(k, fill[j])
            j += 1
    while j < nf:
        emit(k, fill[j])
        j += 1


def emit(k, x):
    if callable(x):
        x()
    elif isinstance(x, tuple):
        k.i(x[0], tag=x[1])
    else:
        k.i(x)


def xsum4(k, x, t):
    k.i(f'v_mov_b32 {t}, {x}')
    k.i(f'v_permlane32_swap_b32 {x}, {t}')
    k.i(f'v_add_f32 {x}, {x}, {t}')
    k.i(f'v_mov_b32 {t}, {x}')
    k.i(f'v_permlane16_swap_b32 {x}, {t}')
    k.i(f'v_add_f32 {x}, {x}, {t}')


def round_bf16(k, d, x):
    k.i(f'v_cvt_pk_bf16_f32 {d}, {x}, {x}')
    k.i(f'v_and_b32 {d}, 0xffff0000, {d}')


def gen_p0():
    k = Kernel('p0_kernel')
    NWG = 128 + 80 + 128
    k.i(f's_cmp_ge_u32 s2, {NWG}')
    k.i('s_cbranch_scc1 p0_end')
    ws = k.s(2)
    k.i(f's_load_dwordx2 {ws}, s[0:1], {KA_WS}')
    lane = k.v()
    wave = k.s()
    k.i(f'v_and_b32 {lane}, 63, v0')
    t0 = k.v()
    k.i(f'v_lshrrev_b32 {t0}, 6, v0')
    k.i(f'v_readfirstlane_b32 {wave}, {t0}')
    k.i('s_cmp_ge_u32 s2, 208')
    k.i('s_cbranch_scc1 p0_xn')
    k.i('s_cmp_ge_u32 s2, 128')
    k.i('s_cbranch_scc1 p0_fold')
    base_mark = k.mark()
    lg_save = list(k.lg)

    pc, pw = k.s(2), k.s(2)
    k.i(f's_load_dwordx2 {pc}, s[0:1], {KA_C}')
    k.i(f's_load_dwordx2 {pw}, s[0:1], {KA_WMOD}')
    sx, sy, sp, col0 = k.s(), k.s(), k.s(), k.s()
    k.i(f's_and_b32 {sx}, s2, 7')
    k.i(f's_lshr_b32 {sy}, s2, 3')
    k.i(f's_lshr_b32 {sp}, {sy}, 1')
    k.i(f's_lshl_b32 {sp}, {sp}, 3')
    k.i(f's_add_u32 {sp}, {sp}, {sx}')
    k.i(f's_cmp_ge_u32 {sp}, 60')
    k.i('s_cbranch_scc1 p0_end')
    k.i(f's_and_b32 {sy}, {sy}, 1')
    k.i(f's_lshl_b32 {col0}, {sp}, 1')
    k.i(f's_add_u32 {col0}, {col0}, {sy}')
    k.i(f's_lshl_b32 {col0}, {col0}, 5')
    sc = k.srd(pc, D * 2)
    sw = k.srd(pw, D * 3840 * 2)
    sws = k.srd(ws, WS_END)
    rr, q, vo, vc = k.v(), k.v(), k.v(), k.v()
    k.i(f'v_lshrrev_b32 {rr}, 2, v0')
    k.i(f'v_and_b32 {q}, 3, v0')
    k.i(f'v_mul_u32_u24 {vo}, 7680, {rr}')
    k.i(f'v_lshl_add_u32 {vo}, {q}, 4, {vo}')
    so = k.s()
    k.i(f's_lshl_b32 {so}, {col0}, 1')
    k.i(f'v_add_u32 {vo}, {so}, {vo}')
    k.i(f'v_lshlrev_b32 {vc}, 1, {rr}')
    cv = k.v(10, align=1)
    wv = k.v(40)
    for i in range(10):
        k.i(f'buffer_load_ushort {cv[i]}, {vc}, {sc}, 0 offen offset:{128 * i}')
    for i in range(10):
        k.i(f's_mov_b32 {so}, {64 * 7680 * i}')
        k.i(f'buffer_load_dwordx4 {wv[4 * i:4 * i + 4]}, {vo}, {sw}, {so} offen')
    acc = k.v(8, align=1)
    for j in range(8):
        k.i(f'v_mov_b32 {acc[j]}, 0')
    t1, t2 = k.v(), k.v()
    for i in range(10):
        c = cv[i]
        k.i(f'v_lshlrev_b32 {c}, 16, {c}')
        k.i(f'v_mul_f32 {t1}, {fhex(-LOG2E)}, {c}')
        k.i(f'v_exp_f32 {t1}, {t1}')
        k.i(f'v_add_f32 {t1}, 1.0, {t1}')
        k.i(f'v_rcp_f32 {t1}, {t1}')
        k.i(f'v_mul_f32 {c}, {c}, {t1}')
        round_bf16(k, c, c)
    for i in range(10):
        for j in range(4):
            w = wv[4 * i + j]
            k.i(f'v_lshlrev_b32 {t1}, 16, {w}')
            k.i(f'v_and_b32 {t2}, 0xffff0000, {w}')
            k.i(f'v_fmac_f32 {acc[2 * j]}, {t1}, {cv[i]}')
            k.i(f'v_fmac_f32 {acc[2 * j + 1]}, {t2}, {cv[i]}')
    for j in range(8):
        k.i(f'v_add_f32 {acc[j]}, {acc[j]}, {acc[j]} row_ror:4 {DPP}')
    for j in range(8):
        k.i(f'v_add_f32 {acc[j]}, {acc[j]}, {acc[j]} row_ror:8 {DPP}')
    for j in range(8):
        xsum4(k, acc[j], t1)
    la = k.v()
    k.i(f'v_lshlrev_b32 {la}, 5, {q}')
    k.i(f's_lshl_b32 {so}, {wave}, 7')
    k.i(f'v_add_u32 {la}, {so}, {la}')
    sv = k.s(2)
    k.i(f'v_cmp_gt_u32 vcc, 4, {lane}')
    k.i(f's_and_saveexec_b64 {sv}, vcc')
    for j in range(8):
        k.i(f'ds_write_b32 {la}, {acc[j]} offset:{4 * j}')
    k.i(f's_mov_b64 exec, {sv}')
    k.barrier()
    k.i(f'v_cmp_gt_u32 vcc, 32, v0')
    k.i(f's_and_saveexec_b64 {sv}, vcc')
    k.i('s_cbranch_execz p0_end')
    k.i(f'v_lshlrev_b32 {la}, 2, v0')
    for j in range(4):
        k.i(f'ds_read_b32 {acc[j]}, {la} offset:{128 * j}')
    k.i(f'v_add_f32 {acc[0]}, {acc[0]}, {acc[1]}')
    k.i(f'v_add_f32 {acc[2]}, {acc[2]}, {acc[3]}')
    k.i(f'v_add_f32 {acc[0]}, {acc[0]}, {acc[2]}')
    round_bf16(k, acc[0], acc[0])
    k.i(f'v_add_f32 {t1}, 1.0, {acc[0]}')
    round_bf16(k, t1, t1)
    flag = k.s()
    sa_, sb_ = k.s(), k.s()
    k.i(f's_sub_u32 {sa_}, {col0}, 640')
    k.i(f's_sub_u32 {sb_}, {col0}, 2560')
    k.i(f's_min_u32 {sa_}, {sa_}, {sb_}')
    k.i(f's_cmp_lt_u32 {sa_}, 640')
    k.i(f's_cselect_b64 vcc, -1, 0')
    k.i(f'v_cndmask_b32 {acc[0]}, {acc[0]}, {t1}, vcc')
    k.i(f's_lshl_b32 {so}, {col0}, 2')
    k.i(f'buffer_store_dword {acc[0]}, {la}, {sws}, {so} offen offset:{WS_MOD}')
    k.i('s_endpgm')

    k.release(base_mark)
    k.reset_state()
    k.lg = list(lg_save)
    k.label('p0_fold')
    pq, pp = k.s(2), k.s(2)
    k.i(f's_load_dwordx2 {pq}, s[0:1], {KA_WQKV}')
    k.i(f's_load_dwordx2 {pp}, s[0:1], {KA_WPHI}')
    bb, hp, J = k.s(), k.s(), k.s()
    k.i(f's_sub_u32 {bb}, s2, 128')
    k.i(f's_and_b32 {hp}, {bb}, 15')
    k.i(f's_lshr_b32 {J}, {bb}, 4')
    k.i(f's_lshl_b32 {J}, {J}, 2')
    k.i(f's_add_u32 {J}, {J}, {wave}')
    sq = k.srd(pq, D * 1920 * 2)
    sph = k.srd(pp, 32 * 400 * 2)
    sws = k.srd(ws, WS_END)
    G, n = k.v(), k.v()
    k.i(f'v_lshrrev_b32 {G}, 4, {lane}')
    k.i(f'v_and_b32 {n}, 15, {lane}')
    row, t1, t2, t3 = k.v(), k.v(), k.v(), k.v()
    k.i(f'v_lshrrev_b32 {row}, 2, {n}')
    k.i(f'v_lshlrev_b32 {row}, 3, {row}')
    k.i(f'v_and_b32 {t1}, 3, {n}')
    k.i(f'v_add_u32 {row}, {row}, {t1}')
    so = k.s()
    k.i(f's_lshl_b32 {so}, {J}, 5')
    k.i(f'v_add_u32 {row}, {so}, {row}')
    k.i(f'v_mul_u32_u24 {row}, 3840, {row}')
    k.i(f's_mul_i32 {so}, {hp}, 80')
    k.i(f'v_add_u32 {row}, {so}, {row}')
    A = k.v(32)
    aoff = k.v(4, align=1)
    for s in range(4):
        k.i(f'v_add_u32 {t1}, {4 * s}, {G}')
        k.i(f'v_min_u32 {t1}, 14, {t1}')
        k.i(f'v_mov_b32 {t2}, 2400')
        k.i(f'v_mov_b32 {t3}, -80')
        k.i(f'v_cmp_gt_u32 vcc, 10, {t1}')
        k.i(f'v_cndmask_b32 {t2}, {t2}, {t3}, vcc')
        k.i(f'v_mov_b32 {t3}, 1280')
        k.i(f'v_cmp_gt_u32 vcc, 5, {t1}')
        k.i(f'v_cndmask_b32 {t2}, {t2}, {t3}, vcc')
        k.i(f'v_lshl_add_u32 {t2}, {t1}, 4, {t2}')
        k.i(f'v_add_u32 {aoff[s]}, {row}, {t2}')
    so2 = k.s()
    k.i(f's_mov_b32 {so2}, {4 * 3840}')
    for p in range(2):
        for s in range(4):
            k.i(f'buffer_load_dwordx4 {A[(p * 4 + s) * 4:(p * 4 + s) * 4 + 4]}, {aoff[s]}, {sq}, {so2 if p else 0} offen')
    ph = k.v(4, align=1)
    k.i(f'v_lshlrev_b32 {t1}, 1, v0')
    k.i(f's_mul_i32 {so}, {hp}, 1600')
    for i in range(4):
        k.i(f'buffer_load_ushort {ph[i]}, {t1}, {sph}, {so} offen offset:{512 * i}')
    z = k.v(4)
    for j in range(4):
        k.i(f'v_mov_b32 {z[j]}, 0')
    k.i(f'v_lshlrev_b32 {t1}, 4, v0')
    for i in range(9):
        k.i(f'ds_write_b128 {t1}, {z} offset:{4096 * i}')
    k.barrier()
    sv = k.s(2)
    idx, rw, f, ad = k.v(), k.v(), k.v(), k.v()
    for i in range(4):
        k.i(f'v_add_u32 {idx}, {256 * i}, v0')
        k.i(f'v_mul_u32_u24 {rw}, 3277, {idx}')
        k.i(f'v_lshrrev_b32 {rw}, 16, {rw}')
        k.i(f'v_mul_u32_u24 {f}, 20, {rw}')
        k.i(f'v_sub_u32 {f}, {idx}, {f}')
        k.i(f'v_lshrrev_b32 {ad}, 2, {f}')
        k.i(f'v_lshlrev_b32 {ad}, 4, {ad}')
        k.i(f'v_and_b32 {t1}, 3, {f}')
        k.i(f'v_add_u32 {ad}, {ad}, {t1}')
        k.i(f'v_cmp_lt_u32 vcc, 19, {rw}')
        k.i(f'v_cndmask_b32 {t1}, 0, 4, vcc')
        k.i(f'v_add_u32 {ad}, {ad}, {t1}')
        k.i(f'v_mul_u32_u24 {ad}, 272, {ad}')
        k.i(f'v_lshl_add_u32 {ad}, {rw}, 1, {ad}')
        if i == 3:
            k.i(f'v_cmp_gt_u32 vcc, 32, v0')
            k.i(f's_and_saveexec_b64 {sv}, vcc')
        k.i(f'ds_write_b16 {ad}, {ph[i]}')
        k.i(f'ds_write_b16 {ad}, {ph[i]} offset:{8 * 272 + 80}')
        if i == 3:
            k.i(f's_mov_b64 exec, {sv}')
    k.i(f'v_cmp_lt_u32 vcc, 19, v0')
    k.i(f'v_cndmask_b32 {t1}, 0, 4, vcc')
    k.i(f'v_add_u32 {t1}, {t1}, v0')
    k.i(f'v_mul_u32_u24 {ad}, 272, {t1}')
    k.i(f'v_lshl_add_u32 {ad}, v0, 1, {ad}')
    k.i(f'v_mov_b32 {t2}, 0x3f80')
    k.i(f'v_cmp_gt_u32 vcc, 40, v0')
    k.i(f's_and_saveexec_b64 {sv}, vcc')
    k.i(f'ds_write_b16 {ad}, {t2} offset:{80 * 272 + 160}')
    k.i(f's_mov_b64 exec, {sv}')
    k.barrier()
    k.i(f'v_mul_u32_u24 {ad}, 272, {n}')
    k.i(f'v_lshl_add_u32 {ad}, {G}, 4, {ad}')
    B = {}
    for ct in range(8):
        for s in (range(3) if ct < 5 else (2, 3)):
            B[ct, s] = k.v(4)
            k.i(f'ds_read_b128 {B[ct, s]}, {ad} offset:{ct * 16 * 272 + 64 * s}')
    Dm = k.v(64)
    for ct in range(8):
        for p in range(2):
            d = Dm[(ct * 2 + p) * 4:(ct * 2 + p) * 4 + 4]
            first = True
            for s in (range(3) if ct < 5 else (2, 3)):
                k.i(f'v_mfma_f32_16x16x32_bf16 {d}, {A[(p * 4 + s) * 4:(p * 4 + s) * 4 + 4]}, {B[ct, s]}, {0 if first else d}')
                first = False
    k.i(f's_mul_i32 {so}, {hp}, 20')
    k.i(f's_add_u32 {so}, {so}, {J}')
    k.i(f's_lshl_b32 {so}, {so}, 13')
    k.i(f's_add_u32 {so}, {so}, {WS_WP}')
    k.i(f'v_lshlrev_b32 {t1}, 4, {lane}')
    k.i(f'v_add_u32 {t2}, 4096, {t1}')
    o = k.v(8)
    for ct in range(8):
        oo = o[(ct & 1) * 4:(ct & 1) * 4 + 4]
        d = Dm[ct * 8:ct * 8 + 8]
        for j in range(4):
            k.i(f'v_cvt_pk_bf16_f32 {oo[j]}, {d[2 * j]}, {d[2 * j + 1]}')
        k.i(f'buffer_store_dwordx4 {oo}, {t1 if ct < 4 else t2}, {sws}, {so} offen offset:{(ct & 3) * 1024}')
    k.i('s_endpgm')

    k.release(base_mark)
    k.reset_state()
    k.lg = list(lg_save)
    k.label('p0_xn')
    px = k.s(2)
    k.i(f's_load_dwordx2 {px}, s[0:1], {KA_X}')
    tt = k.s()
    k.i(f's_sub_u32 {tt}, s2, 208')
    sxx = k.srd(px, S * D * 2)
    sws = k.srd(ws, WS_END)
    nrow, j_, vo, t1, t2 = k.v(), k.v(), k.v(), k.v(), k.v()
    k.i(f'v_lshrrev_b32 {nrow}, 4, v0')
    k.i(f'v_and_b32 {j_}, 15, v0')
    k.i(f'v_mul_u32_u24 {vo}, 1280, {nrow}')
    k.i(f'v_lshl_add_u32 {vo}, {j_}, 4, {vo}')
    so = k.s()
    k.i(f's_mul_i32 {so}, {tt}, 20480')
    xr = k.v(20)
    for i in range(5):
        k.i(f'buffer_load_dwordx4 {xr[4 * i:4 * i + 4]}, {vo}, {sxx}, {so} offen offset:{256 * i}')
    sv = k.s(2)
    so3 = k.s()
    k.i(f's_mul_i32 {so3}, {tt}, 840')
    k.i(f's_add_u32 {so3}, {so3}, {WS_KV}')
    k.i(f'v_lshlrev_b32 {t1}, 2, v0')
    k.i(f'v_mov_b32 {t2}, 0')
    k.i(f'v_cmp_gt_u32 vcc, 210, v0')
    k.i(f's_and_saveexec_b64 {sv}, vcc')
    k.i(f'buffer_store_dword {t2}, {t1}, {sws}, {so3} offen')
    k.i(f's_mov_b64 exec, {sv}')
    xf = k.v(40)
    sm = k.v()
    for i in range(20):
        k.i(f'v_lshlrev_b32 {xf[2 * i]}, 16, {xr[i]}')
        k.i(f'v_and_b32 {xf[2 * i + 1]}, 0xffff0000, {xr[i]}')
    k.i(f'v_add_f32 {sm}, {xf[0]}, {xf[1]}')
    k.i(f'v_add_f32 {t1}, {xf[2]}, {xf[3]}')
    for i in range(4, 40, 2):
        k.i(f'v_add_f32 {sm}, {sm}, {xf[i]}')
        k.i(f'v_add_f32 {t1}, {t1}, {xf[i + 1]}')
    k.i(f'v_add_f32 {sm}, {sm}, {t1}')
    for r in (1, 2, 4, 8):
        k.i(f'v_add_f32 {sm}, {sm}, {sm} row_ror:{r} {DPP}')
    k.i(f'v_mul_f32 {sm}, {fhex(1.0 / 640)}, {sm}')
    for i in range(40):
        k.i(f'v_sub_f32 {xf[i]}, {xf[i]}, {sm}')
    k.i(f'v_mul_f32 {sm}, {xf[0]}, {xf[0]}')
    k.i(f'v_mul_f32 {t1}, {xf[1]}, {xf[1]}')
    for i in range(2, 40, 2):
        k.i(f'v_fmac_f32 {sm}, {xf[i]}, {xf[i]}')
        k.i(f'v_fmac_f32 {t1}, {xf[i + 1]}, {xf[i + 1]}')
    k.i(f'v_add_f32 {sm}, {sm}, {t1}')
    for r in (1, 2, 4, 8):
        k.i(f'v_add_f32 {sm}, {sm}, {sm} row_ror:{r} {DPP}')
    k.i(f'v_mov_b32 {t1}, {fhex(1e-5)}')
    k.i(f'v_fmac_f32 {t1}, {fhex(1.0 / 640)}, {sm}')
    k.i(f'v_rsq_f32 {t1}, {t1}')
    for i in range(40):
        k.i(f'v_mul_f32 {xf[i]}, {xf[i]}, {t1}')
    for i in range(20):
        k.i(f'v_cvt_pk_bf16_f32 {xr[i]}, {xf[2 * i]}, {xf[2 * i + 1]}')
    k.i(f'v_lshlrev_b32 {t1}, 8, {j_}')
    k.i(f'v_lshl_add_u32 {t1}, {nrow}, 4, {t1}')
    for i in range(5):
        k.i(f'ds_write_b128 {t1}, {xr[4 * i:4 * i + 4]} offset:{4096 * i}')
    k.barrier()
    k.i(f'v_lshlrev_b32 {t1}, 4, v0')
    for i in range(5):
        k.i(f'ds_read_b128 {xf[4 * i:4 * i + 4]}, {t1} offset:{4096 * i}')
    k.i(f's_add_u32 {so}, {so}, {WS_XN}')
    for i in range(5):
        k.i(f's_add_u32 {so3}, {so}, {4096 * i}')
        k.i(f'buffer_store_dwordx4 {xf[4 * i:4 * i + 4]}, {t1}, {sws}, {so3} offen')
    k.label('p0_end')
    k.i('s_endpgm')
    return k, NWG, 256, 36864


HEADER = '''; adaLN + hedgehog linear attention + GEGLU FFN, gfx950. Generated by my own generator script (work/gen.py).
; Kernarg: 0 A_x, 8 A_wqkv, 16 A_w_phi, 24 A_wo, 32 B_x, 40 B_w_gate, 48 B_w_up, 56 B_w_down, 64 c, 72 w_mod, 80 out, 88 debug, 96 ws'''.split('\n')


def main():
    import gen_rest
    gens = [gen_p0] + gen_rest.GENS
    n = int(sys.argv[2]) if len(sys.argv) > 2 else len(gens)
    ks, launches = [], []
    for g in gens[:n]:
        k, grid, block, lds = g()
        ks.append(k)
        launches.append((k.name, grid, block, lds))
        print(k.name, 'vgpr', k.hi_v, 'agpr', k.hi_a, 'sgpr', k.hi_s, 'instr', k.ninstr, 'lds', lds, file=sys.stderr)
    open(sys.argv[1], 'w').write(build_file(HEADER, launches, ks))


if __name__ == '__main__':
    main()
```

```python
import re

TRANS = ('v_exp_f32', 'v_log_f32', 'v_rcp_f32', 'v_rsq_f32', 'v_sqrt_f32', 'v_sin_f32', 'v_cos_f32')

_reg_re = re.compile(r'^(-|\|)?(abs\()?([vsa])(\d+|\[(\d+):(\d+)\])\)?\|?$')


def parse_reg(tok):
    tok = tok.strip()
    if tok in ('vcc',):
        return [('s', 106), ('s', 107)]
    if tok == 'vcc_lo':
        return [('s', 106)]
    if tok == 'vcc_hi':
        return [('s', 107)]
    if tok == 'exec':
        return [('s', 126), ('s', 127)]
    if tok == 'exec_lo':
        return [('s', 126)]
    if tok == 'exec_hi':
        return [('s', 127)]
    if tok == 'm0':
        return [('s', 124)]
    m = _reg_re.match(tok)
    if not m:
        return []
    kind = m.group(3)
    if m.group(5) is not None:
        return [(kind, i) for i in range(int(m.group(5)), int(m.group(6)) + 1)]
    return [(kind, int(m.group(4)))]


class R:
    def __init__(self, kind, base, n):
        self.kind, self.base, self.n = kind, base, n

    def __getitem__(self, i):
        if isinstance(i, slice):
            a = i.start or 0
            b = i.stop if i.stop is not None else self.n
            assert 0 <= a < b <= self.n, (a, b, self.n)
            return R(self.kind, self.base + a, b - a)
        assert 0 <= i < self.n, (i, self.n)
        return R(self.kind, self.base + i, 1)

    def __str__(self):
        if self.n == 1:
            return f'{self.kind}{self.base}'
        return f'{self.kind}[{self.base}:{self.base + self.n - 1}]'

    __repr__ = __str__

    def __format__(self, spec):
        return str(self)


def mfma_passes(op):
    if '32x32x16' in op or '32x32x8' in op:
        return 8
    if '16x16x32' in op or '16x16x16' in op:
        return 4
    if '_4b_' in op:
        return 8
    if '_2b_' in op:
        return 16
    if '_16b_' in op:
        return 2
    raise ValueError(op)


class Kernel:
    def __init__(self, name, max_v=256, max_a=256):
        self.name = name
        self.lines = []
        self.nv = 1
        self.na = 0
        self.ns = 4
        self.max_v, self.max_a = max_v, max_a
        self.hi_v = 1
        self.hi_a = 0
        self.hi_s = 4
        self.reset_state()
        self.nlabel = 0
        self.ninstr = 0

    def v(self, n=1, align=None):
        if align is None:
            align = 1 if n == 1 else (2 if n < 4 else 4)
        b = (self.nv + align - 1) // align * align
        self.nv = b + n
        assert self.nv <= (253 if self.TS else self.max_v), f'{self.name}: out of VGPRs ({self.nv})'
        self.hi_v = max(self.hi_v, self.nv)
        return R('v', b, n)

    def a(self, n=1, align=4):
        b = (self.na + align - 1) // align * align
        self.na = b + n
        assert self.na <= self.max_a, f'{self.name}: out of AGPRs'
        self.hi_a = max(self.hi_a, self.na)
        return R('a', b, n)

    def s(self, n=1, align=None):
        if align is None:
            align = 1 if n == 1 else (2 if n < 4 else 4)
        b = (self.ns + align - 1) // align * align
        self.ns = b + n
        assert self.ns <= (72 if self.TS else 100), f'{self.name}: out of SGPRs'
        self.hi_s = max(self.hi_s, self.ns)
        return R('s', b, n)

    def mark(self):
        return (self.nv, self.na, self.ns)

    def release(self, m):
        self.nv, self.na, self.ns = m

    def reset_state(self):
        self.pos = 0
        self.lastw = {}
        self.mfma_c_read = {}
        self.store_data = {}
        self.vm = []
        self.lg = []
        self.m0w = -100

    def raw(self, s):
        self.lines.append(s)

    def comment(self, s):
        self.lines.append('; ' + s)

    def label(self, name):
        self.lines.append(f'{name}:')
        self._join()

    def _join(self):
        self.lastw = {}
        self.mfma_c_read = {}
        self.store_data = {}

    def newlabel(self, p='L'):
        self.nlabel += 1
        return f'{self.name}_{p}{self.nlabel}'

    def nop(self, n):
        while n > 0:
            k = min(n, 16)
            self.lines.append(f'  s_nop {k - 1}')
            self.pos += k
            self.ninstr += 1
            n -= k

    def _emit_wait(self, vm=None, lg=None):
        parts = []
        if vm is not None:
            parts.append(f'vmcnt({vm})')
            self.vm = self.vm[len(self.vm) - vm:] if vm > 0 else []
        if lg is not None:
            parts.append(f'lgkmcnt({lg})')
            self.lg = self.lg[len(self.lg) - lg:] if lg > 0 else []
        if parts:
            self.lines.append('  s_waitcnt ' + ' '.join(parts))
            self.pos += 1
            self.ninstr += 1

    def wait(self, vm=None, lg=None):
        if vm is not None:
            vm = min(vm, 63)
            if vm >= len(self.vm) and not self.force_wait:
                vm = None
        if lg is not None:
            lg = min(lg, 15)
            if lg >= len(self.lg) and not self.force_wait:
                lg = None
        if vm is not None and vm > len(self.vm):
            self.lines.append(f'  s_waitcnt vmcnt({vm})')
            self.pos += 1
            vm = None
        if lg is not None and lg > len(self.lg):
            self.lines.append(f'  s_waitcnt lgkmcnt({lg})')
            self.pos += 1
            lg = None
        self._emit_wait(vm, lg)

    force_wait = False

    def wait_all(self):
        self.lines.append('  s_waitcnt vmcnt(0) lgkmcnt(0)')
        self.pos += 1
        self.vm = []
        self.lg = []

    def wait_tag(self, tag):
        idx = -1
        for i, e in enumerate(self.vm):
            if e['tag'] == tag:
                idx = i
        if idx >= 0:
            n = len(self.vm) - 1 - idx
            if n <= 63:
                self._emit_wait(vm=n)
            else:
                self.vm = self.vm[idx + 1:]

    def _need_waits(self, regs):
        regs = set(regs)
        vm = lg = None
        idx = -1
        for i, e in enumerate(self.vm):
            if e['regs'] & regs:
                idx = i
        if idx >= 0:
            n = len(self.vm) - 1 - idx
            if n <= 62:
                vm = n
            else:
                self.vm = self.vm[idx + 1:]
        idx = -1
        for i, e in enumerate(self.lg):
            if e['regs'] & regs:
                idx = i
        if idx >= 0:
            if any(e['smem'] for e in self.lg):
                lg = 0
            else:
                n = len(self.lg) - 1 - idx
                if n <= 14:
                    lg = n
                else:
                    lg = 15 if n > 15 else n
                    lg = min(lg, 15)
                    lg = 14 if n > 14 else n
        self._emit_wait(vm, lg)

    def i(self, text, tag=None):
        text = text.strip()
        sp = text.split(None, 1)
        op = sp[0]
        rest = sp[1] if len(sp) > 1 else ''
        ops = [o.strip() for o in rest.split(',')] if rest else []
        mods = ''
        if ops:
            last = ops[-1].split()
            if len(last) > 1:
                ops[-1] = last[0]
                mods = ' '.join(last[1:])
        base = op.replace('_e32', '').replace('_e64', '').replace('_dpp', '').replace('_sdwa', '')
        w, r = [], []
        kind = None
        passes = 0
        is_dpp = ('row_' in mods) or ('quad_perm' in mods) or op.endswith('_dpp') or ('wave_' in mods)
        lds_dma = False
        if base.startswith('v_mfma'):
            kind = 'mfma'
            passes = mfma_passes(base)
            w = parse_reg(ops[0])
            ra, rb, rc = parse_reg(ops[1]), parse_reg(ops[2]), parse_reg(ops[3])
            r = ra + rb + rc
        elif base.startswith('v_cmp'):
            kind = 'valu'
            w = parse_reg(ops[0])
            for o in ops[1:]:
                r += parse_reg(o)
            if base.startswith('v_cmpx'):
                w += parse_reg('exec')
        elif base.startswith('v_'):
            kind = 'trans' if base in TRANS else 'valu'
            w = parse_reg(ops[0])
            k = 1
            if '_co_' in base or base in ('v_mad_u64_u32', 'v_div_scale_f32'):
                w += parse_reg(ops[1])
                k = 2
            for o in ops[k:]:
                r += parse_reg(o)
            if base in ('v_fmac_f32', 'v_pk_fmac_f16', 'v_dot2c_f32_bf16', 'v_writelane_b32') or 'fmac' in base:
                r += parse_reg(ops[0])
            if base.startswith('v_permlane') and 'swap' in base:
                w += parse_reg(ops[1])
                r += parse_reg(ops[0])
            if is_dpp or 'op_sel' in mods and base.startswith('v_cvt'):
                r += parse_reg(ops[0])
        elif base.startswith('s_load') or base.startswith('s_buffer_load') or base in ('s_memtime', 's_memrealtime'):
            kind = 'smem'
            w = parse_reg(ops[0])
            for o in ops[1:]:
                r += parse_reg(o)
        elif base.startswith('s_'):
            kind = 'salu'
            if base.startswith('s_cmp') or base.startswith('s_cbranch') or base in ('s_branch', 's_barrier', 's_endpgm', 's_setprio', 's_sleep', 's_nop', 's_waitcnt', 's_bitcmp1_b32', 's_bitcmp0_b32'):
                for o in ops:
                    r += parse_reg(o)
                if 'vcc' in base:
                    r += parse_reg('vcc')
                if 'exec' in base:
                    r += parse_reg('exec')
            else:
                w = parse_reg(ops[0])
                for o in ops[1:]:
                    r += parse_reg(o)
                if 'saveexec' in base:
                    w += parse_reg('exec')
                    r += parse_reg('exec')
                if base in ('s_addk_i32', 's_mulk_i32', 's_cmov_b32', 's_cmov_b64'):
                    r += parse_reg(ops[0])
        elif base.startswith('ds_'):
            kind = 'ds'
            if base.startswith('ds_read') or base.startswith('ds_bpermute') or base.startswith('ds_permute') or base.startswith('ds_swizzle') or '_rtn' in base:
                w = parse_reg(ops[0])
                for o in ops[1:]:
                    r += parse_reg(o)
            else:
                for o in ops:
                    r += parse_reg(o)
        elif base.startswith('buffer_') or base.startswith('global_'):
            kind = 'vmem'
            allmods = mods.split()
            if 'lds' in allmods or '_lds_' in base:
                lds_dma = True
                for o in ops:
                    r += parse_reg(o)
                r += parse_reg('m0')
            elif '_load' in base:
                w = parse_reg(ops[0])
                for o in ops[1:]:
                    r += parse_reg(o)
            elif 'atomic' in base and 'sc0' in allmods:
                raise NotImplementedError('returning atomics: handle manually')
            else:
                for o in ops:
                    r += parse_reg(o)
        else:
            raise ValueError('unknown op ' + text)

        self._need_waits(r + w)

        need = 0

        def req(p, n):
            nonlocal need
            d = self.pos - p
            have = d - 1
            if have < n:
                need = max(need, n - have)

        isv = kind in ('valu', 'trans')
        for reg in r:
            lw = self.lastw.get(reg)
            if lw is None:
                continue
            p, k2, ps = lw
            if k2 in ('valu', 'trans'):
                if reg[0] in 'va':
                    if kind == 'mfma':
                        req(p, 2)
                    if isv and is_dpp:
                        req(p, 2)
                    if base.startswith('v_permlane'):
                        req(p, 2)
                    if base in ('v_readfirstlane_b32', 'v_readlane_b32'):
                        req(p, 1)
                    if k2 == 'trans' and kind in ('valu', 'mfma', 'vmem', 'ds'):
                        req(p, 1)
                else:
                    if isv:
                        req(p, 4 if base in ('v_readlane_b32', 'v_writelane_b32') else 2)
                    if kind == 'vmem':
                        req(p, 5)
                    if kind in ('salu', 'smem'):
                        req(p, 1)
                    if reg in (('s', 126), ('s', 127)):
                        req(p, 5)
            elif k2 == 'mfma':
                if kind == 'mfma':
                    if reg in rc and not (reg in ra or reg in rb):
                        if set(rc) == self.lastw_set.get(p, None) and ps == passes:
                            req(p, 2 if ps == 2 else 0)
                        else:
                            req(p, ps + 2)
                    else:
                        req(p, ps + 4 if ps > 2 else 5)
                else:
                    req(p, ps + 4 if ps > 2 else 5)
            elif k2 == 'salu':
                if reg == ('s', 124) and lds_dma:
                    req(p, 1)
        for reg in w:
            lw = self.lastw.get(reg)
            if lw is not None:
                p, k2, ps = lw
                if k2 == 'mfma' and kind != 'mfma':
                    req(p, ps + 4 if ps > 2 else 5)
                if k2 == 'mfma' and kind == 'mfma' and reg not in rc:
                    req(p, ps + 2)
            cr = self.mfma_c_read.get(reg)
            if cr is not None and kind != 'mfma':
                req(cr[0], cr[1] - 1)
            sd = self.store_data.get(reg)
            if sd is not None:
                req(sd, 2)
        if need > 0:
            self.nop(need)

        self.lines.append('  ' + text)
        self.ninstr += 1
        p = self.pos
        self.pos += 1
        if kind in ('valu', 'trans', 'mfma', 'salu'):
            for reg in w:
                self.lastw[reg] = (p, kind, passes)
            if kind == 'mfma':
                if not hasattr(self, 'lastw_set'):
                    self.lastw_set = {}
                self.lastw_set[p] = set(w)
                for reg in rc:
                    self.mfma_c_read[reg] = (p, passes)
        else:
            for reg in w:
                self.lastw.pop(reg, None)
        if kind == 'vmem':
            self.vm.append(dict(regs=set(w), tag=tag))
            if ('store' in base or 'atomic' in base) and ('x4' in base or 'x3' in base):
                dreg = parse_reg(ops[0]) if base.startswith('buffer_') else parse_reg(ops[1])
                for reg in dreg:
                    self.store_data[reg] = p
        elif kind == 'ds':
            self.lg.append(dict(regs=set(w), smem=False))
        elif kind == 'smem':
            self.lg.append(dict(regs=set(w), smem=True))
        if base.startswith('s_cbranch') or base == 's_branch':
            pass
        for reg in w + r:
            if reg[0] == 'v':
                self.hi_v = max(self.hi_v, reg[1] + 1)
            elif reg[0] == 'a':
                self.hi_a = max(self.hi_a, reg[1] + 1)
            elif reg[1] < 102:
                self.hi_s = max(self.hi_s, reg[1] + 1)

    lastw_set = {}

    TS = False
    WS_TS = 0x1C00000

    def ts_init(self, kidx):
        self.kidx = kidx
        self.nts = 0
        if not self.TS:
            return
        self.tsr = R('s', 72, 28)
        self.i(f's_memrealtime {self.tsr[0:2]}')
        self.i(f's_load_dwordx2 {self.tsr[4:6]}, s[0:1], 96')
        self.i(f's_mov_b32 {self.tsr[3]}, s2')
        self._emit_wait(lg=0)
        self.ts()

    def ts(self):
        if not self.TS:
            return
        assert self.nts < 14
        d = self.tsr[10:12]
        self.i(f's_memtime {d}')
        self._emit_wait(lg=0)
        self.i(f's_mov_b32 {self.tsr[12 + self.nts]}, {d[0]}')
        self.nts += 1

    def ts_end(self):
        if not self.TS:
            return
        t = self.tsr
        self.i('s_mov_b64 exec, -1')
        self.wait_all()
        self.ts()
        self.i(f's_memrealtime {t[10:12]}')
        self._emit_wait(lg=0)
        self.i(f's_mov_b32 {t[1]}, {t[10]}')
        self.i(f's_and_b32 {t[5]}, {t[5]}, 0xffff')
        self.i(f's_mov_b32 {t[6]}, 0x10000000')
        self.i(f's_mov_b32 {t[7]}, 0x00020000')
        self.i(f's_lshl_b32 {t[3]}, {t[3]}, 10')
        self.i(f's_add_u32 {t[3]}, {t[3]}, {self.WS_TS + self.kidx * 512 * 1024}')
        self.i('v_lshrrev_b32 v255, 6, v254')
        self.i('v_lshlrev_b32 v255, 6, v255')
        self.i('s_mov_b32 exec_lo, 1')
        self.i('s_mov_b32 exec_hi, 0')
        vals = [t[0], t[1]] + [t[12 + i] for i in range(self.nts)]
        for j, v in enumerate(vals):
            self.i(f'v_mov_b32 v253, {v}')
            self.i(f'buffer_store_dword v253, v255, {t[4:8]}, {t[3]} offen offset:{4 * j}')
        self.nts -= 1

    def barrier(self):
        if self.lg:
            self._emit_wait(lg=0)
        self.i('s_barrier')

    def srd(self, base, nbytes):
        d = self.s(4)
        self.i(f's_mov_b32 {d[0]}, {base[0]}')
        self.i(f's_and_b32 {d[1]}, {base[1]}, 0xffff')
        self.i(f's_mov_b32 {d[2]}, {nbytes}')
        self.i(f's_mov_b32 {d[3]}, 0x00020000')
        return d

    def srd_off(self, base, off, nbytes):
        d = self.s(4)
        self.i(f's_add_u32 {d[0]}, {base[0]}, {off}')
        self.i(f's_addc_u32 {d[1]}, {base[1]}, 0')
        self.i(f's_and_b32 {d[1]}, {d[1]}, 0xffff')
        self.i(f's_mov_b32 {d[2]}, {nbytes}')
        self.i(f's_mov_b32 {d[3]}, 0x00020000')
        return d

    def text(self):
        out = [f'.globl {self.name}', '.p2align 8', f'.type {self.name},@function', f'{self.name}:']
        out += self.lines
        return '\n'.join(out)

    def desc(self):
        nv = (self.hi_v + 3) // 4 * 4
        tot = nv + self.hi_a if self.hi_a else self.hi_v
        return '\n'.join([
            '.p2align 6',
            f'.amdhsa_kernel {self.name}',
            f'  .amdhsa_next_free_vgpr {tot}',
            f'  .amdhsa_next_free_sgpr {max(self.hi_s, 8)}',
            f'  .amdhsa_accum_offset {nv}',
            '  .amdhsa_group_segment_fixed_size 0',
            '  .amdhsa_kernarg_size 104',
            '  .amdhsa_user_sgpr_count 2',
            '  .amdhsa_user_sgpr_kernarg_segment_ptr 1',
            '  .amdhsa_system_sgpr_workgroup_id_x 1',
            '.end_amdhsa_kernel'])


def build_file(header_lines, launches, kernels):
    out = list(header_lines)
    for (name, grid, block, lds) in launches:
        out.append(f'; @launch kernel={name} grid=({grid},1,1) block=({block},1,1) lds={lds}')
    out.append('.amdgcn_target "amdgcn-amd-amdhsa--gfx950"')
    out.append('.text')
    for k in kernels:
        out.append(k.text())
    out.append('.section .rodata,"a"')
    for k in kernels:
        out.append(k.desc())
    return '\n'.join(out) + '\n'
```

```python
import sys, struct
from asmgen import *

S, D, H, F = 2048, 640, 32, 1728
KA_X, KA_WQKV, KA_WPHI, KA_WO, KA_BX, KA_WG, KA_WU, KA_WD, KA_C, KA_WMOD, KA_OUT, KA_DBG, KA_WS = [8 * i for i in range(13)]
WS_MOD = 0x0000000
WS_CNT = 0x0008000
WS_KV = 0x0010000
WS_MODP = 0x0030000
WS_ST = 0x0040000
WS_CSB = 0x0080000
WS_XN = 0x0100000
WS_WP = 0x0400000
WS_PHIQ = 0x0800000
WS_X1 = 0x0E00000
WS_WOF = 0x1100000
WS_WGU = 0x1200000
WS_WDF = 0x1700000
WS_ACT = 0x1A00000
WS_END = 0x2100000
Kernel.WS_TS = 0x2400000
KVS = 3584
LOG2E = 1.4426950408889634
DPP = 'row_mask:0xf bank_mask:0xf'


def f2u(x):
    return struct.unpack('<I', struct.pack('<f', x))[0]


def fhex(x):
    return hex(f2u(x))


def emit(k, x):
    if callable(x):
        x()
    elif isinstance(x, tuple):
        k.i(x[0], tag=x[1])
    else:
        k.i(x)


def interleave(k, main, fill, lead=0):
    n = max(len(main) - lead, 1)
    nf = len(fill)
    j = 0
    for i, m in enumerate(main):
        emit(k, m)
        tgt = min(nf, (nf * (i + 1) + n - 1) // n)
        while j < tgt:
            emit(k, fill[j])
            j += 1
    while j < nf:
        emit(k, fill[j])
        j += 1


def xsum4(k, x, t):
    k.i(f'v_mov_b32 {t}, {x}')
    k.i(f'v_permlane32_swap_b32 {x}, {t}')
    k.i(f'v_add_f32 {x}, {x}, {t}')
    k.i(f'v_mov_b32 {t}, {x}')
    k.i(f'v_permlane16_swap_b32 {x}, {t}')
    k.i(f'v_add_f32 {x}, {x}, {t}')


def round_bf16(k, d, x):
    k.i(f'v_cvt_pk_bf16_f32 {d}, {x}, {x}')
    k.i(f'v_and_b32 {d}, 0xffff0000, {d}')


class Ctx:
    pass


def common_prologue(k, nwg, endlabel, kidx):
    c = Ctx()
    k.i(f's_cmp_ge_u32 s2, {nwg}')
    k.i(f's_cbranch_scc1 {endlabel}')
    k.ts_init(kidx)
    if k.TS:
        k.i('v_mov_b32 v254, v0')
    c.ws = k.s(2)
    k.i(f's_load_dwordx2 {c.ws}, s[0:1], {KA_WS}')
    c.lane, c.G, c.n, c.l16 = k.v(), k.v(), k.v(), k.v()
    c.wave = k.s()
    k.i(f'v_lshrrev_b32 {c.G}, 6, v0')
    k.i(f'v_and_b32 {c.lane}, 63, v0')
    k.i(f'v_readfirstlane_b32 {c.wave}, {c.G}')
    k.i(f'v_lshrrev_b32 {c.G}, 4, {c.lane}')
    k.i(f'v_and_b32 {c.n}, 15, {c.lane}')
    k.i(f'v_lshlrev_b32 {c.l16}, 4, {c.lane}')
    return c


def save_state(k):
    return (list(k.vm), list(k.lg), k.mark(), k.nts)


def restore_state(k, st):
    k.reset_state()
    k.vm = list(st[0])
    k.lg = list(st[1])
    k.release(st[2])
    k.nts = st[3]


def kk3_tiles(kk):
    q, p = divmod(kk, 5)
    a = 10 * q + [0, 2, 5, 7, 4][p]
    return a, a + (5 if p == 4 else 1)


def kk4_tiles(e):
    if e < 8:
        return 14 * e + 6, min(14 * e + 13, 107)
    nt, p = divmod(e - 8, 3)
    return 7 * nt + 2 * p, 7 * nt + 2 * p + 1


KK4 = list(range(54))
```

```python
import os
from g2_common import *

def gen_p0():
    k = Kernel('p0_kernel')
    NT = 24 if os.environ.get('P0_TLB', '1') == '1' else 0
    NWG = 128 + 80 + 128 + NT
    k.i(f's_cmp_ge_u32 s2, {NWG}')
    k.i('s_cbranch_scc1 p0_end')
    if NT:
        k.i(f's_cmp_ge_u32 s2, {NT}')
        k.i('s_cbranch_scc1 p0_main')
        k.i('v_lshrrev_b32 v1, 6, v0')
        k.i('s_lshr_b32 s3, s2, 3')
        k.i('v_readfirstlane_b32 s4, v1')
        k.i('s_lshl_b32 s3, s3, 2')
        k.i('s_add_u32 s3, s3, s4')
        order = [KA_WMOD, KA_X, KA_WQKV, KA_C, KA_WPHI, KA_WS, KA_WG, KA_WU, KA_WD, KA_WO, KA_OUT, KA_WS]
        sizes = {KA_WMOD: D * 3840 * 2, KA_X: S * D * 2, KA_WQKV: D * 1920 * 2, KA_C: D * 2, KA_WPHI: 25600, KA_WS: WS_END,
                 KA_WG: D * F * 2, KA_WU: D * F * 2, KA_WD: D * F * 2, KA_WO: D * D * 2, KA_OUT: S * D * 2}
        k.i(f's_mov_b32 s5, {order[0]}')
        k.i(f's_mov_b32 s10, {sizes[order[0]]}')
        for i in range(1, 12):
            k.i(f's_cmp_eq_u32 s3, {i}')
            k.i(f's_cselect_b32 s5, {order[i]}, s5')
            k.i(f's_cselect_b32 s10, {sizes[order[i]]}, s10')
        k.i('s_load_dwordx2 s[8:9], s[0:1], s5')
        k.i('v_and_b32 v1, 63, v0')
        k.i('v_lshlrev_b32 v1, 19, v1')
        k.i('s_cmp_eq_u32 s3, 11')
        k.i(f's_cselect_b32 s6, {32 << 20}, 0')
        k.i('s_mov_b32 s11, 0x00020000')
        k.i('s_and_b32 s9, s9, 0xffff')
        k.i('buffer_load_dword v2, v1, s[8:11], s6 offen')
        k.i('s_endpgm')
        k.reset_state()
        k.raw('p0_main:')
        k.i(f's_sub_u32 s2, s2, {NT}')
    k.ts_init(0)
    if k.TS:
        k.i('v_mov_b32 v254, v0')
    ws = k.s(2)
    k.i(f's_load_dwordx2 {ws}, s[0:1], {KA_WS}')
    pdb = k.s(2)
    k.i(f's_load_dwordx2 {pdb}, s[0:1], {KA_DBG}')
    lane = k.v()
    wave = k.s()
    k.i(f'v_and_b32 {lane}, 63, v0')
    t0 = k.v()
    k.i(f'v_lshrrev_b32 {t0}, 6, v0')
    k.i(f'v_readfirstlane_b32 {wave}, {t0}')
    k.i('s_cmp_ge_u32 s2, 208')
    k.i('s_cbranch_scc1 p0_xn')
    k.i('s_cmp_ge_u32 s2, 128')
    k.i('s_cbranch_scc1 p0_fold')
    base_mark = k.mark()
    lg_save = list(k.lg)

    pc, pw = k.s(2), k.s(2)
    k.i(f's_load_dwordx2 {pc}, s[0:1], {KA_C}')
    k.i(f's_load_dwordx2 {pw}, s[0:1], {KA_WMOD}')
    sx, sy, sp, col0 = k.s(), k.s(), k.s(), k.s()
    k.i(f's_and_b32 {sx}, s2, 7')
    k.i(f's_lshr_b32 {sy}, s2, 3')
    k.i(f's_lshr_b32 {sp}, {sy}, 1')
    k.i(f's_lshl_b32 {sp}, {sp}, 3')
    k.i(f's_add_u32 {sp}, {sp}, {sx}')
    k.i(f's_cmp_ge_u32 {sp}, 60')
    k.i('s_cbranch_scc1 p0_end')
    k.i(f's_and_b32 {sy}, {sy}, 1')
    k.i(f's_lshl_b32 {col0}, {sp}, 1')
    k.i(f's_add_u32 {col0}, {col0}, {sy}')
    k.i(f's_lshl_b32 {col0}, {col0}, 5')
    sc = k.srd(pc, D * 2)
    sw = k.srd(pw, D * 3840 * 2)
    sws = k.srd(ws, WS_END)
    rr, q, vo, vc = k.v(), k.v(), k.v(), k.v()
    k.i(f'v_lshrrev_b32 {rr}, 2, v0')
    k.i(f'v_and_b32 {q}, 3, v0')
    k.i(f'v_mul_u32_u24 {vo}, 7680, {rr}')
    k.i(f'v_lshl_add_u32 {vo}, {q}, 4, {vo}')
    so = k.s()
    k.i(f's_lshl_b32 {so}, {col0}, 1')
    k.i(f'v_add_u32 {vo}, {so}, {vo}')
    k.i(f'v_lshlrev_b32 {vc}, 1, {rr}')
    cv = k.v(10, align=1)
    wv = k.v(40)
    for i in range(10):
        k.i(f'buffer_load_ushort {cv[i]}, {vc}, {sc}, 0 offen offset:{128 * i}')
    for i in range(10):
        k.i(f's_mov_b32 {so}, {64 * 7680 * i}')
        k.i(f'buffer_load_dwordx4 {wv[4 * i:4 * i + 4]}, {vo}, {sw}, {so} offen')
    k.ts()
    acc = k.v(8, align=1)
    for j in range(8):
        k.i(f'v_mov_b32 {acc[j]}, 0')
    t1, t2 = k.v(), k.v()
    for i in range(10):
        c = cv[i]
        k.i(f'v_lshlrev_b32 {c}, 16, {c}')
        k.i(f'v_mul_f32 {t1}, {fhex(-LOG2E)}, {c}')
        k.i(f'v_exp_f32 {t1}, {t1}')
        k.i(f'v_add_f32 {t1}, 1.0, {t1}')
        k.i(f'v_rcp_f32 {t1}, {t1}')
        k.i(f'v_mul_f32 {c}, {c}, {t1}')
        round_bf16(k, c, c)
    k.ts()
    k.wait(vm=0)
    k.ts()
    for i in range(10):
        for j in range(4):
            w = wv[4 * i + j]
            k.i(f'v_lshlrev_b32 {t1}, 16, {w}')
            k.i(f'v_and_b32 {t2}, 0xffff0000, {w}')
            k.i(f'v_fmac_f32 {acc[2 * j]}, {t1}, {cv[i]}')
            k.i(f'v_fmac_f32 {acc[2 * j + 1]}, {t2}, {cv[i]}')
    for j in range(8):
        k.i(f'v_add_f32 {acc[j]}, {acc[j]}, {acc[j]} row_ror:4 {DPP}')
    for j in range(8):
        k.i(f'v_add_f32 {acc[j]}, {acc[j]}, {acc[j]} row_ror:8 {DPP}')
    for j in range(8):
        xsum4(k, acc[j], t1)
    k.ts()
    la = k.v()
    k.i(f'v_lshlrev_b32 {la}, 5, {q}')
    k.i(f's_lshl_b32 {so}, {wave}, 7')
    k.i(f'v_add_u32 {la}, {so}, {la}')
    sv = k.s(2)
    k.i(f'v_cmp_gt_u32 vcc, 4, {lane}')
    k.i(f's_and_saveexec_b64 {sv}, vcc')
    for j in range(8):
        k.i(f'ds_write_b32 {la}, {acc[j]} offset:{4 * j}')
    k.i(f's_mov_b64 exec, {sv}')
    k.barrier()
    k.i(f'v_cmp_gt_u32 vcc, 32, v0')
    k.i(f's_and_saveexec_b64 {sv}, vcc')
    k.i('s_cbranch_execz p0_end')
    k.i(f'v_lshlrev_b32 {la}, 2, v0')
    for j in range(4):
        k.i(f'ds_read_b32 {acc[j]}, {la} offset:{128 * j}')
    k.i(f'v_add_f32 {acc[0]}, {acc[0]}, {acc[1]}')
    k.i(f'v_add_f32 {acc[2]}, {acc[2]}, {acc[3]}')
    k.i(f'v_add_f32 {acc[0]}, {acc[0]}, {acc[2]}')
    round_bf16(k, acc[0], acc[0])
    k.i(f'v_add_f32 {t1}, 1.0, {acc[0]}')
    round_bf16(k, t1, t1)
    flag = k.s()
    sa_, sb_ = k.s(), k.s()
    k.i(f's_sub_u32 {sa_}, {col0}, 640')
    k.i(f's_sub_u32 {sb_}, {col0}, 2560')
    k.i(f's_min_u32 {sa_}, {sa_}, {sb_}')
    k.i(f's_cmp_lt_u32 {sa_}, 640')
    k.i(f's_cselect_b64 vcc, -1, 0')
    k.i(f'v_cndmask_b32 {acc[0]}, {acc[0]}, {t1}, vcc')
    k.i(f's_lshl_b32 {so}, {col0}, 2')
    k.i(f'buffer_store_dword {acc[0]}, {la}, {sws}, {so} offen offset:{WS_MOD}')
    k.ts()
    k.raw('p0_gemv_done:')
    k._join()
    k.ts_end()
    k.i('s_endpgm')

    k.release(base_mark)
    k.reset_state()
    k.lg = list(lg_save)
    k.nts = 1
    k.label('p0_fold')
    pq, pp = k.s(2), k.s(2)
    k.i(f's_load_dwordx2 {pq}, s[0:1], {KA_WQKV}')
    k.i(f's_load_dwordx2 {pp}, s[0:1], {KA_WPHI}')
    bb, hp, J = k.s(), k.s(), k.s()
    k.i(f's_sub_u32 {bb}, s2, 128')
    k.i(f's_and_b32 {hp}, {bb}, 15')
    k.i(f's_lshr_b32 {J}, {bb}, 4')
    k.i(f's_lshl_b32 {J}, {J}, 2')
    k.i(f's_add_u32 {J}, {J}, {wave}')
    sq = k.srd(pq, D * 1920 * 2)
    sph = k.srd(pp, 32 * 400 * 2)
    sws = k.srd(ws, WS_END)
    G, n = k.v(), k.v()
    k.i(f'v_lshrrev_b32 {G}, 4, {lane}')
    k.i(f'v_and_b32 {n}, 15, {lane}')
    row, t1, t2, t3 = k.v(), k.v(), k.v(), k.v()
    k.i(f'v_lshrrev_b32 {row}, 2, {n}')
    k.i(f'v_lshlrev_b32 {row}, 3, {row}')
    k.i(f'v_and_b32 {t1}, 3, {n}')
    k.i(f'v_add_u32 {row}, {row}, {t1}')
    so = k.s()
    k.i(f's_lshl_b32 {so}, {J}, 5')
    k.i(f'v_add_u32 {row}, {so}, {row}')
    k.i(f'v_mul_u32_u24 {row}, 3840, {row}')
    k.i(f's_mul_i32 {so}, {hp}, 80')
    k.i(f'v_add_u32 {row}, {so}, {row}')
    A = k.v(32)
    aoff = k.v(4, align=1)
    for s in range(4):
        k.i(f'v_add_u32 {t1}, {4 * s}, {G}')
        k.i(f'v_min_u32 {t1}, 14, {t1}')
        k.i(f'v_mov_b32 {t2}, 2400')
        k.i(f'v_mov_b32 {t3}, -80')
        k.i(f'v_cmp_gt_u32 vcc, 10, {t1}')
        k.i(f'v_cndmask_b32 {t2}, {t2}, {t3}, vcc')
        k.i(f'v_mov_b32 {t3}, 1280')
        k.i(f'v_cmp_gt_u32 vcc, 5, {t1}')
        k.i(f'v_cndmask_b32 {t2}, {t2}, {t3}, vcc')
        k.i(f'v_lshl_add_u32 {t2}, {t1}, 4, {t2}')
        k.i(f'v_add_u32 {aoff[s]}, {row}, {t2}')
    so2 = k.s()
    k.i(f's_mov_b32 {so2}, {4 * 3840}')
    for p in range(2):
        for s in range(4):
            k.i(f'buffer_load_dwordx4 {A[(p * 4 + s) * 4:(p * 4 + s) * 4 + 4]}, {aoff[s]}, {sq}, {so2 if p else 0} offen')
    ph = k.v(4, align=1)
    k.i(f'v_lshlrev_b32 {t1}, 1, v0')
    k.i(f's_mul_i32 {so}, {hp}, 1600')
    for i in range(4):
        k.i(f'buffer_load_ushort {ph[i]}, {t1}, {sph}, {so} offen offset:{512 * i}')
    k.ts()
    z = k.v(4)
    for j in range(4):
        k.i(f'v_mov_b32 {z[j]}, 0')
    k.i(f'v_lshlrev_b32 {t1}, 4, v0')
    for i in range(9):
        k.i(f'ds_write_b128 {t1}, {z} offset:{4096 * i}')
    k.barrier()
    sv = k.s(2)
    idx, rw, f, ad = k.v(), k.v(), k.v(), k.v()
    for i in range(4):
        k.i(f'v_add_u32 {idx}, {256 * i}, v0')
        k.i(f'v_mul_u32_u24 {rw}, 3277, {idx}')
        k.i(f'v_lshrrev_b32 {rw}, 16, {rw}')
        k.i(f'v_mul_u32_u24 {f}, 20, {rw}')
        k.i(f'v_sub_u32 {f}, {idx}, {f}')
        k.i(f'v_lshrrev_b32 {ad}, 2, {f}')
        k.i(f'v_lshlrev_b32 {ad}, 4, {ad}')
        k.i(f'v_and_b32 {t1}, 3, {f}')
        k.i(f'v_add_u32 {ad}, {ad}, {t1}')
        k.i(f'v_cmp_lt_u32 vcc, 19, {rw}')
        k.i(f'v_cndmask_b32 {t1}, 0, 4, vcc')
        k.i(f'v_add_u32 {ad}, {ad}, {t1}')
        k.i(f'v_mul_u32_u24 {ad}, 272, {ad}')
        k.i(f'v_lshl_add_u32 {ad}, {rw}, 1, {ad}')
        if i == 3:
            k.i(f'v_cmp_gt_u32 vcc, 32, v0')
            k.i(f's_and_saveexec_b64 {sv}, vcc')
        k.i(f'ds_write_b16 {ad}, {ph[i]}')
        k.i(f'ds_write_b16 {ad}, {ph[i]} offset:{8 * 272 + 80}')
        if i == 3:
            k.i(f's_mov_b64 exec, {sv}')
    k.i(f'v_cmp_lt_u32 vcc, 19, v0')
    k.i(f'v_cndmask_b32 {t1}, 0, 4, vcc')
    k.i(f'v_add_u32 {t1}, {t1}, v0')
    k.i(f'v_mul_u32_u24 {ad}, 272, {t1}')
    k.i(f'v_lshl_add_u32 {ad}, v0, 1, {ad}')
    k.i(f'v_mov_b32 {t2}, 0x3f80')
    k.i(f'v_cmp_gt_u32 vcc, 40, v0')
    k.i(f's_and_saveexec_b64 {sv}, vcc')
    k.i(f'ds_write_b16 {ad}, {t2} offset:{80 * 272 + 160}')
    k.i(f's_mov_b64 exec, {sv}')
    k.barrier()
    k.ts()
    k.i(f'v_mul_u32_u24 {ad}, 272, {n}')
    k.i(f'v_lshl_add_u32 {ad}, {G}, 4, {ad}')
    B = {}
    for ct in range(8):
        for s in (range(3) if ct < 5 else (2, 3)):
            B[ct, s] = k.v(4)
            k.i(f'ds_read_b128 {B[ct, s]}, {ad} offset:{ct * 16 * 272 + 64 * s}')
    k.wait(vm=0)
    k.ts()
    Dm = k.v(64)
    for ct in range(8):
        for p in range(2):
            d = Dm[(ct * 2 + p) * 4:(ct * 2 + p) * 4 + 4]
            first = True
            for s in (range(3) if ct < 5 else (2, 3)):
                k.i(f'v_mfma_f32_16x16x32_bf16 {d}, {A[(p * 4 + s) * 4:(p * 4 + s) * 4 + 4]}, {B[ct, s]}, {0 if first else d}')
                first = False
    k.i(f's_mul_i32 {so}, {hp}, 20')
    k.i(f's_add_u32 {so}, {so}, {J}')
    k.i(f's_lshl_b32 {so}, {so}, 13')
    k.i(f's_add_u32 {so}, {so}, {WS_WP}')
    k.i(f'v_lshlrev_b32 {t1}, 4, {lane}')
    k.i(f'v_add_u32 {t2}, 4096, {t1}')
    o = k.v(8)
    for ct in range(8):
        oo = o[(ct & 1) * 4:(ct & 1) * 4 + 4]
        d = Dm[ct * 8:ct * 8 + 8]
        for j in range(4):
            k.i(f'v_cvt_pk_bf16_f32 {oo[j]}, {d[2 * j]}, {d[2 * j + 1]}')
        k.i(f'buffer_store_dwordx4 {oo}, {t1 if ct < 4 else t2}, {sws}, {so} offen offset:{(ct & 3) * 1024}')
    k.ts()
    k.ts_end()
    k.i('s_endpgm')

    k.release(base_mark)
    k.reset_state()
    k.lg = list(lg_save)
    k.nts = 1
    k.label('p0_xn')
    px = k.s(2)
    k.i(f's_load_dwordx2 {px}, s[0:1], {KA_X}')
    tt = k.s()
    k.i(f's_sub_u32 {tt}, s2, 208')
    sxx = k.srd(px, S * D * 2)
    sws = k.srd(ws, WS_END)
    nrow, j_, vo, t1, t2 = k.v(), k.v(), k.v(), k.v(), k.v()
    k.i(f'v_lshrrev_b32 {nrow}, 4, v0')
    k.i(f'v_and_b32 {j_}, 15, v0')
    k.i(f'v_mul_u32_u24 {vo}, 1280, {nrow}')
    k.i(f'v_lshl_add_u32 {vo}, {j_}, 4, {vo}')
    so = k.s()
    k.i(f's_mul_i32 {so}, {tt}, 20480')
    xr = k.v(20)
    for i in range(5):
        k.i(f'buffer_load_dwordx4 {xr[4 * i:4 * i + 4]}, {vo}, {sxx}, {so} offen offset:{256 * i}')
    sv = k.s(2)
    so3 = k.s()
    k.i(f's_mul_i32 {so3}, {tt}, 1280')
    k.i(f's_add_u32 {so3}, {so3}, {WS_CNT}')
    k.i(f'v_lshlrev_b32 {t1}, 2, v0')
    k.i(f'v_mov_b32 {t2}, 0')
    k.i(f'buffer_store_dword {t2}, {t1}, {sws}, {so3} offen')
    k.i(f'v_cmp_gt_u32 vcc, 64, v0')
    k.i(f's_and_saveexec_b64 {sv}, vcc')
    k.i(f'buffer_store_dword {t2}, {t1}, {sws}, {so3} offen offset:1024')
    k.i(f's_mov_b64 exec, {sv}')
    k.ts()
    k.wait(vm=2)
    k.ts()
    xf = k.v(40)
    sm = k.v()
    for i in range(20):
        k.i(f'v_lshlrev_b32 {xf[2 * i]}, 16, {xr[i]}')
        k.i(f'v_and_b32 {xf[2 * i + 1]}, 0xffff0000, {xr[i]}')
    k.i(f'v_add_f32 {sm}, {xf[0]}, {xf[1]}')
    k.i(f'v_add_f32 {t1}, {xf[2]}, {xf[3]}')
    for i in range(4, 40, 2):
        k.i(f'v_add_f32 {sm}, {sm}, {xf[i]}')
        k.i(f'v_add_f32 {t1}, {t1}, {xf[i + 1]}')
    k.i(f'v_add_f32 {sm}, {sm}, {t1}')
    for r in (1, 2, 4, 8):
        k.i(f'v_add_f32 {sm}, {sm}, {sm} row_ror:{r} {DPP}')
    k.i(f'v_mul_f32 {sm}, {fhex(1.0 / 640)}, {sm}')
    for i in range(40):
        k.i(f'v_sub_f32 {xf[i]}, {xf[i]}, {sm}')
    k.i(f'v_mul_f32 {sm}, {xf[0]}, {xf[0]}')
    k.i(f'v_mul_f32 {t1}, {xf[1]}, {xf[1]}')
    for i in range(2, 40, 2):
        k.i(f'v_fmac_f32 {sm}, {xf[i]}, {xf[i]}')
        k.i(f'v_fmac_f32 {t1}, {xf[i + 1]}, {xf[i + 1]}')
    k.i(f'v_add_f32 {sm}, {sm}, {t1}')
    for r in (1, 2, 4, 8):
        k.i(f'v_add_f32 {sm}, {sm}, {sm} row_ror:{r} {DPP}')
    k.i(f'v_mov_b32 {t1}, {fhex(1e-5)}')
    k.i(f'v_fmac_f32 {t1}, {fhex(1.0 / 640)}, {sm}')
    k.i(f'v_rsq_f32 {t1}, {t1}')
    for i in range(40):
        k.i(f'v_mul_f32 {xf[i]}, {xf[i]}, {t1}')
    sgn = k.s()
    k.i(f's_mov_b32 {sgn}, 0x7fff0000')
    for i in range(20):
        lo, hi, d = xf[2 * i], xf[2 * i + 1], xr[i]
        k.i(f'v_cvt_pk_bf16_f32 {d}, {lo}, {lo}')
        k.i(f'v_and_b32 {d}, 0xffff, {d}')
        k.i(f'v_and_b32 {lo}, 0x7fffffff, {hi}')
        k.i(f'v_sub_u32 {lo}, {lo}, {d}')
        k.i(f'v_add_u32 {lo}, 0x8000, {lo}')
        k.i(f'v_max_i32 {lo}, 0, {lo}')
        k.i(f'v_bfi_b32 {lo}, {sgn}, {lo}, {hi}')
        k.i(f'v_and_b32 {lo}, 0xffff0000, {lo}')
        k.i(f'v_or_b32 {d}, {d}, {lo}')
    k.ts()
    k.i(f'v_lshlrev_b32 {t1}, 8, {j_}')
    k.i(f'v_lshl_add_u32 {t1}, {nrow}, 4, {t1}')
    for i in range(5):
        k.i(f'ds_write_b128 {t1}, {xr[4 * i:4 * i + 4]} offset:{4096 * i}')
    k.barrier()
    k.i(f'v_lshlrev_b32 {t1}, 4, v0')
    for i in range(5):
        k.i(f'ds_read_b128 {xf[4 * i:4 * i + 4]}, {t1} offset:{4096 * i}')
    k.i(f's_lshr_b32 {so}, {tt}, 3')
    k.i(f's_mul_i32 {so}, {so}, 20')
    k.i(f's_add_u32 {so}, {so}, {wave}')
    k.i(f's_lshl_b32 {so}, {so}, 13')
    k.i(f's_and_b32 {so3}, {tt}, 7')
    k.i(f's_lshl_b32 {so3}, {so3}, 10')
    k.i(f's_add_u32 {so}, {so}, {so3}')
    k.i(f's_add_u32 {so}, {so}, {WS_XN}')
    k.i(f'v_lshlrev_b32 {t2}, 4, {lane}')
    for i in range(5):
        k.i(f's_add_u32 {so3}, {so}, {4 * 8192 * i}')
        k.i(f'buffer_store_dwordx4 {xf[4 * i:4 * i + 4]}, {t2}, {sws}, {so3} offen')
    k.ts()
    k.ts_end()
    k.label('p0_end')
    k.i('s_endpgm')
    return k, NWG, 256, 36864
```

```python
import os
from g2_common import *


def gen_p1():
    k = Kernel('p1_kernel')
    c = common_prologue(k, 256, 'p1_end', 1)
    lane, G, n, l16, wave = c.lane, c.G, c.n, c.l16, c.wave
    KPS = int(os.environ.get('P1_KPS', 1))
    LA = int(os.environ.get('P1_LA', 4))
    NST = 20 // KPS
    NSL = 8 // KPS
    LQK, LV, LPK, LSIDE, LCS = 65536, 106496, 32768, 0, 118784
    mt, hp, sx, sy = k.s(), k.s(), k.s(), k.s()
    k.i(f's_and_b32 {sx}, s2, 7')
    k.i(f's_lshr_b32 {sy}, s2, 3')
    k.i(f's_lshr_b32 {mt}, {sx}, 1')
    k.i(f's_lshl_b32 {mt}, {mt}, 2')
    k.i(f's_and_b32 {hp}, {sy}, 3')
    k.i(f's_add_u32 {mt}, {mt}, {hp}')
    k.i(f's_and_b32 {hp}, {sx}, 1')
    k.i(f's_lshl_b32 {hp}, {hp}, 3')
    k.i(f's_lshr_b32 {sy}, {sy}, 2')
    k.i(f's_add_u32 {hp}, {hp}, {sy}')
    sty, srowA, srowB, sdst, scol, ska, sstr = k.s(), k.s(), k.s(), k.s(), k.s(), k.s(), k.s()
    ks, cblk, u2, q_, p_, t_, t2_ = k.s(), k.s(), k.s(), k.s(), k.s(), k.s(), k.s()
    psd = k.s(2)
    def side_decode(role):
        k.i(f's_mul_i32 {ks}, s2, 1214')
        k.i(f's_lshr_b32 {ks}, {ks}, 16')
        k.i(f's_mul_i32 {t_}, {ks}, 54')
        k.i(f's_sub_u32 {cblk}, s2, {t_}')
        k.i(f's_mul_i32 {u2}, s2, 3')
        k.i(f's_add_u32 {u2}, {u2}, {wave}')
        k.i(f's_sub_u32 {u2}, {u2}, 5')
        k.i(f's_lshl_b32 {t_}, s2, 3')
        k.i(f's_add_u32 {t_}, {t_}, {wave}')
        k.i(f's_sub_u32 {t_}, {t_}, {216 * 8 - 648}')
        k.i(f's_cmp_ge_u32 s2, 216')
        k.i(f's_cselect_b32 {u2}, {t_}, {u2}')
        k.i(f's_cselect_b32 {t_}, 100, {wave}')
        k.i(f's_cmp_lt_u32 {t_}, 5')
        k.i(f's_cbranch_scc1 p1_sd_wgu_{role}')
        k.i(f's_cmp_lt_u32 {u2}, 560')
        k.i(f's_cbranch_scc1 p1_sd_wdf_{role}')
        k.i(f's_sub_u32 {u2}, {u2}, 560')
        k.i(f's_cmp_lt_u32 {u2}, 200')
        k.i(f's_cselect_b32 {sty}, 2, 3')
        k.i(f's_min_u32 {u2}, {u2}, 199')
        k.i(f's_mul_i32 {q_}, {u2}, 6554')
        k.i(f's_lshr_b32 {q_}, {q_}, 16')
        k.i(f's_mul_i32 {t_}, {q_}, 10')
        k.i(f's_sub_u32 {t_}, {u2}, {t_}')
        k.i(f's_lshl_b32 {scol}, {t_}, 7')
        k.i(f's_mul_i32 {sdst}, {q_}, 40')
        k.i(f's_lshl_b32 {t_}, {t_}, 2')
        k.i(f's_add_u32 {sdst}, {sdst}, {t_}')
        k.i(f's_lshl_b32 {sdst}, {sdst}, 10')
        k.i(f's_add_u32 {sdst}, {sdst}, {WS_WOF}')
        k.i(f's_mul_i32 {t_}, {q_}, 52')
        k.i(f's_lshr_b32 {t_}, {t_}, 8')
        k.i(f's_mul_i32 {srowA}, {t_}, 160')
        k.i(f's_mul_i32 {t_}, {t_}, 5')
        k.i(f's_sub_u32 {srowB}, {q_}, {t_}')
        k.i(f's_mov_b32 {ska}, {KA_WO}')
        k.i(f's_mov_b32 {sstr}, 1280')
        k.i(f's_branch p1_sd_done_{role}')
        k.raw(f'p1_sd_wdf_{role}:')
        k.i(f's_mul_i32 {q_}, {u2}, 6554')
        k.i(f's_lshr_b32 {q_}, {q_}, 16')
        k.i(f's_mul_i32 {t_}, {q_}, 10')
        k.i(f's_sub_u32 {t_}, {u2}, {t_}')
        k.i(f's_lshl_b32 {scol}, {t_}, 7')
        k.i(f's_mul_i32 {sdst}, {q_}, 40')
        k.i(f's_lshl_b32 {t_}, {t_}, 2')
        k.i(f's_add_u32 {sdst}, {sdst}, {t_}')
        k.i(f's_lshl_b32 {sdst}, {sdst}, 10')
        k.i(f's_add_u32 {sdst}, {sdst}, {WS_WDF}')
        k.i(f's_sub_u32 {t_}, {q_}, 8')
        k.i(f's_and_b32 {t_}, {t_}, 63')
        k.i(f's_mul_i32 {p_}, {t_}, 86')
        k.i(f's_lshr_b32 {p_}, {p_}, 8')
        k.i(f's_lshl_b32 {srowA}, {t_}, 1')
        k.i(f's_add_u32 {srowA}, {srowA}, {p_}')
        k.i(f's_add_u32 {srowB}, {srowA}, 1')
        k.i(f's_mul_i32 {t_}, {q_}, 14')
        k.i(f's_add_u32 {t2_}, {t_}, 13')
        k.i(f's_min_u32 {t2_}, {t2_}, 107')
        k.i(f's_add_u32 {t_}, {t_}, 6')
        k.i(f's_cmp_lt_u32 {q_}, 8')
        k.i(f's_cselect_b32 {srowA}, {t_}, {srowA}')
        k.i(f's_cselect_b32 {srowB}, {t2_}, {srowB}')
        k.i(f's_lshl_b32 {srowA}, {srowA}, 4')
        k.i(f's_lshl_b32 {srowB}, {srowB}, 4')
        k.i(f's_mov_b32 {sty}, 1')
        k.i(f's_mov_b32 {ska}, {KA_WD}')
        k.i(f's_mov_b32 {sstr}, 1280')
        k.i(f's_branch p1_sd_done_{role}')
        k.raw(f'p1_sd_wgu_{role}:')
        k.i(f's_lshl_b32 {t2_}, {wave}, 2')
        k.i(f's_lshr_b32 {t2_}, 0x47520, {t2_}')
        k.i(f's_and_b32 {t2_}, {t2_}, 15')
        k.i(f's_mul_i32 {srowA}, {ks}, 10')
        k.i(f's_add_u32 {srowA}, {srowA}, {t2_}')
        k.i(f's_cmp_eq_u32 {wave}, 4')
        k.i(f's_cselect_b32 {t2_}, 5, 1')
        k.i(f's_add_u32 {srowB}, {srowA}, {t2_}')
        k.i(f's_lshl_b32 {srowA}, {srowA}, 4')
        k.i(f's_lshl_b32 {srowB}, {srowB}, 4')
        k.i(f's_cmp_ge_u32 {cblk}, 27')
        k.i(f's_cselect_b32 {ska}, {KA_WU}, {KA_WG}')
        k.i(f's_cselect_b32 {t_}, 27, 0')
        k.i(f's_cselect_b32 {t2_}, 112, 0')
        k.i(f's_sub_u32 {t_}, {cblk}, {t_}')
        k.i(f's_lshl_b32 {scol}, {t_}, 7')
        k.i(f's_lshl_b32 {t_}, {t_}, 2')
        k.i(f's_add_u32 {p_}, {t_}, {t2_}')
        k.i(f's_mul_i32 {sdst}, {ks}, 5')
        k.i(f's_add_u32 {sdst}, {sdst}, {wave}')
        k.i(f's_mul_i32 {sdst}, {sdst}, 224')
        k.i(f's_add_u32 {sdst}, {sdst}, {p_}')
        k.i(f's_lshl_b32 {sdst}, {sdst}, 10')
        k.i(f's_add_u32 {sdst}, {sdst}, {WS_WGU}')
        k.i(f's_mov_b32 {sty}, 0')
        k.i(f's_mov_b32 {sstr}, {F * 2}')
        k.raw(f'p1_sd_done_{role}:')
        k.i(f's_load_dwordx2 {psd}, s[0:1], {ska}')

    sws = k.srd(c.ws, WS_END)
    so, st1, st2 = k.s(), k.s(), k.s()
    E = Ctx()
    PR = k.v(16, align=1)
    SA = k.v(4, align=1)
    ssd = k.s(4)
    E.sl2, E.sq, E.skv = k.s(), k.s(), k.s()
    hh, ft = k.s(), k.s()

    def epi_addr(tmp):
        hq, qa, ql, ka = tmp[0], PR[0], PR[1], PR[2]
        sq = E.sq
        E.qa, E.ql, E.ka, E.qk_a, E.sgl, E.ka2 = qa, ql, ka, PR[3], PR[14], PR[15]
        hd, sg = tmp[2], tmp[3]
        k.i(f'v_and_b32 {hd}, 1, {G}')
        k.i(f'v_lshrrev_b32 {sg}, 1, {G}')
        k.i(f'v_lshlrev_b32 {PR[14]}, 31, {sg}')
        k.i(f'v_xor_b32 {PR[14]}, {fhex(LOG2E)}, {PR[14]}')
        k.i(f's_lshl_b32 {so}, {hp}, 1')
        k.i(f'v_add_u32 {hq}, {so}, {hd}')
        k.i(f'v_lshlrev_b32 {qa}, 10, {hq}')
        k.i(f'v_lshl_add_u32 {qa}, {n}, 4, {qa}')
        k.i(f'v_lshl_add_u32 {qa}, {sg}, 9, {qa}')
        k.i(f'v_lshrrev_b32 {ql}, 2, {hq}')
        k.i(f'v_add_u32 {ql}, 32, {ql}')
        k.i(f'v_lshlrev_b32 {ql}, 10, {ql}')
        k.i(f'v_and_b32 {tmp[4]}, 3, {hq}')
        k.i(f'v_lshl_add_u32 {ql}, {tmp[4]}, 8, {ql}')
        k.i(f'v_lshl_add_u32 {ql}, {n}, 4, {ql}')
        k.i(f'v_lshl_add_u32 {ql}, {sg}, 3, {ql}')
        k.i(f'v_mul_u32_u24 {ka}, 160, {n}')
        k.i(f'v_mul_u32_u24 {tmp[4]}, 80, {hd}')
        k.i(f'v_add_u32 {ka}, {ka}, {tmp[4]}')
        k.i(f's_mul_i32 {so}, {wave}, 2560')
        k.i(f's_add_u32 {so}, {so}, {LPK}')
        k.i(f'v_add_u32 {ka}, {so}, {ka}')
        k.i(f'v_lshl_add_u32 {PR[15]}, {sg}, 3, {ka}')
        k.i(f'v_add_u32 {PR[15]}, 64, {PR[15]}')
        k.i(f'v_lshl_add_u32 {ka}, {sg}, 5, {ka}')
        k.i(f's_lshl_b32 {sq}, {mt}, 3')
        k.i(f's_add_u32 {sq}, {sq}, {wave}')
        k.i(f's_mul_i32 {sq}, {sq}, 40960')
        k.i(f's_add_u32 {sq}, {sq}, {WS_PHIQ}')
        k.i(f's_mul_i32 {so}, {wave}, 5120')
        k.i(f's_add_u32 {so}, {so}, {LQK}')
        k.i(f'v_lshlrev_b32 {PR[3]}, 8, {hd}')
        k.i(f'v_lshl_add_u32 {PR[3]}, {n}, 4, {PR[3]}')
        k.i(f'v_add_u32 {PR[3]}, {so}, {PR[3]}')
        k.i(f's_cmp_ge_u32 {wave}, 3')
        k.i(f's_cselect_b32 {hh}, 1, 0')
        k.i(f's_mul_i32 {ft}, {hh}, 3')
        k.i(f's_sub_u32 {ft}, {wave}, {ft}')
        tb, ta = PR[4], PR[5]
        E.tb, E.ta = tb, ta
        rr_, cc_ = tmp[4], tmp[5]
        k.i(f'v_lshrrev_b32 {rr_}, 2, {lane}')
        k.i(f'v_and_b32 {cc_}, 3, {lane}')
        k.i(f'v_mul_u32_u24 {tb}, 160, {rr_}')
        k.i(f'v_lshl_add_u32 {tb}, {cc_}, 3, {tb}')
        k.i(f's_mul_i32 {so}, {hh}, 80')
        k.i(f's_lshl_b32 {st1}, {ft}, 5')
        k.i(f's_add_u32 {so}, {so}, {st1}')
        k.i(f's_add_u32 {so}, {so}, {LPK}')
        k.i(f'v_add_u32 {tb}, {so}, {tb}')
        k.i(f'v_mul_u32_u24 {ta}, 96, {rr_}')
        k.i(f'v_lshl_add_u32 {ta}, {cc_}, 3, {ta}')
        k.i(f's_lshl_b32 {so}, {hh}, 5')
        k.i(f's_add_u32 {so}, {so}, {LV}')
        k.i(f'v_add_u32 {ta}, {so}, {ta}')
        aa = PR[6:14]
        E.aa = aa
        fo, dr = tmp[6], tmp[7]
        k.i(f's_lshl_b32 {so}, {ft}, 4')
        k.i(f'v_add_u32 {fo}, {so}, {n}')
        k.i(f'v_cmp_lt_u32 vcc, 39, {fo}')
        k.i(f'v_lshlrev_b32 {fo}, 2, {fo}')
        big = tmp[1]
        k.i(f'v_mov_b32 {big}, 0x7f000000')
        k.i(f'v_cndmask_b32 {fo}, {fo}, {big}, vcc')
        k.i(f's_lshl_b32 {so}, {hh}, 3')
        for dt in range(2):
            for r in range(4):
                a = aa[dt * 4 + r]
                k.i(f'v_lshlrev_b32 {dr}, 2, {G}')
                k.i(f'v_add_u32 {dr}, {16 * dt + r}, {dr}')
                k.i(f'v_subrev_u32 {dr}, {so}, {dr}')
                k.i(f'v_cmp_lt_u32 vcc, 20, {dr}')
                k.i(f'v_mul_u32_u24 {a}, 160, {dr}')
                k.i(f'v_add_u32 {a}, {a}, {fo}')
                k.i(f'v_cndmask_b32 {a}, {a}, {big}, vcc')
        skv = E.skv
        k.i(f's_lshl_b32 {skv}, {hp}, 1')
        k.i(f's_add_u32 {skv}, {skv}, {hh}')
        k.i(f's_mul_i32 {skv}, {skv}, {KVS}')
        k.i(f's_add_u32 {skv}, {skv}, {WS_KV}')

    k.i(f's_cmp_ge_u32 {wave}, 4')
    k.i('s_cbranch_scc1 p1_helper')
    st0 = save_state(k)

    def side_srd():
        k.i(f's_mov_b32 {ssd[0]}, {psd[0]}')
        k.i(f's_and_b32 {ssd[1]}, {psd[1]}, 0xffff')
        k.i(f's_cmp_eq_u32 {sty}, 2')
        k.i(f's_mov_b32 {ssd[2]}, {D * F * 2}')
        k.i(f's_cselect_b32 {ssd[2]}, {D * D * 2}, {ssd[2]}')
        k.i(f's_mov_b32 {ssd[3]}, 0x00020000')
        return ssd

    def side_issue():
        k.i(f's_lshl_b32 {so}, {wave}, 12')
        k.i(f's_add_u32 {so}, {so}, {LSIDE}')
        for i in range(4):
            k.i(f's_add_u32 m0, {so}, {1024 * i}')
            k.i(f'buffer_load_dwordx4 {SA[i]}, {ssd}, {scol} offen lds', tag='side')

    def side_addr(tv):
        side_srd()
        rho, r1, r2, r3, ad, cc = tv[0], tv[1], tv[2], tv[3], tv[4], tv[5]
        k.i(f'v_and_b32 {cc}, 7, {lane}')
        k.i(f'v_lshlrev_b32 {cc}, 4, {cc}')
        k.i(f's_lshl_b32 {so}, {wave}, 12')
        k.i(f's_add_u32 {so}, {so}, {LSIDE}')
        msk = k.s(2)
        k.i(f's_cmp_eq_u32 {sty}, 2')
        k.i(f's_cselect_b64 {msk}, -1, 0')
        for i in range(4):
            k.i(f'v_lshrrev_b32 {rho}, 3, {lane}')
            k.i(f'v_add_u32 {rho}, {8 * i}, {rho}')
            if i < 2:
                k.i(f'v_add_u32 {r1}, {srowA}, {rho}')
            else:
                k.i(f'v_add_u32 {r1}, {srowB}, {rho}')
                k.i(f'v_subrev_u32 {r1}, 16, {r1}')
            k.i(f's_lshl_b32 {st1}, {srowB}, 3')
            k.i(f'v_and_b32 {r2}, 3, {rho}')
            k.i(f'v_add_u32 {r2}, {st1}, {r2}')
            if i >= 2:
                k.i(f'v_add_u32 {r2}, 4, {r2}')
            k.i(f'v_and_b32 {r2}, 63, {r2}')
            k.i(f'v_mul_u32_u24 {r3}, 52, {r2}')
            k.i(f'v_lshrrev_b32 {r3}, 8, {r3}')
            k.i(f'v_mad_u32_u24 {r2}, {r3}, 15, {r2}')
            k.i(f'v_bfe_u32 {r3}, {rho}, 2, 2')
            k.i(f'v_mad_u32_u24 {r2}, {r3}, 5, {r2}')
            k.i(f'v_add_u32 {r2}, {srowA}, {r2}')
            k.i(f'v_cndmask_b32 {r1}, {r1}, {r2}, {msk}')
            k.i(f'v_mul_lo_u32 {ad}, {r1}, {sstr}')
            k.i(f'v_add_u32 {SA[i]}, {ad}, {cc}')

    def epilogue(R, role):
        tmp = R[0:8]
        P, ph = R[8:28], R[28:40]
        cb, sb = R[152:160], R[160:168]
        k.i(f'v_lshlrev_b32 {tmp[1]}, 4, {G}')
        k.i(f's_lshl_b32 {so}, {srowA}, 2')
        k.i(f's_lshl_b32 {st1}, {srowB}, 2')
        k.i(f's_add_u32 {so}, {so}, {WS_MOD + 3 * 2560}')
        k.i(f's_add_u32 {st1}, {st1}, {WS_MOD + 3 * 2560}')
        k.i(f'buffer_load_dwordx4 {sb[0:4]}, {tmp[1]}, {sws}, {so} offen', tag='side')
        k.i(f'buffer_load_dwordx4 {sb[4:8]}, {tmp[1]}, {sws}, {st1} offen', tag='side')
        k.i(f'buffer_load_dwordx4 {cb[0:4]}, {tmp[1]}, {sws}, {so} offen offset:2560', tag='side')
        k.i(f'buffer_load_dwordx4 {cb[4:8]}, {tmp[1]}, {sws}, {st1} offen offset:2560', tag='side')
        qa, ql, ka, qk_a, sgl, sq = E.qa, E.ql, E.ka, E.qk_a, E.sgl, E.sq
        tb, ta, aa, skv = E.tb, E.ta, E.aa, E.skv

        def softmax(P, ph, tmp):
            mx, s0, s1 = tmp[0], tmp[1], tmp[2]
            for i in range(20):
                k.i(f'v_mul_f32 {P[i]}, {P[i]}, {sgl}')
            k.i(f'v_max3_f32 {mx}, {P[0]}, {P[1]}, {P[2]}')
            k.i(f'v_max3_f32 {s0}, {P[3]}, {P[4]}, {P[5]}')
            for i in range(6, 18, 4):
                k.i(f'v_max3_f32 {mx}, {mx}, {P[i]}, {P[i + 1]}')
                k.i(f'v_max3_f32 {s0}, {s0}, {P[i + 2]}, {P[i + 3]}')
            k.i(f'v_max3_f32 {mx}, {mx}, {P[18]}, {P[19]}')
            k.i(f'v_max_f32 {mx}, {mx}, {s0}')
            for i in range(20):
                k.i(f'v_sub_f32 {P[i]}, {P[i]}, {mx}')
            for i in range(20):
                k.i(f'v_exp_f32 {P[i]}, {P[i]}')
            k.i(f'v_add_f32 {s0}, {P[0]}, {P[1]}')
            k.i(f'v_add_f32 {s1}, {P[2]}, {P[3]}')
            for i in range(4, 20, 2):
                k.i(f'v_add_f32 {s0}, {s0}, {P[i]}')
                k.i(f'v_add_f32 {s1}, {s1}, {P[i + 1]}')
            k.i(f'v_add_f32 {s0}, {s0}, {s1}')
            k.i(f'v_rcp_f32 {s0}, {s0}')
            for i in range(20):
                k.i(f'v_mul_f32 {P[i]}, {P[i]}, {s0}')
            for i in range(10):
                k.i(f'v_cvt_pk_bf16_f32 {ph[i]}, {P[2 * i]}, {P[2 * i + 1]}')

        k.barrier()
        k.ts()
        PQ, phq = R[40:60], R[60:72]
        for t in range(5):
            k.i(f'ds_read_b128 {P[4 * t:4 * t + 4]}, {qk_a} offset:{1024 * t}')
        for t in range(5):
            k.i(f'ds_read_b128 {PQ[4 * t:4 * t + 4]}, {qk_a} offset:{1024 * t + 512}')
        softmax(P, ph, tmp)
        k.i(f'ds_write_b128 {ka}, {ph[0:4]}')
        k.i(f'ds_write_b128 {ka}, {ph[4:8]} offset:16')
        k.i(f'ds_write_b64 {E.ka2}, {ph[8:10]}')
        k.barrier()
        k.ts()
        lab = f'p1_nokv_{role}'
        if role == 'h':
            k.i(f's_cmp_ge_u32 {wave}, 6')
            k.i(f's_cbranch_scc1 {lab}')
        Bf, Af, Dd = R[104:120], R[120:152], R[8:16]
        for kk in range(4):
            for hf in range(2):
                k.i(f'ds_read_b64_tr_b16 {Bf[kk * 4 + 2 * hf:kk * 4 + 2 * hf + 2]}, {tb} offset:{(kk * 32 + hf * 16) * 160}')
            for dt in range(2):
                for hf in range(2):
                    b = (kk * 2 + dt) * 4 + 2 * hf
                    k.i(f'ds_read_b64_tr_b16 {Af[b:b + 2]}, {ta} offset:{(kk * 32 + hf * 16) * 96 + dt * 32}')
        for kk in range(4):
            for dt in range(2):
                d = Dd[dt * 4:dt * 4 + 4]
                k.i(f'v_mfma_f32_16x16x32_bf16 {d}, {Af[(kk * 2 + dt) * 4:(kk * 2 + dt) * 4 + 4]}, {Bf[kk * 4:kk * 4 + 4]}, {0 if kk == 0 else d}')
        k.wait_tag('side')
        for i in range(8):
            k.i(f'buffer_atomic_add_f32 {Dd[i]}, {aa[i]}, {sws}, {skv} offen')
        if role == 'h':
            k.raw(f'{lab}:')
            k._join()
            k.lines.append('  s_cmp_ge_u32 %s, 6' % wave)
            k.lines.append(f'  s_cbranch_scc0 {lab}_b')
            k.lines.append('  s_waitcnt vmcnt(0)')
            k.raw(f'{lab}_b:')
        k.ts()
        softmax(PQ, phq, tmp)
        k.i(f'buffer_store_dwordx4 {phq[0:4]}, {qa}, {sws}, {sq} offen')
        k.i(f'buffer_store_dwordx4 {phq[4:8]}, {qa}, {sws}, {sq} offen offset:256')
        k.i(f'buffer_store_dwordx2 {phq[8:10]}, {ql}, {sws}, {sq} offen')
        k.ts()
        Wf = R[16:32]
        k.i(f'v_lshrrev_b32 {tmp[0]}, 2, {lane}')
        k.i(f'v_lshlrev_b32 {tmp[0]}, 7, {tmp[0]}')
        k.i(f'v_and_b32 {tmp[1]}, 3, {lane}')
        k.i(f'v_lshl_add_u32 {tmp[0]}, {tmp[1]}, 3, {tmp[0]}')
        k.i(f's_lshl_b32 {so}, {wave}, 12')
        k.i(f's_add_u32 {so}, {so}, {LSIDE}')
        k.i(f'v_add_u32 {tmp[0]}, {so}, {tmp[0]}')
        for c4 in range(4):
            for hf in range(2):
                k.i(f'ds_read_b64_tr_b16 {Wf[c4 * 4 + 2 * hf:c4 * 4 + 2 * hf + 2]}, {tmp[0]} offset:{hf * 2048 + c4 * 32}')
        l2 = f'p1_noscale_{role}'
        k.i(f's_cmp_lg_u32 {sty}, 0')
        k.i(f's_cbranch_scc1 {l2}')
        stx = (list(k.vm), list(k.lg))
        Bs, Bo = R[72:76], R[76:80]
        for q in range(4):
            k.i(f'v_cvt_pk_bf16_f32 {Bs[q]}, {sb[2 * q]}, {sb[2 * q + 1]}')
            k.i(f'v_mov_b32 {Bo[q]}, 0x3f803f80')
        Db, Dc = R[80:96], R[96:112]
        for c4 in range(4):
            k.i(f'v_mfma_f32_16x16x32_bf16 {Db[c4 * 4:c4 * 4 + 4]}, {Wf[c4 * 4:c4 * 4 + 4]}, {Bs}, 0')
        for c4 in range(4):
            for q in range(4):
                w = Wf[c4 * 4 + q]
                lo, hi = tmp[2 + (q & 1) * 2], tmp[3 + (q & 1) * 2]
                k.i(f'v_lshlrev_b32 {lo}, 16, {w}')
                k.i(f'v_and_b32 {hi}, 0xffff0000, {w}')
                k.i(f'v_mul_f32 {lo}, {lo}, {cb[2 * q]}')
                k.i(f'v_mul_f32 {hi}, {hi}, {cb[2 * q + 1]}')
                k.i(f'v_cvt_pk_bf16_f32 {w}, {lo}, {hi}')
        for c4 in range(4):
            k.i(f'v_mfma_f32_16x16x32_bf16 {Dc[c4 * 4:c4 * 4 + 4]}, {Wf[c4 * 4:c4 * 4 + 4]}, {Bo}, 0')
        k.i(f'v_lshlrev_b32 {tmp[1]}, 4, {G}')
        k.i(f's_lshl_b32 {so}, {wave}, 9')
        k.i(f's_add_u32 {so}, {so}, {LCS}')
        k.i(f'v_add_u32 {tmp[1]}, {so}, {tmp[1]}')
        k.i('s_mov_b32 exec_lo, 0x00010001')
        k.i('s_mov_b32 exec_hi, 0x00010001')
        for c4 in range(4):
            k.i(f'ds_write_b128 {tmp[1]}, {Dc[c4 * 4:c4 * 4 + 4]} offset:{c4 * 64}')
            k.i(f'ds_write_b128 {tmp[1]}, {Db[c4 * 4:c4 * 4 + 4]} offset:{256 + c4 * 64}')
        k.i('s_mov_b64 exec, -1')
        k.raw(f'{l2}:')
        k._join()
        k.lines.append('  s_waitcnt lgkmcnt(0)')
        k.lg = []
        k.nop(2)
        l3 = f'p1_nostore_{role}'
        k.i(f's_cmp_eq_u32 {sty}, 3')
        k.i(f's_cbranch_scc1 {l3}')
        k.i(f's_cmp_eq_u32 {scol}, {26 * 128}')
        k.i(f's_cselect_b32 {so}, 4096, 0')
        k.i(f's_add_u32 {so}, {so}, {sdst}')
        for c4 in range(4):
            k.lines.append(f'  buffer_store_dwordx4 {Wf[c4 * 4:c4 * 4 + 4]}, {l16}, {sws}, {sdst if c4 < 3 else so} offen offset:{1024 * c4}')
        k.raw(f'{l3}:')
        k._join()
        k.i('s_barrier')
        if role == 'c':
            k.i(f's_cmp_ge_u32 {wave}, 2')
            k.i(f's_cselect_b32 {so}, 1000, s2')
            k.i(f's_cmp_ge_u32 {so}, 216')
            k.i(f's_cbranch_scc1 p1_fin_c')
            k.i(f'v_lshlrev_b32 {tmp[0]}, 2, v0')
            k.i(f'v_add_u32 {tmp[0]}, {LCS}, {tmp[0]}')
            for w in range(5):
                k.i(f'ds_read_b32 {tmp[1 + w]}, {tmp[0]} offset:{512 * w}')
            k.i(f'v_add_f32 {tmp[1]}, {tmp[1]}, {tmp[2]}')
            k.i(f'v_add_f32 {tmp[3]}, {tmp[3]}, {tmp[4]}')
            k.i(f'v_add_f32 {tmp[1]}, {tmp[1]}, {tmp[5]}')
            k.i(f'v_add_f32 {tmp[1]}, {tmp[1]}, {tmp[3]}')
            k.i(f's_lshl_b32 {so}, {ks}, 1')
            k.i(f's_add_u32 {so}, {so}, {wave}')
            k.i(f's_mul_i32 {so}, {so}, {3584 * 4}')
            k.i(f's_lshl_b32 {st1}, {p_}, 6')
            k.i(f's_add_u32 {so}, {so}, {st1}')
            k.i(f's_add_u32 {so}, {so}, {WS_CSB}')
            k.i(f'v_lshlrev_b32 {tmp[0]}, 2, {lane}')
            k.i(f's_cmp_eq_u32 {scol}, {26 * 128}')
            k.i(f's_cselect_b32 {st1}, 256, 0')
            k.i(f'v_mov_b32 {tmp[2]}, {st1}')
            k.i(f'v_cmp_lt_u32 vcc, 47, {lane}')
            k.i(f'v_cndmask_b32 {tmp[2]}, 0, {tmp[2]}, vcc')
            k.i(f'v_add_u32 {tmp[0]}, {tmp[0]}, {tmp[2]}')
            k.i(f'buffer_store_dword {tmp[1]}, {tmp[0]}, {sws}, {so} offen')
            k.raw('p1_fin_c:')
            k._join()
        k.ts()
        k.ts_end()
        k.i('s_endpgm')

    acc = k.v(64)
    Fr = k.v(64)
    R = k.v(40)
    th, ch = k.s(), k.s()
    k.i(f's_and_b32 {th}, {wave}, 1')
    k.i(f's_lshr_b32 {ch}, {wave}, 1')
    ha, wa = k.v(2, align=1), k.v(2, align=1)
    k.i(f's_lshl_b32 {so}, {th}, 12')
    k.i(f's_add_u32 {so}, {so}, 8192')
    k.i(f'v_add_u32 {ha[0]}, {so}, {l16}')
    k.i(f'v_add_u32 {ha[1]}, 65536, {ha[0]}')
    k.i(f's_lshl_b32 {so}, {ch}, 12')
    k.i(f'v_add_u32 {wa[0]}, {so}, {l16}')
    k.i(f'v_add_u32 {wa[1]}, 65536, {wa[0]}')
    side_decode('c')
    epi_addr(R[0:8])
    side_addr(R[0:6])

    def prep(J):
        L = []
        b = J & 1
        blk = J % 8
        for i in range(4):
            o = (blk & 3) * 16384 + i * 1024
            L.append(f'ds_read_b128 {Fr[(b * 8 + 4 + i) * 4:(b * 8 + 4 + i) * 4 + 4]}, {wa[blk >> 2]} offset:{o}')
            L.append(f'ds_read_b128 {Fr[(b * 8 + i) * 4:(b * 8 + i) * 4 + 4]}, {ha[blk >> 2]} offset:{o}')
        return L

    def mfmas(J):
        L = []
        b = J & 1
        for d in range(7):
            for ci in range(4):
                ti = d - ci
                if 0 <= ti < 4:
                    a = acc[(ci * 4 + ti) * 4:(ci * 4 + ti) * 4 + 4]
                    L.append(f'v_mfma_f32_16x16x32_bf16 {a}, {Fr[(b * 8 + 4 + ci) * 4:(b * 8 + 4 + ci) * 4 + 4]}, {Fr[(b * 8 + ti) * 4:(b * 8 + ti) * 4 + 4]}, {0 if J == 0 else a}')
        return L

    k.ts()
    k.barrier()
    k.ts()
    for x in prep(0):
        k.i(x)
    for J in range(20):
        if J == 10:
            k.ts()
        if J + 1 < 20:
            if (J + 1) % KPS == 0:
                k.barrier()
            interleave(k, mfmas(J), prep(J + 1), lead=4)
        else:
            for x in mfmas(J):
                k.i(x)
    k.ts()
    side_issue()
    da = R[8]
    k.i(f's_mul_i32 {so}, {th}, {4 * 5120}')
    k.i(f's_add_u32 {so}, {so}, {LQK}')
    k.i(f'v_add_u32 {da}, {so}, {l16}')
    k.i(f's_cmp_eq_u32 {ch}, 1')
    k.i('s_cbranch_scc1 p1_dump1')
    stx = (list(k.vm), list(k.lg))
    for ci in range(4):
        for ti in range(4):
            k.i(f'ds_write_b128 {da}, {acc[(ci * 4 + ti) * 4:(ci * 4 + ti) * 4 + 4]} offset:{ti * 5120 + ci * 1024}')
    k.i('s_branch p1_dumped')
    k.raw('p1_dump1:')
    k._join()
    k.vm, k.lg = list(stx[0]), list(stx[1])
    for ti in range(4):
        k.i(f'ds_write_b128 {da}, {acc[ti * 4:ti * 4 + 4]} offset:{ti * 5120 + 4096}')
    va = R[9]
    k.i(f'v_mul_u32_u24 {va}, 96, {n}')
    k.i(f'v_lshl_add_u32 {va}, {G}, 3, {va}')
    k.i(f's_mul_i32 {so}, {th}, {64 * 96}')
    k.i(f's_add_u32 {so}, {so}, {LV}')
    k.i(f'v_add_u32 {va}, {so}, {va}')
    m1, m3 = k.s(2), k.s(2)
    k.i(f'v_cmp_eq_u32 {m1}, 1, {G}')
    k.i(f'v_cmp_eq_u32 {m3}, 3, {G}')
    for ci in range(1, 4):
        for ti in range(4):
            a = acc[(ci * 4 + ti) * 4:(ci * 4 + ti) * 4 + 4]
            if ci == 2:
                k.i(f'v_cndmask_b32 {a[0]}, {a[0]}, 1.0, {m1}')
            if ci == 3:
                k.i(f'v_cndmask_b32 {a[0]}, {a[0]}, 1.0, {m3}')
            o = R[12 + ((ci * 4 + ti) % 8) * 2:12 + ((ci * 4 + ti) % 8) * 2 + 2]
            k.i(f'v_cvt_pk_bf16_f32 {o[0]}, {a[0]}, {a[1]}')
            k.i(f'v_cvt_pk_bf16_f32 {o[1]}, {a[2]}, {a[3]}')
            k.i(f'ds_write_b64 {va}, {o} offset:{ti * 16 * 96 + (ci - 1) * 32}')
    k.raw('p1_dumped:')
    k._join()
    k.lines.append('  s_waitcnt lgkmcnt(0)')
    k.lg = []
    RR = R_(acc.base, 168)
    epilogue(RR, 'c')

    restore_state(k, st0)
    k.label('p1_helper')
    hw = k.s()
    k.i(f's_sub_u32 {hw}, {wave}, 4')
    DX = int(os.environ.get('P1_DX', 4))
    X = k.v(168)
    tmp = X[0:8]
    cf = X[8:40]
    ob = X[40:56]
    XR = X[56:56 + 8 * DX]
    LC = 131072
    sxn, swp, sm0 = k.s(), k.s(), k.s()
    k.i(f's_lshl_b32 {sm0}, {hw}, 11')
    k.i(f's_mul_i32 {sxn}, {mt}, 163840')
    k.i(f's_add_u32 {sxn}, {sxn}, {sm0}')
    k.i(f's_add_u32 {sxn}, {sxn}, {WS_XN}')
    k.i(f's_mul_i32 {swp}, {hp}, 163840')
    k.i(f's_add_u32 {swp}, {swp}, {sm0}')
    k.i(f's_add_u32 {swp}, {swp}, {WS_WP}')
    ca, hwa = k.v(), k.v(2, align=1)
    k.i(f'v_lshlrev_b32 {ca}, 5, {G}')

    def xfrag(J, tt):
        b = ((J % DX) * 2 + tt) * 4
        return XR[b:b + 4]

    def w_dma(J):
        k.i(f's_add_u32 {st1}, {swp}, {J * 8192}')
        k.i(f's_add_u32 m0, {sm0}, {(J % 8) * 16384}')
        for i in range(2):
            k.i(f'buffer_load_dwordx4 {l16}, {sws}, {st1} offen offset:{1024 * i} lds', tag=f'w{J}')

    def x_load(J):
        k.i(f's_add_u32 {st2}, {sxn}, {J * 8192}')
        for tt in range(2):
            k.i(f'buffer_load_dwordx4 {xfrag(J, tt)}, {l16}, {sws}, {st2} offen offset:{1024 * tt}')

    k.i(f's_mov_b32 {so}, 2560')
    x_load(0)
    for J in range(2):
        cc = cf[J * 16:J * 16 + 16]
        for q in range(2):
            k.i(f'buffer_load_dwordx4 {cc[4 * q:4 * q + 4]}, {ca}, {sws}, 0 offen offset:{WS_MOD + J * 128 + 16 * q}')
            k.i(f'buffer_load_dwordx4 {cc[8 + 4 * q:8 + 4 * q + 4]}, {ca}, {sws}, {so} offen offset:{WS_MOD + J * 128 + 16 * q}')
        if J == 0:
            w_dma(0)
            x_load(1)
    k.i(f's_lshl_b32 {so}, {hw}, 10')
    k.i(f's_add_u32 m0, {so}, {LC}')
    k.i(f'buffer_load_dwordx4 {l16}, {sws}, {so} offen lds', tag='w0')
    k.i(f's_mov_b32 m0, {LC + 4096}')
    k.i(f's_mov_b32 {so}, 4096')
    k.i(f'buffer_load_dwordx4 {l16}, {sws}, {so} offen lds', tag='w0')
    w_dma(1)
    for J in range(2, max(DX, LA)):
        if J < DX:
            x_load(J)
        if J < LA:
            w_dma(J)
    k.i(f'v_add_u32 {ca}, {LC}, {ca}')
    k.i(f's_add_u32 {so}, {sm0}, 8192')
    k.i(f'v_add_u32 {hwa[0]}, {so}, {l16}')
    k.i(f'v_add_u32 {hwa[1]}, 65536, {hwa[0]}')
    k.ts()
    if os.environ.get('P1_PRIO', '1') != '0':
        k.i(f"s_setprio {os.environ.get('P1_PRIO', '1')}")

    def transform(J):
        cc = cf[(J & 1) * 16:(J & 1) * 16 + 16]
        for tt in range(2):
            x = xfrag(J, tt)
            o = ob[((J & 1) * 2 + tt) * 4:((J & 1) * 2 + tt) * 4 + 4]
            for q in range(4):
                k.i(f'v_lshlrev_b32 {tmp[2 * q]}, 16, {x[q]}')
                k.i(f'v_fma_f32 {tmp[2 * q + 1]}, {x[q]}, {cc[8 + 2 * q + 1]}, {cc[2 * q + 1]}')
            for q in range(4):
                k.i(f'v_fma_f32 {tmp[2 * q]}, {tmp[2 * q]}, {cc[8 + 2 * q]}, {cc[2 * q]}')
            for q in range(4):
                k.i(f'v_cvt_pk_bf16_f32 {o[q]}, {tmp[2 * q]}, {tmp[2 * q + 1]}')
            blk = J % 8
            k.i(f'ds_write_b128 {hwa[blk >> 2]}, {o} offset:{(blk & 3) * 16384 + tt * 1024}')
        if J + DX < 20:
            x_load(J + DX)

    def coeff(Jc):
        c2 = cf[(Jc & 1) * 16:(Jc & 1) * 16 + 16]
        for q in range(2):
            k.i(f'ds_read_b128 {c2[4 * q:4 * q + 4]}, {ca} offset:{Jc * 128 + 16 * q}')
            k.i(f'ds_read_b128 {c2[8 + 4 * q:8 + 4 * q + 4]}, {ca} offset:{2560 + Jc * 128 + 16 * q}')

    assert KPS == 1
    transform(0)
    k.wait_tag('w0')
    k.barrier()
    k.ts()
    coeff(2)
    transform(1)
    for J in range(1, 20):
        if J == 10:
            k.ts()
        if J + 2 < 20:
            coeff(J + 2) if J >= 1 else None
        if J + 1 < 20:
            transform(J + 1)
        if J - 1 + LA < 20:
            w_dma(J - 1 + LA)
        k.wait_tag(f'w{J}')
        k.wait(lg=2 if J + 1 < 20 else 0)
        k.i('s_barrier')
        if J == 2:
            side_decode('h')
            epi_addr(X[100:108])
            side_addr(X[100:106])
    k.i('s_setprio 0')
    k.ts()
    side_issue()
    epilogue(X, 'h')
    k.label('p1_end')
    k.i('s_endpgm')
    return k, 256, 512, 136192


def R_(base, n):
    return R('v', base, n)
```

```python
import os
from g2_common import *

SPIN_MAX = 400000


def gen_p234():
    k = Kernel('p2_kernel')
    c = common_prologue(k, 256, 'p2_end', 2)
    lane, G, n, l16, wave = c.lane, c.G, c.n, c.l16, c.wave
    px, po = k.s(2), k.s(2)
    k.i(f's_load_dwordx2 {px}, s[0:1], {KA_X}')
    k.i(f's_load_dwordx2 {po}, s[0:1], {KA_OUT}')
    sx, sy, so, st1, st2 = k.s(), k.s(), k.s(), k.s(), k.s()
    k.i(f's_and_b32 {sx}, s2, 7')
    k.i(f's_lshr_b32 {sy}, s2, 3')
    mt2, nt2, mt3, nt3 = k.s(), k.s(), k.s(), k.s()
    k.i(f's_lshl_b32 {mt2}, {sx}, 2')
    k.i(f's_and_b32 {nt2}, {sy}, 3')
    k.i(f's_add_u32 {mt2}, {mt2}, {nt2}')
    k.i(f's_lshr_b32 {nt2}, {sy}, 2')
    k.i(f's_and_b32 {mt3}, {sx}, 1')
    k.i(f's_lshl_b32 {mt3}, {mt3}, 3')
    k.i(f's_and_b32 {nt3}, {sy}, 7')
    k.i(f's_add_u32 {mt3}, {mt3}, {nt3}')
    k.i(f's_lshr_b32 {nt3}, {sx}, 1')
    k.i(f's_lshl_b32 {nt3}, {nt3}, 2')
    k.i(f's_lshr_b32 {so}, {sy}, 3')
    k.i(f's_add_u32 {nt3}, {nt3}, {so}')
    sws = k.srd(c.ws, WS_END)
    t1, t2, t3 = k.v(), k.v(), k.v()
    LCNT = 163840 - 64
    mk_common = k.mark()

    KVB = 102400
    hg, th = k.s(), k.s()
    k.i(f's_and_b32 {hg}, {wave}, 3')
    k.i(f's_lshr_b32 {th}, {wave}, 2')
    PQ = k.v(64)
    PL = k.v(16)
    KR = k.v(28)
    WA = KR[0:20]
    AF = k.v(32)
    O = k.v(16)
    Xf = k.v(24)
    acc = k.v(40)
    carry = k.v(2, align=1)
    skv, spq, spl, swo, slw = k.s(), k.s(), k.s(), k.s(), k.s()
    k.i(f's_mul_i32 {skv}, {hg}, {8 * KVS}')
    k.i(f's_lshl_b32 {so}, {th}, 10')
    k.i(f's_add_u32 {skv}, {skv}, {so}')
    k.i(f's_lshl_b32 {spq}, {mt2}, 1')
    k.i(f's_add_u32 {spq}, {spq}, {th}')
    k.i(f's_mul_i32 {spq}, {spq}, {2 * 40960}')
    k.i(f's_add_u32 {spq}, {spq}, {WS_PHIQ}')
    k.i(f's_lshl_b32 {so}, {hg}, 11')
    k.i(f's_add_u32 {spl}, {spq}, {so}')
    k.i(f's_add_u32 {spl}, {spl}, {32 * 1024}')
    k.i(f's_lshl_b32 {so}, {hg}, 13')
    k.i(f's_add_u32 {spq}, {spq}, {so}')

    def kv_load(u):
        k.i(f's_add_u32 {so}, {skv}, {WS_KV + u * 4 * KVS}')
        for i in range(7):
            if i % 2 == 0 and i:
                k.i(f's_add_u32 {so}, {so}, 4096')
            k.i(f'buffer_load_dwordx4 {KR[4 * i:4 * i + 4]}, {l16}, {sws}, {so} offen offset:{(i % 2) * 2048}')

    def pq_load(hh):
        for t in range(2):
            k.i(f's_add_u32 {so}, {spq}, {t * 40960 + hh * 1024}')
            k.i(f'buffer_load_dwordx4 {PQ[(hh * 2 + t) * 4:(hh * 2 + t) * 4 + 4]}, {l16}, {sws}, {so} offen')

    def pl_load(u):
        for t in range(2):
            k.i(f's_add_u32 {so}, {spl}, {t * 40960 + u * 1024}')
            k.i(f'buffer_load_dwordx4 {PL[(u * 2 + t) * 4:(u * 2 + t) * 4 + 4]}, {l16}, {sws}, {so} offen')

    kv_load(0)
    pl_load(0)
    pq_load(0)
    pq_load(1)
    k.i(f's_mul_i32 {swo}, {hg}, {5 * 40 * 1024}')
    k.i(f's_mul_i32 {so}, {nt2}, 5120')
    k.i(f's_add_u32 {swo}, {swo}, {so}')
    k.i(f's_lshl_b32 {so}, {th}, 10')
    k.i(f's_add_u32 {swo}, {swo}, {so}')
    k.i(f's_add_u32 {swo}, {swo}, {WS_WOF}')
    k.i(f's_mul_i32 {slw}, {hg}, 25600')
    k.i(f's_add_u32 {slw}, {slw}, {so}')

    def wo_dma(j, tag):
        k.i(f's_add_u32 {so}, {swo}, {j * 40960}')
        k.i(f's_add_u32 m0, {slw}, {j * 5120}')
        k.i(f'buffer_load_dwordx4 {l16}, {sws}, {so} offen lds', tag=tag)
        k.i(f'buffer_load_dwordx4 {l16}, {sws}, {so} offen offset:2048 lds', tag=tag)

    def wo_dma4(j0, tag):
        jj = 0 if j0 == 4 else 1
        k.i(f's_mul_i32 {st1}, {th}, {jj * 40960 - 1024}')
        k.i(f's_add_u32 {so}, {swo}, {j0 * 40960 + 4096}')
        k.i(f's_add_u32 {so}, {so}, {st1}')
        k.i(f's_mul_i32 {st1}, {th}, {jj * 5120 - 1024}')
        k.i(f's_add_u32 {st1}, {st1}, {slw}')
        k.i(f's_add_u32 m0, {st1}, {j0 * 5120 + 4096}')
        k.i(f'buffer_load_dwordx4 {l16}, {sws}, {so} offen lds', tag=tag)

    k.i(f'v_mov_b32 {t1}, {LCNT}')
    k.i(f'v_mov_b32 {t2}, 0')
    k.i(f'ds_write_b32 {t1}, {t2}')
    k.i(f'ds_write_b32 {t1}, {t2} offset:4')
    a0, a1, kvw, woa = k.v(), k.v(), k.v(), k.v()
    aL = k.v(8, align=1)
    k.i(f's_mul_i32 {st1}, {hg}, {8 * 1792}')
    k.i(f's_add_u32 {st1}, {st1}, {KVB}')
    k.i(f'v_lshrrev_b32 {t1}, 2, {n}')
    k.i(f'v_and_b32 {t2}, 3, {n}')
    k.i(f'v_mad_u32_u24 {t3}, {t1}, 5, {t2}')
    k.i(f'v_mul_u32_u24 {a0}, 80, {t3}')
    k.i(f'v_add_u32 {a0}, {st1}, {a0}')
    k.i(f'v_mad_u32_u24 {t3}, {t1}, 5, 4')
    k.i(f'v_cmp_eq_u32 vcc, 0, {t2}')
    k.i(f'v_cndmask_b32 {t3}, 20, {t3}, vcc')
    k.i(f'v_mul_u32_u24 {a1}, 80, {t3}')
    k.i(f'v_add_u32 {a1}, {st1}, {a1}')
    k.i(f's_add_u32 {st1}, {st1}, 1680')
    k.i(f'v_mov_b32 {t3}, {st1}')
    for rho in range(4):
        k.i(f'v_cmp_eq_u32 vcc, {rho}, {G}')
        k.i(f'v_add_u32 {t1}, 64, {a0}')
        k.i(f'v_add_u32 {t2}, 64, {a1}')
        k.i(f'v_cndmask_b32 {aL[2 * rho]}, {t3}, {t1}, vcc')
        k.i(f'v_cndmask_b32 {aL[2 * rho + 1]}, {t3}, {t2}, vcc')
    k.i(f'v_lshl_add_u32 {a0}, {G}, 4, {a0}')
    k.i(f'v_lshl_add_u32 {a1}, {G}, 4, {a1}')
    k.i(f's_lshr_b32 {st1}, {skv}, 1')
    k.i(f's_add_u32 {st1}, {st1}, {KVB}')
    k.i(f'v_lshlrev_b32 {kvw}, 3, {lane}')
    k.i(f'v_add_u32 {kvw}, {st1}, {kvw}')
    k.i(f's_mul_i32 {st1}, {hg}, 25600')
    k.i(f'v_add_u32 {woa}, {st1}, {l16}')

    def kv_stage(u):
        for i in range(7):
            o = O[(i % 4) * 2:(i % 4) * 2 + 2]
            k.i(f'v_cvt_pk_bf16_f32 {o[0]}, {KR[4 * i]}, {KR[4 * i + 1]}')
            k.i(f'v_cvt_pk_bf16_f32 {o[1]}, {KR[4 * i + 2]}, {KR[4 * i + 3]}')
            k.i(f'ds_write_b64 {kvw}, {o} offset:{u * 4 * 1792 + i * 1024}')

    def a_read(hh):
        A = AF[(hh & 1) * 16:(hh & 1) * 16 + 16]
        k.i(f'ds_read_b128 {A[0:4]}, {a0} offset:{hh * 1792}')
        k.i(f'ds_read_b128 {A[4:8]}, {a1} offset:{hh * 1792}')
        k.i(f'ds_read_b128 {A[8:12]}, {aL[2 * (hh & 3)]} offset:{hh * 1792}')
        k.i(f'ds_read_b128 {A[12:16]}, {aL[2 * (hh & 3) + 1]} offset:{hh * 1792}')

    def xf(j, t):
        return Xf[((j % 3) * 2 + t) * 4:((j % 3) * 2 + t) * 4 + 4]

    def head(hh):
        A = AF[(hh & 1) * 16:(hh & 1) * 16 + 16]
        u = hh // 4
        for t in range(2):
            for tl in range(2):
                o = O[(t * 2 + tl) * 4:(t * 2 + tl) * 4 + 4]
                k.i(f'v_mfma_f32_16x16x32_bf16 {o}, {A[8 + tl * 4:8 + tl * 4 + 4]}, {PL[(u * 2 + t) * 4:(u * 2 + t) * 4 + 4]}, 0')
        for t in range(2):
            for tl in (1, 0):
                o = O[(t * 2 + tl) * 4:(t * 2 + tl) * 4 + 4]
                k.i(f'v_mfma_f32_16x16x32_bf16 {o}, {A[tl * 4:tl * 4 + 4]}, {PQ[(hh * 2 + t) * 4:(hh * 2 + t) * 4 + 4]}, {o}')
        for t in range(2):
            o = O[t * 8:t * 8 + 8]
            k.i(f'v_add_f32 {o[5]}, {fhex(1e-6)}, {o[5]}')
            k.i(f'v_rcp_f32 {o[5]}, {o[5]}')
        for t in range(2):
            o = O[t * 8:t * 8 + 8]
            if hh & 1:
                for s in range(5):
                    k.i(f'v_mul_f32 {o[s]}, {o[s]}, {o[5]}')
                vals = [carry[t]] + [o[s] for s in range(5)]
                idx0 = 5 * hh - 1
            else:
                for s in range(4):
                    k.i(f'v_mul_f32 {o[s]}, {o[s]}, {o[5]}')
                k.i(f'v_mul_f32 {carry[t]}, {o[4]}, {o[5]}')
                vals = [o[s] for s in range(4)]
                idx0 = 5 * hh
            for p in range(len(vals) // 2):
                idx = idx0 + 2 * p
                j, e = idx >> 3, idx & 7
                k.i(f'v_cvt_pk_bf16_f32 {xf(j, t)[e >> 1]}, {vals[2 * p]}, {vals[2 * p + 1]}')

    def wo_read(j):
        for ct in range(5):
            k.i(f'ds_read_b128 {WA[ct * 4:ct * 4 + 4]}, {woa} offset:{j * 5120 + ct * 1024}')

    def wo_step(j):
        for ct in range(5):
            for t in range(2):
                a = acc[(ct * 2 + t) * 4:(ct * 2 + t) * 4 + 4]
                k.i(f'v_mfma_f32_16x16x32_bf16 {a}, {WA[ct * 4:ct * 4 + 4]}, {xf(j, t)}, {0 if j == 0 else a}')

    kv_stage(0)
    kv_load(1)
    pq_load(2)
    pq_load(3)
    k.barrier()
    k.ts()
    a_read(0)
    wo_dma(0, 'wA')
    wo_dma(1, 'wA')
    wo_dma4(0, 'wA')
    a_read(1)
    head(0)
    a_read(2)
    head(1)
    pl_load(1)
    pq_load(4)
    pq_load(5)
    kv_stage(1)
    a_read(3)
    head(2)
    wo_dma(2, 'wB')
    wo_dma(3, 'wB')
    wo_dma4(2, 'wB')
    head(3)
    pq_load(6)
    pq_load(7)
    k.wait_tag('wA')
    k.barrier()
    wo_dma(4, 'wC')
    wo_dma4(4, 'wC')
    a_read(4)
    wo_read(0)
    a_read(5)
    wo_step(0)
    wo_read(1)
    head(4)
    wo_step(1)
    a_read(6)
    head(5)
    k.wait_tag('wB')
    k.barrier()
    wo_read(2)
    a_read(7)
    wo_step(2)
    head(6)
    wo_read(3)
    head(7)
    wo_step(3)
    k.wait_tag('wC')
    k.barrier()
    wo_read(4)
    wo_step(4)
    k.ts()
    k.barrier()
    k.i(f's_mul_i32 {so}, {th}, 40960')
    k.i(f's_mul_i32 {st1}, {hg}, 5120')
    k.i(f's_add_u32 {so}, {so}, {st1}')
    k.i(f'v_add_u32 {t1}, {so}, {l16}')
    for t in range(2):
        for ct in range(5):
            k.i(f'ds_write_b128 {t1}, {acc[(ct * 2 + t) * 4:(ct * 2 + t) * 4 + 4]} offset:{t * 20480 + ct * 1024}')
    k.i(f's_cmp_ge_u32 {wave}, 4')
    k.i('s_cbranch_scc1 p2_loader')
    st_split = save_state(k)
    k.release(mk_common)
    st_split = (st_split[0], st_split[1], mk_common, st_split[3])

    W3 = [81920, 110592, 0, 28672]
    X3 = [139264, 147456, 155648 - 0, 57344, 65536]
    X3[2] = 73728
    CSL = 155648
    EXB = 157696
    W4 = [0, 20480, 40960, 61440, 81920]
    X4 = [102400, 118784, 135168]

    def signal(idx, cnt_off, go_off, sel):
        lab = k.newlabel('sig')
        k.wait(vm=0)
        k.i(f'v_mov_b32 {t1}, {LCNT + 4 * idx}')
        k.i(f'v_mov_b32 {t2}, 1')
        k.i('s_mov_b32 exec_lo, 1')
        k.i('s_mov_b32 exec_hi, 0')
        k.i(f'ds_add_rtn_u32 {t3}, {t1}, {t2}')
        k.i(f'v_readfirstlane_b32 {so}, {t3}')
        k.i(f's_cmp_lg_u32 {so}, 3')
        k.i(f's_cbranch_scc1 {lab}')
        k.i(f's_lshl_b32 {so}, {sel}, 8')
        k.i(f's_add_u32 {so}, {so}, {WS_CNT + cnt_off}')
        k.i(f'v_mov_b32 {t1}, 0')
        k.lines.append(f'  buffer_atomic_add {t2}, {t1}, {sws}, {so} offen sc0 sc1')
        k.lines.append('  s_waitcnt vmcnt(0)')
        k.lines.append(f'  v_readfirstlane_b32 {st1}, {t2}')
        k.lines.append(f'  v_mov_b32 {t2}, 1')
        k.lines.append(f'  s_cmp_lg_u32 {st1}, 15')
        k.lines.append(f'  s_cbranch_scc1 {lab}')
        k.lines.append(f'  s_add_u32 {so}, {so}, {go_off - cnt_off}')
        k.lines.append(f'  buffer_store_dword {t2}, {t1}, {sws}, {so} offen sc1')
        k.raw(f'{lab}:')
        k._join()
        k.i('s_mov_b64 exec, -1')
        k.vm = [dict(regs=set(), tag=None)]

    def poll(go_off, sel):
        lab = k.newlabel('poll')
        k.i(f's_cmp_lg_u32 {wave}, 4')
        k.i(f's_cbranch_scc1 {lab}_x')
        k.i(f's_lshl_b32 {so}, {sel}, 8')
        k.i(f's_add_u32 {so}, {so}, {WS_CNT + go_off}')
        k.i(f'v_mov_b32 {t1}, 0')
        k.i(f's_mov_b32 {st1}, 0')
        k.i('s_mov_b32 exec_lo, 1')
        k.i('s_mov_b32 exec_hi, 0')
        k.raw(f'{lab}:')
        k.lines.append(f'  buffer_load_dword {t2}, {t1}, {sws}, {so} offen sc1')
        k.lines.append('  s_waitcnt vmcnt(0)')
        k.lines.append(f'  v_readfirstlane_b32 {st2}, {t2}')
        k.lines.append(f'  s_add_u32 {st1}, {st1}, 1')
        k.lines.append(f'  s_cmp_ge_u32 {st1}, {SPIN_MAX}')
        k.lines.append(f'  s_cbranch_scc1 {lab}_d')
        k.lines.append(f'  s_cmp_eq_u32 {st2}, 0')
        k.lines.append(f'  s_cbranch_scc1 {lab}')
        k.raw(f'{lab}_d:')
        k.i('s_mov_b64 exec, -1')
        k.raw(f'{lab}_x:')
        k._join()

    sxx = k.srd(px, S * D * 2)
    xv = k.v(10)
    gav = k.v(20)
    P = k.v(80)
    cp = k.v(8, align=1)
    ttg = k.s()
    k.i(f's_lshl_b32 {ttg}, {mt2}, 2')
    k.i(f's_add_u32 {ttg}, {ttg}, {wave}')
    k.i(f's_mul_i32 {so}, {ttg}, {16 * 1280}')
    k.i(f's_mul_i32 {st1}, {nt2}, 160')
    k.i(f's_add_u32 {so}, {so}, {st1}')
    k.i(f'v_mul_u32_u24 {t2}, 1280, {n}')
    k.i(f'v_lshl_add_u32 {t2}, {G}, 3, {t2}')
    assert cp.base + 8 <= acc.base
    for ct in range(5):
        k.i(f'buffer_load_dwordx2 {xv[2 * ct:2 * ct + 2]}, {t2}, {sxx}, {so} offen offset:{32 * ct}')
    k.i(f'v_lshlrev_b32 {t2}, 4, {G}')
    k.i(f's_mul_i32 {st1}, {nt2}, 320')
    k.i(f's_add_u32 {so}, {st1}, {WS_MOD + 2 * 2560}')
    for ct in range(5):
        k.i(f'buffer_load_dwordx4 {gav[4 * ct:4 * ct + 4]}, {t2}, {sws}, {so} offen offset:{64 * ct}')
    k.i(f'v_cmp_lt_u32 vcc, 111, v0')
    k.i(f'v_mov_b32 {t3}, {1792 - 112}')
    k.i(f'v_cndmask_b32 {t2}, 0, {t3}, vcc')
    k.i(f'v_add_u32 {t2}, {t2}, v0')
    k.i(f's_mul_i32 {so}, {nt3}, 112')
    k.i(f'v_add_u32 {t2}, {so}, {t2}')
    k.i(f'v_lshlrev_b32 {t2}, 2, {t2}')
    for p in range(8):
        k.i(f's_mov_b32 {so}, {WS_CSB + p * 3584 * 4}')
        k.i(f'buffer_load_dword {cp[p]}, {t2}, {sws}, {so} offen')
    k.barrier()
    k.i(f's_mul_i32 {so}, {wave}, 20480')
    k.i(f'v_add_u32 {t1}, {so}, {l16}')
    for cc in range(4):
        for ct in range(5):
            k.i(f'ds_read_b128 {P[cc * 20 + 4 * ct:cc * 20 + 4 * ct + 4]}, {t1} offset:{cc * 5120 + ct * 1024}')
    for i in range(20):
        k.i(f'v_add_f32 {P[i]}, {P[i]}, {P[20 + i]}')
    k.barrier()
    for i in range(20):
        k.i(f'v_add_f32 {P[40 + i]}, {P[40 + i]}, {P[60 + i]}')
    s12 = k.v(2)
    xe = k.v(4, align=1)
    k.i(f'v_mov_b32 {s12[0]}, 0')
    k.i(f'v_mov_b32 {s12[1]}, 0')
    xo = P[20:32]
    for ct in range(5):
        for r in range(4):
            k.i(f'v_add_f32 {P[4 * ct + r]}, {P[4 * ct + r]}, {P[40 + 4 * ct + r]}')
        for q in range(2):
            k.i(f'v_lshlrev_b32 {xe[2 * q]}, 16, {xv[2 * ct + q]}')
            k.i(f'v_and_b32 {xe[2 * q + 1]}, 0xffff0000, {xv[2 * ct + q]}')
        for r in range(4):
            k.i(f'v_fmac_f32 {xe[r]}, {P[4 * ct + r]}, {gav[4 * ct + r]}')
        for q in range(2):
            k.i(f'v_cvt_pk_bf16_f32 {xo[2 * ct + q]}, {xe[2 * q]}, {xe[2 * q + 1]}')
        for q in range(2):
            k.i(f'v_lshlrev_b32 {xe[2 * q]}, 16, {xo[2 * ct + q]}')
            k.i(f'v_and_b32 {xe[2 * q + 1]}, 0xffff0000, {xo[2 * ct + q]}')
        for r in range(4):
            k.i(f'v_add_f32 {s12[0]}, {s12[0]}, {xe[r]}')
            k.i(f'v_fmac_f32 {s12[1]}, {xe[r]}, {xe[r]}')

    def x1_addr(ttg_, nt_, sreg, sspec):
        k.i(f's_lshr_b32 {so}, {ttg_}, 3')
        k.i(f's_mul_i32 {so}, {so}, 20')
        k.i(f's_lshr_b32 {st1}, {nt_}, 1')
        k.i(f's_mul_i32 {st1}, {st1}, 5')
        k.i(f's_add_u32 {so}, {so}, {st1}')
        k.i(f's_lshl_b32 {so}, {so}, 13')
        k.i(f's_add_u32 {so}, {so}, {WS_X1}')
        k.i(f's_and_b32 {st1}, {nt_}, 1')
        k.i(f's_and_b32 {st2}, {ttg_}, 7')
        k.i(f's_lshl_b32 {sreg}, {st1}, 14')
        k.i(f's_add_u32 {sreg}, {sreg}, {so}')
        k.i(f's_lshl_b32 {sspec}, {st2}, 10')
        k.i(f's_add_u32 {sreg}, {sreg}, {sspec}')
        k.i(f's_lshl_b32 {st1}, {st1}, 12')
        k.i(f's_lshl_b32 {st2}, {st2}, 9')
        k.i(f's_add_u32 {sspec}, {so}, {st1}')
        k.i(f's_add_u32 {sspec}, {sspec}, {st2}')
        k.i(f's_add_u32 {sspec}, {sspec}, {4 * 8192}')

    sreg, sspec = k.s(), k.s()
    x1_addr(ttg, nt2, sreg, sspec)
    l8 = k.v()
    k.i(f'v_lshlrev_b32 {l8}, 3, {lane}')
    k.i(f'buffer_store_dwordx4 {xo[0:4]}, {l16}, {sws}, {sreg} offen sc1')
    k.i(f's_add_u32 {sreg}, {sreg}, 8192')
    k.i(f'buffer_store_dwordx4 {xo[4:8]}, {l16}, {sws}, {sreg} offen sc1')
    k.i(f'buffer_store_dwordx2 {xo[8:10]}, {l8}, {sws}, {sspec} offen sc1')
    xsum4(k, s12[0], t1)
    xsum4(k, s12[1], t1)
    k.i(f's_lshl_b32 {so}, {ttg}, 10')
    k.i(f's_lshl_b32 {st1}, {nt2}, 3')
    k.i(f's_add_u32 {so}, {so}, {st1}')
    k.i(f's_add_u32 {so}, {so}, {WS_ST}')
    k.i(f'v_lshlrev_b32 {t1}, 6, {n}')
    k.i('s_mov_b32 exec_lo, 0xffff')
    k.i('s_mov_b32 exec_hi, 0')
    k.i(f'buffer_store_dwordx2 {s12}, {t1}, {sws}, {so} offen sc1')
    k.i('s_mov_b64 exec, -1')
    k.i(f'v_add_f32 {cp[0]}, {cp[0]}, {cp[2]}')
    k.i(f'v_add_f32 {cp[4]}, {cp[4]}, {cp[6]}')
    k.i(f'v_add_f32 {cp[1]}, {cp[1]}, {cp[3]}')
    k.i(f'v_add_f32 {cp[5]}, {cp[5]}, {cp[7]}')
    k.i(f'v_add_f32 {cp[0]}, {cp[0]}, {cp[4]}')
    k.i(f'v_add_f32 {cp[1]}, {cp[1]}, {cp[5]}')
    k.i(f'v_mov_b32 {t2}, 0')
    k.i(f'v_cmp_lt_u32 vcc, 63, v0')
    k.i(f'v_cndmask_b32 {t2}, {t2}, 64, vcc')
    k.i(f'v_mov_b32 {t3}, -48')
    k.i(f'v_cmp_lt_u32 vcc, 111, v0')
    k.i(f'v_cndmask_b32 {t2}, {t2}, {t3}, vcc')
    k.i(f'v_cmp_lt_u32 vcc, 175, v0')
    k.i(f'v_cndmask_b32 {t2}, {t2}, 0, vcc')
    k.i(f'v_add_u32 {t2}, {t2}, v0')
    k.i(f'v_lshlrev_b32 {t2}, 2, {t2}')
    k.i(f'v_add_u32 {t2}, {CSL}, {t2}')
    k.i(f'ds_write_b32 {t2}, {cp[0]}')
    k.i(f'ds_write_b32 {t2}, {cp[1]} offset:1024')
    k.ts()
    k.i(f's_lshr_b32 {st2}, {mt2}, 1')
    sel = k.s()
    k.i(f's_mov_b32 {sel}, {st2}')
    signal(0, 0, 4096, sel)

    k.release(mk_common)
    l8 = k.v()
    k.i(f'v_lshlrev_b32 {l8}, 3, {lane}')
    th3, cg = k.s(), k.s()
    k.i(f's_and_b32 {th3}, {wave}, 1')
    k.i(f's_lshr_b32 {cg}, {wave}, 1')
    acc = k.v(112)
    Fr = k.v(88)
    stv = k.v(16)
    mu, sd, rr = k.v(4, align=1), k.v(4, align=1), k.v(4, align=1)
    cb8 = stv[8:16]
    wa = k.v(2, align=1)
    xa = k.v(2, align=1)
    xs = k.v(2, align=1)
    csa = k.v()
    k.i(f's_mul_i32 {so}, {cg}, 7168')
    k.i(f'v_add_u32 {wa[0]}, {so}, {l16}')
    k.i(f'v_add_u32 {wa[1]}, 81920, {wa[0]}')
    k.i(f's_lshl_b32 {so}, {th3}, 12')
    k.i(f's_add_u32 {so}, {so}, 57344')
    k.i(f'v_add_u32 {xa[0]}, {so}, {l16}')
    k.i(f'v_add_u32 {xa[1]}, {139264 - 57344}, {xa[0]}')
    k.i(f's_lshl_b32 {so}, {th3}, 11')
    k.i(f's_add_u32 {so}, {so}, 57344')
    k.i(f'v_add_u32 {xs[0]}, {so}, {l8}')
    k.i(f'v_add_u32 {xs[1]}, {139264 - 57344}, {xs[0]}')
    k.i(f's_mul_i32 {so}, {cg}, 448')
    k.i(f's_add_u32 {so}, {so}, {CSL}')
    k.i(f'v_lshlrev_b32 {csa}, 4, {G}')
    k.i(f'v_add_u32 {csa}, {so}, {csa}')
    k.i(f'v_lshlrev_b32 {t1}, 6, {n}')
    k.i(f'v_lshl_add_u32 {t1}, {G}, 4, {t1}')
    k.i(f's_lshl_b32 {so}, {mt3}, 1')
    k.i(f's_add_u32 {so}, {so}, {th3}')
    mt4o = k.s()
    k.i(f's_mov_b32 {mt4o}, {so}')
    k.i(f's_lshl_b32 {so}, {so}, 12')
    k.i(f's_add_u32 {so}, {so}, {WS_ST}')
    k.barrier()
    k.ts()
    for tt in range(4):
        k.i(f'buffer_load_dwordx4 {stv[4 * tt:4 * tt + 4]}, {t1}, {sws}, {so} offen offset:{1024 * tt} sc1')

    def xfr(J, tt):
        b = ((J & 1) * 11 + tt) * 4
        return Fr[b:b + 4]

    def wfr(J, i):
        b = ((J & 1) * 11 + 4 + i) * 4
        return Fr[b:b + 4]

    def prep3(J):
        L = []
        wb = W3[(J // 2) % 4] + (J & 1) * 14336
        wreg, wo_ = (wa[0], wb) if wb < 81920 else (wa[1], wb - 81920)
        xb = X3[J % 5]
        xi, xo_ = (0, xb - 57344) if xb < 139264 else (1, xb - 139264)
        xl = []
        for tt in range(4):
            if J % 5 == 4:
                xl.append([f'ds_read_b64 {xfr(J, tt)[0:2]}, {xs[xi]} offset:{xo_ + tt * 512}',
                           f'ds_read_b64 {xfr(J, tt)[2:4]}, {xs[xi]} offset:{xo_ + 4096 + tt * 512}'])
            else:
                xl.append([f'ds_read_b128 {xfr(J, tt)}, {xa[xi]} offset:{xo_ + tt * 1024}'])
        L.append(f'ds_read_b128 {wfr(J, 0)}, {wreg} offset:{wo_}')
        for tt in range(4):
            L += xl[tt]
        for i in range(1, 7):
            L.append(f'ds_read_b128 {wfr(J, i)}, {wreg} offset:{wo_ + i * 1024}')
        return L

    def mf3(J):
        L = []
        for i in range(7):
            for tt in range(4):
                a = acc[(i * 4 + tt) * 4:(i * 4 + tt) * 4 + 4]
                L.append(f'v_mfma_f32_16x16x32_bf16 {a}, {wfr(J, i)}, {xfr(J, tt)}, {0 if J == 0 else a}')
        return L

    def stats_code():
        L = []
        for tt in range(4):
            a = stv[4 * tt:4 * tt + 4]
            L.append(f'v_add_f32 {a[0]}, {a[0]}, {a[2]}')
            L.append(f'v_add_f32 {a[1]}, {a[1]}, {a[3]}')
            for x in (a[0], a[1]):
                L.append(f'v_mov_b32 {a[2]}, {x}')
                L.append(f'v_permlane32_swap_b32 {x}, {a[2]}')
                L.append(f'v_add_f32 {x}, {x}, {a[2]}')
                L.append(f'v_mov_b32 {a[2]}, {x}')
                L.append(f'v_permlane16_swap_b32 {x}, {a[2]}')
                L.append(f'v_add_f32 {x}, {x}, {a[2]}')
            L.append(f'v_mul_f32 {mu[tt]}, {fhex(1.0 / 640)}, {a[0]}')
            L.append(f'v_mul_f32 {a[1]}, {fhex(1.0 / 640)}, {a[1]}')
            L.append(f'v_fma_f32 {a[1]}, -{mu[tt]}, {mu[tt]}, {a[1]}')
            L.append(f'v_max_f32 {a[1]}, 0, {a[1]}')
            L.append(f'v_add_f32 {a[1]}, {fhex(1e-5)}, {a[1]}')
            L.append(f'v_sqrt_f32 {sd[tt]}, {a[1]}')
            L.append(f'v_rsq_f32 {rr[tt]}, {a[1]}')
        return L

    def init_code(i):
        L = []
        for tt in range(4):
            a = acc[(i * 4 + tt) * 4:(i * 4 + tt) * 4 + 4]
            for r in range(4):
                L.append(f'v_fmac_f32 {a[r]}, {cb8[4 + r]}, {sd[tt]}')
            for r in range(4):
                L.append(f'v_fma_f32 {a[r]}, -{mu[tt]}, {cb8[r]}, {a[r]}')
        return L

    k.barrier()
    k.ts()
    for x in prep3(0):
        k.i(x)
    st_l = stats_code()
    for J in range(20):
        if J == 10:
            k.ts()
        M = mf3(J)
        if J + 1 < 20:
            k.barrier()
            fill = prep3(J + 1)
        else:
            fill = []
        if J in (2, 3):
            h = len(st_l) // 2
            fill = fill + (st_l[:h] if J == 2 else st_l[h:])
            interleave(k, M, fill, lead=2)
        elif 4 <= J < 11:
            i = J - 4
            M = M[4 * i:] + M[:4 * i]
            pre = [f'ds_read_b128 {cb8[0:4]}, {csa} offset:{i * 64}', f'ds_read_b128 {cb8[4:8]}, {csa} offset:{1024 + i * 64}']
            interleave(k, M[:12], pre + fill[:8])
            interleave(k, M[12:], fill[8:] + init_code(i))
        else:
            interleave(k, M, fill, lead=6)
    k.ts()
    KK = -2.0 * 0.7978845608028654 * LOG2E
    c1, c3, ir2 = stv[0:4], stv[4:8], stv[8:12]
    for tt in range(4):
        k.i(f'v_mul_f32 {c1[tt]}, {fhex(KK)}, {rr[tt]}')
        k.i(f'v_mul_f32 {c3[tt]}, {rr[tt]}, {rr[tt]}')
        k.i(f'v_mul_f32 {c3[tt]}, {c3[tt]}, {c1[tt]}')
        k.i(f'v_mul_f32 {c3[tt]}, {fhex(0.044715)}, {c3[tt]}')
        k.i(f'v_mul_f32 {ir2[tt]}, {sd[tt]}, {sd[tt]}')
    EXB = 151552
    k.i(f's_lshl_b32 {so}, {th3}, 12')
    k.i(f's_add_u32 {so}, {so}, {EXB}')
    k.i(f'v_add_u32 {t1}, {so}, {l16}')
    sact, sasp = k.s(), k.s()
    k.i(f's_mul_i32 {sact}, {mt4o}, 56')
    k.i(f's_lshr_b32 {st1}, {nt3}, 1')
    k.i(f's_add_u32 {sasp}, {sact}, {st1}')
    k.i(f's_lshl_b32 {sasp}, {sasp}, 12')
    k.i(f's_and_b32 {st1}, {nt3}, 1')
    k.i(f's_lshl_b32 {st1}, {st1}, 11')
    k.i(f's_add_u32 {sasp}, {sasp}, {st1}')
    k.i(f's_add_u32 {sasp}, {sasp}, {WS_ACT}')
    k.i(f's_mul_i32 {st1}, {nt3}, 3')
    k.i(f's_add_u32 {sact}, {sact}, {st1}')
    k.i(f's_add_u32 {sact}, {sact}, 8')
    k.i(f's_lshl_b32 {sact}, {sact}, 12')
    k.i(f's_add_u32 {sact}, {sact}, {WS_ACT}')
    k.barrier()
    T = Fr[0:16]
    OUT = Fr[16:48]
    UX = Fr[48:64]

    def geglu(g, u, tt, o2, ti):
        t = T[(ti % 4) * 4:(ti % 4) * 4 + 4]
        for r in range(4):
            k.i(f'v_mul_f32 {t[r]}, {g[r]}, {g[r]}')
        for r in range(4):
            k.i(f'v_fma_f32 {t[r]}, {t[r]}, {c3[tt]}, {c1[tt]}')
        for r in range(4):
            k.i(f'v_mul_f32 {t[r]}, {t[r]}, {g[r]}')
        for r in range(4):
            k.i(f'v_exp_f32 {t[r]}, {t[r]}')
        for r in range(4):
            k.i(f'v_mul_f32 {u[r]}, {u[r]}, {g[r]}')
        for r in range(4):
            k.i(f'v_fma_f32 {t[r]}, {t[r]}, {ir2[tt]}, {ir2[tt]}')
        for r in range(4):
            k.i(f'v_rcp_f32 {t[r]}, {t[r]}')
        for r in range(4):
            k.i(f'v_mul_f32 {u[r]}, {u[r]}, {t[r]}')
        k.i(f'v_cvt_pk_bf16_f32 {o2[0]}, {u[0]}, {u[1]}')
        k.i(f'v_cvt_pk_bf16_f32 {o2[1]}, {u[2]}, {u[3]}')

    def A(i, tt):
        return acc[(i * 4 + tt) * 4:(i * 4 + tt) * 4 + 4]

    k.i(f's_cmp_eq_u32 {cg}, 1')
    k.i('s_cbranch_scc1 p3_epi1')
    stx = (list(k.vm), list(k.lg))
    cnt = 0
    for tt in range(4):
        o = OUT[tt * 4:tt * 4 + 4]
        geglu(A(0, tt), A(4, tt), tt, o[0:2], cnt)
        geglu(A(1, tt), A(5, tt), tt, o[2:4], cnt + 1)
        cnt += 2
        k.i(f'buffer_store_dwordx4 {o}, {l16}, {sws}, {sact} offen offset:{1024 * tt} sc1')
        if tt == 0:
            k.i('s_barrier')
            for t2_ in range(4):
                k.i(f'ds_read_b128 {UX[t2_ * 4:t2_ * 4 + 4]}, {t1} offset:{1024 * t2_}')
    k.i(f's_add_u32 {sact}, {sact}, 4096')
    for tt in range(4):
        o = OUT[16 + tt * 4:16 + tt * 4 + 4]
        geglu(A(2, tt), A(6, tt), tt, o[0:2], cnt)
        geglu(A(3, tt), UX[tt * 4:tt * 4 + 4], tt, o[2:4], cnt + 1)
        cnt += 2
        k.i(f'buffer_store_dwordx4 {o}, {l16}, {sws}, {sact} offen offset:{1024 * tt} sc1')
    k.i('s_branch p3_epid')
    k.raw('p3_epi1:')
    k._join()
    k.vm, k.lg = list(stx[0]), list(stx[1])
    for tt in range(4):
        k.i(f'ds_write_b128 {t1}, {A(0, tt)} offset:{1024 * tt}')
    k.barrier()
    k.i(f's_add_u32 {sact}, {sact}, 8192')
    cnt = 0
    for tt in range(4):
        o = OUT[tt * 4:tt * 4 + 4]
        geglu(A(1, tt), A(4, tt), tt, o[0:2], cnt)
        geglu(A(2, tt), A(5, tt), tt, o[2:4], cnt + 1)
        cnt += 2
        k.i(f'buffer_store_dwordx4 {o}, {l16}, {sws}, {sact} offen offset:{1024 * tt} sc1')
    for tp in range(2):
        o = OUT[16 + tp * 4:16 + tp * 4 + 4]
        geglu(A(3, 2 * tp), A(6, 2 * tp), 2 * tp, o[0:2], cnt)
        geglu(A(3, 2 * tp + 1), A(6, 2 * tp + 1), 2 * tp + 1, o[2:4], cnt + 1)
        cnt += 2
        k.i(f'buffer_store_dwordx4 {o}, {l16}, {sws}, {sasp} offen offset:{1024 * tp} sc1')
    k.raw('p3_epid:')
    k._join()
    k.lines.append('  s_waitcnt lgkmcnt(0)')
    k.lg = []
    k.force_wait = True
    k.ts()
    signal(1, 8192, 12288, mt3)
    k.force_wait = False

    k.release(mk_common)
    l8 = k.v()
    k.i(f'v_lshlrev_b32 {l8}, 3, {lane}')
    th4, kh = k.s(), k.s()
    k.i(f's_and_b32 {th4}, {wave}, 1')
    k.i(f's_lshr_b32 {kh}, {wave}, 1')
    acc = k.v(40)
    Fr = k.v(56)
    wa = k.v(2, align=1)
    xa, xsp = k.v(), k.v()
    k.i(f's_mul_i32 {so}, {kh}, 5120')
    k.i(f'v_add_u32 {wa[0]}, {so}, {l16}')
    k.i(f'v_add_u32 {wa[1]}, 61440, {wa[0]}')
    k.i(f's_lshl_b32 {so}, {kh}, 12')
    k.i(f's_add_u32 {so}, {so}, {X4[0]}')
    k.i(f's_lshl_b32 {st1}, {th4}, 11')
    k.i(f's_add_u32 {st1}, {st1}, {so}')
    k.i(f'v_add_u32 {xa}, {st1}, {l16}')
    k.i(f's_lshl_b32 {st1}, {th4}, 10')
    k.i(f's_add_u32 {st1}, {st1}, {so}')
    k.i(f'v_add_u32 {xsp}, {st1}, {l16}')
    xv = k.v(12)
    gbv = k.v(20)
    ttg = k.s()
    k.i(f's_lshl_b32 {ttg}, {mt2}, 2')
    k.i(f's_lshl_b32 {so}, {th4}, 1')
    k.i(f's_add_u32 {ttg}, {ttg}, {so}')
    k.i(f's_add_u32 {ttg}, {ttg}, {kh}')
    sreg, sspec = k.s(), k.s()
    x1_addr(ttg, nt2, sreg, sspec)
    k.i(f'buffer_load_dwordx4 {xv[0:4]}, {l16}, {sws}, {sreg} offen sc1')
    k.i(f's_add_u32 {sreg}, {sreg}, 8192')
    k.i(f'buffer_load_dwordx4 {xv[4:8]}, {l16}, {sws}, {sreg} offen sc1')
    k.i(f'buffer_load_dwordx2 {xv[8:10]}, {l8}, {sws}, {sspec} offen sc1')
    k.i(f'v_lshlrev_b32 {t2}, 4, {G}')
    k.i(f's_mul_i32 {st1}, {nt2}, 320')
    k.i(f's_add_u32 {so}, {st1}, {WS_MOD + 5 * 2560}')
    for ct in range(5):
        k.i(f'buffer_load_dwordx4 {gbv[4 * ct:4 * ct + 4]}, {t2}, {sws}, {so} offen offset:{64 * ct}')
    sout = k.srd(po, S * D * 2)
    k.barrier()
    k.ts()
    NS4 = 14
    steps = [(s, h) for s in range(NS4) for h in range(2) if 4 * s + 2 * h < 54]

    def prep4(idx):
        s, h = steps[idx]
        b = idx & 1
        L = []
        wb = W4[s % 5] + h * 10240
        wreg, wo_ = (wa[0], wb) if wb < 61440 else (wa[1], wb - 61440)
        xo_ = (s % 3) * 16384 + h * 8192
        L.append(f'ds_read_b128 {Fr[(b * 7 + 2) * 4:(b * 7 + 2) * 4 + 4]}, {wreg} offset:{wo_}')
        for t in range(2):
            x = Fr[(b * 7 + t) * 4:(b * 7 + t) * 4 + 4]
            if s < 2:
                L.append(f'ds_read_b64 {x[0:2]}, {xsp} offset:{xo_ + t * 8}')
                L.append(f'ds_read_b64 {x[2:4]}, {xsp} offset:{xo_ + 2048 + t * 8}')
            else:
                L.append(f'ds_read_b128 {x}, {xa} offset:{xo_ + t * 1024}')
        for ct in range(1, 5):
            L.append(f'ds_read_b128 {Fr[(b * 7 + 2 + ct) * 4:(b * 7 + 2 + ct) * 4 + 4]}, {wreg} offset:{wo_ + ct * 1024}')
        return L

    def mf4(idx):
        b = idx & 1
        L = []
        for ct in range(5):
            for t in range(2):
                a = acc[(ct * 2 + t) * 4:(ct * 2 + t) * 4 + 4]
                L.append(f'v_mfma_f32_16x16x32_bf16 {a}, {Fr[(b * 7 + 2 + ct) * 4:(b * 7 + 2 + ct) * 4 + 4]}, {Fr[(b * 7 + t) * 4:(b * 7 + t) * 4 + 4]}, {0 if idx == 0 else a}')
        return L

    k.barrier()
    k.ts()
    for x in prep4(0):
        k.i(x)
    for idx in range(len(steps)):
        if idx == 14:
            k.ts()
        if idx + 1 < len(steps):
            if steps[idx + 1][1] == 0:
                k.barrier()
            interleave(k, mf4(idx), prep4(idx + 1), lead=2)
        else:
            for x in mf4(idx):
                k.i(x)
    k.ts()
    k.i(f's_mul_i32 {so}, {wave}, 5120')
    k.i(f'v_add_u32 {t1}, {so}, {l16}')
    k.i(f's_xor_b32 {st1}, {wave}, 2')
    k.i(f's_mul_i32 {st1}, {st1}, 5120')
    k.i(f'v_add_u32 {t3}, {st1}, {l16}')
    mk = k.s(2)
    k.i(f's_cmp_eq_u32 {kh}, 1')
    k.i(f's_cselect_b64 {mk}, -1, 0')
    Sd = Fr[0:20]
    Kp = Fr[20:40]
    for ct in range(5):
        for r in range(4):
            a0_, a1_ = acc[(ct * 2) * 4 + r], acc[(ct * 2 + 1) * 4 + r]
            k.i(f'v_cndmask_b32 {Sd[4 * ct + r]}, {a1_}, {a0_}, {mk}')
            k.i(f'v_cndmask_b32 {Kp[4 * ct + r]}, {a0_}, {a1_}, {mk}')
        k.i(f'ds_write_b128 {t1}, {Sd[4 * ct:4 * ct + 4]} offset:{1024 * ct}')
    k.barrier()
    Rv = acc[0:20]
    for ct in range(5):
        k.i(f'ds_read_b128 {Rv[4 * ct:4 * ct + 4]}, {t3} offset:{1024 * ct}')
    k.i(f's_mul_i32 {so}, {ttg}, {16 * 1280}')
    k.i(f's_mul_i32 {st1}, {nt2}, 160')
    k.i(f's_add_u32 {so}, {so}, {st1}')
    k.i(f'v_mul_u32_u24 {t1}, 1280, {n}')
    k.i(f'v_lshl_add_u32 {t1}, {G}, 3, {t1}')
    xe = Fr[40:44]
    for ct in range(5):
        for q in range(2):
            k.i(f'v_lshlrev_b32 {xe[2 * q]}, 16, {xv[2 * ct + q]}')
            k.i(f'v_and_b32 {xe[2 * q + 1]}, 0xffff0000, {xv[2 * ct + q]}')
        for r in range(4):
            k.i(f'v_add_f32 {Kp[4 * ct + r]}, {Kp[4 * ct + r]}, {Rv[4 * ct + r]}')
        for r in range(4):
            k.i(f'v_fmac_f32 {xe[r]}, {Kp[4 * ct + r]}, {gbv[4 * ct + r]}')
        o = Fr[44 + 2 * ct:44 + 2 * ct + 2]
        for q in range(2):
            k.i(f'v_cvt_pk_bf16_f32 {o[q]}, {xe[2 * q]}, {xe[2 * q + 1]}')
        k.i(f'buffer_store_dwordx2 {o}, {t1}, {sout}, {so} offen offset:{32 * ct}')
    k.ts_end()
    k.i('s_endpgm')

    restore_state(k, st_split)
    k.label('p2_loader')
    lw = k.s()
    k.i(f's_sub_u32 {lw}, {wave}, 4')
    sw3, dlo, dhi, sx3, dx3 = k.s(), k.s(), k.s(), k.s(), k.s()
    k.i(f's_mul_i32 {sw3}, {lw}, {112 * 1024}')
    k.i(f's_mul_i32 {so}, {nt3}, 7168')
    k.i(f's_add_u32 {sw3}, {sw3}, {so}')
    k.i(f's_add_u32 {sw3}, {sw3}, {WS_WGU}')
    k.i(f's_lshr_b32 {so}, {lw}, 1')
    k.i(f's_mul_i32 {so}, {so}, 14336')
    k.i(f's_and_b32 {st1}, {lw}, 1')
    k.i(f's_lshl_b32 {dlo}, {st1}, 12')
    k.i(f's_add_u32 {dlo}, {dlo}, {so}')
    k.i(f's_mul_i32 {dhi}, {st1}, 3072')
    k.i(f's_add_u32 {dhi}, {dhi}, 8192')
    k.i(f's_add_u32 {dhi}, {dhi}, {so}')
    k.i(f's_lshl_b32 {dx3}, {lw}, 11')
    k.i(f's_mul_i32 {sx3}, {mt3}, {20 * 8192}')
    k.i(f's_add_u32 {sx3}, {sx3}, {dx3}')
    k.i(f's_add_u32 {sx3}, {sx3}, {WS_X1}')

    def w3(p):
        k.i(f's_add_u32 {so}, {sw3}, {p * 4 * 112 * 1024}')
        k.i(f's_add_u32 m0, {dlo}, {W3[p % 4]}')
        for cc in range(4):
            k.i(f'buffer_load_dwordx4 {l16}, {sws}, {so} offen offset:{1024 * cc} lds', tag=f'w3_{p}')
        k.i(f's_add_u32 {so}, {so}, 4096')
        k.i(f's_add_u32 m0, {dhi}, {W3[p % 4]}')
        for cc in range(3):
            k.i(f'buffer_load_dwordx4 {l16}, {sws}, {so} offen offset:{1024 * cc} lds', tag=f'w3_{p}')

    def x3(J):
        k.i(f's_add_u32 {so}, {sx3}, {J * 8192}')
        k.i(f's_add_u32 m0, {dx3}, {X3[J % 5]}')
        for i in range(2):
            k.i(f'buffer_load_dwordx4 {l16}, {sws}, {so} offen offset:{1024 * i} sc1 lds', tag=f'x3_{J}')

    sw4, sx4, dw4, dx4 = k.s(), k.s(), k.s(), k.s()
    k.i(f's_mul_i32 {sw4}, {lw}, 40960')
    k.i(f's_mul_i32 {so}, {nt2}, 5120')
    k.i(f's_add_u32 {sw4}, {sw4}, {so}')
    k.i(f's_add_u32 {sw4}, {sw4}, {WS_WDF}')
    k.i(f's_mul_i32 {dw4}, {lw}, 5120')
    k.i(f's_lshl_b32 {dx4}, {lw}, 12')
    k.i(f's_mul_i32 {sx4}, {mt2}, {56 * 4096}')
    k.i(f's_add_u32 {sx4}, {sx4}, {dx4}')
    k.i(f's_add_u32 {sx4}, {sx4}, {WS_ACT}')

    def w4(s):
        k.i(f's_add_u32 {so}, {sw4}, {s * 4 * 40960}')
        k.i(f's_add_u32 m0, {dw4}, {W4[s % 5]}')
        for cc in range(4):
            k.i(f'buffer_load_dwordx4 {l16}, {sws}, {so} offen offset:{1024 * cc} lds', tag=f'w4_{s}')
        k.i(f's_add_u32 {so}, {so}, 4096')
        k.i(f's_add_u32 m0, {dw4}, {W4[s % 5] + 4096}')
        k.i(f'buffer_load_dwordx4 {l16}, {sws}, {so} offen lds', tag=f'w4_{s}')

    def x4(s):
        k.i(f's_add_u32 {so}, {sx4}, {s * 16384}')
        k.i(f's_add_u32 m0, {dx4}, {X4[s % 3]}')
        for cc in range(4):
            k.i(f'buffer_load_dwordx4 {l16}, {sws}, {so} offen offset:{1024 * cc} sc1 lds', tag=f'x4_{s}')

    k.barrier()
    w3(0)
    k.i('s_barrier')
    w3(1)
    w3(2)
    w3(3)
    k.ts()
    poll(4096, mt3)
    k.i('s_barrier')
    k.ts()
    LAX = 4
    for J in range(LAX):
        x3(J)
    for J in range(20):
        if J % 2 == 0:
            k.wait_tag(f'w3_{J // 2}')
        k.wait_tag(f'x3_{J}')
        k.i('s_barrier')
        if J == 0:
            k.ts()
        if J == 10:
            k.ts()
        if J + LAX < 20:
            x3(J + LAX)
        if J % 2 == 0 and J >= 2 and J // 2 + 3 < 10:
            w3(J // 2 + 3)
        if J == 16:
            w4(0)
        if J == 17:
            w4(1)
    k.ts()
    k.i('s_barrier')
    k.i('s_barrier')
    w4(2)
    w4(3)
    w4(4)
    k.ts()
    k.i(f's_lshr_b32 {st2}, {mt2}, 1')
    sel = k.s()
    k.i(f's_mov_b32 {sel}, {st2}')
    poll(12288, sel)
    k.i('s_barrier')
    k.ts()
    x4(0)
    x4(1)
    for s in range(NS4):
        k.wait_tag(f'w4_{s}')
        k.wait_tag(f'x4_{s}')
        k.i('s_barrier')
        if s in (0, 7):
            k.ts()
        if s + 2 < NS4:
            x4(s + 2)
        if s >= 1 and s + 4 < NS4:
            w4(s + 4)
    k.ts()
    k.i('s_barrier')
    k.ts_end()
    k.label('p2_end')
    k.i('s_endpgm')
    return k, 256, 512, 163840


GENS = [gen_p234]
```

```python
import os, sys
from g2_common import *
if os.environ.get('TS'):
    Kernel.TS = True
import g2_p0, g2_p1
gens = [g2_p0.gen_p0, g2_p1.gen_p1]
try:
    import g2_p234
    gens += g2_p234.GENS
except ImportError:
    pass
HEADER = '''; adaLN + hedgehog linear attention + GEGLU FFN, gfx950. Generated by my own generator scripts.
; Kernarg: 0 A_x, 8 A_wqkv, 16 A_w_phi, 24 A_wo, 32 B_x, 40 B_w_gate, 48 B_w_up, 56 B_w_down, 64 c, 72 w_mod, 80 out, 88 debug, 96 ws'''.split('\n')
n = int(sys.argv[2]) if len(sys.argv) > 2 else len(gens)
ks, launches = [], []
for g in gens[:n]:
    k, grid, block, lds = g()
    ks.append(k)
    launches.append((k.name, grid, block, lds))
    print(k.name, 'vgpr', k.hi_v, 'agpr', k.hi_a, 'sgpr', k.hi_s, 'instr', k.ninstr, 'lds', lds, file=sys.stderr)
open(sys.argv[1], 'w').write(build_file(HEADER, launches, ks))
```

```python
import re

TRANS = ('v_exp_f32', 'v_log_f32', 'v_rcp_f32', 'v_rsq_f32', 'v_sqrt_f32', 'v_sin_f32', 'v_cos_f32')

_reg_re = re.compile(r'^(-|\|)?(abs\()?([vsa])(\d+|\[(\d+):(\d+)\])\)?\|?$')


def parse_reg(tok):
    tok = tok.strip()
    if tok in ('vcc',):
        return [('s', 106), ('s', 107)]
    if tok == 'vcc_lo':
        return [('s', 106)]
    if tok == 'vcc_hi':
        return [('s', 107)]
    if tok == 'exec':
        return [('s', 126), ('s', 127)]
    if tok == 'exec_lo':
        return [('s', 126)]
    if tok == 'exec_hi':
        return [('s', 127)]
    if tok == 'm0':
        return [('s', 124)]
    m = _reg_re.match(tok)
    if not m:
        return []
    kind = m.group(3)
    if m.group(5) is not None:
        return [(kind, i) for i in range(int(m.group(5)), int(m.group(6)) + 1)]
    return [(kind, int(m.group(4)))]


class R:
    def __init__(self, kind, base, n):
        self.kind, self.base, self.n = kind, base, n

    def __getitem__(self, i):
        if isinstance(i, slice):
            a = i.start or 0
            b = i.stop if i.stop is not None else self.n
            assert 0 <= a < b <= self.n, (a, b, self.n)
            return R(self.kind, self.base + a, b - a)
        assert 0 <= i < self.n, (i, self.n)
        return R(self.kind, self.base + i, 1)

    def __str__(self):
        if self.n == 1:
            return f'{self.kind}{self.base}'
        return f'{self.kind}[{self.base}:{self.base + self.n - 1}]'

    __repr__ = __str__

    def __format__(self, spec):
        return str(self)


def mfma_passes(op):
    if '32x32x16' in op or '32x32x8' in op:
        return 8
    if '16x16x32' in op or '16x16x16' in op:
        return 4
    if '_4b_' in op:
        return 8
    if '_2b_' in op:
        return 16
    if '_16b_' in op:
        return 2
    raise ValueError(op)


class Kernel:
    def __init__(self, name, max_v=256, max_a=256):
        self.name = name
        self.lines = []
        self.nv = 1
        self.na = 0
        self.ns = 4
        self.max_v, self.max_a = max_v, max_a
        self.hi_v = 1
        self.hi_a = 0
        self.hi_s = 4
        self.reset_state()
        self.nlabel = 0
        self.ninstr = 0

    def v(self, n=1, align=None):
        if align is None:
            align = 1 if n == 1 else (2 if n < 4 else 4)
        b = (self.nv + align - 1) // align * align
        self.nv = b + n
        assert self.nv <= (253 if self.TS else self.max_v), f'{self.name}: out of VGPRs ({self.nv})'
        self.hi_v = max(self.hi_v, self.nv)
        return R('v', b, n)

    def a(self, n=1, align=4):
        b = (self.na + align - 1) // align * align
        self.na = b + n
        assert self.na <= self.max_a, f'{self.name}: out of AGPRs'
        self.hi_a = max(self.hi_a, self.na)
        return R('a', b, n)

    def s(self, n=1, align=None):
        if align is None:
            align = 1 if n == 1 else (2 if n < 4 else 4)
        b = (self.ns + align - 1) // align * align
        self.ns = b + n
        assert self.ns <= (60 if self.TS else 100), f'{self.name}: out of SGPRs'
        self.hi_s = max(self.hi_s, self.ns)
        return R('s', b, n)

    def mark(self):
        return (self.nv, self.na, self.ns)

    def release(self, m):
        self.nv, self.na, self.ns = m

    def reset_state(self):
        self.pos = 0
        self.lastw = {}
        self.mfma_c_read = {}
        self.store_data = {}
        self.vm = []
        self.lg = []
        self.m0w = -100

    def raw(self, s):
        self.lines.append(s)

    def comment(self, s):
        self.lines.append('; ' + s)

    def label(self, name):
        self.lines.append(f'{name}:')
        self._join()

    def _join(self):
        self.lastw = {}
        self.mfma_c_read = {}
        self.store_data = {}

    def newlabel(self, p='L'):
        self.nlabel += 1
        return f'{self.name}_{p}{self.nlabel}'

    def nop(self, n):
        while n > 0:
            k = min(n, 16)
            self.lines.append(f'  s_nop {k - 1}')
            self.pos += k
            self.ninstr += 1
            n -= k

    def _emit_wait(self, vm=None, lg=None):
        parts = []
        if vm is not None:
            parts.append(f'vmcnt({vm})')
            self.vm = self.vm[len(self.vm) - vm:] if vm > 0 else []
        if lg is not None:
            parts.append(f'lgkmcnt({lg})')
            self.lg = self.lg[len(self.lg) - lg:] if lg > 0 else []
        if parts:
            self.lines.append('  s_waitcnt ' + ' '.join(parts))
            self.pos += 1
            self.ninstr += 1

    def wait(self, vm=None, lg=None):
        if vm is not None:
            vm = min(vm, 63)
            if vm >= len(self.vm) and not self.force_wait:
                vm = None
        if lg is not None:
            lg = min(lg, 15)
            if lg >= len(self.lg) and not self.force_wait:
                lg = None
        if vm is not None and vm > len(self.vm):
            self.lines.append(f'  s_waitcnt vmcnt({vm})')
            self.pos += 1
            vm = None
        if lg is not None and lg > len(self.lg):
            self.lines.append(f'  s_waitcnt lgkmcnt({lg})')
            self.pos += 1
            lg = None
        self._emit_wait(vm, lg)

    force_wait = False

    def wait_all(self):
        self.lines.append('  s_waitcnt vmcnt(0) lgkmcnt(0)')
        self.pos += 1
        self.vm = []
        self.lg = []

    def wait_tag(self, tag):
        idx = -1
        for i, e in enumerate(self.vm):
            if e['tag'] == tag:
                idx = i
        if idx >= 0:
            n = len(self.vm) - 1 - idx
            if n <= 63:
                self._emit_wait(vm=n)
            else:
                self.vm = self.vm[idx + 1:]

    def _need_waits(self, regs):
        regs = set(regs)
        vm = lg = None
        idx = -1
        for i, e in enumerate(self.vm):
            if e['regs'] & regs:
                idx = i
        if idx >= 0:
            n = len(self.vm) - 1 - idx
            if n <= 62:
                vm = n
            else:
                self.vm = self.vm[idx + 1:]
        idx = -1
        for i, e in enumerate(self.lg):
            if e['regs'] & regs:
                idx = i
        if idx >= 0:
            if any(e['smem'] for e in self.lg):
                lg = 0
            else:
                n = len(self.lg) - 1 - idx
                if n <= 14:
                    lg = n
                else:
                    lg = 15 if n > 15 else n
                    lg = min(lg, 15)
                    lg = 14 if n > 14 else n
        self._emit_wait(vm, lg)

    def i(self, text, tag=None):
        text = text.strip()
        sp = text.split(None, 1)
        op = sp[0]
        rest = sp[1] if len(sp) > 1 else ''
        ops = [o.strip() for o in rest.split(',')] if rest else []
        mods = ''
        if ops:
            last = ops[-1].split()
            if len(last) > 1:
                ops[-1] = last[0]
                mods = ' '.join(last[1:])
        base = op.replace('_e32', '').replace('_e64', '').replace('_dpp', '').replace('_sdwa', '')
        w, r = [], []
        kind = None
        passes = 0
        is_dpp = ('row_' in mods) or ('quad_perm' in mods) or op.endswith('_dpp') or ('wave_' in mods)
        lds_dma = False
        if base.startswith('v_mfma'):
            kind = 'mfma'
            passes = mfma_passes(base)
            w = parse_reg(ops[0])
            ra, rb, rc = parse_reg(ops[1]), parse_reg(ops[2]), parse_reg(ops[3])
            r = ra + rb + rc
        elif base.startswith('v_cmp'):
            kind = 'valu'
            w = parse_reg(ops[0])
            for o in ops[1:]:
                r += parse_reg(o)
            if base.startswith('v_cmpx'):
                w += parse_reg('exec')
        elif base.startswith('v_'):
            kind = 'trans' if base in TRANS else 'valu'
            w = parse_reg(ops[0])
            k = 1
            if '_co_' in base or base in ('v_mad_u64_u32', 'v_div_scale_f32'):
                w += parse_reg(ops[1])
                k = 2
            for o in ops[k:]:
                r += parse_reg(o)
            if base in ('v_fmac_f32', 'v_pk_fmac_f16', 'v_dot2c_f32_bf16', 'v_writelane_b32') or 'fmac' in base:
                r += parse_reg(ops[0])
            if base.startswith('v_permlane') and 'swap' in base:
                w += parse_reg(ops[1])
                r += parse_reg(ops[0])
            if is_dpp or 'op_sel' in mods and base.startswith('v_cvt'):
                r += parse_reg(ops[0])
        elif base.startswith('s_load') or base.startswith('s_buffer_load') or base in ('s_memtime', 's_memrealtime'):
            kind = 'smem'
            w = parse_reg(ops[0])
            for o in ops[1:]:
                r += parse_reg(o)
        elif base.startswith('s_'):
            kind = 'salu'
            if base.startswith('s_cmp') or base.startswith('s_cbranch') or base in ('s_branch', 's_barrier', 's_endpgm', 's_setprio', 's_sleep', 's_nop', 's_waitcnt', 's_bitcmp1_b32', 's_bitcmp0_b32'):
                for o in ops:
                    r += parse_reg(o)
                if 'vcc' in base:
                    r += parse_reg('vcc')
                if 'exec' in base:
                    r += parse_reg('exec')
            else:
                w = parse_reg(ops[0])
                for o in ops[1:]:
                    r += parse_reg(o)
                if 'saveexec' in base:
                    w += parse_reg('exec')
                    r += parse_reg('exec')
                if base in ('s_addk_i32', 's_mulk_i32', 's_cmov_b32', 's_cmov_b64'):
                    r += parse_reg(ops[0])
        elif base.startswith('ds_'):
            kind = 'ds'
            if base.startswith('ds_read') or base.startswith('ds_bpermute') or base.startswith('ds_permute') or base.startswith('ds_swizzle') or '_rtn' in base:
                w = parse_reg(ops[0])
                for o in ops[1:]:
                    r += parse_reg(o)
            else:
                for o in ops:
                    r += parse_reg(o)
        elif base.startswith('buffer_') or base.startswith('global_'):
            kind = 'vmem'
            allmods = mods.split()
            if 'lds' in allmods or '_lds_' in base:
                lds_dma = True
                for o in ops:
                    r += parse_reg(o)
                r += parse_reg('m0')
            elif '_load' in base:
                w = parse_reg(ops[0])
                for o in ops[1:]:
                    r += parse_reg(o)
            elif 'atomic' in base and 'sc0' in allmods:
                raise NotImplementedError('returning atomics: handle manually')
            else:
                for o in ops:
                    r += parse_reg(o)
        else:
            raise ValueError('unknown op ' + text)

        self._need_waits(r + w)

        need = 0

        def req(p, n):
            nonlocal need
            d = self.pos - p
            have = d - 1
            if have < n:
                need = max(need, n - have)

        isv = kind in ('valu', 'trans')
        for reg in r:
            lw = self.lastw.get(reg)
            if lw is None:
                continue
            p, k2, ps = lw
            if k2 in ('valu', 'trans'):
                if reg[0] in 'va':
                    if kind == 'mfma':
                        req(p, 2)
                    if isv and is_dpp:
                        req(p, 2)
                    if base.startswith('v_permlane'):
                        req(p, 2)
                    if base in ('v_readfirstlane_b32', 'v_readlane_b32'):
                        req(p, 1)
                    if k2 == 'trans' and kind in ('valu', 'mfma', 'vmem', 'ds'):
                        req(p, 1)
                else:
                    if isv:
                        req(p, 4 if base in ('v_readlane_b32', 'v_writelane_b32') else 2)
                    if kind == 'vmem':
                        req(p, 5)
                    if kind in ('salu', 'smem'):
                        req(p, 1)
                    if reg in (('s', 126), ('s', 127)):
                        req(p, 5)
            elif k2 == 'mfma':
                if kind == 'mfma':
                    if reg in rc and not (reg in ra or reg in rb):
                        if set(rc) == self.lastw_set.get(p, None) and ps == passes:
                            req(p, 2 if ps == 2 else 0)
                        else:
                            req(p, ps + 2)
                    else:
                        req(p, ps + 4 if ps > 2 else 5)
                else:
                    req(p, ps + 4 if ps > 2 else 5)
            elif k2 == 'salu':
                if reg == ('s', 124) and lds_dma:
                    req(p, 1)
        for reg in w:
            lw = self.lastw.get(reg)
            if lw is not None:
                p, k2, ps = lw
                if k2 == 'mfma' and kind != 'mfma':
                    req(p, ps + 4 if ps > 2 else 5)
                if k2 == 'mfma' and kind == 'mfma' and reg not in rc:
                    req(p, ps + 2)
            cr = self.mfma_c_read.get(reg)
            if cr is not None and kind != 'mfma':
                req(cr[0], cr[1] - 1)
            sd = self.store_data.get(reg)
            if sd is not None:
                req(sd, 2)
        if need > 0:
            self.nop(need)

        self.lines.append('  ' + text)
        self.ninstr += 1
        p = self.pos
        self.pos += 1
        if kind in ('valu', 'trans', 'mfma', 'salu'):
            for reg in w:
                self.lastw[reg] = (p, kind, passes)
            if kind == 'mfma':
                if not hasattr(self, 'lastw_set'):
                    self.lastw_set = {}
                self.lastw_set[p] = set(w)
                for reg in rc:
                    self.mfma_c_read[reg] = (p, passes)
        else:
            for reg in w:
                self.lastw.pop(reg, None)
        if kind == 'vmem':
            self.vm.append(dict(regs=set(w), tag=tag))
            if ('store' in base or 'atomic' in base) and ('x4' in base or 'x3' in base):
                dreg = parse_reg(ops[0]) if base.startswith('buffer_') else parse_reg(ops[1])
                for reg in dreg:
                    self.store_data[reg] = p
        elif kind == 'ds':
            self.lg.append(dict(regs=set(w), smem=False))
        elif kind == 'smem':
            self.lg.append(dict(regs=set(w), smem=True))
        if base.startswith('s_cbranch') or base == 's_branch':
            pass
        for reg in w + r:
            if reg[0] == 'v':
                self.hi_v = max(self.hi_v, reg[1] + 1)
            elif reg[0] == 'a':
                self.hi_a = max(self.hi_a, reg[1] + 1)
            elif reg[1] < 102:
                self.hi_s = max(self.hi_s, reg[1] + 1)

    lastw_set = {}

    TS = False
    WS_TS = 0x1C00000

    def ts_init(self, kidx):
        self.kidx = kidx
        self.nts = 0
        if not self.TS:
            return
        self.tsr = R('s', 60, 40)
        self.i(f's_memrealtime {self.tsr[0:2]}')
        self.i(f's_load_dwordx2 {self.tsr[4:6]}, s[0:1], 96')
        self.i(f's_mov_b32 {self.tsr[3]}, s2')
        self._emit_wait(lg=0)
        self.ts()

    def ts(self):
        if not self.TS:
            return
        if self.nts >= 27 and not getattr(self, '_final', False):
            return
        d = self.tsr[10:12]
        self.i(f's_memtime {d}')
        self._emit_wait(lg=0)
        self.i(f's_mov_b32 {self.tsr[12 + self.nts]}, {d[0]}')
        self.nts += 1

    def ts_end(self):
        if not self.TS:
            return
        t = self.tsr
        self.i('s_mov_b64 exec, -1')
        self.wait_all()
        self._final = True
        self.ts()
        self._final = False
        self.i(f's_memrealtime {t[10:12]}')
        self._emit_wait(lg=0)
        self.i(f's_mov_b32 {t[1]}, {t[10]}')
        self.i(f's_and_b32 {t[5]}, {t[5]}, 0xffff')
        self.i(f's_mov_b32 {t[6]}, 0x10000000')
        self.i(f's_mov_b32 {t[7]}, 0x00020000')
        self.i(f's_lshl_b32 {t[3]}, {t[3]}, 10')
        self.i(f's_add_u32 {t[3]}, {t[3]}, {self.WS_TS + self.kidx * 1024 * 1024}')
        self.i('v_lshrrev_b32 v255, 6, v254')
        self.i('v_lshlrev_b32 v255, 7, v255')
        self.i('s_mov_b32 exec_lo, 1')
        self.i('s_mov_b32 exec_hi, 0')
        vals = [t[0], t[1]] + [t[12 + i] for i in range(self.nts)]
        for j, v in enumerate(vals):
            self.i(f'v_mov_b32 v253, {v}')
            self.i(f'buffer_store_dword v253, v255, {t[4:8]}, {t[3]} offen offset:{4 * j}')
        self.nts -= 1

    def barrier(self):
        if self.lg:
            self._emit_wait(lg=0)
        self.i('s_barrier')

    def srd(self, base, nbytes):
        d = self.s(4)
        self.i(f's_mov_b32 {d[0]}, {base[0]}')
        self.i(f's_and_b32 {d[1]}, {base[1]}, 0xffff')
        self.i(f's_mov_b32 {d[2]}, {nbytes}')
        self.i(f's_mov_b32 {d[3]}, 0x00020000')
        return d

    def srd_off(self, base, off, nbytes):
        d = self.s(4)
        self.i(f's_add_u32 {d[0]}, {base[0]}, {off}')
        self.i(f's_addc_u32 {d[1]}, {base[1]}, 0')
        self.i(f's_and_b32 {d[1]}, {d[1]}, 0xffff')
        self.i(f's_mov_b32 {d[2]}, {nbytes}')
        self.i(f's_mov_b32 {d[3]}, 0x00020000')
        return d

    def text(self):
        out = [f'.globl {self.name}', '.p2align 8', f'.type {self.name},@function', f'{self.name}:']
        out += self.lines
        return '\n'.join(out)

    def desc(self):
        nv = (self.hi_v + 3) // 4 * 4
        tot = nv + self.hi_a if self.hi_a else self.hi_v
        return '\n'.join([
            '.p2align 6',
            f'.amdhsa_kernel {self.name}',
            f'  .amdhsa_next_free_vgpr {tot}',
            f'  .amdhsa_next_free_sgpr {max(self.hi_s, 8)}',
            f'  .amdhsa_accum_offset {nv}',
            '  .amdhsa_group_segment_fixed_size 0',
            '  .amdhsa_kernarg_size 104',
            '  .amdhsa_user_sgpr_count 2',
            '  .amdhsa_user_sgpr_kernarg_segment_ptr 1',
            '  .amdhsa_system_sgpr_workgroup_id_x 1',
            '.end_amdhsa_kernel'])


def build_file(header_lines, launches, kernels):
    out = list(header_lines)
    for (name, grid, block, lds) in launches:
        out.append(f'; @launch kernel={name} grid=({grid},1,1) block=({block},1,1) lds={lds}')
    out.append('.amdgcn_target "amdgcn-amd-amdhsa--gfx950"')
    out.append('.text')
    for k in kernels:
        out.append(k.text())
    out.append('code_end:')
    out.append('.section .rodata,"a"')
    for k in kernels:
        out.append(k.desc())
    return '\n'.join(out) + '\n'
```

```python
import os
from g2_common import *

SPIN_MAX = 400000
C2, G2, C3, G3, C1G, C1T, G1, CW = 0, 4096, 8192, 12288, 16384, 20480, 24576, 28672


def R_(base, n):
    return R('v', base, n)


def gen_main():
    k = Kernel('p1_kernel')
    TSX = os.environ.get('TSX')

    def tsx():
        if TSX == '1':
            k.ts()

    def tsy(c=True):
        if TSX == '2' and c:
            k.ts()

    c = common_prologue(k, 256, 'p1_end', 1)
    lane, G, n, l16, wave = c.lane, c.G, c.n, c.l16, c.wave
    KPS, LA, NST, NSL = 1, int(os.environ.get('P1_LA', 4)), 20, 8
    LQK, LV, LPK, LSIDE, LCS = 0, 129024, 40960, 141824, 0
    WOFB = 57344
    LCNT = 163840 - 64
    sx, sy, so, st1, st2 = k.s(), k.s(), k.s(), k.s(), k.s()
    mt2, nt2, mt3, nt3 = k.s(), k.s(), k.s(), k.s()
    px, po = k.s(2), k.s(2)
    rot2 = k.s()
    t1, t2, t3 = k.v(), k.v(), k.v()
    sws = k.s(4)
    mk_common = k.mark()

    def code_pf(lab_from, lab_to, tag):
        pc = k.s(2)
        k.lines.append(f'  s_getpc_b64 {pc}')
        k.lines.append(f'm_pc{tag}:')
        k.lines.append(f'  s_add_u32 {pc[0]}, {pc[0]}, {lab_from}-m_pc{tag}')
        k.lines.append(f'  s_addc_u32 {pc[1]}, {pc[1]}, ({lab_from}-m_pc{tag})>>32')
        k.i(f'v_lshlrev_b32 {t1}, 12, {lane}')
        k.i(f's_lshl_b32 {so}, {sy}, 7')
        k.i(f'v_add_u32 {t1}, {so}, {t1}')
        k.lines.append(f'  v_cmp_gt_u32 vcc, {lab_to}-{lab_from}-4, {t1}')
        k.lines.append(f'  s_and_saveexec_b64 {k.s(2)}, vcc')
        k.lines.append(f'  s_cbranch_execz m_pcx{tag}')
        k.lines.append(f'  global_load_dword {t2}, {t1}, {pc}')
        k.lines.append(f'm_pcx{tag}:')
        k.i('s_mov_b64 exec, -1')

    mt, hp = k.s(), k.s()
    k.i(f's_and_b32 {sx}, s2, 7')
    k.i(f's_lshr_b32 {sy}, s2, 3')
    k.i(f's_lshr_b32 {mt}, {sx}, 1')
    k.i(f's_lshl_b32 {mt}, {mt}, 2')
    k.i(f's_and_b32 {hp}, {sy}, 3')
    k.i(f's_add_u32 {mt}, {mt}, {hp}')
    k.i(f's_and_b32 {hp}, {sx}, 1')
    k.i(f's_lshl_b32 {hp}, {hp}, 3')
    k.i(f's_lshr_b32 {so}, {sy}, 2')
    k.i(f's_add_u32 {hp}, {hp}, {so}')
    hw, sg_, sm0 = k.s(), k.s(), k.s()
    k.i(f's_and_b32 {hw}, {wave}, 3')
    k.i(f's_mul_i32 {sg_}, {hp}, 163840')
    k.i(f's_add_u32 {sg_}, {sg_}, {WS_WP}')
    k.i(f's_mul_i32 {so}, {mt}, 163840')
    k.i(f's_add_u32 {so}, {so}, {WS_XN - 8192}')
    k.i(f's_cmp_ge_u32 {hw}, 2')
    k.i(f's_cselect_b32 {sg_}, {so}, {sg_}')
    k.i(f's_lshl_b32 {sm0}, {hw}, 12')
    k.i(f's_add_u32 {sg_}, {sg_}, {sm0}')
    k.i(f's_mov_b32 {sws[0]}, {c.ws[0]}')
    k.i(f's_and_b32 {sws[1]}, {c.ws[1]}, 0xffff')
    k.i(f's_mov_b32 {sws[2]}, {WS_END}')
    k.i(f's_mov_b32 {sws[3]}, 0x00020000')

    cur1 = k.s()
    if os.environ.get('ROT1', '0') == '1':
        k.i(f's_and_b32 {cur1}, {hp}, 7')
        k.i(f's_mul_i32 {cur1}, {cur1}, 5')
        k.i(f's_lshr_b32 {cur1}, {cur1}, 1')
        k.i(f's_and_b32 {so}, {mt}, 3')
        k.i(f's_mul_i32 {so}, {so}, 5')
        k.i(f's_add_u32 {cur1}, {cur1}, {so}')
        k.i(f's_cmp_ge_u32 {cur1}, 20')
        k.i(f's_cselect_b32 {so}, 20, 0')
        k.i(f's_sub_u32 {cur1}, {cur1}, {so}')
        k.i(f's_lshl_b32 {cur1}, {cur1}, 13')
    else:
        k.i(f's_mov_b32 {cur1}, 0')

    def dma_stage(s):
        k.i(f's_add_u32 {st1}, {sg_}, {cur1}')
        k.i(f's_add_u32 {cur1}, {cur1}, 8192')
        k.i(f's_cmp_eq_u32 {cur1}, 163840')
        k.i(f's_cselect_b32 {cur1}, 0, {cur1}')
        k.i(f's_add_u32 m0, {sm0}, {(s % 8) * 16384}')
        for i in range(4):
            k.i(f'buffer_load_dwordx4 {l16}, {sws}, {st1} offen offset:{1024 * i} lds', tag=f'w{s}')

    k.i(f's_cmp_lt_u32 {wave}, 4')
    k.i('s_cbranch_scc1 m_setup')
    NPRE = 3
    for s in range(NPRE):
        dma_stage(s)
    vm_L = list(k.vm)
    k.raw('m_setup:')
    k._join()
    k.vm = []
    k.i(f's_load_dwordx2 {px}, s[0:1], {KA_X}')
    k.i(f's_load_dwordx2 {po}, s[0:1], {KA_OUT}')
    k.i(f's_lshl_b32 {mt2}, {sx}, 2')
    k.i(f's_and_b32 {nt2}, {sy}, 3')
    k.i(f's_add_u32 {mt2}, {mt2}, {nt2}')
    k.i(f's_lshr_b32 {nt2}, {sy}, 2')
    k.i(f's_and_b32 {mt3}, {sx}, 1')
    k.i(f's_lshl_b32 {mt3}, {mt3}, 3')
    k.i(f's_and_b32 {nt3}, {sy}, 7')
    k.i(f's_add_u32 {mt3}, {mt3}, {nt3}')
    k.i(f's_lshr_b32 {nt3}, {sx}, 1')
    k.i(f's_lshl_b32 {nt3}, {nt3}, 2')
    k.i(f's_lshr_b32 {so}, {sy}, 3')
    k.i(f's_add_u32 {nt3}, {nt3}, {so}')
    k.i(f's_mov_b32 {rot2}, 0')
    k.i(f'v_lshlrev_b32 {t1}, 2, {n}')
    k.i(f'v_add_u32 {t1}, {LCNT}, {t1}')
    k.i(f'v_mov_b32 {t2}, 0')
    k.i(f'ds_write_b32 {t1}, {t2}')
    sty, srowA, srowB, sdst, scol, ks, p_ = k.s(), k.s(), k.s(), k.s(), k.s(), k.s(), k.s()
    ssd = k.s(4)
    mk_tmp = k.mark()
    ska, sstr, cblk, u2, q_, t_, t2_ = k.s(), k.s(), k.s(), k.s(), k.s(), k.s(), k.s()
    k.i(f's_mul_i32 {ks}, s2, 1214')
    k.i(f's_lshr_b32 {ks}, {ks}, 16')
    k.i(f's_mul_i32 {t_}, {ks}, 54')
    k.i(f's_sub_u32 {cblk}, s2, {t_}')
    k.i(f's_cmp_ge_u32 s2, 216')
    k.i(f's_cselect_b32 {t_}, 100, {wave}')
    k.i(f's_cmp_lt_u32 {t_}, 5')
    k.i(f's_cselect_b32 {sty}, 0, 3')
    k.i(f's_min_u32 {ks}, {ks}, 3')
    k.i(f's_lshl_b32 {t2_}, {wave}, 2')
    k.i(f's_lshr_b32 {t2_}, 0x47520, {t2_}')
    k.i(f's_and_b32 {t2_}, {t2_}, 15')
    k.i(f's_mul_i32 {srowA}, {ks}, 10')
    k.i(f's_add_u32 {srowA}, {srowA}, {t2_}')
    k.i(f's_cmp_eq_u32 {wave}, 4')
    k.i(f's_cselect_b32 {t2_}, 5, 1')
    k.i(f's_add_u32 {srowB}, {srowA}, {t2_}')
    k.i(f's_cmp_ge_u32 {cblk}, 27')
    k.i(f's_cselect_b32 {ska}, {KA_WU}, {KA_WG}')
    k.i(f's_cselect_b32 {t_}, 27, 0')
    k.i(f's_cselect_b32 {t2_}, 112, 0')
    k.i(f's_sub_u32 {t_}, {cblk}, {t_}')
    k.i(f's_lshl_b32 {scol}, {t_}, 7')
    k.i(f's_lshl_b32 {t_}, {t_}, 2')
    k.i(f's_add_u32 {p_}, {t_}, {t2_}')
    k.i(f's_mul_i32 {sdst}, {ks}, 5')
    k.i(f's_add_u32 {sdst}, {sdst}, {wave}')
    k.i(f's_mul_i32 {sdst}, {sdst}, 224')
    k.i(f's_add_u32 {sdst}, {sdst}, {p_}')
    k.i(f's_lshl_b32 {sdst}, {sdst}, 10')
    k.i(f's_add_u32 {sdst}, {sdst}, {WS_WGU}')
    k.i(f's_mov_b32 {sstr}, {F * 2}')
    k.i(f's_load_dwordx2 {ssd[0:2]}, s[0:1], {ska}')
    k.i(f's_lshl_b32 {srowA}, {srowA}, 4')
    k.i(f's_lshl_b32 {srowB}, {srowB}, 4')
    SA = k.v(4, align=1)
    k.i(f'v_and_b32 {t3}, 7, {lane}')
    k.i(f'v_lshlrev_b32 {t3}, 4, {t3}')
    k.i(f'v_lshrrev_b32 {t1}, 3, {lane}')
    for i in range(4):
        k.i(f'v_add_u32 {t2}, {srowA if i < 2 else srowB}, {t1}')
        if i & 1:
            k.i(f'v_add_u32 {t2}, 8, {t2}')
        k.i(f'v_mul_lo_u32 {t2}, {t2}, {sstr}')
        k.i(f'v_add_u32 {SA[i]}, {t2}, {t3}')
    k.ns = mk_tmp[2]
    E = Ctx()
    PR = k.v(16, align=1)
    E.sq, E.skv = k.s(), k.s()
    hh, ft = k.s(), k.s()

    def epi_addr(tmp):
        hq, qa, ql, ka = tmp[0], PR[0], PR[1], PR[2]
        sq = E.sq
        E.qa, E.ql, E.ka, E.qk_a, E.sgl, E.ka2 = qa, ql, ka, PR[3], PR[14], PR[15]
        hd, sg = tmp[2], tmp[3]
        k.i(f'v_and_b32 {hd}, 1, {G}')
        k.i(f'v_lshrrev_b32 {sg}, 1, {G}')
        k.i(f'v_lshlrev_b32 {PR[14]}, 31, {sg}')
        k.i(f'v_xor_b32 {PR[14]}, {fhex(LOG2E)}, {PR[14]}')
        k.i(f's_lshl_b32 {so}, {hp}, 1')
        k.i(f'v_add_u32 {hq}, {so}, {hd}')
        k.i(f'v_and_b32 {tmp[4]}, 15, {hq}')
        k.i(f'v_lshrrev_b32 {tmp[5]}, 4, {hq}')
        k.i(f'v_lshlrev_b32 {tmp[5]}, 10, {tmp[5]}')
        k.i(f'v_lshl_add_u32 {tmp[5]}, {n}, 4, {tmp[5]}')
        k.i(f'v_lshl_add_u32 {qa}, {tmp[4]}, 13, {tmp[5]}')
        k.i(f'v_lshl_add_u32 {qa}, {sg}, 9, {qa}')
        k.i(f'v_lshrrev_b32 {ql}, 2, {tmp[4]}')
        k.i(f'v_add_u32 {ql}, 16, {ql}')
        k.i(f'v_lshl_add_u32 {ql}, {ql}, 13, {tmp[5]}')
        k.i(f'v_and_b32 {tmp[4]}, 3, {hq}')
        k.i(f'v_lshl_add_u32 {ql}, {tmp[4]}, 8, {ql}')
        k.i(f'v_lshl_add_u32 {ql}, {sg}, 3, {ql}')
        k.i(f'v_mul_u32_u24 {ka}, 160, {n}')
        k.i(f'v_mul_u32_u24 {tmp[4]}, 80, {hd}')
        k.i(f'v_add_u32 {ka}, {ka}, {tmp[4]}')
        k.i(f's_mul_i32 {so}, {wave}, 2560')
        k.i(f's_add_u32 {so}, {so}, {LPK}')
        k.i(f'v_add_u32 {ka}, {so}, {ka}')
        k.i(f'v_lshl_add_u32 {PR[15]}, {sg}, 3, {ka}')
        k.i(f'v_add_u32 {PR[15]}, 64, {PR[15]}')
        k.i(f'v_lshl_add_u32 {ka}, {sg}, 5, {ka}')
        k.i(f's_lshl_b32 {sq}, {mt}, 1')
        k.i(f's_lshr_b32 {so}, {wave}, 2')
        k.i(f's_add_u32 {sq}, {sq}, {so}')
        k.i(f's_mul_i32 {sq}, {sq}, 163840')
        k.i(f's_and_b32 {so}, {wave}, 3')
        k.i(f's_lshl_b32 {so}, {so}, 11')
        k.i(f's_add_u32 {sq}, {sq}, {so}')
        k.i(f's_add_u32 {sq}, {sq}, {WS_PHIQ}')
        k.i(f's_mul_i32 {so}, {wave}, 5120')
        k.i(f's_add_u32 {so}, {so}, {LQK}')
        k.i(f'v_lshlrev_b32 {PR[3]}, 8, {hd}')
        k.i(f'v_lshl_add_u32 {PR[3]}, {n}, 4, {PR[3]}')
        k.i(f'v_add_u32 {PR[3]}, {so}, {PR[3]}')
        k.i(f's_cmp_ge_u32 {wave}, 3')
        k.i(f's_cselect_b32 {hh}, 1, 0')
        k.i(f's_mul_i32 {ft}, {hh}, 3')
        k.i(f's_sub_u32 {ft}, {wave}, {ft}')
        tb, ta = PR[4], PR[5]
        E.tb, E.ta = tb, ta
        rr_, cc_ = tmp[4], tmp[5]
        k.i(f'v_lshrrev_b32 {rr_}, 2, {lane}')
        k.i(f'v_and_b32 {cc_}, 3, {lane}')
        k.i(f'v_mul_u32_u24 {tb}, 160, {rr_}')
        k.i(f'v_lshl_add_u32 {tb}, {cc_}, 3, {tb}')
        k.i(f's_mul_i32 {so}, {hh}, 80')
        k.i(f's_lshl_b32 {st1}, {ft}, 5')
        k.i(f's_add_u32 {so}, {so}, {st1}')
        k.i(f's_add_u32 {so}, {so}, {LPK}')
        k.i(f'v_add_u32 {tb}, {so}, {tb}')
        k.i(f'v_mul_u32_u24 {ta}, 96, {rr_}')
        k.i(f'v_lshl_add_u32 {ta}, {cc_}, 3, {ta}')
        k.i(f's_lshl_b32 {so}, {hh}, 5')
        k.i(f's_add_u32 {so}, {so}, {LV}')
        k.i(f'v_add_u32 {ta}, {so}, {ta}')
        aa = PR[6:14]
        E.aa = aa
        fo, dr = tmp[6], tmp[7]
        k.i(f's_lshl_b32 {so}, {ft}, 4')
        k.i(f'v_add_u32 {fo}, {so}, {n}')
        k.i(f'v_cmp_lt_u32 vcc, 39, {fo}')
        k.i(f'v_lshlrev_b32 {fo}, 2, {fo}')
        big = tmp[1]
        k.i(f'v_mov_b32 {big}, 0x7f000000')
        k.i(f'v_cndmask_b32 {fo}, {fo}, {big}, vcc')
        k.i(f's_lshl_b32 {so}, {hh}, 3')
        for dt in range(2):
            for r in range(4):
                a = aa[dt * 4 + r]
                k.i(f'v_lshlrev_b32 {dr}, 2, {G}')
                k.i(f'v_add_u32 {dr}, {16 * dt + r}, {dr}')
                k.i(f'v_subrev_u32 {dr}, {so}, {dr}')
                k.i(f'v_cmp_lt_u32 vcc, 20, {dr}')
                k.i(f'v_mul_u32_u24 {a}, 160, {dr}')
                k.i(f'v_add_u32 {a}, {a}, {fo}')
                k.i(f'v_cndmask_b32 {a}, {a}, {big}, vcc')
        skv = E.skv
        k.i(f's_lshl_b32 {skv}, {hp}, 1')
        k.i(f's_add_u32 {skv}, {skv}, {hh}')
        k.i(f's_mul_i32 {skv}, {skv}, {KVS}')
        k.i(f's_add_u32 {skv}, {skv}, {WS_KV}')

    swo = k.s()
    k.i(f's_mul_i32 {swo}, {nt2}, 5120')
    k.i(f's_add_u32 {swo}, {swo}, {WS_WOF}')

    def wof_jj(sbase, add):
        k.i(f's_add_u32 {st2}, {sbase}, {add}')
        k.i(f's_lshr_b32 {so}, {st2}, 1')
        k.i(f's_and_b32 {st1}, {st2}, 1')
        k.i(f's_mul_i32 {st1}, {st1}, 10')
        k.i(f's_add_u32 {so}, {so}, {st1}')
        k.i(f's_mul_i32 {so}, {so}, 40960')
        k.i(f's_add_u32 {so}, {so}, {swo}')
        k.i(f's_add_u32 {st2}, {st2}, 2')
        k.i(f's_cmp_ge_u32 {st2}, 20')
        k.i(f's_cselect_b32 {st1}, 20, 0')
        k.i(f's_sub_u32 {st2}, {st2}, {st1}')
        k.i(f's_mul_i32 {st1}, {st2}, 5120')
        k.i(f's_add_u32 {st1}, {st1}, {WOFB}')
        k.i(f's_and_b32 {st2}, {mt2}, 3')
        k.i(f's_lshl_b32 {st2}, {st2}, 10')
        for cc in range(5):
            k.i(f's_add_u32 m0, {st1}, {st2}')
            k.i(f's_add_u32 {rot2}, {so}, {st2}')
            k.i(f'buffer_load_dwordx4 {l16}, {sws}, {rot2} offen lds', tag='wof')
            if cc < 4:
                k.i(f's_add_u32 {st2}, {st2}, 1024')
                k.i(f's_cmp_eq_u32 {st2}, 5120')
                k.i(f's_cselect_b32 {st2}, 0, {st2}')

    mk_p1 = k.mark()
    RR = k.v(168)
    epi_addr(RR[0:8])
    k.i(f's_and_b32 {ssd[1]}, {ssd[1]}, 0xffff')
    k.i(f's_mov_b32 {ssd[2]}, {D * F * 2}')
    k.i(f's_mov_b32 {ssd[3]}, 0x00020000')
    k.release(mk_p1)
    k.wait(lg=0)
    k.i(f's_cmp_ge_u32 {wave}, 4')
    k.i('s_cbranch_scc1 m_l1')
    nts0 = k.nts
    acc = k.v(64)
    Fr = k.v(64)
    R = k.v(40)
    th, ch = k.s(), k.s()
    k.i(f's_and_b32 {th}, {wave}, 1')
    k.i(f's_lshr_b32 {ch}, {wave}, 1')
    ha, wa = k.v(2, align=1), k.v(2, align=1)
    k.i(f's_lshl_b32 {so}, {th}, 12')
    k.i(f's_add_u32 {so}, {so}, 8192')
    k.i(f'v_add_u32 {ha[0]}, {so}, {l16}')
    k.i(f'v_add_u32 {ha[1]}, 65536, {ha[0]}')
    k.i(f's_lshl_b32 {so}, {ch}, 12')
    k.i(f'v_add_u32 {wa[0]}, {so}, {l16}')
    k.i(f'v_add_u32 {wa[1]}, 65536, {wa[0]}')

    def prep(J):
        L = []
        b = J & 1
        blk = J % 8
        for i in range(4):
            o = (blk & 3) * 16384 + i * 1024
            L.append(f'ds_read_b128 {Fr[(b * 8 + 4 + i) * 4:(b * 8 + 4 + i) * 4 + 4]}, {wa[blk >> 2]} offset:{o}')
            L.append(f'ds_read_b128 {Fr[(b * 8 + i) * 4:(b * 8 + i) * 4 + 4]}, {ha[blk >> 2]} offset:{o}')
        return L

    def mfmas(J):
        L = []
        b = J & 1
        for d in range(7):
            for ci in range(4):
                ti = d - ci
                if 0 <= ti < 4:
                    a = acc[(ci * 4 + ti) * 4:(ci * 4 + ti) * 4 + 4]
                    L.append(f'v_mfma_f32_16x16x32_bf16 {a}, {Fr[(b * 8 + 4 + ci) * 4:(b * 8 + 4 + ci) * 4 + 4]}, {Fr[(b * 8 + ti) * 4:(b * 8 + ti) * 4 + 4]}, {0 if J == 0 else a}')
        return L

    k.ts()
    k.barrier()
    k.ts()
    for x in prep(0):
        k.i(x)
    for J in range(20):
        if J == 10:
            k.ts()
        if J + 1 < 20:
            if (J + 1) % KPS == 0:
                k.barrier()
            interleave(k, mfmas(J), prep(J + 1), lead=4)
        else:
            for x in mfmas(J):
                k.i(x)
    k.ts()
    da = R[8]
    k.i(f's_mul_i32 {so}, {th}, {4 * 5120}')
    k.i(f's_add_u32 {so}, {so}, {LQK}')
    k.i(f'v_add_u32 {da}, {so}, {l16}')
    k.i(f's_cmp_eq_u32 {ch}, 1')
    k.i('s_cbranch_scc1 p1_dump1')
    stx = (list(k.vm), list(k.lg))
    for ci in range(4):
        for ti in range(4):
            k.i(f'ds_write_b128 {da}, {acc[(ci * 4 + ti) * 4:(ci * 4 + ti) * 4 + 4]} offset:{ti * 5120 + ci * 1024}')
    k.i('s_branch p1_dumped')
    k.raw('p1_dump1:')
    k._join()
    k.vm, k.lg = list(stx[0]), list(stx[1])
    for ti in range(4):
        k.i(f'ds_write_b128 {da}, {acc[ti * 4:ti * 4 + 4]} offset:{ti * 5120 + 4096}')
    va = R[9]
    k.i(f'v_mul_u32_u24 {va}, 96, {n}')
    k.i(f'v_lshl_add_u32 {va}, {G}, 3, {va}')
    k.i(f's_mul_i32 {so}, {th}, {64 * 96}')
    k.i(f's_add_u32 {so}, {so}, {LV}')
    k.i(f'v_add_u32 {va}, {so}, {va}')
    m1, m3 = k.s(2), k.s(2)
    k.i(f'v_cmp_eq_u32 {m1}, 1, {G}')
    k.i(f'v_cmp_eq_u32 {m3}, 3, {G}')
    for ci in range(1, 4):
        for ti in range(4):
            a = acc[(ci * 4 + ti) * 4:(ci * 4 + ti) * 4 + 4]
            if ci == 2:
                k.i(f'v_cndmask_b32 {a[0]}, {a[0]}, 1.0, {m1}')
            if ci == 3:
                k.i(f'v_cndmask_b32 {a[0]}, {a[0]}, 1.0, {m3}')
            o = R[12 + ((ci * 4 + ti) % 8) * 2:12 + ((ci * 4 + ti) % 8) * 2 + 2]
            k.i(f'v_cvt_pk_bf16_f32 {o[0]}, {a[0]}, {a[1]}')
            k.i(f'v_cvt_pk_bf16_f32 {o[1]}, {a[2]}, {a[3]}')
            k.i(f'ds_write_b64 {va}, {o} offset:{ti * 16 * 96 + (ci - 1) * 32}')
    k.raw('p1_dumped:')
    k._join()
    k.lines.append('  s_waitcnt lgkmcnt(0)')
    k.lg = []
    assert acc.base == RR.base
    k.i('s_branch m_j1')
    nts1 = k.nts
    k.reset_state()
    k.release(mk_p1)
    k.vm = list(vm_L)
    k.nts = nts0
    k.label('m_l1')
    nxt = NPRE
    k.ts()
    for s in range(NST):
        if s == NST // 2:
            k.ts()
        k.wait_tag(f'w{s}')
        k.barrier()
        if s == 0:
            k.ts()
        cnt = 0
        while nxt < NST and nxt <= min(s + LA, s - 1 + NSL) and cnt < 2:
            dma_stage(nxt)
            nxt += 1
            cnt += 1
        if 16 <= s <= 18:
            wof_jj(hw, 4 * (s - 16))
    k.ts()
    assert k.nts == nts1
    k.raw('m_j1:')
    k.reset_state()
    k.release(mk_p1)
    R = k.v(168)
    tmp = R[0:8]
    P, ph = R[8:28], R[28:40]
    cb, sb = R[152:160], R[160:168]
    k.i(f's_cmp_lg_u32 {sty}, 0')
    k.i('s_cbranch_scc1 m_noside')
    k.i(f's_lshl_b32 {so}, {wave}, 12')
    k.i(f's_add_u32 {so}, {so}, {LSIDE}')
    for i in range(4):
        k.i(f's_add_u32 m0, {so}, {1024 * i}')
        k.i(f'buffer_load_dwordx4 {SA[i]}, {ssd}, {scol} offen lds', tag='side')
    k.i(f'v_lshlrev_b32 {tmp[1]}, 4, {G}')
    k.i(f's_lshl_b32 {so}, {srowA}, 2')
    k.i(f's_lshl_b32 {st1}, {srowB}, 2')
    k.i(f's_add_u32 {so}, {so}, {WS_MOD + 3 * 2560}')
    k.i(f's_add_u32 {st1}, {st1}, {WS_MOD + 3 * 2560}')
    k.i(f'buffer_load_dwordx4 {sb[0:4]}, {tmp[1]}, {sws}, {so} offen', tag='side')
    k.i(f'buffer_load_dwordx4 {sb[4:8]}, {tmp[1]}, {sws}, {st1} offen', tag='side')
    k.i(f'buffer_load_dwordx4 {cb[0:4]}, {tmp[1]}, {sws}, {so} offen offset:2560', tag='side')
    k.i(f'buffer_load_dwordx4 {cb[4:8]}, {tmp[1]}, {sws}, {st1} offen offset:2560', tag='side')
    k.raw('m_noside:')
    k._join()
    qa, ql, ka, qk_a, sgl, sq = E.qa, E.ql, E.ka, E.qk_a, E.sgl, E.sq
    tb, ta, aa, skv = E.tb, E.ta, E.aa, E.skv

    def softmax(P, ph, tmp):
        mx, s0, s1 = tmp[0], tmp[1], tmp[2]
        for i in range(20):
            k.i(f'v_mul_f32 {P[i]}, {P[i]}, {sgl}')
        k.i(f'v_max3_f32 {mx}, {P[0]}, {P[1]}, {P[2]}')
        k.i(f'v_max3_f32 {s0}, {P[3]}, {P[4]}, {P[5]}')
        for i in range(6, 18, 4):
            k.i(f'v_max3_f32 {mx}, {mx}, {P[i]}, {P[i + 1]}')
            k.i(f'v_max3_f32 {s0}, {s0}, {P[i + 2]}, {P[i + 3]}')
        k.i(f'v_max3_f32 {mx}, {mx}, {P[18]}, {P[19]}')
        k.i(f'v_max_f32 {mx}, {mx}, {s0}')
        for i in range(20):
            k.i(f'v_sub_f32 {P[i]}, {P[i]}, {mx}')
        for i in range(20):
            k.i(f'v_exp_f32 {P[i]}, {P[i]}')
        k.i(f'v_add_f32 {s0}, {P[0]}, {P[1]}')
        k.i(f'v_add_f32 {s1}, {P[2]}, {P[3]}')
        for i in range(4, 20, 2):
            k.i(f'v_add_f32 {s0}, {s0}, {P[i]}')
            k.i(f'v_add_f32 {s1}, {s1}, {P[i + 1]}')
        k.i(f'v_add_f32 {s0}, {s0}, {s1}')
        k.i(f'v_rcp_f32 {s0}, {s0}')
        for i in range(20):
            k.i(f'v_mul_f32 {P[i]}, {P[i]}, {s0}')
        for i in range(10):
            k.i(f'v_cvt_pk_bf16_f32 {ph[i]}, {P[2 * i]}, {P[2 * i + 1]}')

    k.i('s_barrier')
    k.ts()
    PQ, phq = R[40:60], R[60:72]
    for t in range(5):
        k.i(f'ds_read_b128 {P[4 * t:4 * t + 4]}, {qk_a} offset:{1024 * t}')
    for t in range(5):
        k.i(f'ds_read_b128 {PQ[4 * t:4 * t + 4]}, {qk_a} offset:{1024 * t + 512}')
    softmax(P, ph, tmp)
    k.i(f'ds_write_b128 {ka}, {ph[0:4]}')
    k.i(f'ds_write_b128 {ka}, {ph[4:8]} offset:16')
    k.i(f'ds_write_b64 {E.ka2}, {ph[8:10]}')
    k.barrier()
    k.ts()
    Bf, Af, Dd = R[104:120], R[120:152], R[8:16]
    for kk in range(4):
        for hf in range(2):
            k.i(f'ds_read_b64_tr_b16 {Bf[kk * 4 + 2 * hf:kk * 4 + 2 * hf + 2]}, {tb} offset:{(kk * 32 + hf * 16) * 160}')
        for dt in range(2):
            for hf in range(2):
                b = (kk * 2 + dt) * 4 + 2 * hf
                k.i(f'ds_read_b64_tr_b16 {Af[b:b + 2]}, {ta} offset:{(kk * 32 + hf * 16) * 96 + dt * 32}')
    for kk in range(4):
        for dt in range(2):
            d = Dd[dt * 4:dt * 4 + 4]
            k.i(f'v_mfma_f32_16x16x32_bf16 {d}, {Af[(kk * 2 + dt) * 4:(kk * 2 + dt) * 4 + 4]}, {Bf[kk * 4:kk * 4 + 4]}, {0 if kk == 0 else d}')
    for i in range(8):
        k.i(f'buffer_atomic_add_f32 {Dd[i]}, {aa[i]}, {sws}, {skv} offen')
    k.ts()
    softmax(PQ, phq, tmp)
    k.i(f'buffer_store_dwordx4 {phq[0:4]}, {qa}, {sws}, {sq} offen sc1')
    k.i(f'buffer_store_dwordx4 {phq[4:8]}, {qa}, {sws}, {sq} offen offset:256 sc1')
    k.i(f'buffer_store_dwordx2 {phq[8:10]}, {ql}, {sws}, {sq} offen sc1', tag='pub')
    k.ts()
    k.wait_tag('pub')
    k.i('s_barrier')
    k.ts()
    k.i(f's_cmp_lg_u32 {wave}, 7')
    k.i(f's_cbranch_scc1 m_arr')
    k.i('s_mov_b32 exec_lo, 1')
    k.i('s_mov_b32 exec_hi, 0')
    k.i(f's_and_b32 {so}, s2, 15')
    k.i(f's_lshl_b32 {so}, {so}, 8')
    k.i(f's_add_u32 {so}, {so}, {WS_CNT + C1G}')
    k.i(f'v_mov_b32 {t1}, 0')
    k.i(f'v_mov_b32 {t2}, 1')
    for x in [f'buffer_atomic_add {t2}, {t1}, {sws}, {so} offen sc0 sc1', 's_waitcnt vmcnt(0)',
              f'v_readfirstlane_b32 {st1}, {t2}', f'v_mov_b32 {t2}, 1', f's_cmp_lg_u32 {st1}, 15', 's_cbranch_scc1 m_arr',
              f's_mov_b32 {so}, {WS_CNT + C1T}',
              f'buffer_atomic_add {t2}, {t1}, {sws}, {so} offen sc0 sc1', 's_waitcnt vmcnt(0)',
              f'v_readfirstlane_b32 {st1}, {t2}', f's_cmp_lg_u32 {st1}, 15', 's_cbranch_scc1 m_arr',
              's_mov_b32 exec_lo, 0xff', f'v_mov_b32 {t2}, 1', f'v_lshlrev_b32 {t1}, 8, {lane}', f's_mov_b32 {so}, {WS_CNT + G1}',
              f'buffer_store_dword {t2}, {t1}, {sws}, {so} offen sc1']:
        k.lines.append('  ' + x)
    k.raw('m_arr:')
    k._join()
    k.i('s_mov_b64 exec, -1')
    tsx()
    k.vm = []
    k.i(f's_cmp_lg_u32 {sty}, 0')
    k.i(f's_cbranch_scc1 m_nostore')
    Wf = R[16:32]
    k.i(f'v_lshrrev_b32 {tmp[0]}, 2, {lane}')
    k.i(f'v_lshlrev_b32 {tmp[0]}, 7, {tmp[0]}')
    k.i(f'v_and_b32 {tmp[1]}, 3, {lane}')
    k.i(f'v_lshl_add_u32 {tmp[0]}, {tmp[1]}, 3, {tmp[0]}')
    k.i(f's_lshl_b32 {so}, {wave}, 12')
    k.i(f's_add_u32 {so}, {so}, {LSIDE}')
    k.i(f'v_add_u32 {tmp[0]}, {so}, {tmp[0]}')
    for c4 in range(4):
        for hf in range(2):
            k.i(f'ds_read_b64_tr_b16 {Wf[c4 * 4 + 2 * hf:c4 * 4 + 2 * hf + 2]}, {tmp[0]} offset:{hf * 2048 + c4 * 32}')
    Bs, Bo = R[72:76], R[76:80]
    for q in range(4):
        k.i(f'v_cvt_pk_bf16_f32 {Bs[q]}, {sb[2 * q]}, {sb[2 * q + 1]}')
        k.i(f'v_mov_b32 {Bo[q]}, 0x3f803f80')
    Db, Dc = R[80:96], R[96:112]
    for c4 in range(4):
        k.i(f'v_mfma_f32_16x16x32_bf16 {Db[c4 * 4:c4 * 4 + 4]}, {Wf[c4 * 4:c4 * 4 + 4]}, {Bs}, 0')
    for c4 in range(4):
        for q in range(4):
            w = Wf[c4 * 4 + q]
            lo, hi = tmp[2 + (q & 1) * 2], tmp[3 + (q & 1) * 2]
            k.i(f'v_lshlrev_b32 {lo}, 16, {w}')
            k.i(f'v_and_b32 {hi}, 0xffff0000, {w}')
            k.i(f'v_mul_f32 {lo}, {lo}, {cb[2 * q]}')
            k.i(f'v_mul_f32 {hi}, {hi}, {cb[2 * q + 1]}')
            k.i(f'v_cvt_pk_bf16_f32 {w}, {lo}, {hi}')
    for c4 in range(4):
        k.i(f'v_mfma_f32_16x16x32_bf16 {Dc[c4 * 4:c4 * 4 + 4]}, {Wf[c4 * 4:c4 * 4 + 4]}, {Bo}, 0')
    k.i(f'v_lshlrev_b32 {tmp[1]}, 4, {G}')
    k.i(f's_lshl_b32 {so}, {wave}, 9')
    k.i(f's_add_u32 {so}, {so}, {LCS}')
    k.i(f'v_add_u32 {tmp[1]}, {so}, {tmp[1]}')
    k.i('s_mov_b32 exec_lo, 0x00010001')
    k.i('s_mov_b32 exec_hi, 0x00010001')
    for c4 in range(4):
        k.i(f'ds_write_b128 {tmp[1]}, {Dc[c4 * 4:c4 * 4 + 4]} offset:{c4 * 64}')
        k.i(f'ds_write_b128 {tmp[1]}, {Db[c4 * 4:c4 * 4 + 4]} offset:{256 + c4 * 64}')
    k.i('s_mov_b64 exec, -1')
    k.wait(lg=0)
    k.i(f's_cmp_eq_u32 {scol}, {26 * 128}')
    k.i(f's_cselect_b32 {so}, 4096, 0')
    k.i(f's_add_u32 {so}, {so}, {sdst}')
    for c4 in range(4):
        k.lines.append(f'  buffer_store_dwordx4 {Wf[c4 * 4:c4 * 4 + 4]}, {l16}, {sws}, {sdst if c4 < 3 else so} offen offset:{1024 * c4} sc1')
    k.raw('m_nostore:')
    k._join()
    tsx()
    k.i('s_barrier')
    tsx()
    wof_jj(wave, 12)
    tsx()
    k.i(f's_cmp_ge_u32 {wave}, 2')
    k.i(f's_cselect_b32 {so}, 1000, s2')
    k.i(f's_cmp_ge_u32 {so}, 216')
    k.i(f's_cbranch_scc1 m_nocs')
    k.i(f'v_lshlrev_b32 {tmp[0]}, 2, v0')
    k.i(f'v_add_u32 {tmp[0]}, {LCS}, {tmp[0]}')
    for w in range(5):
        k.i(f'ds_read_b32 {tmp[1 + w]}, {tmp[0]} offset:{512 * w}')
    k.i(f'v_add_f32 {tmp[1]}, {tmp[1]}, {tmp[2]}')
    k.i(f'v_add_f32 {tmp[3]}, {tmp[3]}, {tmp[4]}')
    k.i(f'v_add_f32 {tmp[1]}, {tmp[1]}, {tmp[5]}')
    k.i(f'v_add_f32 {tmp[1]}, {tmp[1]}, {tmp[3]}')
    k.i(f's_lshl_b32 {so}, {ks}, 1')
    k.i(f's_add_u32 {so}, {so}, {wave}')
    k.i(f's_mul_i32 {so}, {so}, {3584 * 4}')
    k.i(f's_lshl_b32 {st1}, {p_}, 6')
    k.i(f's_add_u32 {so}, {so}, {st1}')
    k.i(f's_add_u32 {so}, {so}, {WS_CSB}')
    k.i(f'v_lshlrev_b32 {tmp[0]}, 2, {lane}')
    k.i(f's_cmp_eq_u32 {scol}, {26 * 128}')
    k.i(f's_cselect_b32 {st1}, 256, 0')
    k.i(f'v_mov_b32 {tmp[2]}, {st1}')
    k.i(f'v_cmp_lt_u32 vcc, 47, {lane}')
    k.i(f'v_cndmask_b32 {tmp[2]}, 0, {tmp[2]}, vcc')
    k.i(f'v_add_u32 {tmp[0]}, {tmp[0]}, {tmp[2]}')
    k.i(f'buffer_store_dword {tmp[1]}, {tmp[0]}, {sws}, {so} offen sc1')
    k.raw('m_nocs:')
    k.reset_state()
    k.release(mk_common)
    k.ts()

    RING2, SL2, PLB = 24576, 4096, 0
    W3 = [67584, 96256, 0, 28672]
    X3 = [124928, 133120, 141312, 149504, 57344]
    CSL = 157696
    W4 = [0, 20480, 40960, 61440, 81920]
    X4 = [102400, 118784, 135168]

    def signal(idx, cnt_off, go_off, sel):
        lab = k.newlabel('sig')
        k.wait(vm=0)
        k.i(f'v_mov_b32 {t1}, {LCNT + 4 * idx}')
        k.i(f'v_mov_b32 {t2}, 1')
        k.i('s_mov_b32 exec_lo, 1')
        k.i('s_mov_b32 exec_hi, 0')
        k.i(f'ds_add_rtn_u32 {t3}, {t1}, {t2}')
        k.i(f'v_readfirstlane_b32 {so}, {t3}')
        k.i(f's_cmp_lg_u32 {so}, 3')
        k.i(f's_cbranch_scc1 {lab}')
        k.i(f's_lshl_b32 {so}, {sel}, 8')
        k.i(f's_add_u32 {so}, {so}, {WS_CNT + cnt_off}')
        k.i(f'v_mov_b32 {t1}, 0')
        k.lines.append(f'  buffer_atomic_add {t2}, {t1}, {sws}, {so} offen sc0 sc1')
        k.lines.append('  s_waitcnt vmcnt(0)')
        k.lines.append(f'  v_readfirstlane_b32 {st1}, {t2}')
        k.lines.append(f'  v_mov_b32 {t2}, 1')
        k.lines.append(f'  s_cmp_lg_u32 {st1}, 15')
        k.lines.append(f'  s_cbranch_scc1 {lab}')
        k.lines.append(f'  s_add_u32 {so}, {so}, {go_off - cnt_off}')
        k.lines.append(f'  buffer_store_dword {t2}, {t1}, {sws}, {so} offen sc1')
        k.raw(f'{lab}:')
        k._join()
        k.i('s_mov_b64 exec, -1')
        k.vm = [dict(regs=set(), tag=None)]

    def poll(go_off, sel, pw=4):
        lab = k.newlabel('poll')
        k.i(f's_cmp_lg_u32 {wave}, {pw}')
        k.i(f's_cbranch_scc1 {lab}_x')
        k.i(f's_lshl_b32 {so}, {sel}, 8')
        k.i(f's_add_u32 {so}, {so}, {WS_CNT + go_off}')
        k.i(f'v_mov_b32 {t1}, 0')
        k.i(f's_mov_b32 {st1}, 0')
        k.i('s_mov_b32 exec_lo, 1')
        k.i('s_mov_b32 exec_hi, 0')
        k.raw(f'{lab}:')
        k.lines.append(f'  buffer_load_dword {t2}, {t1}, {sws}, {so} offen sc1')
        k.lines.append('  s_waitcnt vmcnt(0)')
        k.lines.append(f'  v_readfirstlane_b32 {st2}, {t2}')
        k.lines.append(f'  s_add_u32 {st1}, {st1}, 1')
        k.lines.append(f'  s_cmp_ge_u32 {st1}, {SPIN_MAX}')
        k.lines.append(f'  s_cbranch_scc1 {lab}_d')
        k.lines.append(f'  s_cmp_eq_u32 {st2}, 0')
        k.lines.append(f'  s_cbranch_scc1 {lab}')
        k.raw(f'{lab}_d:')
        k.i('s_mov_b64 exec, -1')
        k.raw(f'{lab}_x:')
        k._join()

    def x1_addr(ttg_, nt_, sreg, sspec):
        k.i(f's_lshr_b32 {so}, {ttg_}, 3')
        k.i(f's_mul_i32 {so}, {so}, 20')
        k.i(f's_lshr_b32 {st1}, {nt_}, 1')
        k.i(f's_mul_i32 {st1}, {st1}, 5')
        k.i(f's_add_u32 {so}, {so}, {st1}')
        k.i(f's_lshl_b32 {so}, {so}, 13')
        k.i(f's_add_u32 {so}, {so}, {WS_X1}')
        k.i(f's_and_b32 {st1}, {nt_}, 1')
        k.i(f's_and_b32 {st2}, {ttg_}, 7')
        k.i(f's_lshl_b32 {sreg}, {st1}, 14')
        k.i(f's_add_u32 {sreg}, {sreg}, {so}')
        k.i(f's_lshl_b32 {sspec}, {st2}, 10')
        k.i(f's_add_u32 {sreg}, {sreg}, {sspec}')
        k.i(f's_lshl_b32 {st1}, {st1}, 12')
        k.i(f's_lshl_b32 {st2}, {st2}, 9')
        k.i(f's_add_u32 {sspec}, {so}, {st1}')
        k.i(f's_add_u32 {sspec}, {sspec}, {st2}')
        k.i(f's_add_u32 {sspec}, {sspec}, {4 * 8192}')

    k.i(f's_cmp_ge_u32 {wave}, 4')
    k.i('s_cbranch_scc1 m_l2')
    nts2 = k.nts
    sxx = k.srd(px, S * D * 2)
    ttg = k.s()
    tp, kh2 = k.s(), k.s()
    k.i(f's_and_b32 {tp}, {wave}, 1')
    k.i(f's_lshr_b32 {kh2}, {wave}, 1')
    AF = k.v(32)
    PQf = k.v(32)
    PLf = k.v(16)
    O = k.v(32)
    Xf = k.v(32)
    WA = k.v(20)
    acc = k.v(40)
    xv, gav = AF[0:10], PQf[0:20]
    carry = k.v(2, align=1)
    a0, a1, woa = k.v(), k.v(), k.v(2, align=1)
    aL = k.v(8, align=1)
    k.i(f's_lshl_b32 {ttg}, {mt2}, 2')
    k.i(f's_lshl_b32 {so}, {tp}, 1')
    k.i(f's_add_u32 {ttg}, {ttg}, {so}')
    k.i(f's_add_u32 {ttg}, {ttg}, {kh2}')
    k.i(f's_mul_i32 {st1}, {kh2}, 1920')
    k.i(f's_add_u32 {st1}, {st1}, {RING2}')
    k.i(f'v_add_u32 {a0}, {st1}, {l16}')
    k.i(f'v_lshrrev_b32 {t1}, 2, {n}')
    k.i(f'v_and_b32 {t2}, 3, {n}')
    k.i(f'v_cmp_eq_u32 vcc, 0, {t2}')
    k.i(f'v_cndmask_b32 {t1}, 4, {t1}, vcc')
    k.i(f'v_lshlrev_b32 {t1}, 4, {t1}')
    k.i(f'v_add_u32 {t1}, {st1}, {t1}')
    k.i(f'v_add_u32 {t1}, 1280, {t1}')
    k.i(f'v_lshl_add_u32 {a1}, {G}, 7, {t1}')
    k.i(f'v_add_u32 {t1}, 512, {t1}')
    k.i(f'v_lshlrev_b32 {t2}, 4, {n}')
    k.i(f'v_add_u32 {t2}, {st1}, {t2}')
    k.i(f'v_add_u32 {t2}, 1024, {t2}')
    k.i(f's_add_u32 {st1}, {st1}, {1280 + 512 + 112}')
    k.i(f'v_mov_b32 {t3}, {st1}')
    for rho in range(4):
        k.i(f'v_cmp_eq_u32 vcc, {rho}, {G}')
        k.i(f'v_cndmask_b32 {aL[2 * rho]}, {t3}, {t2}, vcc')
        k.i(f'v_cndmask_b32 {aL[2 * rho + 1]}, {t3}, {t1}, vcc')
    spqc = k.s()
    k.i(f's_lshl_b32 {so}, {tp}, 12')
    k.i(f's_lshl_b32 {st1}, {kh2}, 10')
    k.i(f's_add_u32 {so}, {so}, {st1}')
    k.i(f's_mul_i32 {spqc}, {mt2}, 163840')
    k.i(f's_add_u32 {spqc}, {spqc}, {so}')
    k.i(f's_add_u32 {spqc}, {spqc}, {WS_PHIQ}')

    def ldq(s):
        L = []
        if s % 4 == 0:
            L.append(f's_add_u32 {st2}, {spqc}, {(16 + s // 4) * 8192}')
            for t in range(2):
                q = (((s // 4) & 1) * 2 + t) * 4
                L.append(f'buffer_load_dwordx4 {PLf[q:q + 4]}, {l16}, {sws}, {st2} offen offset:{2048 * t}')
        L.append(f's_add_u32 {st2}, {spqc}, {s * 8192}')
        for t in range(2):
            L.append(f'buffer_load_dwordx4 {PQf[((s % 4) * 2 + t) * 4:((s % 4) * 2 + t) * 4 + 4]}, {l16}, {sws}, {st2} offen offset:{2048 * t}')
        return L

    k.i(f's_mul_i32 {so}, {kh2}, 5120')
    k.i(f's_add_u32 {so}, {so}, {WOFB}')
    k.i(f'v_add_u32 {woa[0]}, {so}, {l16}')
    k.i(f'v_add_u32 {woa[1]}, 51200, {woa[0]}')
    k.i('s_barrier')
    k.ts()
    for s in range(3):
        for x in ldq(s):
            k.i(x)

    def rd2(s):
        L = []
        b = s & 1
        sl = (s % 4) * SL2
        A = AF[b * 16:b * 16 + 16]
        rho = s & 3
        L.append(f'ds_read_b128 {A[8:12]}, {aL[2 * rho]} offset:{sl}')
        L.append(f'ds_read_b128 {A[12:16]}, {aL[2 * rho + 1]} offset:{sl}')
        L.append(f'ds_read_b128 {A[4:8]}, {a1} offset:{sl}')
        L.append(f'ds_read_b128 {A[0:4]}, {a0} offset:{sl}')
        return L

    def om(s):
        L = []
        b = s & 1
        A = AF[b * 16:b * 16 + 16]
        for t in range(2):
            q = (((s // 4) & 1) * 2 + t) * 4
            for tl in range(2):
                o = O[((b * 2 + t) * 2 + tl) * 4:((b * 2 + t) * 2 + tl) * 4 + 4]
                L.append(f'v_mfma_f32_16x16x32_bf16 {o}, {A[8 + tl * 4:8 + tl * 4 + 4]}, {PLf[q:q + 4]}, 0')
        for t in range(2):
            for tl in (1, 0):
                o = O[((b * 2 + t) * 2 + tl) * 4:((b * 2 + t) * 2 + tl) * 4 + 4]
                L.append(f'v_mfma_f32_16x16x32_bf16 {o}, {A[tl * 4:tl * 4 + 4]}, {PQf[((s % 4) * 2 + t) * 4:((s % 4) * 2 + t) * 4 + 4]}, {o}')
        return L

    def xf(j, t):
        return Xf[((j % 4) * 2 + t) * 4:((j % 4) * 2 + t) * 4 + 4]

    def ov(s):
        L = []
        b = s & 1
        os_ = [O[(b * 2 + t) * 8:(b * 2 + t) * 8 + 8] for t in range(2)]
        for o in os_:
            L.append(f'v_add_f32 {o[5]}, {fhex(1e-6)}, {o[5]}')
        for o in os_:
            L.append(f'v_rcp_f32 {o[5]}, {o[5]}')
        for t, o in enumerate(os_):
            for q in range(4):
                L.append(f'v_mul_f32 {o[q]}, {o[q]}, {o[5]}')
            L.append(f'v_mul_f32 {o[4] if s & 1 else o[6]}, {o[4]}, {o[5]}')
        for t, o in enumerate(os_):
            if s & 1:
                vals = [carry[t]] + [o[q] for q in range(5)]
                idx0 = 5 * s - 1
            else:
                vals = [o[q] for q in range(4)]
                idx0 = 5 * s
            for p in range(len(vals) // 2):
                idx = idx0 + 2 * p
                L.append(f'v_cvt_pk_bf16_f32 {xf(idx >> 3, t)[(idx & 7) >> 1]}, {vals[2 * p]}, {vals[2 * p + 1]}')
            if not s & 1:
                L.append(f'v_mov_b32 {carry[t]}, {o[6]}')
        return L

    def wrd(j):
        off = ((2 * j + 2) % 20) * 5120
        areg, o = (woa[0], off) if off < 51200 else (woa[1], off - 51200)
        return [f'ds_read_b128 {WA[ct * 4:ct * 4 + 4]}, {areg} offset:{o + ct * 1024}' for ct in range(5)]

    def wm(j):
        return [f'v_mfma_f32_16x16x32_bf16 {acc[(ct * 2 + t) * 4:(ct * 2 + t) * 4 + 4]}, {WA[ct * 4:ct * 4 + 4]}, {xf(j, t)}, {0 if j == 0 else acc[(ct * 2 + t) * 4:(ct * 2 + t) * 4 + 4]}' for ct in range(5) for t in range(2)]

    def done_after(s):
        return (5 * s + (5 if s & 1 else 4)) // 8

    k.i('s_barrier')
    k.ts()
    for x in rd2(0) + wrd(0):
        k.i(x)
    jm = 0
    nlate = 5
    for s in range(18):
        if s == 8:
            k.ts()
        if s == 15:
            k.i(f's_mul_i32 {so}, {ttg}, {16 * 1280}')
            k.i(f's_mul_i32 {st1}, {nt2}, 160')
            k.i(f's_add_u32 {so}, {so}, {st1}')
            k.i(f'v_mul_u32_u24 {t2}, 1280, {n}')
            k.i(f'v_lshl_add_u32 {t2}, {G}, 3, {t2}')
            for ct in range(5):
                k.i(f'buffer_load_dwordx2 {xv[2 * ct:2 * ct + 2]}, {t2}, {sxx}, {so} offen offset:{32 * ct}')
            k.i(f'v_lshlrev_b32 {t2}, 4, {G}')
            k.i(f's_mul_i32 {st1}, {nt2}, 320')
            k.i(f's_add_u32 {so}, {st1}, {WS_MOD + 2 * 2560}')
            for ct in range(5):
                k.i(f'buffer_load_dwordx4 {gav[4 * ct:4 * ct + 4]}, {t2}, {sws}, {so} offen offset:{64 * ct}')
        fill = []
        if s + 1 < 16:
            tsy(s in (9, 10))
            if nlate < len(k.lg):
                k.wait(lg=nlate)
            tsy(s in (9, 10))
            k.i('s_barrier')
            tsy(s in (9, 10))
            tsy(s in (9, 10))
            fill += rd2(s + 1)
        if s + 3 < 16:
            fill += ldq(s + 3)
        lim = done_after(s - 2) if s >= 2 else 0
        Mw, late = [], []
        if jm < lim:
            Mw = wm(jm)
            jm += 1
            if jm < 10:
                late = wrd(jm)
        assert jm >= lim
        Mo = om(s) if s < 16 else []
        V = ov(s - 1) if 1 <= s <= 16 else []
        M = Mo + Mw
        if os.environ.get('X_NOC'):
            M, V = M[:1], []
        if os.environ.get('X_NORD'):
            fill, late = [], []
        if M:
            interleave(k, M, fill + V)
        else:
            for x in fill + V:
                k.i(x)
        for x in late:
            k.i(x)
        nlate = len(late)
    assert jm == 10
    k.i(f's_mul_i32 {so}, {wave}, 5120')
    k.i(f'v_add_u32 {t1}, {so}, {l16}')
    k.i(f's_xor_b32 {st1}, {wave}, 2')
    k.i(f's_mul_i32 {st1}, {st1}, 5120')
    k.i(f'v_add_u32 {t3}, {st1}, {l16}')
    mk2 = k.s(2)
    k.i(f's_cmp_eq_u32 {kh2}, 1')
    k.i(f's_cselect_b64 {mk2}, -1, 0')
    Sd, Kp = O[0:20], Xf[0:20]
    for ct in range(5):
        for r in range(4):
            a0_, a1_ = acc[(ct * 2) * 4 + r], acc[(ct * 2 + 1) * 4 + r]
            k.i(f'v_cndmask_b32 {Sd[4 * ct + r]}, {a1_}, {a0_}, {mk2}')
            k.i(f'v_cndmask_b32 {Kp[4 * ct + r]}, {a0_}, {a1_}, {mk2}')
        k.i(f'ds_write_b128 {t1}, {Sd[4 * ct:4 * ct + 4]} offset:{1024 * ct}')
    k.ts()
    k.barrier()
    for ct in range(5):
        k.i(f'ds_read_b128 {acc[4 * ct:4 * ct + 4]}, {t3} offset:{1024 * ct}')
    for i in range(20):
        k.i(f'v_add_f32 {acc[i]}, {acc[i]}, {Kp[i]}')
    cp = O[20:28]
    k.i(f'v_cmp_lt_u32 vcc, 111, v0')
    k.i(f'v_mov_b32 {t3}, {1792 - 112}')
    k.i(f'v_cndmask_b32 {t2}, 0, {t3}, vcc')
    k.i(f'v_add_u32 {t2}, {t2}, v0')
    k.i(f's_mul_i32 {so}, {nt3}, 112')
    k.i(f'v_add_u32 {t2}, {so}, {t2}')
    k.i(f'v_lshlrev_b32 {t2}, 2, {t2}')
    s12 = AF[10:12]
    xe = AF[12:16]
    k.i(f'v_mov_b32 {s12[0]}, 0')
    k.i(f'v_mov_b32 {s12[1]}, 0')
    xo = AF[16:28]
    for ct in range(5):
        for q in range(2):
            k.i(f'v_lshlrev_b32 {xe[2 * q]}, 16, {xv[2 * ct + q]}')
            k.i(f'v_and_b32 {xe[2 * q + 1]}, 0xffff0000, {xv[2 * ct + q]}')
        for r in range(4):
            k.i(f'v_fmac_f32 {xe[r]}, {acc[4 * ct + r]}, {gav[4 * ct + r]}')
        for q in range(2):
            k.i(f'v_cvt_pk_bf16_f32 {xo[2 * ct + q]}, {xe[2 * q]}, {xe[2 * q + 1]}')
        for q in range(2):
            k.i(f'v_lshlrev_b32 {xe[2 * q]}, 16, {xo[2 * ct + q]}')
            k.i(f'v_and_b32 {xe[2 * q + 1]}, 0xffff0000, {xo[2 * ct + q]}')
        for r in range(4):
            k.i(f'v_add_f32 {s12[0]}, {s12[0]}, {xe[r]}')
            k.i(f'v_fmac_f32 {s12[1]}, {xe[r]}, {xe[r]}')
    sreg, sspec = k.s(), k.s()
    x1_addr(ttg, nt2, sreg, sspec)
    l8 = AF[28]
    k.i(f'v_lshlrev_b32 {l8}, 3, {lane}')
    k.i(f'buffer_store_dwordx4 {xo[0:4]}, {l16}, {sws}, {sreg} offen sc1')
    k.i(f's_add_u32 {sreg}, {sreg}, 8192')
    k.i(f'buffer_store_dwordx4 {xo[4:8]}, {l16}, {sws}, {sreg} offen sc1')
    k.i(f'buffer_store_dwordx2 {xo[8:10]}, {l8}, {sws}, {sspec} offen sc1')
    xsum4(k, s12[0], t1)
    xsum4(k, s12[1], t1)
    k.i(f's_lshl_b32 {so}, {ttg}, 10')
    k.i(f's_lshl_b32 {st1}, {nt2}, 3')
    k.i(f's_add_u32 {so}, {so}, {st1}')
    k.i(f's_add_u32 {so}, {so}, {WS_ST}')
    k.i(f'v_lshlrev_b32 {t1}, 6, {n}')
    k.i('s_mov_b32 exec_lo, 0xffff')
    k.i('s_mov_b32 exec_hi, 0')
    k.i(f'buffer_store_dwordx2 {s12}, {t1}, {sws}, {so} offen sc1')
    k.i('s_mov_b64 exec, -1')
    for p in range(8):
        k.i(f's_mov_b32 {so}, {WS_CSB + p * 3584 * 4}')
        k.i(f'buffer_load_dword {cp[p]}, {t2}, {sws}, {so} offen sc1')
    k.i('s_barrier')
    k.ts()
    sel = k.s()
    k.i(f's_lshr_b32 {sel}, {mt2}, 1')
    signal(0, C2, G2, sel)
    k.i(f'v_add_f32 {cp[0]}, {cp[0]}, {cp[2]}')
    k.i(f'v_add_f32 {cp[4]}, {cp[4]}, {cp[6]}')
    k.i(f'v_add_f32 {cp[1]}, {cp[1]}, {cp[3]}')
    k.i(f'v_add_f32 {cp[5]}, {cp[5]}, {cp[7]}')
    k.i(f'v_add_f32 {cp[0]}, {cp[0]}, {cp[4]}')
    k.i(f'v_add_f32 {cp[1]}, {cp[1]}, {cp[5]}')
    k.i(f'v_mov_b32 {t2}, 0')
    k.i(f'v_cmp_lt_u32 vcc, 63, v0')
    k.i(f'v_cndmask_b32 {t2}, {t2}, 64, vcc')
    k.i(f'v_mov_b32 {t3}, -48')
    k.i(f'v_cmp_lt_u32 vcc, 111, v0')
    k.i(f'v_cndmask_b32 {t2}, {t2}, {t3}, vcc')
    k.i(f'v_cmp_lt_u32 vcc, 175, v0')
    k.i(f'v_cndmask_b32 {t2}, {t2}, 0, vcc')
    k.i(f'v_add_u32 {t2}, {t2}, v0')
    k.i(f'v_lshlrev_b32 {t2}, 2, {t2}')
    k.i(f'v_add_u32 {t2}, {CSL}, {t2}')
    k.i(f'ds_write_b32 {t2}, {cp[0]}')
    k.i(f'ds_write_b32 {t2}, {cp[1]} offset:1024')

    k.release(mk_common)
    l8 = k.v()
    k.i(f'v_lshlrev_b32 {l8}, 3, {lane}')
    th3, cg = k.s(), k.s()
    k.i(f's_and_b32 {th3}, {wave}, 1')
    k.i(f's_lshr_b32 {cg}, {wave}, 1')
    acc = k.v(112)
    Fr = k.v(88)
    stv = k.v(16)
    mu, sd, rr = k.v(4, align=1), k.v(4, align=1), k.v(4, align=1)
    cb8 = stv[8:16]
    wa = k.v(2, align=1)
    xa = k.v(2, align=1)
    xs = k.v(2, align=1)
    csa = k.v()
    k.i(f's_mul_i32 {so}, {cg}, 7168')
    k.i(f'v_add_u32 {wa[0]}, {so}, {l16}')
    k.i(f'v_add_u32 {wa[1]}, 67584, {wa[0]}')
    k.i(f's_lshl_b32 {so}, {th3}, 12')
    k.i(f's_add_u32 {so}, {so}, 57344')
    k.i(f'v_add_u32 {xa[0]}, {so}, {l16}')
    k.i(f'v_add_u32 {xa[1]}, {124928 - 57344}, {xa[0]}')
    k.i(f's_lshl_b32 {so}, {th3}, 11')
    k.i(f's_add_u32 {so}, {so}, 57344')
    k.i(f'v_add_u32 {xs[0]}, {so}, {l8}')
    k.i(f'v_add_u32 {xs[1]}, {124928 - 57344}, {xs[0]}')
    k.i(f's_mul_i32 {so}, {cg}, 448')
    k.i(f's_add_u32 {so}, {so}, {CSL}')
    k.i(f'v_lshlrev_b32 {csa}, 4, {G}')
    k.i(f'v_add_u32 {csa}, {so}, {csa}')
    k.i(f'v_lshlrev_b32 {t1}, 6, {n}')
    k.i(f'v_lshl_add_u32 {t1}, {G}, 4, {t1}')
    k.i(f's_lshl_b32 {so}, {mt3}, 1')
    k.i(f's_add_u32 {so}, {so}, {th3}')
    mt4o = k.s()
    k.i(f's_mov_b32 {mt4o}, {so}')
    k.i(f's_lshl_b32 {so}, {so}, 12')
    k.i(f's_add_u32 {so}, {so}, {WS_ST}')
    k.barrier()
    k.ts()
    for tt in range(4):
        k.i(f'buffer_load_dwordx4 {stv[4 * tt:4 * tt + 4]}, {t1}, {sws}, {so} offen offset:{1024 * tt} sc1')

    def xfr(J, tt):
        b = ((J & 1) * 11 + tt) * 4
        return Fr[b:b + 4]

    def wfr(J, i):
        b = ((J & 1) * 11 + 4 + i) * 4
        return Fr[b:b + 4]

    def prep3(J):
        L = []
        wb = W3[(J // 2) % 4] + (J & 1) * 14336
        wreg, wo_ = (wa[0], wb) if wb < 67584 else (wa[1], wb - 67584)
        xb = X3[J % 5]
        xi, xo_ = (0, xb - 57344) if xb < 124928 else (1, xb - 124928)
        xl = []
        for tt in range(4):
            if J % 5 == 4:
                xl.append([f'ds_read_b64 {xfr(J, tt)[0:2]}, {xs[xi]} offset:{xo_ + tt * 512}',
                           f'ds_read_b64 {xfr(J, tt)[2:4]}, {xs[xi]} offset:{xo_ + 4096 + tt * 512}'])
            else:
                xl.append([f'ds_read_b128 {xfr(J, tt)}, {xa[xi]} offset:{xo_ + tt * 1024}'])
        L.append(f'ds_read_b128 {wfr(J, 0)}, {wreg} offset:{wo_}')
        for tt in range(4):
            L += xl[tt]
        for i in range(1, 7):
            L.append(f'ds_read_b128 {wfr(J, i)}, {wreg} offset:{wo_ + i * 1024}')
        return L

    def mf3(J):
        L = []
        for i in range(7):
            for tt in range(4):
                a = acc[(i * 4 + tt) * 4:(i * 4 + tt) * 4 + 4]
                L.append(f'v_mfma_f32_16x16x32_bf16 {a}, {wfr(J, i)}, {xfr(J, tt)}, {0 if J == 0 else a}')
        return L

    def stats_code():
        L = []
        for tt in range(4):
            a = stv[4 * tt:4 * tt + 4]
            L.append(f'v_add_f32 {a[0]}, {a[0]}, {a[2]}')
            L.append(f'v_add_f32 {a[1]}, {a[1]}, {a[3]}')
            for x in (a[0], a[1]):
                L.append(f'v_mov_b32 {a[2]}, {x}')
                L.append(f'v_permlane32_swap_b32 {x}, {a[2]}')
                L.append(f'v_add_f32 {x}, {x}, {a[2]}')
                L.append(f'v_mov_b32 {a[2]}, {x}')
                L.append(f'v_permlane16_swap_b32 {x}, {a[2]}')
                L.append(f'v_add_f32 {x}, {x}, {a[2]}')
            L.append(f'v_mul_f32 {mu[tt]}, {fhex(1.0 / 640)}, {a[0]}')
            L.append(f'v_mul_f32 {a[1]}, {fhex(1.0 / 640)}, {a[1]}')
            L.append(f'v_fma_f32 {a[1]}, -{mu[tt]}, {mu[tt]}, {a[1]}')
            L.append(f'v_max_f32 {a[1]}, 0, {a[1]}')
            L.append(f'v_add_f32 {a[1]}, {fhex(1e-5)}, {a[1]}')
            L.append(f'v_sqrt_f32 {sd[tt]}, {a[1]}')
            L.append(f'v_rsq_f32 {rr[tt]}, {a[1]}')
        return L

    def init_code(i):
        L = []
        for tt in range(4):
            a = acc[(i * 4 + tt) * 4:(i * 4 + tt) * 4 + 4]
            for r in range(4):
                L.append(f'v_fmac_f32 {a[r]}, {cb8[4 + r]}, {sd[tt]}')
            for r in range(4):
                L.append(f'v_fma_f32 {a[r]}, -{mu[tt]}, {cb8[r]}, {a[r]}')
        return L

    k.barrier()
    k.ts()
    for x in prep3(0):
        k.i(x)
    st_l = stats_code()
    for J in range(20):
        if J == 10:
            k.ts()
        M = mf3(J)
        if J + 1 < 20:
            k.barrier()
            fill = prep3(J + 1)
        else:
            fill = []
        if J in (2, 3):
            h = len(st_l) // 2
            fill = fill + (st_l[:h] if J == 2 else st_l[h:])
            interleave(k, M, fill, lead=2)
        elif 4 <= J < 11:
            i = J - 4
            M = M[4 * i:] + M[:4 * i]
            pre = [f'ds_read_b128 {cb8[0:4]}, {csa} offset:{i * 64}', f'ds_read_b128 {cb8[4:8]}, {csa} offset:{1024 + i * 64}']
            interleave(k, M[:12], pre + fill[:8])
            interleave(k, M[12:], fill[8:] + init_code(i))
        else:
            interleave(k, M, fill, lead=6)
    k.ts()
    k.raw('m_p3epi:')
    KK = -2.0 * 0.7978845608028654 * LOG2E
    c1, c3, ir2 = stv[0:4], stv[4:8], stv[8:12]
    for tt in range(4):
        k.i(f'v_mul_f32 {c1[tt]}, {fhex(KK)}, {rr[tt]}')
        k.i(f'v_mul_f32 {c3[tt]}, {rr[tt]}, {rr[tt]}')
        k.i(f'v_mul_f32 {c3[tt]}, {c3[tt]}, {c1[tt]}')
        k.i(f'v_mul_f32 {c3[tt]}, {fhex(0.044715)}, {c3[tt]}')
        k.i(f'v_mul_f32 {ir2[tt]}, {sd[tt]}, {sd[tt]}')
    EXB = 151552
    k.i(f's_lshl_b32 {so}, {th3}, 12')
    k.i(f's_add_u32 {so}, {so}, {EXB}')
    k.i(f'v_add_u32 {t1}, {so}, {l16}')
    sact, sasp = k.s(), k.s()
    k.i(f's_mul_i32 {sact}, {mt4o}, 56')
    k.i(f's_lshr_b32 {st1}, {nt3}, 1')
    k.i(f's_add_u32 {sasp}, {sact}, {st1}')
    k.i(f's_lshl_b32 {sasp}, {sasp}, 12')
    k.i(f's_and_b32 {st1}, {nt3}, 1')
    k.i(f's_lshl_b32 {st1}, {st1}, 11')
    k.i(f's_add_u32 {sasp}, {sasp}, {st1}')
    k.i(f's_add_u32 {sasp}, {sasp}, {WS_ACT}')
    k.i(f's_mul_i32 {st1}, {nt3}, 3')
    k.i(f's_add_u32 {sact}, {sact}, {st1}')
    k.i(f's_add_u32 {sact}, {sact}, 8')
    k.i(f's_lshl_b32 {sact}, {sact}, 12')
    k.i(f's_add_u32 {sact}, {sact}, {WS_ACT}')
    k.barrier()
    T = Fr[0:16]
    OUT = Fr[16:48]
    UX = Fr[48:64]

    def geglu(g, u, tt, o2, ti):
        t = T[(ti % 4) * 4:(ti % 4) * 4 + 4]
        for r in range(4):
            k.i(f'v_mul_f32 {t[r]}, {g[r]}, {g[r]}')
        for r in range(4):
            k.i(f'v_fma_f32 {t[r]}, {t[r]}, {c3[tt]}, {c1[tt]}')
        for r in range(4):
            k.i(f'v_mul_f32 {t[r]}, {t[r]}, {g[r]}')
        for r in range(4):
            k.i(f'v_exp_f32 {t[r]}, {t[r]}')
        for r in range(4):
            k.i(f'v_mul_f32 {u[r]}, {u[r]}, {g[r]}')
        for r in range(4):
            k.i(f'v_fma_f32 {t[r]}, {t[r]}, {ir2[tt]}, {ir2[tt]}')
        for r in range(4):
            k.i(f'v_rcp_f32 {t[r]}, {t[r]}')
        for r in range(4):
            k.i(f'v_mul_f32 {u[r]}, {u[r]}, {t[r]}')
        k.i(f'v_cvt_pk_bf16_f32 {o2[0]}, {u[0]}, {u[1]}')
        k.i(f'v_cvt_pk_bf16_f32 {o2[1]}, {u[2]}, {u[3]}')

    def A(i, tt):
        return acc[(i * 4 + tt) * 4:(i * 4 + tt) * 4 + 4]

    k.i(f's_cmp_eq_u32 {cg}, 1')
    k.i('s_cbranch_scc1 p3_epi1')
    stx = (list(k.vm), list(k.lg))
    cnt = 0
    for tt in range(4):
        o = OUT[tt * 4:tt * 4 + 4]
        geglu(A(0, tt), A(4, tt), tt, o[0:2], cnt)
        geglu(A(1, tt), A(5, tt), tt, o[2:4], cnt + 1)
        cnt += 2
        k.i(f'buffer_store_dwordx4 {o}, {l16}, {sws}, {sact} offen offset:{1024 * tt} sc1')
        if tt == 0:
            k.i('s_barrier')
            for t2_ in range(4):
                k.i(f'ds_read_b128 {UX[t2_ * 4:t2_ * 4 + 4]}, {t1} offset:{1024 * t2_}')
    k.i(f's_add_u32 {sact}, {sact}, 4096')
    for tt in range(4):
        o = OUT[16 + tt * 4:16 + tt * 4 + 4]
        geglu(A(2, tt), A(6, tt), tt, o[0:2], cnt)
        geglu(A(3, tt), UX[tt * 4:tt * 4 + 4], tt, o[2:4], cnt + 1)
        cnt += 2
        k.i(f'buffer_store_dwordx4 {o}, {l16}, {sws}, {sact} offen offset:{1024 * tt} sc1')
    k.i('s_branch p3_epid')
    k.raw('p3_epi1:')
    k._join()
    k.vm, k.lg = list(stx[0]), list(stx[1])
    for tt in range(4):
        k.i(f'ds_write_b128 {t1}, {A(0, tt)} offset:{1024 * tt}')
    k.barrier()
    k.i(f's_add_u32 {sact}, {sact}, 8192')
    cnt = 0
    for tt in range(4):
        o = OUT[tt * 4:tt * 4 + 4]
        geglu(A(1, tt), A(4, tt), tt, o[0:2], cnt)
        geglu(A(2, tt), A(5, tt), tt, o[2:4], cnt + 1)
        cnt += 2
        k.i(f'buffer_store_dwordx4 {o}, {l16}, {sws}, {sact} offen offset:{1024 * tt} sc1')
    for tp in range(2):
        o = OUT[16 + tp * 4:16 + tp * 4 + 4]
        geglu(A(3, 2 * tp), A(6, 2 * tp), 2 * tp, o[0:2], cnt)
        geglu(A(3, 2 * tp + 1), A(6, 2 * tp + 1), 2 * tp + 1, o[2:4], cnt + 1)
        cnt += 2
        k.i(f'buffer_store_dwordx4 {o}, {l16}, {sws}, {sasp} offen offset:{1024 * tp} sc1')
    k.raw('p3_epid:')
    k._join()
    k.lines.append('  s_waitcnt lgkmcnt(0)')
    k.lg = []
    k.force_wait = True
    k.ts()
    signal(1, 8192, 12288, mt3)
    k.force_wait = False

    k.release(mk_common)
    l8 = k.v()
    k.i(f'v_lshlrev_b32 {l8}, 3, {lane}')
    th4, kh = k.s(), k.s()
    k.i(f's_and_b32 {th4}, {wave}, 1')
    k.i(f's_lshr_b32 {kh}, {wave}, 1')
    acc = k.v(40)
    Fr = k.v(56)
    wa = k.v(2, align=1)
    xa, xsp = k.v(), k.v()
    k.i(f's_mul_i32 {so}, {kh}, 5120')
    k.i(f'v_add_u32 {wa[0]}, {so}, {l16}')
    k.i(f'v_add_u32 {wa[1]}, 61440, {wa[0]}')
    k.i(f's_lshl_b32 {so}, {kh}, 12')
    k.i(f's_add_u32 {so}, {so}, {X4[0]}')
    k.i(f's_lshl_b32 {st1}, {th4}, 11')
    k.i(f's_add_u32 {st1}, {st1}, {so}')
    k.i(f'v_add_u32 {xa}, {st1}, {l16}')
    k.i(f's_lshl_b32 {st1}, {th4}, 10')
    k.i(f's_add_u32 {st1}, {st1}, {so}')
    k.i(f'v_add_u32 {xsp}, {st1}, {l16}')
    xv = k.v(12)
    gbv = k.v(20)
    ttg = k.s()
    k.i(f's_lshl_b32 {ttg}, {mt2}, 2')
    k.i(f's_lshl_b32 {so}, {th4}, 1')
    k.i(f's_add_u32 {ttg}, {ttg}, {so}')
    k.i(f's_add_u32 {ttg}, {ttg}, {kh}')
    sreg, sspec = k.s(), k.s()
    x1_addr(ttg, nt2, sreg, sspec)
    k.i(f'buffer_load_dwordx4 {xv[0:4]}, {l16}, {sws}, {sreg} offen sc1')
    k.i(f's_add_u32 {sreg}, {sreg}, 8192')
    k.i(f'buffer_load_dwordx4 {xv[4:8]}, {l16}, {sws}, {sreg} offen sc1')
    k.i(f'buffer_load_dwordx2 {xv[8:10]}, {l8}, {sws}, {sspec} offen sc1')
    k.i(f'v_lshlrev_b32 {t2}, 4, {G}')
    k.i(f's_mul_i32 {st1}, {nt2}, 320')
    k.i(f's_add_u32 {so}, {st1}, {WS_MOD + 5 * 2560}')
    for ct in range(5):
        k.i(f'buffer_load_dwordx4 {gbv[4 * ct:4 * ct + 4]}, {t2}, {sws}, {so} offen offset:{64 * ct}')
    sout = k.srd(po, S * D * 2)
    k.barrier()
    k.ts()
    NS4 = 14
    steps = [(s, h) for s in range(NS4) for h in range(2) if 4 * s + 2 * h < 54]

    def prep4(idx):
        s, h = steps[idx]
        b = idx & 1
        L = []
        wb = W4[s % 5] + h * 10240
        wreg, wo_ = (wa[0], wb) if wb < 61440 else (wa[1], wb - 61440)
        xo_ = (s % 3) * 16384 + h * 8192
        L.append(f'ds_read_b128 {Fr[(b * 7 + 2) * 4:(b * 7 + 2) * 4 + 4]}, {wreg} offset:{wo_}')
        for t in range(2):
            x = Fr[(b * 7 + t) * 4:(b * 7 + t) * 4 + 4]
            if s < 2:
                L.append(f'ds_read_b64 {x[0:2]}, {xsp} offset:{xo_ + t * 8}')
                L.append(f'ds_read_b64 {x[2:4]}, {xsp} offset:{xo_ + 2048 + t * 8}')
            else:
                L.append(f'ds_read_b128 {x}, {xa} offset:{xo_ + t * 1024}')
        for ct in range(1, 5):
            L.append(f'ds_read_b128 {Fr[(b * 7 + 2 + ct) * 4:(b * 7 + 2 + ct) * 4 + 4]}, {wreg} offset:{wo_ + ct * 1024}')
        return L

    def mf4(idx):
        b = idx & 1
        L = []
        for ct in range(5):
            for t in range(2):
                a = acc[(ct * 2 + t) * 4:(ct * 2 + t) * 4 + 4]
                L.append(f'v_mfma_f32_16x16x32_bf16 {a}, {Fr[(b * 7 + 2 + ct) * 4:(b * 7 + 2 + ct) * 4 + 4]}, {Fr[(b * 7 + t) * 4:(b * 7 + t) * 4 + 4]}, {0 if idx == 0 else a}')
        return L

    k.barrier()
    k.ts()
    for x in prep4(0):
        k.i(x)
    for idx in range(len(steps)):
        if idx == 14:
            k.ts()
        if idx + 1 < len(steps):
            if steps[idx + 1][1] == 0:
                k.barrier()
            interleave(k, mf4(idx), prep4(idx + 1), lead=2)
        else:
            for x in mf4(idx):
                k.i(x)
    k.ts()
    k.i(f's_mul_i32 {so}, {wave}, 5120')
    k.i(f'v_add_u32 {t1}, {so}, {l16}')
    k.i(f's_xor_b32 {st1}, {wave}, 2')
    k.i(f's_mul_i32 {st1}, {st1}, 5120')
    k.i(f'v_add_u32 {t3}, {st1}, {l16}')
    mk = k.s(2)
    k.i(f's_cmp_eq_u32 {kh}, 1')
    k.i(f's_cselect_b64 {mk}, -1, 0')
    Sd = Fr[0:20]
    Kp = Fr[20:40]
    for ct in range(5):
        for r in range(4):
            a0_, a1_ = acc[(ct * 2) * 4 + r], acc[(ct * 2 + 1) * 4 + r]
            k.i(f'v_cndmask_b32 {Sd[4 * ct + r]}, {a1_}, {a0_}, {mk}')
            k.i(f'v_cndmask_b32 {Kp[4 * ct + r]}, {a0_}, {a1_}, {mk}')
        k.i(f'ds_write_b128 {t1}, {Sd[4 * ct:4 * ct + 4]} offset:{1024 * ct}')
    k.barrier()
    Rv = acc[0:20]
    for ct in range(5):
        k.i(f'ds_read_b128 {Rv[4 * ct:4 * ct + 4]}, {t3} offset:{1024 * ct}')
    k.i(f's_mul_i32 {so}, {ttg}, {16 * 1280}')
    k.i(f's_mul_i32 {st1}, {nt2}, 160')
    k.i(f's_add_u32 {so}, {so}, {st1}')
    k.i(f'v_mul_u32_u24 {t1}, 1280, {n}')
    k.i(f'v_lshl_add_u32 {t1}, {G}, 3, {t1}')
    xe = Fr[40:44]
    for ct in range(5):
        for q in range(2):
            k.i(f'v_lshlrev_b32 {xe[2 * q]}, 16, {xv[2 * ct + q]}')
            k.i(f'v_and_b32 {xe[2 * q + 1]}, 0xffff0000, {xv[2 * ct + q]}')
        for r in range(4):
            k.i(f'v_add_f32 {Kp[4 * ct + r]}, {Kp[4 * ct + r]}, {Rv[4 * ct + r]}')
        for r in range(4):
            k.i(f'v_fmac_f32 {xe[r]}, {Kp[4 * ct + r]}, {gbv[4 * ct + r]}')
        o = Fr[44 + 2 * ct:44 + 2 * ct + 2]
        for q in range(2):
            k.i(f'v_cvt_pk_bf16_f32 {o[q]}, {xe[2 * q]}, {xe[2 * q + 1]}')
        k.i(f'buffer_store_dwordx2 {o}, {t1}, {sout}, {so} offen offset:{32 * ct}')
    k.ts_end()
    k.i('s_endpgm')

    k.reset_state()
    k.release(mk_common)
    k.nts = nts2
    k.label('m_l2')
    lw = k.s()
    k.i(f's_sub_u32 {lw}, {wave}, 4')
    skv2, spq = k.s(), k.s()
    kvw = k.v(2, align=1)
    KR = k.v(40)
    ob = k.v(8)
    k.i(f's_lshr_b32 {st2}, {lw}, 1')
    k.i(f's_and_b32 {st1}, {lw}, 1')
    k.i(f's_mul_i32 {skv2}, {st2}, {16 * KVS}')
    k.i(f's_mul_i32 {so}, {st1}, 1792')
    k.i(f's_add_u32 {skv2}, {skv2}, {so}')
    k.i(f's_add_u32 {skv2}, {skv2}, {WS_KV}')
    k.i(f's_mul_i32 {st1}, {st1}, 112')
    k.i(f's_mul_i32 {st2}, {st2}, 1920')
    k.i(f's_add_u32 {st2}, {st2}, {RING2}')
    u1, u2_, u3 = KR[0], KR[1], KR[2]
    for i in range(2):
        k.i(f'v_add_u32 {t1}, {st1}, {lane}')
        k.i(f'v_add_u32 {t1}, {64 * i}, {t1}')
        k.i(f'v_mul_u32_u24 {t2}, 6554, {t1}')
        k.i(f'v_lshrrev_b32 {t2}, 16, {t2}')
        k.i(f'v_mul_u32_u24 {t3}, 10, {t2}')
        k.i(f'v_sub_u32 {t3}, {t1}, {t3}')
        k.i(f'v_mul_u32_u24 {u1}, 52, {t2}')
        k.i(f'v_lshrrev_b32 {u1}, 8, {u1}')
        k.i(f'v_mul_u32_u24 {u2_}, 5, {u1}')
        k.i(f'v_sub_u32 {u2_}, {t2}, {u2_}')
        k.i(f'v_lshrrev_b32 {u3}, 1, {t3}')
        k.i(f'v_lshl_add_u32 {kvw[i]}, {u1}, 2, {u2_}')
        k.i(f'v_lshlrev_b32 {kvw[i]}, 4, {kvw[i]}')
        k.i(f'v_lshl_add_u32 {kvw[i]}, {u3}, 8, {kvw[i]}')
        k.i(f'v_cmp_lt_u32 vcc, 20, {t2}')
        k.i(f'v_cndmask_b32 {u1}, {u1}, 5, vcc')
        k.i(f'v_lshlrev_b32 {u1}, 4, {u1}')
        k.i(f'v_lshl_add_u32 {u1}, {u3}, 7, {u1}')
        k.i(f'v_add_u32 {u1}, 1280, {u1}')
        k.i(f'v_cmp_eq_u32 vcc, 4, {u2_}')
        k.i(f'v_cndmask_b32 {kvw[i]}, {kvw[i]}, {u1}, vcc')
        k.i(f'v_cmp_lt_u32 vcc, 19, {t2}')
        k.i(f'v_cndmask_b32 {kvw[i]}, {kvw[i]}, {u1}, vcc')
        k.i(f'v_and_b32 {t3}, 1, {t3}')
        k.i(f'v_lshl_add_u32 {kvw[i]}, {t3}, 3, {kvw[i]}')
        k.i(f'v_add_u32 {kvw[i]}, {st2}, {kvw[i]}')
    dpq = k.s()
    k.i(f's_and_b32 {dpq}, {lw}, 1')
    k.i(f's_lshl_b32 {dpq}, {dpq}, 12')
    k.i(f's_mul_i32 {spq}, {mt2}, 163840')
    k.i(f's_add_u32 {spq}, {spq}, {dpq}')
    k.i(f's_add_u32 {spq}, {spq}, {WS_PHIQ}')
    sw3, dlo, dhi, sx3, dx3 = k.s(), k.s(), k.s(), k.s(), k.s()
    cw3, cx3 = k.s(), k.s()
    if os.environ.get('ROT3', '0') == '1':
        k.i(f's_add_u32 {cx3}, {nt3}, {mt3}')
        k.i(f's_and_b32 {cx3}, {cx3}, 3')
        k.i(f's_mul_i32 {cx3}, {cx3}, 5')
    else:
        k.i(f's_mov_b32 {cx3}, 0')
    k.i(f's_lshr_b32 {cw3}, {lw}, 1')
    k.i(f's_add_u32 {cw3}, {cw3}, {cx3}')
    k.i(f's_and_b32 {sw3}, {lw}, 1')
    k.i(f's_mul_i32 {sw3}, {sw3}, {112 * 1024}')
    k.i(f's_mul_i32 {so}, {nt3}, 7168')
    k.i(f's_add_u32 {sw3}, {sw3}, {so}')
    k.i(f's_add_u32 {sw3}, {sw3}, {WS_WGU}')
    k.i(f's_lshr_b32 {so}, {lw}, 1')
    k.i(f's_mul_i32 {so}, {so}, 14336')
    k.i(f's_and_b32 {st1}, {lw}, 1')
    k.i(f's_lshl_b32 {dlo}, {st1}, 12')
    k.i(f's_add_u32 {dlo}, {dlo}, {so}')
    k.i(f's_mul_i32 {dhi}, {st1}, 3072')
    k.i(f's_add_u32 {dhi}, {dhi}, 8192')
    k.i(f's_add_u32 {dhi}, {dhi}, {so}')
    k.i(f's_lshl_b32 {dx3}, {lw}, 11')
    k.i(f's_mul_i32 {sx3}, {mt3}, {20 * 8192}')
    k.i(f's_add_u32 {sx3}, {sx3}, {dx3}')
    k.i(f's_add_u32 {sx3}, {sx3}, {WS_X1}')

    def w3(p):
        k.i(f's_mul_i32 {so}, {cw3}, {2 * 112 * 1024}')
        k.i(f's_add_u32 {so}, {so}, {sw3}')
        k.i(f's_add_u32 {cw3}, {cw3}, 2')
        k.i(f's_cmp_ge_u32 {cw3}, 20')
        k.i(f's_cselect_b32 {st1}, 20, 0')
        k.i(f's_sub_u32 {cw3}, {cw3}, {st1}')
        k.i(f's_add_u32 m0, {dlo}, {W3[p % 4]}')
        for cc in range(4):
            k.i(f'buffer_load_dwordx4 {l16}, {sws}, {so} offen offset:{1024 * cc} lds', tag=f'w3_{p}')
        k.i(f's_add_u32 {so}, {so}, 4096')
        k.i(f's_add_u32 m0, {dhi}, {W3[p % 4]}')
        for cc in range(3):
            k.i(f'buffer_load_dwordx4 {l16}, {sws}, {so} offen offset:{1024 * cc} lds', tag=f'w3_{p}')

    def x3(J):
        k.i(f's_lshl_b32 {so}, {cx3}, 13')
        k.i(f's_add_u32 {so}, {so}, {sx3}')
        k.i(f's_add_u32 {cx3}, {cx3}, 1')
        k.i(f's_cmp_eq_u32 {cx3}, 20')
        k.i(f's_cselect_b32 {cx3}, 0, {cx3}')
        k.i(f's_add_u32 m0, {dx3}, {X3[J % 5]}')
        for i in range(2):
            k.i(f'buffer_load_dwordx4 {l16}, {sws}, {so} offen offset:{1024 * i} lds', tag=f'x3_{J}')

    sw4, sx4, dw4, dx4 = k.s(), k.s(), k.s(), k.s()
    r4 = k.s()
    if os.environ.get('ROT', '1') == '1':
        k.i(f's_mul_i32 {r4}, {nt2}, 6')
        k.i(f's_and_b32 {so}, {mt2}, 3')
        k.i(f's_mul_i32 {so}, {so}, 11')
        k.i(f's_add_u32 {r4}, {r4}, {so}')
    else:
        k.i(f's_mov_b32 {r4}, 0')
    k.i(f's_add_u32 {r4}, {r4}, {lw}')

    def e4(s):
        if s < 2:
            k.i(f's_add_u32 {st2}, {r4}, {4 * s}')
            k.i(f's_and_b32 {st2}, {st2}, 7')
        else:
            k.i(f's_add_u32 {st2}, {r4}, {4 * s - 8}')
            for _ in range(2):
                k.i(f's_cmp_ge_u32 {st2}, 46')
                k.i(f's_cselect_b32 {st1}, 46, 0')
                k.i(f's_sub_u32 {st2}, {st2}, {st1}')
            k.i(f's_add_u32 {st2}, {st2}, 8')

    k.i(f's_mul_i32 {sw4}, {nt2}, 5120')
    k.i(f's_add_u32 {sw4}, {sw4}, {WS_WDF}')
    k.i(f's_mul_i32 {dw4}, {lw}, 5120')
    k.i(f's_lshl_b32 {dx4}, {lw}, 12')
    k.i(f's_mul_i32 {sx4}, {mt2}, {56 * 4096}')
    k.i(f's_add_u32 {sx4}, {sx4}, {WS_ACT}')

    def w4(s):
        e4(s)
        k.i(f's_mul_i32 {so}, {st2}, 40960')
        k.i(f's_add_u32 {so}, {so}, {sw4}')
        k.i(f's_add_u32 m0, {dw4}, {W4[s % 5]}')
        for cc in range(4):
            k.i(f'buffer_load_dwordx4 {l16}, {sws}, {so} offen offset:{1024 * cc} lds', tag=f'w4_{s}')
        k.i(f's_add_u32 {so}, {so}, 4096')
        k.i(f's_add_u32 m0, {dw4}, {W4[s % 5] + 4096}')
        k.i(f'buffer_load_dwordx4 {l16}, {sws}, {so} offen lds', tag=f'w4_{s}')

    def x4(s):
        e4(s)
        k.i(f's_lshl_b32 {so}, {st2}, 12')
        k.i(f's_add_u32 {so}, {so}, {sx4}')
        k.i(f's_add_u32 m0, {dx4}, {X4[s % 3]}')
        for cc in range(4):
            k.i(f'buffer_load_dwordx4 {l16}, {sws}, {so} offen offset:{1024 * cc} lds', tag=f'x4_{s}')

    def ldk(s):
        k.i(f's_add_u32 {so}, {skv2}, {s * KVS}')
        for i in range(2):
            k.i(f'buffer_load_dwordx4 {KR[((s % 5) * 2 + i) * 4:((s % 5) * 2 + i) * 4 + 4]}, {l16}, {sws}, {so} offen offset:{1024 * i}')

    def stk(s):
        for i in range(2):
            kr = KR[((s % 5) * 2 + i) * 4:((s % 5) * 2 + i) * 4 + 4]
            o = ob[((s & 1) * 2 + i) * 2:((s & 1) * 2 + i) * 2 + 2]
            k.i(f'v_cvt_pk_bf16_f32 {o[0]}, {kr[0]}, {kr[1]}')
            k.i(f'v_cvt_pk_bf16_f32 {o[1]}, {kr[2]}, {kr[3]}')
            k.i(f'ds_write_b64 {kvw[i]}, {o} offset:{(s % 4) * SL2}')

    poll(G1, sx, 6)
    k.i('s_barrier')
    k.ts()
    for s in range(5):
        ldk(s)
    k.i(f's_mul_i32 {so}, {lw}, {SL2}')
    k.i(f'v_and_b32 {t1}, 1, {lane}')
    k.i(f'v_mul_u32_u24 {t1}, 1920, {t1}')
    k.i(f'v_add_u32 {t1}, {so}, {t1}')
    zz = k.v(4)
    for q in range(4):
        k.i(f'v_mov_b32 {zz[q]}, 0')
    stk(0)
    k.i(f'ds_write_b128 {t1}, {zz} offset:{RING2 + 1280 + 512 + 112}')
    for s in range(16):
        if s + 1 < 16:
            if s == 0:
                k.wait(lg=0)
            stk(s + 1) if s > 0 else None
        if s > 0:
            k.wait(lg=2 if s + 1 < 16 else 0)
        k.i('s_barrier')
        if s == 0:
            stk(1)
        if s in (0, 8):
            k.ts()
        if s == 5:
            k.i(f's_cmp_lg_u32 {wave}, 7')
            k.i('s_cbranch_scc1 m_nowr')
            k.i(f's_and_b32 {so}, s2, 15')
            k.i(f's_lshl_b32 {so}, {so}, 8')
            k.i(f's_add_u32 {so}, {so}, {WS_CNT + CW}')
            k.i(f'v_mov_b32 {t1}, 0')
            k.i(f'v_mov_b32 {t2}, 1')
            k.i('s_mov_b32 exec_lo, 1')
            k.i('s_mov_b32 exec_hi, 0')
            k.lines.append(f'  buffer_atomic_add {t2}, {t1}, {sws}, {so} offen sc1')
            k.i('s_mov_b64 exec, -1')
            k.raw('m_nowr:')
            k._join()
        if s + 5 < 16:
            ldk(s + 5)
    k.raw('m_l2j:')
    k.reset_state()
    if True:
        if True:
            k.i(f'v_lshlrev_b32 {t1}, 8, {n}')
            k.i(f's_mov_b32 {so}, {WS_CNT + CW}')
            k.i(f's_mov_b32 {st1}, 0')
            k.raw('m_wr:')
            for x in [f'buffer_load_dword {t2}, {t1}, {sws}, {so} offen sc1', 's_waitcnt vmcnt(0)',
                      f'v_cmp_gt_u32 vcc, 16, {t2}', f's_add_u32 {st1}, {st1}, 1', f's_cmp_ge_u32 {st1}, {SPIN_MAX}',
                      's_cbranch_scc1 m_wrd', 's_nop 1', 's_cbranch_vccnz m_wr']:
                k.lines.append('  ' + x)
            k.raw('m_wrd:')
            k._join()
            k.vm = []
            w3(0)
    k.ts()
    k.i('s_barrier')
    k.i('s_barrier')
    NPRE3 = int(os.environ.get('NPRE3', 2))
    for p in range(1, NPRE3):
        w3(p)
    k.ts()
    poll(G2, mt3)
    k.i('s_barrier')
    k.ts()
    LAX = 4
    for J in range(LAX):
        x3(J)
        if J >= 1 and NPRE3 + J - 1 < 4:
            w3(NPRE3 + J - 1)
    for J in range(20):
        if J % 2 == 0:
            k.wait_tag(f'w3_{J // 2}')
        k.wait_tag(f'x3_{J}')
        k.i('s_barrier')
        if J == 0:
            k.ts()
        if J == 10:
            k.ts()
        if J + LAX < 20:
            x3(J + LAX)
        if J % 2 == 0 and J >= 2 and J // 2 + 3 < 10:
            w3(J // 2 + 3)
        if J == 8 and os.environ.get('CPF', '1') == '1':
            mk_ = k.mark()
            k.i(f's_cmp_lg_u32 {wave}, 5')
            k.i('s_cbranch_scc1 m_nocpf')
            code_pf('m_p3epi', 'm_l2', 'a')
            k.raw('m_nocpf:')
            k._join()
            k.release(mk_)
        if J == 16:
            w4(0)
        if J == 17:
            w4(1)
    k.ts()
    k.i('s_barrier')
    k.i('s_barrier')
    w4(2)
    w4(3)
    w4(4)
    k.ts()
    k.i(f's_lshr_b32 {st2}, {mt2}, 1')
    sel = k.s()
    k.i(f's_mov_b32 {sel}, {st2}')
    poll(12288, sel)
    k.i('s_barrier')
    k.ts()
    x4(0)
    x4(1)
    for s in range(NS4):
        k.wait_tag(f'w4_{s}')
        k.wait_tag(f'x4_{s}')
        k.i('s_barrier')
        if s in (0, 7):
            k.ts()
        if s + 2 < NS4:
            x4(s + 2)
        if s >= 1 and s + 4 < NS4:
            w4(s + 4)
    k.ts()
    k.i('s_barrier')
    k.ts_end()
    k.label('p1_end')
    k.i('s_endpgm')
    return k, 256, 512, 163840


GENS = [gen_main]
```

```python
import os
from g2_common import *


def poll_flag(k, name, wave, pdb, off, t1, t2):
    sdb = k.srd(pdb, 256)
    cnt, val = k.s(), k.s()
    k.i(f's_cmp_lg_u32 {wave}, 0')
    k.i(f's_cbranch_scc1 {name}_x')
    k.i(f'v_mov_b32 {t1}, {off}')
    k.i('s_mov_b32 exec_lo, 1')
    k.i('s_mov_b32 exec_hi, 0')
    k.i(f's_mov_b32 {cnt}, 0')
    k.raw(f'{name}:')
    k.lines.append(f'  buffer_load_dword {t2}, {t1}, {sdb}, 0 offen sc1')
    k.lines.append('  s_waitcnt vmcnt(0)')
    k.lines.append(f'  v_readfirstlane_b32 {val}, {t2}')
    k.lines.append(f'  s_add_u32 {cnt}, {cnt}, 1')
    k.lines.append(f'  s_cmp_ge_u32 {cnt}, 200000')
    k.lines.append(f'  s_cbranch_scc1 {name}_d')
    k.lines.append(f'  s_cmp_lg_u32 {val}, 0')
    k.lines.append(f'  s_cbranch_scc1 {name}_d')
    k.lines.append(f"  s_sleep {os.environ.get('P0_SLEEP', '6')}")
    k.lines.append(f'  s_branch {name}')
    k.raw(f'{name}_d:')
    k.i('s_mov_b64 exec, -1')
    k.raw(f'{name}_x:')
    k._join()
    k.i('s_barrier')

def gen_p0():
    k = Kernel('p0_kernel')
    NT = 32 if os.environ.get('P0_TLB', '1') == '1' else 0
    NWG = 48 + 128 + 80 + 185 + NT
    k.i(f's_cmp_ge_u32 s2, {NWG}')
    k.i('s_cbranch_scc1 p0_end')
    if NT:
        k.i(f's_cmp_ge_u32 s2, {NT}')
        k.i('s_cbranch_scc1 p0_main')
        k.i('v_lshrrev_b32 v1, 6, v0')
        k.i('s_lshr_b32 s3, s2, 3')
        k.i('v_readfirstlane_b32 s4, v1')
        k.i('s_lshl_b32 s3, s3, 2')
        k.i('s_add_u32 s3, s3, s4')
        k.i('s_cmp_lt_u32 s3, 12')
        k.i('s_cbranch_scc1 p0_tlb')
        k.lines.append('  s_getpc_b64 s[8:9]')
        k.lines.append('p0_pc:')
        k.lines.append('  s_add_u32 s8, s8, p1_kernel-p0_pc')
        k.lines.append('  s_addc_u32 s9, s9, 0')
        k.i('v_lshlrev_b32 v1, 7, v0')
        k.lines.append('  v_min_u32 v2, code_end-p1_kernel-4, v1')
        k.lines.append('  global_load_dword v3, v2, s[8:9]')
        for r in (1, 2):
            k.i(f'v_add_u32 v1, 32768, v1')
            k.lines.append('  v_min_u32 v2, code_end-p1_kernel-4, v1')
            k.lines.append(f'  global_load_dword v{3 + r}, v2, s[8:9]')
        k.i('s_endpgm')
        k.raw('p0_tlb:')
        order = [KA_WMOD, KA_X, KA_WQKV, KA_C, KA_WPHI, KA_WS, KA_WG, KA_WU, KA_WD, KA_WO, KA_OUT, KA_WS]
        sizes = {KA_WMOD: D * 3840 * 2, KA_X: S * D * 2, KA_WQKV: D * 1920 * 2, KA_C: D * 2, KA_WPHI: 25600, KA_WS: WS_END,
                 KA_WG: D * F * 2, KA_WU: D * F * 2, KA_WD: D * F * 2, KA_WO: D * D * 2, KA_OUT: S * D * 2}
        k.i(f's_mov_b32 s5, {order[0]}')
        k.i(f's_mov_b32 s10, {sizes[order[0]]}')
        for i in range(1, 12):
            k.i(f's_cmp_eq_u32 s3, {i}')
            k.i(f's_cselect_b32 s5, {order[i]}, s5')
            k.i(f's_cselect_b32 s10, {sizes[order[i]]}, s10')
        k.i('s_load_dwordx2 s[8:9], s[0:1], s5')
        k.i('v_and_b32 v1, 63, v0')
        k.i('v_lshlrev_b32 v1, 19, v1')
        k.i('s_cmp_eq_u32 s3, 11')
        k.i(f's_cselect_b32 s6, {32 << 20}, 0')
        k.i('s_mov_b32 s11, 0x00020000')
        k.i('s_and_b32 s9, s9, 0xffff')
        k.i('buffer_load_dword v2, v1, s[8:11], s6 offen')
        k.i('s_endpgm')
        k.reset_state()
        k.raw('p0_main:')
        k.i(f's_sub_u32 s2, s2, {NT}')
    k.ts_init(0)
    if k.TS:
        k.i('v_mov_b32 v254, v0')
    ws = k.s(2)
    k.i(f's_load_dwordx2 {ws}, s[0:1], {KA_WS}')
    pdb = k.s(2)
    k.i(f's_load_dwordx2 {pdb}, s[0:1], {KA_DBG}')
    lane = k.v()
    wave = k.s()
    k.i(f'v_and_b32 {lane}, 63, v0')
    t0 = k.v()
    k.i(f'v_lshrrev_b32 {t0}, 6, v0')
    k.i(f'v_readfirstlane_b32 {wave}, {t0}')
    sp, sy = k.s(), k.s()
    k.i('s_cmp_ge_u32 s2, 256')
    k.i('s_cbranch_scc1 p0_rearr')
    k.i('s_cmp_ge_u32 s2, 176')
    k.i('s_cbranch_scc1 p0_fold')
    k.i('s_cmp_ge_u32 s2, 48')
    k.i('s_cbranch_scc1 p0_xn')
    base_mark = k.mark()
    lg_save = list(k.lg)

    sx, col0 = k.s(), k.s()
    k.i(f's_and_b32 {sx}, s2, 7')
    k.i(f's_lshr_b32 {sy}, s2, 3')
    k.i(f's_lshr_b32 {sp}, {sy}, 1')
    k.i(f's_lshl_b32 {sp}, {sp}, 3')
    k.i(f's_add_u32 {sp}, {sp}, {sx}')
    k.i(f's_cmp_ge_u32 {sp}, 20')
    k.i('s_cbranch_scc1 p0_end')
    k.i(f's_and_b32 {sy}, {sy}, 1')
    k.raw('p0_gemv:')
    k._join()
    if k.TS:
        k.nts = 3
        k.i(f's_cmp_ge_u32 {sp}, 20')
        k.i('s_cbranch_scc1 p0_gts')
        k.i(f's_mov_b32 {k.tsr[13]}, {k.tsr[12]}')
        k.i(f's_mov_b32 {k.tsr[14]}, {k.tsr[12]}')
        k.raw('p0_gts:')
        k.ts()
    pc, pw = k.s(2), k.s(2)
    k.i(f's_load_dwordx2 {pc}, s[0:1], {KA_C}')
    k.i(f's_load_dwordx2 {pw}, s[0:1], {KA_WMOD}')
    k.i(f's_mov_b32 {col0}, {sp}')
    k.i(f's_lshl_b32 {col0}, {col0}, 1')
    k.i(f's_add_u32 {col0}, {col0}, {sy}')
    k.i(f's_lshl_b32 {col0}, {col0}, 5')
    sc = k.srd(pc, D * 2)
    sw = k.srd(pw, D * 3840 * 2)
    sws = k.srd(ws, WS_END)
    rr, q, vo, vc = k.v(), k.v(), k.v(), k.v()
    k.i(f'v_lshrrev_b32 {rr}, 2, v0')
    k.i(f'v_and_b32 {q}, 3, v0')
    EXP = os.environ.get('P0_EXP', '')
    k.i(f'v_mul_u32_u24 {vo}, {64 if EXP == "lin" else 7680}, {rr}')
    k.i(f'v_lshl_add_u32 {vo}, {q}, 4, {vo}')
    so = k.s()
    if EXP == 'lin':
        k.i(f's_mul_i32 {so}, {col0}, 1280')
    else:
        k.i(f's_lshl_b32 {so}, {col0}, 1')
    k.i(f'v_add_u32 {vo}, {so}, {vo}')
    k.i(f'v_lshlrev_b32 {vc}, 1, {rr}')
    cv = k.v(10, align=1)
    wv = k.v(40)
    for i in range(10):
        k.i(f'buffer_load_ushort {cv[i]}, {vc}, {sc}, 0 offen offset:{128 * i}')
    for i in range(10):
        k.i(f's_mov_b32 {so}, {(4096 if EXP == "lin" else 64 * 7680) * i}')
        k.i(f'buffer_load_dwordx4 {wv[4 * i:4 * i + 4]}, {vo}, {sw}, {so} offen')
    k.ts()
    acc = k.v(8, align=1)
    for j in range(8):
        k.i(f'v_mov_b32 {acc[j]}, 0')
    t1, t2 = k.v(), k.v()
    for i in range(10):
        c = cv[i]
        k.i(f'v_lshlrev_b32 {c}, 16, {c}')
        k.i(f'v_mul_f32 {t1}, {fhex(-LOG2E)}, {c}')
        k.i(f'v_exp_f32 {t1}, {t1}')
        k.i(f'v_add_f32 {t1}, 1.0, {t1}')
        k.i(f'v_rcp_f32 {t1}, {t1}')
        k.i(f'v_mul_f32 {c}, {c}, {t1}')
        round_bf16(k, c, c)
    k.ts()
    k.wait(vm=0)
    k.ts()
    for i in range(10):
        for j in range(4):
            w = wv[4 * i + j]
            k.i(f'v_lshlrev_b32 {t1}, 16, {w}')
            k.i(f'v_and_b32 {t2}, 0xffff0000, {w}')
            k.i(f'v_fmac_f32 {acc[2 * j]}, {t1}, {cv[i]}')
            k.i(f'v_fmac_f32 {acc[2 * j + 1]}, {t2}, {cv[i]}')
    for j in range(8):
        k.i(f'v_add_f32 {acc[j]}, {acc[j]}, {acc[j]} row_ror:4 {DPP}')
    for j in range(8):
        k.i(f'v_add_f32 {acc[j]}, {acc[j]}, {acc[j]} row_ror:8 {DPP}')
    for j in range(8):
        xsum4(k, acc[j], t1)
    k.ts()
    la = k.v()
    k.i(f'v_lshlrev_b32 {la}, 5, {q}')
    k.i(f's_lshl_b32 {so}, {wave}, 7')
    k.i(f'v_add_u32 {la}, {so}, {la}')
    sv = k.s(2)
    k.i(f'v_cmp_gt_u32 vcc, 4, {lane}')
    k.i(f's_and_saveexec_b64 {sv}, vcc')
    for j in range(8):
        k.i(f'ds_write_b32 {la}, {acc[j]} offset:{4 * j}')
    k.i(f's_mov_b64 exec, {sv}')
    k.barrier()
    k.i(f'v_cmp_gt_u32 vcc, 32, v0')
    k.i(f's_and_saveexec_b64 {sv}, vcc')
    k.i('s_cbranch_execz p0_end')
    k.i(f'v_lshlrev_b32 {la}, 2, v0')
    for j in range(4):
        k.i(f'ds_read_b32 {acc[j]}, {la} offset:{128 * j}')
    k.i(f'v_add_f32 {acc[0]}, {acc[0]}, {acc[1]}')
    k.i(f'v_add_f32 {acc[2]}, {acc[2]}, {acc[3]}')
    k.i(f'v_add_f32 {acc[0]}, {acc[0]}, {acc[2]}')
    round_bf16(k, acc[0], acc[0])
    k.i(f'v_add_f32 {t1}, 1.0, {acc[0]}')
    round_bf16(k, t1, t1)
    flag = k.s()
    sa_, sb_ = k.s(), k.s()
    k.i(f's_sub_u32 {sa_}, {col0}, 640')
    k.i(f's_sub_u32 {sb_}, {col0}, 2560')
    k.i(f's_min_u32 {sa_}, {sa_}, {sb_}')
    k.i(f's_cmp_lt_u32 {sa_}, 640')
    k.i(f's_cselect_b64 vcc, -1, 0')
    k.i(f'v_cndmask_b32 {acc[0]}, {acc[0]}, {t1}, vcc')
    k.i(f's_lshl_b32 {so}, {col0}, 2')
    k.i(f'buffer_store_dword {acc[0]}, {la}, {sws}, {so} offen offset:{WS_MOD} sc1')
    k.i(f's_cmp_ge_u32 {sp}, 20')
    k.i(f's_cbranch_scc1 p0_gemv_done')
    sdb = k.srd(pdb, 256)
    k.i(f's_mov_b32 {sa_}, 0')
    k.i(f'v_mov_b32 {t1}, 1')
    k.i(f'v_mov_b32 {t2}, 0')
    k.i('s_mov_b32 exec_lo, 1')
    k.wait(vm=0)
    k.lines.append(f'  buffer_atomic_add {t1}, {t2}, {sdb}, {sa_} offen sc0 sc1')
    k.lines.append('  s_waitcnt vmcnt(0)')
    k.lines.append(f'  v_readfirstlane_b32 {so}, {t1}')
    k.lines.append(f'  v_mov_b32 {t1}, 1')
    k.lines.append(f'  s_cmp_lg_u32 {so}, 39')
    k.lines.append('  s_cbranch_scc1 p0_gemv_done')
    k.lines.append(f'  buffer_store_dword {t1}, {t2}, {sdb}, {sa_} offen offset:128 sc1')
    k.raw('p0_gemv_done:')
    k._join()
    k.ts_end()
    k.i('s_endpgm')

    k.release(base_mark)
    k.reset_state()
    k.lg = list(lg_save)
    k.nts = 1
    k.label('p0_fold')
    pq, pp = k.s(2), k.s(2)
    k.i(f's_load_dwordx2 {pq}, s[0:1], {KA_WQKV}')
    k.i(f's_load_dwordx2 {pp}, s[0:1], {KA_WPHI}')
    bb, hg4, J = k.s(), k.s(), k.s()
    k.i(f's_sub_u32 {bb}, s2, 176')
    k.i(f's_and_b32 {hg4}, {bb}, 3')
    k.i(f's_lshr_b32 {J}, {bb}, 2')
    PHI, ZERO = 32768, 40448
    G, n, l16 = k.v(), k.v(), k.v()
    k.i(f'v_lshrrev_b32 {G}, 4, {lane}')
    k.i(f'v_and_b32 {n}, 15, {lane}')
    k.i(f'v_lshlrev_b32 {l16}, 4, {lane}')
    t1, t2, t3, t4 = k.v(), k.v(), k.v(), k.v()
    da = k.v(8, align=1)
    for i in range(8):
        k.i(f'v_add_u32 {t1}, {256 * i}, v0')
        if i == 7:
            k.i(f'v_min_u32 {t1}, 1919, {t1}')
        k.i(f'v_mul_u32_u24 {t2}, 2185, {t1}')
        k.i(f'v_lshrrev_b32 {t2}, 17, {t2}')
        k.i(f'v_mul_u32_u24 {t3}, 60, {t2}')
        k.i(f'v_sub_u32 {t1}, {t1}, {t3}')
        k.i(f'v_mov_b32 {t3}, 1920')
        k.i(f'v_mov_b32 {t4}, -320')
        k.i(f'v_cmp_gt_u32 vcc, 40, {t1}')
        k.i(f'v_cndmask_b32 {t3}, {t3}, {t4}, vcc')
        k.i(f'v_mov_b32 {t4}, 1280')
        k.i(f'v_cmp_gt_u32 vcc, 20, {t1}')
        k.i(f'v_cndmask_b32 {t3}, {t3}, {t4}, vcc')
        k.i(f'v_lshl_add_u32 {t3}, {t1}, 4, {t3}')
        k.i(f'v_mul_u32_u24 {t2}, 3840, {t2}')
        k.i(f'v_add_u32 {da[i]}, {t2}, {t3}')
    sq = k.srd(pq, D * 1920 * 2)
    sph = k.srd(pp, 32 * 400 * 2)
    sws = k.srd(ws, WS_END)
    so, so2 = k.s(), k.s()
    k.i(f's_mul_i32 {so}, {J}, {32 * 3840}')
    k.i(f's_mul_i32 {so2}, {hg4}, 320')
    k.i(f's_add_u32 {so}, {so}, {so2}')
    k.i(f's_lshl_b32 {so2}, {wave}, 10')
    for i in range(8):
        k.i(f's_add_u32 m0, {so2}, {4096 * i}')
        k.i(f'buffer_load_dwordx4 {da[i]}, {sq}, {so} offen lds', tag='t')
    k.i(f's_mul_i32 {so}, {hg4}, 6400')
    k.i(f's_add_u32 {so}, {so}, {so2}')
    k.i(f's_add_u32 m0, {so2}, {PHI}')
    k.i(f'buffer_load_dwordx4 {l16}, {sph}, {so} offen lds', tag='t')
    k.i(f's_cmp_eq_u32 {wave}, 3')
    k.i('s_cbranch_scc1 p0_nophi')
    k.i(f's_add_u32 {so}, {so}, 4096')
    k.i(f's_add_u32 m0, {so2}, {PHI + 4096}')
    k.i(f'buffer_load_dwordx4 {l16}, {sph}, {so} offen lds', tag='t')
    k.raw('p0_nophi:')
    k._join()
    k.ts()
    k.i(f'v_lshlrev_b32 {t1}, 2, {lane}')
    k.i(f'v_mov_b32 {t2}, 0')
    k.i(f'ds_write_b32 {t1}, {t2} offset:{ZERO}')
    w80 = k.s()
    k.i(f's_mul_i32 {w80}, {wave}, 80')
    aa = k.v(3, align=1)
    k.i(f'v_lshrrev_b32 {t1}, 2, {n}')
    k.i(f'v_lshlrev_b32 {t1}, 3, {t1}')
    k.i(f'v_and_b32 {t2}, 3, {n}')
    k.i(f'v_add_u32 {t1}, {t1}, {t2}')
    k.i(f'v_mul_u32_u24 {t1}, 960, {t1}')
    k.i(f'v_add_u32 {t1}, {w80}, {t1}')
    for s_ in range(3):
        k.i(f'v_add_u32 {t2}, {4 * s_}, {G}')
        k.i(f'v_min_u32 {t2}, 9, {t2}')
        k.i(f'v_cmp_lt_u32 vcc, 4, {t2}')
        k.i(f'v_mov_b32 {t4}, 240')
        k.i(f'v_cndmask_b32 {t3}, 0, {t4}, vcc')
        k.i(f'v_lshl_add_u32 {t3}, {t2}, 4, {t3}')
        k.i(f'v_add_u32 {aa[s_]}, {t1}, {t3}')
    ba = k.v(6, align=1)
    rp, cc = k.v(), k.v()
    k.i(f'v_lshrrev_b32 {rp}, 2, {n}')
    k.i(f'v_and_b32 {cc}, 3, {n}')
    hb = k.v()
    k.i(f'v_and_b32 {hb}, 1, {cc}')
    k.i(f'v_mul_u32_u24 {hb}, 800, {hb}')
    k.i(f's_mul_i32 {so}, {wave}, 1600')
    k.i(f's_add_u32 {so}, {so}, {PHI}')
    k.i(f'v_add_u32 {hb}, {so}, {hb}')
    zr = k.v()
    k.i(f'v_mov_b32 {zr}, {ZERO}')
    k8 = k.v()
    k.i(f'v_lshl_add_u32 {k8}, {G}, 3, {rp}')
    for s_ in range(3):
        for hf in range(2):
            k.i(f'v_add_u32 {t1}, {32 * s_ + 4 * hf}, {k8}')
            k.i(f'v_mul_u32_u24 {t2}, 3277, {t1}')
            k.i(f'v_lshrrev_b32 {t2}, 16, {t2}')
            k.i(f'v_mul_u32_u24 {t3}, 20, {t2}')
            k.i(f'v_sub_u32 {t3}, {t1}, {t3}')
            k.i(f'v_mul_u32_u24 {t3}, 40, {t3}')
            k.i(f'v_add_u32 {t3}, {t3}, {hb}')
            k.i(f'v_cmp_eq_u32 vcc, {t2}, {cc}')
            k.i(f'v_cndmask_b32 {ba[2 * s_ + hf]}, {zr}, {t3}, vcc')
    va = k.v(6, align=1)
    k.i(f'v_mul_u32_u24 {t1}, 960, {k8}')
    k.i(f'v_add_u32 {t1}, 640, {t1}')
    k.i(f'v_add_u32 {t1}, {w80}, {t1}')
    for c3 in range(3):
        k.i(f'v_add_u32 {t2}, {4 * c3}, {cc}')
        k.i(f'v_cmp_lt_u32 vcc, 5, {t2}')
        k.i(f'v_cndmask_b32 {t3}, 0, 1, vcc')
        k.i(f'v_sub_u32 {t3}, {t2}, {t3}')
        k.i(f'v_lshl_add_u32 {t3}, {t3}, 3, {t1}')
        k.i(f'v_add_u32 {t4}, 3840, {t3}')
        if c3 >= 1:
            k.i(f'v_cmp_eq_u32 vcc, {5 if c3 == 1 else 11}, {t2}')
            k.i(f'v_cndmask_b32 {va[2 * c3]}, {t3}, {zr}, vcc')
            k.i(f'v_cndmask_b32 {va[2 * c3 + 1]}, {t4}, {zr}, vcc')
        else:
            k.i(f'v_mov_b32 {va[0]}, {t3}')
            k.i(f'v_mov_b32 {va[1]}, {t4}')
    k.lines.append('  s_waitcnt vmcnt(0)')
    k.vm = []
    k.barrier()
    k.ts()
    A = k.v(24)
    B = k.v(60)
    Vf = k.v(12)
    for p in range(2):
        for s_ in range(3):
            k.i(f'ds_read_b128 {A[(p * 3 + s_) * 4:(p * 3 + s_) * 4 + 4]}, {aa[s_]} offset:{p * 3840}')
    for ct in range(5):
        for s_ in range(3):
            for hf in range(2):
                b_ = (ct * 3 + s_) * 4 + 2 * hf
                k.i(f'ds_read_b64_tr_b16 {B[b_:b_ + 2]}, {ba[2 * s_ + hf]} offset:{8 * ct}')
    for c3 in range(3):
        for hf in range(2):
            k.i(f'ds_read_b64_tr_b16 {Vf[c3 * 4 + 2 * hf:c3 * 4 + 2 * hf + 2]}, {va[2 * c3 + hf]}')
    k.i(f's_lshl_b32 {so}, {hg4}, 2')
    k.i(f's_add_u32 {so}, {so}, {wave}')
    k.i(f's_mul_i32 {so}, {so}, 20')
    k.i(f's_add_u32 {so}, {so}, {J}')
    k.i(f's_lshl_b32 {so}, {so}, 13')
    k.i(f's_add_u32 {so}, {so}, {WS_WP}')
    k.i(f's_add_u32 {so2}, {so}, 4096')
    Dm = k.v(16)
    o = k.v(8)
    STF = os.environ.get('P0_ST', '')
    for ct in range(5):
        d8 = Dm[(ct & 1) * 8:(ct & 1) * 8 + 8]
        for p in range(2):
            d = d8[p * 4:p * 4 + 4]
            for s_ in range(3):
                k.i(f'v_mfma_f32_16x16x32_bf16 {d}, {A[(p * 3 + s_) * 4:(p * 3 + s_) * 4 + 4]}, {B[(ct * 3 + s_) * 4:(ct * 3 + s_) * 4 + 4]}, {0 if s_ == 0 else d}')
        if ct >= 1:
            pd = Dm[((ct - 1) & 1) * 8:((ct - 1) & 1) * 8 + 8]
            oo = o[((ct - 1) & 1) * 4:((ct - 1) & 1) * 4 + 4]
            for j in range(4):
                k.i(f'v_cvt_pk_bf16_f32 {oo[j]}, {pd[2 * j]}, {pd[2 * j + 1]}')
            k.i(f'buffer_store_dwordx4 {oo}, {l16}, {sws}, {so} offen offset:{(ct - 1) * 1024} {STF}')
    for c3 in range(3):
        k.i(f'buffer_store_dwordx4 {Vf[c3 * 4:c3 * 4 + 4]}, {l16}, {sws}, {so2} offen offset:{(c3 + 1) * 1024} {STF}')
    oo = o[0:4]
    for j in range(4):
        k.i(f'v_cvt_pk_bf16_f32 {oo[j]}, {Dm[2 * j]}, {Dm[2 * j + 1]}')
    k.i(f'buffer_store_dwordx4 {oo}, {l16}, {sws}, {so2} offen {STF}')
    k.i(f's_lshr_b32 {sp}, {bb}, 1')
    k.i(f's_add_u32 {sp}, {sp}, 20')
    k.i(f's_and_b32 {sy}, {bb}, 1')
    k.barrier()
    k.nop(2)
    k.i('s_branch p0_gemv')

    k.release(base_mark)
    k.reset_state()
    k.lg = list(lg_save)
    k.nts = 1
    k.label('p0_xn')
    px = k.s(2)
    k.i(f's_load_dwordx2 {px}, s[0:1], {KA_X}')
    tt = k.s()
    k.i(f's_sub_u32 {tt}, s2, 48')
    sxx = k.srd(px, S * D * 2)
    sws = k.srd(ws, WS_END)
    nrow, j_, vo, t1, t2 = k.v(), k.v(), k.v(), k.v(), k.v()
    k.i(f'v_lshrrev_b32 {nrow}, 4, v0')
    k.i(f'v_and_b32 {j_}, 15, v0')
    k.i(f'v_mul_u32_u24 {vo}, 1280, {nrow}')
    k.i(f'v_lshl_add_u32 {vo}, {j_}, 4, {vo}')
    so = k.s()
    k.i(f's_mul_i32 {so}, {tt}, 20480')
    xr = k.v(20)
    for i in range(5):
        k.i(f'buffer_load_dwordx4 {xr[4 * i:4 * i + 4]}, {vo}, {sxx}, {so} offen offset:{256 * i}')
    sv = k.s(2)
    so3 = k.s()
    k.i(f's_mul_i32 {so3}, {tt}, 1280')
    k.i(f's_add_u32 {so3}, {so3}, {WS_CNT}')
    k.i(f'v_lshlrev_b32 {t1}, 2, v0')
    k.i(f'v_mov_b32 {t2}, 0')
    k.i(f'buffer_store_dword {t2}, {t1}, {sws}, {so3} offen sc1')
    k.i(f'v_cmp_gt_u32 vcc, 64, v0')
    k.i(f's_and_saveexec_b64 {sv}, vcc')
    k.i(f'buffer_store_dword {t2}, {t1}, {sws}, {so3} offen offset:1024 sc1')
    k.i(f's_mov_b64 exec, {sv}')
    k.ts()
    k.wait(vm=2)
    k.ts()
    xf = k.v(40)
    sm = k.v()
    for i in range(20):
        k.i(f'v_lshlrev_b32 {xf[2 * i]}, 16, {xr[i]}')
        k.i(f'v_and_b32 {xf[2 * i + 1]}, 0xffff0000, {xr[i]}')
    k.i(f'v_add_f32 {sm}, {xf[0]}, {xf[1]}')
    k.i(f'v_add_f32 {t1}, {xf[2]}, {xf[3]}')
    for i in range(4, 40, 2):
        k.i(f'v_add_f32 {sm}, {sm}, {xf[i]}')
        k.i(f'v_add_f32 {t1}, {t1}, {xf[i + 1]}')
    k.i(f'v_add_f32 {sm}, {sm}, {t1}')
    for r in (1, 2, 4, 8):
        k.i(f'v_add_f32 {sm}, {sm}, {sm} row_ror:{r} {DPP}')
    k.i(f'v_mul_f32 {sm}, {fhex(1.0 / 640)}, {sm}')
    for i in range(40):
        k.i(f'v_sub_f32 {xf[i]}, {xf[i]}, {sm}')
    k.i(f'v_mul_f32 {sm}, {xf[0]}, {xf[0]}')
    k.i(f'v_mul_f32 {t1}, {xf[1]}, {xf[1]}')
    for i in range(2, 40, 2):
        k.i(f'v_fmac_f32 {sm}, {xf[i]}, {xf[i]}')
        k.i(f'v_fmac_f32 {t1}, {xf[i + 1]}, {xf[i + 1]}')
    k.i(f'v_add_f32 {sm}, {sm}, {t1}')
    for r in (1, 2, 4, 8):
        k.i(f'v_add_f32 {sm}, {sm}, {sm} row_ror:{r} {DPP}')
    k.i(f'v_mov_b32 {t1}, {fhex(1e-5)}')
    k.i(f'v_fmac_f32 {t1}, {fhex(1.0 / 640)}, {sm}')
    k.i(f'v_rsq_f32 {t1}, {t1}')
    for i in range(40):
        k.i(f'v_mul_f32 {xf[i]}, {xf[i]}, {t1}')
    for i in range(20):
        k.i(f'v_cvt_pk_bf16_f32 {xr[i]}, {xf[2 * i]}, {xf[2 * i + 1]}')
    k.i(f'v_lshlrev_b32 {t1}, 8, {j_}')
    k.i(f'v_lshl_add_u32 {t1}, {nrow}, 4, {t1}')
    for i in range(5):
        k.i(f'ds_write_b128 {t1}, {xr[4 * i:4 * i + 4]} offset:{4096 * i}')
    k.barrier()
    k.i(f'v_lshlrev_b32 {t1}, 4, v0')
    for i in range(5):
        k.i(f'ds_read_b128 {xr[4 * i:4 * i + 4]}, {t1} offset:{4096 * i}')
    for i in range(20):
        k.i(f'v_lshlrev_b32 {xf[2 * i]}, 16, {xr[i]}')
        k.i(f'v_and_b32 {xf[2 * i + 1]}, 0xffff0000, {xr[i]}')
    cfa = k.v()
    k.i(f'v_lshlrev_b32 {cfa}, 5, {nrow}')
    k.ts()
    poll_flag(k, 'p0_pollA', wave, pdb, 128, t1, t2)
    k.ts()
    cfs = k.v(80)
    k.i(f's_mov_b32 {so3}, 2560')
    for i in range(5):
        for q in range(2):
            k.i(f'buffer_load_dwordx4 {cfs[16 * i + 4 * q:16 * i + 4 * q + 4]}, {cfa}, {sws}, 0 offen offset:{WS_MOD + 512 * i + 16 * q} sc1')
            k.i(f'buffer_load_dwordx4 {cfs[16 * i + 8 + 4 * q:16 * i + 8 + 4 * q + 4]}, {cfa}, {sws}, {so3} offen offset:{WS_MOD + 512 * i + 16 * q} sc1')
    k.i(f's_lshr_b32 {so}, {tt}, 3')
    k.i(f's_mul_i32 {so}, {so}, 20')
    k.i(f's_add_u32 {so}, {so}, {wave}')
    k.i(f's_lshl_b32 {so}, {so}, 13')
    k.i(f's_and_b32 {so3}, {tt}, 7')
    k.i(f's_lshl_b32 {so3}, {so3}, 10')
    k.i(f's_add_u32 {so}, {so}, {so3}')
    k.i(f's_add_u32 {so}, {so}, {WS_XN}')
    k.i(f'v_lshlrev_b32 {t2}, 4, {lane}')
    for i in range(5):
        for e in range(8):
            k.i(f'v_fma_f32 {xf[8 * i + e]}, {xf[8 * i + e]}, {cfs[16 * i + 8 + e]}, {cfs[16 * i + e]}')
        for q in range(4):
            k.i(f'v_cvt_pk_bf16_f32 {xr[4 * i + q]}, {xf[8 * i + 2 * q]}, {xf[8 * i + 2 * q + 1]}')
        k.i(f's_add_u32 {so3}, {so}, {4 * 8192 * i}')
        k.i(f'buffer_store_dwordx4 {xr[4 * i:4 * i + 4]}, {t2}, {sws}, {so3} offen ' + os.environ.get('P0_ST', ''))
    k.ts()
    k.ts_end()
    k.i('s_endpgm')

    k.release(base_mark)
    k.reset_state()
    k.lg = list(lg_save)
    k.nts = 1
    k.label('p0_rearr')
    sty, srowA, srowB, sdst, scol, ska, sstr = k.s(), k.s(), k.s(), k.s(), k.s(), k.s(), k.s()
    ks, cblk, u2, q_, p_, t_, t2_, rr_ = k.s(), k.s(), k.s(), k.s(), k.s(), k.s(), k.s(), k.s()
    so, st1 = k.s(), k.s()
    k.i(f's_sub_u32 {rr_}, s2, 256')
    k.i(f's_lshl_b32 {u2}, {rr_}, 2')
    k.i(f's_add_u32 {u2}, {u2}, {wave}')
    k.i(f's_cmp_lt_u32 {rr_}, 135')
    k.i(f's_cbranch_scc1 p0_sd_wdf')
    k.i(f's_sub_u32 {u2}, {u2}, 540')
    k.i(f's_mov_b32 {sty}, 2')
    k.i(f's_mul_i32 {q_}, {u2}, 6554')
    k.i(f's_lshr_b32 {q_}, {q_}, 16')
    k.i(f's_mul_i32 {t_}, {q_}, 10')
    k.i(f's_sub_u32 {t_}, {u2}, {t_}')
    k.i(f's_lshl_b32 {scol}, {t_}, 7')
    k.i(f's_mul_i32 {sdst}, {q_}, 40')
    k.i(f's_lshl_b32 {t_}, {t_}, 2')
    k.i(f's_add_u32 {sdst}, {sdst}, {t_}')
    k.i(f's_lshl_b32 {sdst}, {sdst}, 10')
    k.i(f's_add_u32 {sdst}, {sdst}, {WS_WOF}')
    k.i(f's_mul_i32 {t_}, {q_}, 52')
    k.i(f's_lshr_b32 {t_}, {t_}, 8')
    k.i(f's_mul_i32 {srowA}, {t_}, 160')
    k.i(f's_mul_i32 {t_}, {t_}, 5')
    k.i(f's_sub_u32 {srowB}, {q_}, {t_}')
    k.i(f's_mov_b32 {ska}, {KA_WO}')
    k.i(f's_mov_b32 {sstr}, 1280')
    k.i(f's_branch p0_sd_done')
    k.raw('p0_sd_wdf:')
    k.i(f's_mul_i32 {q_}, {u2}, 6554')
    k.i(f's_lshr_b32 {q_}, {q_}, 16')
    k.i(f's_mul_i32 {t_}, {q_}, 10')
    k.i(f's_sub_u32 {t_}, {u2}, {t_}')
    k.i(f's_lshl_b32 {scol}, {t_}, 7')
    k.i(f's_mul_i32 {sdst}, {q_}, 40')
    k.i(f's_lshl_b32 {t_}, {t_}, 2')
    k.i(f's_add_u32 {sdst}, {sdst}, {t_}')
    k.i(f's_lshl_b32 {sdst}, {sdst}, 10')
    k.i(f's_add_u32 {sdst}, {sdst}, {WS_WDF}')
    k.i(f's_sub_u32 {t_}, {q_}, 8')
    k.i(f's_and_b32 {t_}, {t_}, 63')
    k.i(f's_mul_i32 {p_}, {t_}, 86')
    k.i(f's_lshr_b32 {p_}, {p_}, 8')
    k.i(f's_lshl_b32 {srowA}, {t_}, 1')
    k.i(f's_add_u32 {srowA}, {srowA}, {p_}')
    k.i(f's_add_u32 {srowB}, {srowA}, 1')
    k.i(f's_mul_i32 {t_}, {q_}, 14')
    k.i(f's_add_u32 {t2_}, {t_}, 13')
    k.i(f's_min_u32 {t2_}, {t2_}, 107')
    k.i(f's_add_u32 {t_}, {t_}, 6')
    k.i(f's_cmp_lt_u32 {q_}, 8')
    k.i(f's_cselect_b32 {srowA}, {t_}, {srowA}')
    k.i(f's_cselect_b32 {srowB}, {t2_}, {srowB}')
    k.i(f's_lshl_b32 {srowA}, {srowA}, 4')
    k.i(f's_lshl_b32 {srowB}, {srowB}, 4')
    k.i(f's_mov_b32 {sty}, 1')
    k.i(f's_mov_b32 {ska}, {KA_WD}')
    k.i(f's_mov_b32 {sstr}, 1280')
    k.i(f's_branch p0_sd_done')
    k.raw('p0_sd_done:')
    psd = k.s(2)
    k.i(f's_load_dwordx2 {psd}, s[0:1], {ska}')
    G, n, l16 = k.v(), k.v(), k.v()
    k.i(f'v_lshrrev_b32 {G}, 4, {lane}')
    k.i(f'v_and_b32 {n}, 15, {lane}')
    k.i(f'v_lshlrev_b32 {l16}, 4, {lane}')
    tmp = k.v(8, align=1)
    rho, r1, r2, r3, ad, cc = tmp[0], tmp[1], tmp[2], tmp[3], tmp[4], tmp[5]
    SA = k.v(4, align=1)
    k.i(f'v_and_b32 {cc}, 7, {lane}')
    k.i(f'v_lshlrev_b32 {cc}, 4, {cc}')
    msk = k.s(2)
    k.i(f's_cmp_eq_u32 {sty}, 2')
    k.i(f's_cselect_b64 {msk}, -1, 0')
    k.i(f's_lshl_b32 {st1}, {srowB}, 3')
    for i in range(4):
        k.i(f'v_lshrrev_b32 {rho}, 3, {lane}')
        k.i(f'v_add_u32 {rho}, {8 * i}, {rho}')
        if i < 2:
            k.i(f'v_add_u32 {r1}, {srowA}, {rho}')
        else:
            k.i(f'v_add_u32 {r1}, {srowB}, {rho}')
            k.i(f'v_subrev_u32 {r1}, 16, {r1}')
        k.i(f'v_and_b32 {r2}, 3, {rho}')
        k.i(f'v_add_u32 {r2}, {st1}, {r2}')
        if i >= 2:
            k.i(f'v_add_u32 {r2}, 4, {r2}')
        k.i(f'v_and_b32 {r2}, 63, {r2}')
        k.i(f'v_mul_u32_u24 {r3}, 52, {r2}')
        k.i(f'v_lshrrev_b32 {r3}, 8, {r3}')
        k.i(f'v_mad_u32_u24 {r2}, {r3}, 15, {r2}')
        k.i(f'v_bfe_u32 {r3}, {rho}, 2, 2')
        k.i(f'v_mad_u32_u24 {r2}, {r3}, 5, {r2}')
        k.i(f'v_add_u32 {r2}, {srowA}, {r2}')
        k.i(f'v_cndmask_b32 {r1}, {r1}, {r2}, {msk}')
        k.i(f'v_mul_lo_u32 {ad}, {r1}, {sstr}')
        k.i(f'v_add_u32 {SA[i]}, {ad}, {cc}')
    sws = k.srd(ws, WS_END)
    ssd = k.s(4)
    k.i(f's_mov_b32 {ssd[0]}, {psd[0]}')
    k.i(f's_and_b32 {ssd[1]}, {psd[1]}, 0xffff')
    k.i(f's_mov_b32 {ssd[2]}, {D * F * 2}')
    k.i(f's_cmp_eq_u32 {sty}, 2')
    k.i(f's_cselect_b32 {ssd[2]}, {D * D * 2}, {ssd[2]}')
    k.i(f's_mov_b32 {ssd[3]}, 0x00020000')
    k.i(f's_lshl_b32 {so}, {wave}, 12')
    for i in range(4):
        k.i(f's_add_u32 m0, {so}, {1024 * i}')
        k.i(f'buffer_load_dwordx4 {SA[i]}, {ssd}, {scol} offen lds', tag='side')
    Wf = k.v(16)
    k.i(f'v_lshrrev_b32 {tmp[0]}, 2, {lane}')
    k.i(f'v_lshlrev_b32 {tmp[0]}, 7, {tmp[0]}')
    k.i(f'v_and_b32 {tmp[1]}, 3, {lane}')
    k.i(f'v_lshl_add_u32 {tmp[0]}, {tmp[1]}, 3, {tmp[0]}')
    k.i(f'v_add_u32 {tmp[0]}, {so}, {tmp[0]}')
    k.wait_tag('side')
    k.ts()
    for c4 in range(4):
        for hf in range(2):
            k.i(f'ds_read_b64_tr_b16 {Wf[c4 * 4 + 2 * hf:c4 * 4 + 2 * hf + 2]}, {tmp[0]} offset:{hf * 2048 + c4 * 32}')
    k.wait(lg=0)
    STF = os.environ.get('P0_ST', '')
    for c4 in range(4):
        k.i(f'buffer_store_dwordx4 {Wf[c4 * 4:c4 * 4 + 4]}, {l16}, {sws}, {sdst} offen offset:{1024 * c4} {STF}')
    k.ts()
    k.ts()
    k.ts_end()
    k.label('p0_end')
    k.i('s_endpgm')
    return k, NWG, 256, 40960
```

```python
import os, sys
from g2_common import *
if os.environ.get('TS'):
    Kernel.TS = True
import g5_p0, g5_main
gens = [g5_p0.gen_p0, g5_main.gen_main]
HEADER = '''; adaLN + hedgehog linear attention + GEGLU FFN, gfx950. Generated by my own generator scripts.
; Kernarg: 0 A_x, 8 A_wqkv, 16 A_w_phi, 24 A_wo, 32 B_x, 40 B_w_gate, 48 B_w_up, 56 B_w_down, 64 c, 72 w_mod, 80 out, 88 debug, 96 ws'''.split('\n')
n = int(sys.argv[2]) if len(sys.argv) > 2 else len(gens)
ks, launches = [], []
for g in gens[:n]:
    k, grid, block, lds = g()
    ks.append(k)
    launches.append((k.name, grid, block, lds))
    print(k.name, 'vgpr', k.hi_v, 'agpr', k.hi_a, 'sgpr', k.hi_s, 'instr', k.ninstr, 'lds', lds, file=sys.stderr)
open(sys.argv[1], 'w').write(build_file(HEADER, launches, ks))
```

```python
import re

TRANS = ('v_exp_f32', 'v_log_f32', 'v_rcp_f32', 'v_rsq_f32', 'v_sqrt_f32', 'v_sin_f32', 'v_cos_f32')

_reg_re = re.compile(r'^(-|\|)?(abs\()?([vsa])(\d+|\[(\d+):(\d+)\])\)?\|?$')


def parse_reg(tok):
    tok = tok.strip()
    if tok in ('vcc',):
        return [('s', 106), ('s', 107)]
    if tok == 'vcc_lo':
        return [('s', 106)]
    if tok == 'vcc_hi':
        return [('s', 107)]
    if tok == 'exec':
        return [('s', 126), ('s', 127)]
    if tok == 'exec_lo':
        return [('s', 126)]
    if tok == 'exec_hi':
        return [('s', 127)]
    if tok == 'm0':
        return [('s', 124)]
    m = _reg_re.match(tok)
    if not m:
        return []
    kind = m.group(3)
    if m.group(5) is not None:
        return [(kind, i) for i in range(int(m.group(5)), int(m.group(6)) + 1)]
    return [(kind, int(m.group(4)))]


class R:
    def __init__(self, kind, base, n):
        self.kind, self.base, self.n = kind, base, n

    def __getitem__(self, i):
        if isinstance(i, slice):
            a = i.start or 0
            b = i.stop if i.stop is not None else self.n
            assert 0 <= a < b <= self.n, (a, b, self.n)
            return R(self.kind, self.base + a, b - a)
        assert 0 <= i < self.n, (i, self.n)
        return R(self.kind, self.base + i, 1)

    def __str__(self):
        if self.n == 1:
            return f'{self.kind}{self.base}'
        return f'{self.kind}[{self.base}:{self.base + self.n - 1}]'

    __repr__ = __str__

    def __format__(self, spec):
        return str(self)


def mfma_passes(op):
    if '32x32x16' in op or '32x32x8' in op:
        return 8
    if '16x16x32' in op or '16x16x16' in op:
        return 4
    if '_4b_' in op:
        return 8
    if '_2b_' in op:
        return 16
    if '_16b_' in op:
        return 2
    raise ValueError(op)


class Kernel:
    def __init__(self, name, max_v=256, max_a=256):
        self.name = name
        self.lines = []
        self.nv = 1
        self.na = 0
        self.ns = 4
        self.max_v, self.max_a = max_v, max_a
        self.hi_v = 1
        self.hi_a = 0
        self.hi_s = 4
        self.reset_state()
        self.nlabel = 0
        self.ninstr = 0

    def v(self, n=1, align=None):
        if align is None:
            align = 1 if n == 1 else (2 if n < 4 else 4)
        b = (self.nv + align - 1) // align * align
        self.nv = b + n
        assert self.nv <= (251 if self.TS else self.max_v), f'{self.name}: out of VGPRs ({self.nv})'
        self.hi_v = max(self.hi_v, self.nv)
        return R('v', b, n)

    def a(self, n=1, align=4):
        b = (self.na + align - 1) // align * align
        self.na = b + n
        assert self.na <= self.max_a, f'{self.name}: out of AGPRs'
        self.hi_a = max(self.hi_a, self.na)
        return R('a', b, n)

    def s(self, n=1, align=None):
        if align is None:
            align = 1 if n == 1 else (2 if n < 4 else 4)
        b = (self.ns + align - 1) // align * align
        self.ns = b + n
        assert self.ns <= (60 if self.TS else 100), f'{self.name}: out of SGPRs'
        self.hi_s = max(self.hi_s, self.ns)
        return R('s', b, n)

    def mark(self):
        return (self.nv, self.na, self.ns)

    def release(self, m):
        self.nv, self.na, self.ns = m

    def reset_state(self):
        self.pos = 0
        self.lastw = {}
        self.mfma_c_read = {}
        self.store_data = {}
        self.vm = []
        self.lg = []
        self.m0w = -100

    def raw(self, s):
        self.lines.append(s)

    def comment(self, s):
        self.lines.append('; ' + s)

    def label(self, name):
        self.lines.append(f'{name}:')
        self._join()

    def _join(self):
        self.lastw = {}
        self.mfma_c_read = {}
        self.store_data = {}

    def newlabel(self, p='L'):
        self.nlabel += 1
        return f'{self.name}_{p}{self.nlabel}'

    def nop(self, n):
        while n > 0:
            k = min(n, 16)
            self.lines.append(f'  s_nop {k - 1}')
            self.pos += k
            self.ninstr += 1
            n -= k

    def _emit_wait(self, vm=None, lg=None):
        parts = []
        if vm is not None:
            parts.append(f'vmcnt({vm})')
            self.vm = self.vm[len(self.vm) - vm:] if vm > 0 else []
        if lg is not None:
            parts.append(f'lgkmcnt({lg})')
            self.lg = self.lg[len(self.lg) - lg:] if lg > 0 else []
        if parts:
            self.lines.append('  s_waitcnt ' + ' '.join(parts))
            self.pos += 1
            self.ninstr += 1

    def wait(self, vm=None, lg=None):
        if vm is not None:
            vm = min(vm, 63)
            if vm >= len(self.vm) and not self.force_wait:
                vm = None
        if lg is not None:
            lg = min(lg, 15)
            if lg >= len(self.lg) and not self.force_wait:
                lg = None
        if vm is not None and vm > len(self.vm):
            self.lines.append(f'  s_waitcnt vmcnt({vm})')
            self.pos += 1
            vm = None
        if lg is not None and lg > len(self.lg):
            self.lines.append(f'  s_waitcnt lgkmcnt({lg})')
            self.pos += 1
            lg = None
        self._emit_wait(vm, lg)

    force_wait = False

    def wait_all(self):
        self.lines.append('  s_waitcnt vmcnt(0) lgkmcnt(0)')
        self.pos += 1
        self.vm = []
        self.lg = []

    def wait_tag(self, tag):
        idx = -1
        for i, e in enumerate(self.vm):
            if e['tag'] == tag:
                idx = i
        if idx >= 0:
            n = len(self.vm) - 1 - idx
            if n <= 63:
                self._emit_wait(vm=n)
            else:
                self.vm = self.vm[idx + 1:]

    def _need_waits(self, regs):
        regs = set(regs)
        vm = lg = None
        idx = -1
        for i, e in enumerate(self.vm):
            if e['regs'] & regs:
                idx = i
        if idx >= 0:
            n = len(self.vm) - 1 - idx
            if n <= 62:
                vm = n
            else:
                self.vm = self.vm[idx + 1:]
        idx = -1
        for i, e in enumerate(self.lg):
            if e['regs'] & regs:
                idx = i
        if idx >= 0:
            if any(e['smem'] for e in self.lg):
                lg = 0
            else:
                n = len(self.lg) - 1 - idx
                if n <= 14:
                    lg = n
                else:
                    lg = 15 if n > 15 else n
                    lg = min(lg, 15)
                    lg = 14 if n > 14 else n
        self._emit_wait(vm, lg)

    def i(self, text, tag=None):
        text = text.strip()
        sp = text.split(None, 1)
        op = sp[0]
        rest = sp[1] if len(sp) > 1 else ''
        ops = [o.strip() for o in rest.split(',')] if rest else []
        mods = ''
        if ops:
            last = ops[-1].split()
            if len(last) > 1:
                ops[-1] = last[0]
                mods = ' '.join(last[1:])
        base = op.replace('_e32', '').replace('_e64', '').replace('_dpp', '').replace('_sdwa', '')
        w, r = [], []
        kind = None
        passes = 0
        is_dpp = ('row_' in mods) or ('quad_perm' in mods) or op.endswith('_dpp') or ('wave_' in mods)
        lds_dma = False
        if base.startswith('v_mfma'):
            kind = 'mfma'
            passes = mfma_passes(base)
            w = parse_reg(ops[0])
            ra, rb, rc = parse_reg(ops[1]), parse_reg(ops[2]), parse_reg(ops[3])
            r = ra + rb + rc
        elif base.startswith('v_cmp'):
            kind = 'valu'
            w = parse_reg(ops[0])
            for o in ops[1:]:
                r += parse_reg(o)
            if base.startswith('v_cmpx'):
                w += parse_reg('exec')
        elif base.startswith('v_'):
            kind = 'trans' if base in TRANS else 'valu'
            w = parse_reg(ops[0])
            k = 1
            if '_co_' in base or base in ('v_mad_u64_u32', 'v_div_scale_f32'):
                w += parse_reg(ops[1])
                k = 2
            for o in ops[k:]:
                r += parse_reg(o)
            if base in ('v_fmac_f32', 'v_pk_fmac_f16', 'v_dot2c_f32_bf16', 'v_writelane_b32') or 'fmac' in base:
                r += parse_reg(ops[0])
            if base.startswith('v_permlane') and 'swap' in base:
                w += parse_reg(ops[1])
                r += parse_reg(ops[0])
            if is_dpp or 'op_sel' in mods and base.startswith('v_cvt'):
                r += parse_reg(ops[0])
        elif base.startswith('s_load') or base.startswith('s_buffer_load') or base in ('s_memtime', 's_memrealtime'):
            kind = 'smem'
            w = parse_reg(ops[0])
            for o in ops[1:]:
                r += parse_reg(o)
        elif base.startswith('s_'):
            kind = 'salu'
            if base.startswith('s_cmp') or base.startswith('s_cbranch') or base in ('s_branch', 's_barrier', 's_endpgm', 's_setprio', 's_sleep', 's_nop', 's_waitcnt', 's_bitcmp1_b32', 's_bitcmp0_b32'):
                for o in ops:
                    r += parse_reg(o)
                if 'vcc' in base:
                    r += parse_reg('vcc')
                if 'exec' in base:
                    r += parse_reg('exec')
            else:
                w = parse_reg(ops[0])
                for o in ops[1:]:
                    r += parse_reg(o)
                if 'saveexec' in base:
                    w += parse_reg('exec')
                    r += parse_reg('exec')
                if base in ('s_addk_i32', 's_mulk_i32', 's_cmov_b32', 's_cmov_b64'):
                    r += parse_reg(ops[0])
        elif base.startswith('ds_'):
            kind = 'ds'
            if base.startswith('ds_read') or base.startswith('ds_bpermute') or base.startswith('ds_permute') or base.startswith('ds_swizzle') or '_rtn' in base:
                w = parse_reg(ops[0])
                for o in ops[1:]:
                    r += parse_reg(o)
            else:
                for o in ops:
                    r += parse_reg(o)
        elif base.startswith('buffer_') or base.startswith('global_'):
            kind = 'vmem'
            allmods = mods.split()
            if 'lds' in allmods or '_lds_' in base:
                lds_dma = True
                for o in ops:
                    r += parse_reg(o)
                r += parse_reg('m0')
            elif '_load' in base:
                w = parse_reg(ops[0])
                for o in ops[1:]:
                    r += parse_reg(o)
            elif 'atomic' in base and 'sc0' in allmods:
                raise NotImplementedError('returning atomics: handle manually')
            else:
                for o in ops:
                    r += parse_reg(o)
        else:
            raise ValueError('unknown op ' + text)

        self._need_waits(r + w)

        need = 0

        def req(p, n):
            nonlocal need
            d = self.pos - p
            have = d - 1
            if have < n:
                need = max(need, n - have)

        isv = kind in ('valu', 'trans')
        for reg in r:
            lw = self.lastw.get(reg)
            if lw is None:
                continue
            p, k2, ps = lw
            if k2 in ('valu', 'trans'):
                if reg[0] in 'va':
                    if kind == 'mfma':
                        req(p, 2)
                    if isv and is_dpp:
                        req(p, 2)
                    if base.startswith('v_permlane'):
                        req(p, 2)
                    if base in ('v_readfirstlane_b32', 'v_readlane_b32'):
                        req(p, 1)
                    if k2 == 'trans' and kind in ('valu', 'mfma', 'vmem', 'ds'):
                        req(p, 1)
                else:
                    if isv:
                        req(p, 4 if base in ('v_readlane_b32', 'v_writelane_b32') else 2)
                    if kind == 'vmem':
                        req(p, 5)
                    if kind in ('salu', 'smem'):
                        req(p, 1)
                    if reg in (('s', 126), ('s', 127)):
                        req(p, 5)
            elif k2 == 'mfma':
                if kind == 'mfma':
                    if reg in rc and not (reg in ra or reg in rb):
                        if set(rc) == self.lastw_set.get(p, None) and ps == passes:
                            req(p, 2 if ps == 2 else 0)
                        else:
                            req(p, ps + 2)
                    else:
                        req(p, ps + 4 if ps > 2 else 5)
                else:
                    req(p, ps + 4 if ps > 2 else 5)
            elif k2 == 'salu':
                if reg == ('s', 124) and lds_dma:
                    req(p, 1)
        for reg in w:
            lw = self.lastw.get(reg)
            if lw is not None:
                p, k2, ps = lw
                if k2 == 'mfma' and kind != 'mfma':
                    req(p, ps + 4 if ps > 2 else 5)
                if k2 == 'mfma' and kind == 'mfma' and reg not in rc:
                    req(p, ps + 2)
            cr = self.mfma_c_read.get(reg)
            if cr is not None and kind != 'mfma':
                req(cr[0], cr[1] - 1)
            sd = self.store_data.get(reg)
            if sd is not None:
                req(sd, 2)
        if need > 0:
            self.nop(need)

        self.lines.append('  ' + text)
        self.ninstr += 1
        p = self.pos
        self.pos += 1
        if kind in ('valu', 'trans', 'mfma', 'salu'):
            for reg in w:
                self.lastw[reg] = (p, kind, passes)
            if kind == 'mfma':
                if not hasattr(self, 'lastw_set'):
                    self.lastw_set = {}
                self.lastw_set[p] = set(w)
                for reg in rc:
                    self.mfma_c_read[reg] = (p, passes)
        else:
            for reg in w:
                self.lastw.pop(reg, None)
        if kind == 'vmem':
            self.vm.append(dict(regs=set(w), tag=tag))
            if ('store' in base or 'atomic' in base) and ('x4' in base or 'x3' in base):
                dreg = parse_reg(ops[0]) if base.startswith('buffer_') else parse_reg(ops[1])
                for reg in dreg:
                    self.store_data[reg] = p
        elif kind == 'ds':
            self.lg.append(dict(regs=set(w), smem=False))
        elif kind == 'smem':
            self.lg.append(dict(regs=set(w), smem=True))
        if base.startswith('s_cbranch') or base == 's_branch':
            pass
        for reg in w + r:
            if reg[0] == 'v':
                self.hi_v = max(self.hi_v, reg[1] + 1)
            elif reg[0] == 'a':
                self.hi_a = max(self.hi_a, reg[1] + 1)
            elif reg[1] < 102:
                self.hi_s = max(self.hi_s, reg[1] + 1)

    lastw_set = {}

    TS = False
    WS_TS = 0x1C00000

    def ts_init(self, kidx):
        self.kidx = kidx
        self.nts = 0
        if not self.TS:
            return
        self.tsr = R('s', 60, 40)
        self.i(f's_memrealtime {self.tsr[0:2]}')
        self.i(f's_load_dwordx2 {self.tsr[4:6]}, s[0:1], 96')
        self.i(f's_mov_b32 {self.tsr[3]}, s2')
        self._emit_wait(lg=0)
        self.ts()

    def ts(self):
        if not self.TS:
            return
        if self.nts >= 27 and not getattr(self, '_final', False):
            return
        d = self.tsr[10:12]
        import os
        self.i(f"{'s_memrealtime' if os.environ.get('TSR') else 's_memtime'} {d}")
        self._emit_wait(lg=0)
        self.i(f's_mov_b32 {self.tsr[12 + self.nts]}, {d[0]}')
        self.nts += 1

    def ts_end(self):
        if not self.TS:
            return
        t = self.tsr
        self.i('s_mov_b64 exec, -1')
        self.wait_all()
        self._final = True
        self.ts()
        self._final = False
        self.i(f's_memrealtime {t[10:12]}')
        self._emit_wait(lg=0)
        self.i(f's_mov_b32 {t[1]}, {t[10]}')
        self.i(f's_and_b32 {t[5]}, {t[5]}, 0xffff')
        self.i(f's_mov_b32 {t[6]}, 0x10000000')
        self.i(f's_mov_b32 {t[7]}, 0x00020000')
        self.i(f's_lshl_b32 {t[3]}, {t[3]}, 10')
        self.i(f's_add_u32 {t[3]}, {t[3]}, {self.WS_TS + self.kidx * 1024 * 1024}')
        self.i('v_lshrrev_b32 v255, 6, v254')
        self.i('v_lshlrev_b32 v255, 7, v255')
        self.i('s_mov_b32 exec_lo, 1')
        self.i('s_mov_b32 exec_hi, 0')
        import os
        if os.environ.get('DBG'):
            if self.kidx == 1:
                lab = self.newlabel('dbg')
                self.i(f'v_readfirstlane_b32 {t[8]}, v254')
                self.i(f's_lshr_b32 {t[9]}, {t[3]}, 10')
                self.i(f's_and_b32 {t[9]}, {t[9]}, 1023')
                self.i(f's_lshr_b32 {t[8]}, {t[8]}, 6')
                self.i(f's_lshl_b32 {t[8]}, {t[8]}, 10')
                self.i(f's_add_u32 {t[8]}, {t[8]}, {t[9]}')
                self.i(f's_cmp_lg_u32 {t[8]}, 40')
                self.i(f's_cbranch_scc1 {lab}')
                self.i(f'v_mov_b32 v252, {self.WS_TS}')
                self.i(f'buffer_load_dword v251, v252, {t[4:8]}, 0 offen')
                self.i(f's_load_dwordx2 {t[8:10]}, s[0:1], 88')
                self.wait_all()
                self.i(f's_mov_b32 {t[4]}, {t[8]}')
                self.i(f's_and_b32 {t[5]}, {t[9]}, 0xffff')
                self.i(f's_mov_b32 {t[6]}, 256')
                self.i('v_mov_b32 v255, 0')
                sel = [int(x) for x in os.environ['DBG'].split(',')]
                for j, si in enumerate(sel[:16]):
                    self.i(f'v_sub_u32 v253, {t[12 + si]}, v251')
                    self.i(f'buffer_store_dword v253, v255, {t[4:8]}, 0 offen offset:{4 * j}')
                self.raw(f'{lab}:')
                self._join()
                self.nts -= 1
                return
        vals = [t[0], t[1]] + [t[12 + i] for i in range(self.nts)]
        for j, v in enumerate(vals):
            self.i(f'v_mov_b32 v253, {v}')
            self.i(f'buffer_store_dword v253, v255, {t[4:8]}, {t[3]} offen offset:{4 * j}')
        self.nts -= 1

    def barrier(self):
        if self.lg:
            self._emit_wait(lg=0)
        self.i('s_barrier')

    def srd(self, base, nbytes):
        d = self.s(4)
        self.i(f's_mov_b32 {d[0]}, {base[0]}')
        self.i(f's_and_b32 {d[1]}, {base[1]}, 0xffff')
        self.i(f's_mov_b32 {d[2]}, {nbytes}')
        self.i(f's_mov_b32 {d[3]}, 0x00020000')
        return d

    def srd_off(self, base, off, nbytes):
        d = self.s(4)
        self.i(f's_add_u32 {d[0]}, {base[0]}, {off}')
        self.i(f's_addc_u32 {d[1]}, {base[1]}, 0')
        self.i(f's_and_b32 {d[1]}, {d[1]}, 0xffff')
        self.i(f's_mov_b32 {d[2]}, {nbytes}')
        self.i(f's_mov_b32 {d[3]}, 0x00020000')
        return d

    def text(self):
        out = [f'.globl {self.name}', '.p2align 8', f'.type {self.name},@function', f'{self.name}:']
        out += self.lines
        return '\n'.join(out)

    def desc(self):
        nv = (self.hi_v + 3) // 4 * 4
        tot = nv + self.hi_a if self.hi_a else self.hi_v
        return '\n'.join([
            '.p2align 6',
            f'.amdhsa_kernel {self.name}',
            f'  .amdhsa_next_free_vgpr {tot}',
            f'  .amdhsa_next_free_sgpr {max(self.hi_s, 8)}',
            f'  .amdhsa_accum_offset {nv}',
            '  .amdhsa_group_segment_fixed_size 0',
            '  .amdhsa_kernarg_size 104',
            '  .amdhsa_user_sgpr_count 2',
            '  .amdhsa_user_sgpr_kernarg_segment_ptr 1',
            '  .amdhsa_system_sgpr_workgroup_id_x 1',
            '.end_amdhsa_kernel'])


def build_file(header_lines, launches, kernels):
    out = list(header_lines)
    for (name, grid, block, lds) in launches:
        out.append(f'; @launch kernel={name} grid=({grid},1,1) block=({block},1,1) lds={lds}')
    out.append('.amdgcn_target "amdgcn-amd-amdhsa--gfx950"')
    out.append('.text')
    for k in kernels:
        out.append(k.text())
    out.append('code_end:')
    out.append('.section .rodata,"a"')
    for k in kernels:
        out.append(k.desc())
    return '\n'.join(out) + '\n'
```

```python
import os
from g2_common import *

SPIN_MAX = 400000
C2, G2, C3, G3, C1G, C1T, G1, CW = 0, 4096, 8192, 12288, 16384, 20480, 24576, 28672


def R_(base, n):
    return R('v', base, n)


def gen_main():
    k = Kernel('p1_kernel')
    TSX = os.environ.get('TSX')

    def tsx():
        if TSX == '1':
            k.ts()

    def tsz():
        if TSX == '3':
            k.ts()

    def tsy(c=True):
        if TSX == '2' and c:
            k.ts()

    c = common_prologue(k, 256, 'p1_end', 1)
    lane, G, n, l16, wave = c.lane, c.G, c.n, c.l16, c.wave
    KPS, LA, NST, NSL = 1, int(os.environ.get('P1_LA', 4)), 20, 8
    LQK, LV, LPK, LSIDE, LCS = 0, 129024, 40960, 141824, 0
    WOFB = 57344
    LCNT = 163840 - 64
    sx, sy, so, st1, st2 = k.s(), k.s(), k.s(), k.s(), k.s()
    mt2, nt2, mt3, nt3 = k.s(), k.s(), k.s(), k.s()
    px, po = k.s(2), k.s(2)
    rot2 = k.s()
    t1, t2, t3 = k.v(), k.v(), k.v()
    sws = k.s(4)
    mk_common = k.mark()

    def code_pf(lab_from, lab_to, tag):
        pc = k.s(2)
        k.lines.append(f'  s_getpc_b64 {pc}')
        k.lines.append(f'm_pc{tag}:')
        k.lines.append(f'  s_add_u32 {pc[0]}, {pc[0]}, {lab_from}-m_pc{tag}')
        k.lines.append(f'  s_addc_u32 {pc[1]}, {pc[1]}, ({lab_from}-m_pc{tag})>>32')
        k.i(f'v_lshlrev_b32 {t1}, 12, {lane}')
        k.i(f's_lshl_b32 {so}, {sy}, 7')
        k.i(f'v_add_u32 {t1}, {so}, {t1}')
        k.lines.append(f'  v_cmp_gt_u32 vcc, {lab_to}-{lab_from}-4, {t1}')
        k.lines.append(f'  s_and_saveexec_b64 {k.s(2)}, vcc')
        k.lines.append(f'  s_cbranch_execz m_pcx{tag}')
        k.lines.append(f'  global_load_dword {t2}, {t1}, {pc}')
        k.lines.append(f'm_pcx{tag}:')
        k.i('s_mov_b64 exec, -1')

    mt, hp = k.s(), k.s()
    k.i(f's_and_b32 {sx}, s2, 7')
    k.i(f's_lshr_b32 {sy}, s2, 3')
    k.i(f's_lshr_b32 {mt}, {sx}, 1')
    k.i(f's_lshl_b32 {mt}, {mt}, 2')
    k.i(f's_and_b32 {hp}, {sy}, 3')
    k.i(f's_add_u32 {mt}, {mt}, {hp}')
    k.i(f's_and_b32 {hp}, {sx}, 1')
    k.i(f's_lshl_b32 {hp}, {hp}, 3')
    k.i(f's_lshr_b32 {so}, {sy}, 2')
    k.i(f's_add_u32 {hp}, {hp}, {so}')
    hw, sg_, sm0 = k.s(), k.s(), k.s()
    k.i(f's_and_b32 {hw}, {wave}, 3')
    k.i(f's_mul_i32 {sg_}, {hp}, 163840')
    k.i(f's_add_u32 {sg_}, {sg_}, {WS_WP}')
    k.i(f's_mul_i32 {so}, {mt}, 163840')
    k.i(f's_add_u32 {so}, {so}, {WS_XN - 8192}')
    k.i(f's_cmp_ge_u32 {hw}, 2')
    k.i(f's_cselect_b32 {sg_}, {so}, {sg_}')
    k.i(f's_lshl_b32 {sm0}, {hw}, 12')
    k.i(f's_add_u32 {sg_}, {sg_}, {sm0}')
    k.i(f's_mov_b32 {sws[0]}, {c.ws[0]}')
    k.i(f's_and_b32 {sws[1]}, {c.ws[1]}, 0xffff')
    k.i(f's_mov_b32 {sws[2]}, {WS_END}')
    k.i(f's_mov_b32 {sws[3]}, 0x00020000')

    cur1 = k.s()
    if os.environ.get('ROT1', '0') == '1':
        k.i(f's_and_b32 {cur1}, {hp}, 7')
        k.i(f's_mul_i32 {cur1}, {cur1}, 5')
        k.i(f's_lshr_b32 {cur1}, {cur1}, 1')
        k.i(f's_and_b32 {so}, {mt}, 3')
        k.i(f's_mul_i32 {so}, {so}, 5')
        k.i(f's_add_u32 {cur1}, {cur1}, {so}')
        k.i(f's_cmp_ge_u32 {cur1}, 20')
        k.i(f's_cselect_b32 {so}, 20, 0')
        k.i(f's_sub_u32 {cur1}, {cur1}, {so}')
        k.i(f's_lshl_b32 {cur1}, {cur1}, 13')
    else:
        k.i(f's_mov_b32 {cur1}, 0')

    def dma_stage(s):
        k.i(f's_add_u32 {st1}, {sg_}, {cur1}')
        k.i(f's_add_u32 {cur1}, {cur1}, 8192')
        k.i(f's_cmp_eq_u32 {cur1}, 163840')
        k.i(f's_cselect_b32 {cur1}, 0, {cur1}')
        k.i(f's_add_u32 m0, {sm0}, {(s % 8) * 16384}')
        for i in range(4):
            k.i(f'buffer_load_dwordx4 {l16}, {sws}, {st1} offen offset:{1024 * i} lds', tag=f'w{s}')

    k.i(f's_cmp_lt_u32 {wave}, 4')
    k.i('s_cbranch_scc1 m_setup')
    NPRE = 3
    for s in range(NPRE):
        dma_stage(s)
    vm_L = list(k.vm)
    k.raw('m_setup:')
    k._join()
    k.vm = []
    k.i(f's_load_dwordx2 {px}, s[0:1], {KA_X}')
    k.i(f's_load_dwordx2 {po}, s[0:1], {KA_OUT}')
    k.i(f's_lshl_b32 {mt2}, {sx}, 2')
    k.i(f's_and_b32 {nt2}, {sy}, 3')
    k.i(f's_add_u32 {mt2}, {mt2}, {nt2}')
    k.i(f's_lshr_b32 {nt2}, {sy}, 2')
    k.i(f's_and_b32 {mt3}, {sx}, 1')
    k.i(f's_lshl_b32 {mt3}, {mt3}, 3')
    k.i(f's_and_b32 {nt3}, {sy}, 7')
    k.i(f's_add_u32 {mt3}, {mt3}, {nt3}')
    k.i(f's_lshr_b32 {nt3}, {sx}, 1')
    k.i(f's_lshl_b32 {nt3}, {nt3}, 2')
    k.i(f's_lshr_b32 {so}, {sy}, 3')
    k.i(f's_add_u32 {nt3}, {nt3}, {so}')
    k.i(f's_mov_b32 {rot2}, 0')
    k.i(f'v_lshlrev_b32 {t1}, 2, {n}')
    k.i(f'v_add_u32 {t1}, {LCNT}, {t1}')
    k.i(f'v_mov_b32 {t2}, 0')
    k.i(f'ds_write_b32 {t1}, {t2}')
    sty, srowA, srowB, sdst, scol, ks, p_ = k.s(), k.s(), k.s(), k.s(), k.s(), k.s(), k.s()
    ssd = k.s(4)
    mk_tmp = k.mark()
    ska, sstr, cblk, u2, q_, t_, t2_ = k.s(), k.s(), k.s(), k.s(), k.s(), k.s(), k.s()
    k.i(f's_mul_i32 {ks}, s2, 1214')
    k.i(f's_lshr_b32 {ks}, {ks}, 16')
    k.i(f's_mul_i32 {t_}, {ks}, 54')
    k.i(f's_sub_u32 {cblk}, s2, {t_}')
    k.i(f's_cmp_ge_u32 s2, 216')
    k.i(f's_cselect_b32 {t_}, 100, {wave}')
    k.i(f's_cmp_lt_u32 {t_}, 5')
    k.i(f's_cselect_b32 {sty}, 0, 3')
    k.i(f's_min_u32 {ks}, {ks}, 3')
    k.i(f's_lshl_b32 {t2_}, {wave}, 2')
    k.i(f's_lshr_b32 {t2_}, 0x47520, {t2_}')
    k.i(f's_and_b32 {t2_}, {t2_}, 15')
    k.i(f's_mul_i32 {srowA}, {ks}, 10')
    k.i(f's_add_u32 {srowA}, {srowA}, {t2_}')
    k.i(f's_cmp_eq_u32 {wave}, 4')
    k.i(f's_cselect_b32 {t2_}, 5, 1')
    k.i(f's_add_u32 {srowB}, {srowA}, {t2_}')
    k.i(f's_cmp_ge_u32 {cblk}, 27')
    k.i(f's_cselect_b32 {ska}, {KA_WU}, {KA_WG}')
    k.i(f's_cselect_b32 {t_}, 27, 0')
    k.i(f's_cselect_b32 {t2_}, 112, 0')
    k.i(f's_sub_u32 {t_}, {cblk}, {t_}')
    k.i(f's_lshl_b32 {scol}, {t_}, 7')
    k.i(f's_lshl_b32 {t_}, {t_}, 2')
    k.i(f's_add_u32 {p_}, {t_}, {t2_}')
    k.i(f's_mul_i32 {sdst}, {ks}, 5')
    k.i(f's_add_u32 {sdst}, {sdst}, {wave}')
    k.i(f's_mul_i32 {sdst}, {sdst}, 224')
    k.i(f's_add_u32 {sdst}, {sdst}, {p_}')
    k.i(f's_lshl_b32 {sdst}, {sdst}, 10')
    k.i(f's_add_u32 {sdst}, {sdst}, {WS_WGU}')
    k.i(f's_mov_b32 {sstr}, {F * 2}')
    k.i(f's_load_dwordx2 {ssd[0:2]}, s[0:1], {ska}')
    k.i(f's_lshl_b32 {srowA}, {srowA}, 4')
    k.i(f's_lshl_b32 {srowB}, {srowB}, 4')
    SA = k.v(4, align=1)
    k.i(f'v_and_b32 {t3}, 7, {lane}')
    k.i(f'v_lshlrev_b32 {t3}, 4, {t3}')
    k.i(f'v_lshrrev_b32 {t1}, 3, {lane}')
    for i in range(4):
        k.i(f'v_add_u32 {t2}, {srowA if i < 2 else srowB}, {t1}')
        if i & 1:
            k.i(f'v_add_u32 {t2}, 8, {t2}')
        k.i(f'v_mul_lo_u32 {t2}, {t2}, {sstr}')
        k.i(f'v_add_u32 {SA[i]}, {t2}, {t3}')
    k.ns = mk_tmp[2]
    E = Ctx()
    PR = k.v(16, align=1)
    E.sq, E.skv = k.s(), k.s()
    hh, ft = k.s(), k.s()

    def epi_addr(tmp):
        hq, qa, ql, ka = tmp[0], PR[0], PR[1], PR[2]
        sq = E.sq
        E.qa, E.ql, E.ka, E.qk_a, E.sgl, E.ka2 = qa, ql, ka, PR[3], PR[14], PR[15]
        hd, sg = tmp[2], tmp[3]
        k.i(f'v_and_b32 {hd}, 1, {G}')
        k.i(f'v_lshrrev_b32 {sg}, 1, {G}')
        k.i(f'v_lshlrev_b32 {PR[14]}, 31, {sg}')
        k.i(f'v_xor_b32 {PR[14]}, {fhex(LOG2E)}, {PR[14]}')
        k.i(f's_lshl_b32 {so}, {hp}, 1')
        k.i(f'v_add_u32 {hq}, {so}, {hd}')
        k.i(f'v_and_b32 {tmp[4]}, 15, {hq}')
        k.i(f'v_lshrrev_b32 {tmp[5]}, 4, {hq}')
        k.i(f'v_lshlrev_b32 {tmp[5]}, 10, {tmp[5]}')
        k.i(f'v_lshl_add_u32 {tmp[5]}, {n}, 4, {tmp[5]}')
        k.i(f'v_lshl_add_u32 {qa}, {tmp[4]}, 13, {tmp[5]}')
        k.i(f'v_lshl_add_u32 {qa}, {sg}, 9, {qa}')
        k.i(f'v_lshrrev_b32 {ql}, 2, {tmp[4]}')
        k.i(f'v_add_u32 {ql}, 16, {ql}')
        k.i(f'v_lshl_add_u32 {ql}, {ql}, 13, {tmp[5]}')
        k.i(f'v_and_b32 {tmp[4]}, 3, {hq}')
        k.i(f'v_lshl_add_u32 {ql}, {tmp[4]}, 8, {ql}')
        k.i(f'v_lshl_add_u32 {ql}, {sg}, 3, {ql}')
        k.i(f'v_mul_u32_u24 {ka}, 160, {n}')
        k.i(f'v_mul_u32_u24 {tmp[4]}, 80, {hd}')
        k.i(f'v_add_u32 {ka}, {ka}, {tmp[4]}')
        k.i(f's_mul_i32 {so}, {wave}, 2560')
        k.i(f's_add_u32 {so}, {so}, {LPK}')
        k.i(f'v_add_u32 {ka}, {so}, {ka}')
        k.i(f'v_lshl_add_u32 {PR[15]}, {sg}, 3, {ka}')
        k.i(f'v_add_u32 {PR[15]}, 64, {PR[15]}')
        k.i(f'v_lshl_add_u32 {ka}, {sg}, 5, {ka}')
        k.i(f's_lshl_b32 {sq}, {mt}, 1')
        k.i(f's_lshr_b32 {so}, {wave}, 2')
        k.i(f's_add_u32 {sq}, {sq}, {so}')
        k.i(f's_mul_i32 {sq}, {sq}, 163840')
        k.i(f's_and_b32 {so}, {wave}, 3')
        k.i(f's_lshl_b32 {so}, {so}, 11')
        k.i(f's_add_u32 {sq}, {sq}, {so}')
        k.i(f's_add_u32 {sq}, {sq}, {WS_PHIQ}')
        k.i(f's_mul_i32 {so}, {wave}, 5120')
        k.i(f's_add_u32 {so}, {so}, {LQK}')
        k.i(f'v_lshlrev_b32 {PR[3]}, 8, {hd}')
        k.i(f'v_lshl_add_u32 {PR[3]}, {n}, 4, {PR[3]}')
        k.i(f'v_add_u32 {PR[3]}, {so}, {PR[3]}')
        k.i(f's_cmp_ge_u32 {wave}, 3')
        k.i(f's_cselect_b32 {hh}, 1, 0')
        k.i(f's_mul_i32 {ft}, {hh}, 3')
        k.i(f's_sub_u32 {ft}, {wave}, {ft}')
        tb, ta = PR[4], PR[5]
        E.tb, E.ta = tb, ta
        rr_, cc_ = tmp[4], tmp[5]
        k.i(f'v_lshrrev_b32 {rr_}, 2, {lane}')
        k.i(f'v_and_b32 {cc_}, 3, {lane}')
        k.i(f'v_mul_u32_u24 {tb}, 160, {rr_}')
        k.i(f'v_lshl_add_u32 {tb}, {cc_}, 3, {tb}')
        k.i(f's_mul_i32 {so}, {hh}, 80')
        k.i(f's_lshl_b32 {st1}, {ft}, 5')
        k.i(f's_add_u32 {so}, {so}, {st1}')
        k.i(f's_add_u32 {so}, {so}, {LPK}')
        k.i(f'v_add_u32 {tb}, {so}, {tb}')
        k.i(f'v_mul_u32_u24 {ta}, 96, {rr_}')
        k.i(f'v_lshl_add_u32 {ta}, {cc_}, 3, {ta}')
        k.i(f's_lshl_b32 {so}, {hh}, 5')
        k.i(f's_add_u32 {so}, {so}, {LV}')
        k.i(f'v_add_u32 {ta}, {so}, {ta}')
        aa = PR[6:14]
        E.aa = aa
        fo, dr = tmp[6], tmp[7]
        k.i(f's_lshl_b32 {so}, {ft}, 4')
        k.i(f'v_add_u32 {fo}, {so}, {n}')
        k.i(f'v_cmp_lt_u32 vcc, 39, {fo}')
        k.i(f'v_lshlrev_b32 {fo}, 2, {fo}')
        big = tmp[1]
        k.i(f'v_mov_b32 {big}, 0x7f000000')
        k.i(f'v_cndmask_b32 {fo}, {fo}, {big}, vcc')
        k.i(f's_lshl_b32 {so}, {hh}, 3')
        for dt in range(2):
            for r in range(4):
                a = aa[dt * 4 + r]
                k.i(f'v_lshlrev_b32 {dr}, 2, {G}')
                k.i(f'v_add_u32 {dr}, {16 * dt + r}, {dr}')
                k.i(f'v_subrev_u32 {dr}, {so}, {dr}')
                k.i(f'v_cmp_lt_u32 vcc, 20, {dr}')
                k.i(f'v_mul_u32_u24 {a}, 160, {dr}')
                k.i(f'v_add_u32 {a}, {a}, {fo}')
                k.i(f'v_cndmask_b32 {a}, {a}, {big}, vcc')
        skv = E.skv
        k.i(f's_lshl_b32 {skv}, {hp}, 1')
        k.i(f's_add_u32 {skv}, {skv}, {hh}')
        k.i(f's_mul_i32 {skv}, {skv}, {KVS}')
        k.i(f's_add_u32 {skv}, {skv}, {WS_KV}')

    swo = k.s()
    k.i(f's_mul_i32 {swo}, {nt2}, 5120')
    k.i(f's_add_u32 {swo}, {swo}, {WS_WOF}')

    def wof_jj(sbase, add):
        k.i(f's_add_u32 {st2}, {sbase}, {add}')
        k.i(f's_lshr_b32 {so}, {st2}, 1')
        k.i(f's_and_b32 {st1}, {st2}, 1')
        k.i(f's_mul_i32 {st1}, {st1}, 10')
        k.i(f's_add_u32 {so}, {so}, {st1}')
        k.i(f's_mul_i32 {so}, {so}, 40960')
        k.i(f's_add_u32 {so}, {so}, {swo}')
        k.i(f's_add_u32 {st2}, {st2}, 2')
        k.i(f's_cmp_ge_u32 {st2}, 20')
        k.i(f's_cselect_b32 {st1}, 20, 0')
        k.i(f's_sub_u32 {st2}, {st2}, {st1}')
        k.i(f's_mul_i32 {st1}, {st2}, 5120')
        k.i(f's_add_u32 {st1}, {st1}, {WOFB}')
        k.i(f's_and_b32 {st2}, {mt2}, 3')
        k.i(f's_lshl_b32 {st2}, {st2}, 10')
        for cc in range(5):
            k.i(f's_add_u32 m0, {st1}, {st2}')
            k.i(f's_add_u32 {rot2}, {so}, {st2}')
            k.i(f'buffer_load_dwordx4 {l16}, {sws}, {rot2} offen lds', tag='wof')
            if cc < 4:
                k.i(f's_add_u32 {st2}, {st2}, 1024')
                k.i(f's_cmp_eq_u32 {st2}, 5120')
                k.i(f's_cselect_b32 {st2}, 0, {st2}')

    mk_p1 = k.mark()
    RR = k.v(168)
    epi_addr(RR[0:8])
    k.i(f's_and_b32 {ssd[1]}, {ssd[1]}, 0xffff')
    k.i(f's_mov_b32 {ssd[2]}, {D * F * 2}')
    k.i(f's_mov_b32 {ssd[3]}, 0x00020000')
    k.release(mk_p1)
    k.wait(lg=0)
    k.i(f's_cmp_ge_u32 {wave}, 4')
    k.i('s_cbranch_scc1 m_l1')
    nts0 = k.nts
    acc = k.v(64)
    Fr = k.v(64)
    R = k.v(40)
    th, ch = k.s(), k.s()
    k.i(f's_and_b32 {th}, {wave}, 1')
    k.i(f's_lshr_b32 {ch}, {wave}, 1')
    ha, wa = k.v(2, align=1), k.v(2, align=1)
    k.i(f's_lshl_b32 {so}, {th}, 12')
    k.i(f's_add_u32 {so}, {so}, 8192')
    k.i(f'v_add_u32 {ha[0]}, {so}, {l16}')
    k.i(f'v_add_u32 {ha[1]}, 65536, {ha[0]}')
    k.i(f's_lshl_b32 {so}, {ch}, 12')
    k.i(f'v_add_u32 {wa[0]}, {so}, {l16}')
    k.i(f'v_add_u32 {wa[1]}, 65536, {wa[0]}')

    def prep(J):
        L = []
        b = J & 1
        blk = J % 8
        for i in range(4):
            o = (blk & 3) * 16384 + i * 1024
            L.append(f'ds_read_b128 {Fr[(b * 8 + 4 + i) * 4:(b * 8 + 4 + i) * 4 + 4]}, {wa[blk >> 2]} offset:{o}')
            L.append(f'ds_read_b128 {Fr[(b * 8 + i) * 4:(b * 8 + i) * 4 + 4]}, {ha[blk >> 2]} offset:{o}')
        return L

    def mfmas(J):
        L = []
        b = J & 1
        for d in range(7):
            for ci in range(4):
                ti = d - ci
                if 0 <= ti < 4:
                    a = acc[(ci * 4 + ti) * 4:(ci * 4 + ti) * 4 + 4]
                    L.append(f'v_mfma_f32_16x16x32_bf16 {a}, {Fr[(b * 8 + 4 + ci) * 4:(b * 8 + 4 + ci) * 4 + 4]}, {Fr[(b * 8 + ti) * 4:(b * 8 + ti) * 4 + 4]}, {0 if J == 0 else a}')
        return L

    k.ts()
    k.barrier()
    k.ts()
    for x in prep(0):
        k.i(x)
    for J in range(20):
        if J == 10:
            k.ts()
        if J + 1 < 20:
            if (J + 1) % KPS == 0:
                k.barrier()
            interleave(k, mfmas(J), prep(J + 1), lead=4)
        else:
            for x in mfmas(J):
                k.i(x)
    k.ts()
    da = R[8]
    k.i(f's_mul_i32 {so}, {th}, {4 * 5120}')
    k.i(f's_add_u32 {so}, {so}, {LQK}')
    k.i(f'v_add_u32 {da}, {so}, {l16}')
    k.i(f's_cmp_eq_u32 {ch}, 1')
    k.i('s_cbranch_scc1 p1_dump1')
    stx = (list(k.vm), list(k.lg))
    for ci in range(4):
        for ti in range(4):
            k.i(f'ds_write_b128 {da}, {acc[(ci * 4 + ti) * 4:(ci * 4 + ti) * 4 + 4]} offset:{ti * 5120 + ci * 1024}')
    k.i('s_branch p1_dumped')
    k.raw('p1_dump1:')
    k._join()
    k.vm, k.lg = list(stx[0]), list(stx[1])
    for ti in range(4):
        k.i(f'ds_write_b128 {da}, {acc[ti * 4:ti * 4 + 4]} offset:{ti * 5120 + 4096}')
    va = R[9]
    k.i(f'v_mul_u32_u24 {va}, 96, {n}')
    k.i(f'v_lshl_add_u32 {va}, {G}, 3, {va}')
    k.i(f's_mul_i32 {so}, {th}, {64 * 96}')
    k.i(f's_add_u32 {so}, {so}, {LV}')
    k.i(f'v_add_u32 {va}, {so}, {va}')
    m1, m3 = k.s(2), k.s(2)
    k.i(f'v_cmp_eq_u32 {m1}, 1, {G}')
    k.i(f'v_cmp_eq_u32 {m3}, 3, {G}')
    for ci in range(1, 4):
        for ti in range(4):
            a = acc[(ci * 4 + ti) * 4:(ci * 4 + ti) * 4 + 4]
            if ci == 2:
                k.i(f'v_cndmask_b32 {a[0]}, {a[0]}, 1.0, {m1}')
            if ci == 3:
                k.i(f'v_cndmask_b32 {a[0]}, {a[0]}, 1.0, {m3}')
            o = R[12 + ((ci * 4 + ti) % 8) * 2:12 + ((ci * 4 + ti) % 8) * 2 + 2]
            k.i(f'v_cvt_pk_bf16_f32 {o[0]}, {a[0]}, {a[1]}')
            k.i(f'v_cvt_pk_bf16_f32 {o[1]}, {a[2]}, {a[3]}')
            k.i(f'ds_write_b64 {va}, {o} offset:{ti * 16 * 96 + (ci - 1) * 32}')
    k.raw('p1_dumped:')
    k._join()
    k.lines.append('  s_waitcnt lgkmcnt(0)')
    k.lg = []
    assert acc.base == RR.base
    k.i('s_branch m_j1')
    nts1 = k.nts
    k.reset_state()
    k.release(mk_p1)
    k.vm = list(vm_L)
    k.nts = nts0
    k.label('m_l1')
    nxt = NPRE
    k.ts()
    for s in range(NST):
        if s == NST // 2:
            k.ts()
        k.wait_tag(f'w{s}')
        k.barrier()
        if s == 0:
            k.ts()
        cnt = 0
        while nxt < NST and nxt <= min(s + LA, s - 1 + NSL) and cnt < 2:
            dma_stage(nxt)
            nxt += 1
            cnt += 1
        if 16 <= s <= 18:
            wof_jj(hw, 4 * (s - 16))
    k.ts()
    assert k.nts == nts1
    k.raw('m_j1:')
    k.reset_state()
    k.release(mk_p1)
    R = k.v(168)
    tmp = R[0:8]
    P, ph = R[8:28], R[28:40]
    cb, sb = R[152:160], R[160:168]
    k.i(f's_cmp_lg_u32 {sty}, 0')
    k.i('s_cbranch_scc1 m_noside')
    k.i(f's_lshl_b32 {so}, {wave}, 12')
    k.i(f's_add_u32 {so}, {so}, {LSIDE}')
    for i in range(4):
        k.i(f's_add_u32 m0, {so}, {1024 * i}')
        k.i(f'buffer_load_dwordx4 {SA[i]}, {ssd}, {scol} offen lds', tag='side')
    k.i(f'v_lshlrev_b32 {tmp[1]}, 4, {G}')
    k.i(f's_lshl_b32 {so}, {srowA}, 2')
    k.i(f's_lshl_b32 {st1}, {srowB}, 2')
    k.i(f's_add_u32 {so}, {so}, {WS_MOD + 3 * 2560}')
    k.i(f's_add_u32 {st1}, {st1}, {WS_MOD + 3 * 2560}')
    k.i(f'buffer_load_dwordx4 {sb[0:4]}, {tmp[1]}, {sws}, {so} offen', tag='side')
    k.i(f'buffer_load_dwordx4 {sb[4:8]}, {tmp[1]}, {sws}, {st1} offen', tag='side')
    k.i(f'buffer_load_dwordx4 {cb[0:4]}, {tmp[1]}, {sws}, {so} offen offset:2560', tag='side')
    k.i(f'buffer_load_dwordx4 {cb[4:8]}, {tmp[1]}, {sws}, {st1} offen offset:2560', tag='side')
    k.raw('m_noside:')
    k._join()
    qa, ql, ka, qk_a, sgl, sq = E.qa, E.ql, E.ka, E.qk_a, E.sgl, E.sq
    tb, ta, aa, skv = E.tb, E.ta, E.aa, E.skv

    def softmax(P, ph, tmp):
        mx, s0, s1 = tmp[0], tmp[1], tmp[2]
        for i in range(20):
            k.i(f'v_mul_f32 {P[i]}, {P[i]}, {sgl}')
        k.i(f'v_max3_f32 {mx}, {P[0]}, {P[1]}, {P[2]}')
        k.i(f'v_max3_f32 {s0}, {P[3]}, {P[4]}, {P[5]}')
        for i in range(6, 18, 4):
            k.i(f'v_max3_f32 {mx}, {mx}, {P[i]}, {P[i + 1]}')
            k.i(f'v_max3_f32 {s0}, {s0}, {P[i + 2]}, {P[i + 3]}')
        k.i(f'v_max3_f32 {mx}, {mx}, {P[18]}, {P[19]}')
        k.i(f'v_max_f32 {mx}, {mx}, {s0}')
        for i in range(20):
            k.i(f'v_sub_f32 {P[i]}, {P[i]}, {mx}')
        for i in range(20):
            k.i(f'v_exp_f32 {P[i]}, {P[i]}')
        k.i(f'v_add_f32 {s0}, {P[0]}, {P[1]}')
        k.i(f'v_add_f32 {s1}, {P[2]}, {P[3]}')
        for i in range(4, 20, 2):
            k.i(f'v_add_f32 {s0}, {s0}, {P[i]}')
            k.i(f'v_add_f32 {s1}, {s1}, {P[i + 1]}')
        k.i(f'v_add_f32 {s0}, {s0}, {s1}')
        k.i(f'v_rcp_f32 {s0}, {s0}')
        for i in range(20):
            k.i(f'v_mul_f32 {P[i]}, {P[i]}, {s0}')
        for i in range(10):
            k.i(f'v_cvt_pk_bf16_f32 {ph[i]}, {P[2 * i]}, {P[2 * i + 1]}')

    k.i('s_barrier')
    k.ts()
    PQ, phq = R[40:60], R[60:72]
    for t in range(5):
        k.i(f'ds_read_b128 {P[4 * t:4 * t + 4]}, {qk_a} offset:{1024 * t}')
    for t in range(5):
        k.i(f'ds_read_b128 {PQ[4 * t:4 * t + 4]}, {qk_a} offset:{1024 * t + 512}')
    softmax(P, ph, tmp)
    k.i(f'ds_write_b128 {ka}, {ph[0:4]}')
    k.i(f'ds_write_b128 {ka}, {ph[4:8]} offset:16')
    k.i(f'ds_write_b64 {E.ka2}, {ph[8:10]}')
    k.barrier()
    k.ts()
    Bf, Af, Dd = R[104:120], R[120:152], R[8:16]
    for kk in range(4):
        for hf in range(2):
            k.i(f'ds_read_b64_tr_b16 {Bf[kk * 4 + 2 * hf:kk * 4 + 2 * hf + 2]}, {tb} offset:{(kk * 32 + hf * 16) * 160}')
        for dt in range(2):
            for hf in range(2):
                b = (kk * 2 + dt) * 4 + 2 * hf
                k.i(f'ds_read_b64_tr_b16 {Af[b:b + 2]}, {ta} offset:{(kk * 32 + hf * 16) * 96 + dt * 32}')
    for kk in range(4):
        for dt in range(2):
            d = Dd[dt * 4:dt * 4 + 4]
            k.i(f'v_mfma_f32_16x16x32_bf16 {d}, {Af[(kk * 2 + dt) * 4:(kk * 2 + dt) * 4 + 4]}, {Bf[kk * 4:kk * 4 + 4]}, {0 if kk == 0 else d}')
    for i in range(8):
        k.i(f'buffer_atomic_add_f32 {Dd[i]}, {aa[i]}, {sws}, {skv} offen')
    k.ts()
    softmax(PQ, phq, tmp)
    k.i(f'buffer_store_dwordx4 {phq[0:4]}, {qa}, {sws}, {sq} offen sc1')
    k.i(f'buffer_store_dwordx4 {phq[4:8]}, {qa}, {sws}, {sq} offen offset:256 sc1')
    k.i(f'buffer_store_dwordx2 {phq[8:10]}, {ql}, {sws}, {sq} offen sc1', tag='pub')
    k.ts()
    k.wait_tag('pub')
    k.i('s_barrier')
    k.ts()
    k.i(f's_cmp_lg_u32 {wave}, 7')
    k.i(f's_cbranch_scc1 m_arr')
    k.i('s_mov_b32 exec_lo, 1')
    k.i('s_mov_b32 exec_hi, 0')
    k.i(f's_and_b32 {so}, s2, 15')
    k.i(f's_lshl_b32 {so}, {so}, 8')
    k.i(f's_add_u32 {so}, {so}, {WS_CNT + C1G}')
    k.i(f'v_mov_b32 {t1}, 0')
    k.i(f'v_mov_b32 {t2}, 1')
    for x in [f'buffer_atomic_add {t2}, {t1}, {sws}, {so} offen sc0 sc1', 's_waitcnt vmcnt(0)',
              f'v_readfirstlane_b32 {st1}, {t2}', f'v_mov_b32 {t2}, 1', f's_cmp_lg_u32 {st1}, 15', 's_cbranch_scc1 m_arr',
              f's_mov_b32 {so}, {WS_CNT + C1T}',
              f'buffer_atomic_add {t2}, {t1}, {sws}, {so} offen sc0 sc1', 's_waitcnt vmcnt(0)',
              f'v_readfirstlane_b32 {st1}, {t2}', f's_cmp_lg_u32 {st1}, 15', 's_cbranch_scc1 m_arr',
              's_mov_b32 exec_lo, 0xff', f'v_mov_b32 {t2}, 1', f'v_lshlrev_b32 {t1}, 8, {lane}', f's_mov_b32 {so}, {WS_CNT + G1}',
              f'buffer_store_dword {t2}, {t1}, {sws}, {so} offen sc1']:
        k.lines.append('  ' + x)
    k.raw('m_arr:')
    k._join()
    k.i('s_mov_b64 exec, -1')
    tsx()
    k.vm = []
    k.i(f's_cmp_lg_u32 {sty}, 0')
    k.i(f's_cbranch_scc1 m_nostore')
    Wf = R[16:32]
    k.i(f'v_lshrrev_b32 {tmp[0]}, 2, {lane}')
    k.i(f'v_lshlrev_b32 {tmp[0]}, 7, {tmp[0]}')
    k.i(f'v_and_b32 {tmp[1]}, 3, {lane}')
    k.i(f'v_lshl_add_u32 {tmp[0]}, {tmp[1]}, 3, {tmp[0]}')
    k.i(f's_lshl_b32 {so}, {wave}, 12')
    k.i(f's_add_u32 {so}, {so}, {LSIDE}')
    k.i(f'v_add_u32 {tmp[0]}, {so}, {tmp[0]}')
    for c4 in range(4):
        for hf in range(2):
            k.i(f'ds_read_b64_tr_b16 {Wf[c4 * 4 + 2 * hf:c4 * 4 + 2 * hf + 2]}, {tmp[0]} offset:{hf * 2048 + c4 * 32}')
    Bs, Bo = R[72:76], R[76:80]
    for q in range(4):
        k.i(f'v_cvt_pk_bf16_f32 {Bs[q]}, {sb[2 * q]}, {sb[2 * q + 1]}')
        k.i(f'v_mov_b32 {Bo[q]}, 0x3f803f80')
    Db, Dc = R[80:96], R[96:112]
    for c4 in range(4):
        k.i(f'v_mfma_f32_16x16x32_bf16 {Db[c4 * 4:c4 * 4 + 4]}, {Wf[c4 * 4:c4 * 4 + 4]}, {Bs}, 0')
    for c4 in range(4):
        for q in range(4):
            w = Wf[c4 * 4 + q]
            lo, hi = tmp[2 + (q & 1) * 2], tmp[3 + (q & 1) * 2]
            k.i(f'v_lshlrev_b32 {lo}, 16, {w}')
            k.i(f'v_and_b32 {hi}, 0xffff0000, {w}')
            k.i(f'v_mul_f32 {lo}, {lo}, {cb[2 * q]}')
            k.i(f'v_mul_f32 {hi}, {hi}, {cb[2 * q + 1]}')
            k.i(f'v_cvt_pk_bf16_f32 {w}, {lo}, {hi}')
    for c4 in range(4):
        k.i(f'v_mfma_f32_16x16x32_bf16 {Dc[c4 * 4:c4 * 4 + 4]}, {Wf[c4 * 4:c4 * 4 + 4]}, {Bo}, 0')
    k.i(f'v_lshlrev_b32 {tmp[1]}, 4, {G}')
    k.i(f's_lshl_b32 {so}, {wave}, 9')
    k.i(f's_add_u32 {so}, {so}, {LCS}')
    k.i(f'v_add_u32 {tmp[1]}, {so}, {tmp[1]}')
    k.i('s_mov_b32 exec_lo, 0x00010001')
    k.i('s_mov_b32 exec_hi, 0x00010001')
    for c4 in range(4):
        k.i(f'ds_write_b128 {tmp[1]}, {Dc[c4 * 4:c4 * 4 + 4]} offset:{c4 * 64}')
        k.i(f'ds_write_b128 {tmp[1]}, {Db[c4 * 4:c4 * 4 + 4]} offset:{256 + c4 * 64}')
    k.i('s_mov_b64 exec, -1')
    k.wait(lg=0)
    k.i(f's_cmp_eq_u32 {scol}, {26 * 128}')
    k.i(f's_cselect_b32 {so}, 4096, 0')
    k.i(f's_add_u32 {so}, {so}, {sdst}')
    for c4 in range(4):
        k.lines.append(f'  buffer_store_dwordx4 {Wf[c4 * 4:c4 * 4 + 4]}, {l16}, {sws}, {sdst if c4 < 3 else so} offen offset:{1024 * c4} sc1')
    k.raw('m_nostore:')
    k._join()
    tsx()
    k.i('s_barrier')
    tsx()
    wof_jj(wave, 12)
    tsx()
    k.i(f's_cmp_ge_u32 {wave}, 2')
    k.i(f's_cselect_b32 {so}, 1000, s2')
    k.i(f's_cmp_ge_u32 {so}, 216')
    k.i(f's_cbranch_scc1 m_nocs')
    k.i(f'v_lshlrev_b32 {tmp[0]}, 2, v0')
    k.i(f'v_add_u32 {tmp[0]}, {LCS}, {tmp[0]}')
    for w in range(5):
        k.i(f'ds_read_b32 {tmp[1 + w]}, {tmp[0]} offset:{512 * w}')
    k.i(f'v_add_f32 {tmp[1]}, {tmp[1]}, {tmp[2]}')
    k.i(f'v_add_f32 {tmp[3]}, {tmp[3]}, {tmp[4]}')
    k.i(f'v_add_f32 {tmp[1]}, {tmp[1]}, {tmp[5]}')
    k.i(f'v_add_f32 {tmp[1]}, {tmp[1]}, {tmp[3]}')
    k.i(f's_lshl_b32 {so}, {ks}, 1')
    k.i(f's_add_u32 {so}, {so}, {wave}')
    k.i(f's_mul_i32 {so}, {so}, {3584 * 4}')
    k.i(f's_lshl_b32 {st1}, {p_}, 6')
    k.i(f's_add_u32 {so}, {so}, {st1}')
    k.i(f's_add_u32 {so}, {so}, {WS_CSB}')
    k.i(f'v_lshlrev_b32 {tmp[0]}, 2, {lane}')
    k.i(f's_cmp_eq_u32 {scol}, {26 * 128}')
    k.i(f's_cselect_b32 {st1}, 256, 0')
    k.i(f'v_mov_b32 {tmp[2]}, {st1}')
    k.i(f'v_cmp_lt_u32 vcc, 47, {lane}')
    k.i(f'v_cndmask_b32 {tmp[2]}, 0, {tmp[2]}, vcc')
    k.i(f'v_add_u32 {tmp[0]}, {tmp[0]}, {tmp[2]}')
    k.i(f'buffer_store_dword {tmp[1]}, {tmp[0]}, {sws}, {so} offen sc1')
    k.raw('m_nocs:')
    k.reset_state()
    k.release(mk_common)
    k.ts()

    RING2, SL2, PLB = 24576, 4096, 0
    W3 = [67584, 96256, 0, 28672]
    X3 = [124928, 133120, 141312, 149504, 57344]
    CSL = 157696
    W4 = [0, 20480, 40960, 61440, 81920]
    X4 = [102400, 118784, 135168]

    def signal(idx, cnt_off, go_off, sel):
        lab = k.newlabel('sig')
        k.wait(vm=0)
        tsz()
        k.i(f'v_mov_b32 {t1}, {LCNT + 4 * idx}')
        k.i(f'v_mov_b32 {t2}, 1')
        k.i('s_mov_b32 exec_lo, 1')
        k.i('s_mov_b32 exec_hi, 0')
        k.i(f'ds_add_rtn_u32 {t3}, {t1}, {t2}')
        k.i(f'v_readfirstlane_b32 {so}, {t3}')
        k.i(f's_cmp_lg_u32 {so}, 3')
        k.i(f's_cbranch_scc1 {lab}')
        k.i(f's_lshl_b32 {so}, {sel}, 8')
        k.i(f's_add_u32 {so}, {so}, {WS_CNT + cnt_off}')
        k.i(f'v_mov_b32 {t1}, 0')
        k.lines.append(f'  buffer_atomic_add {t2}, {t1}, {sws}, {so} offen sc0 sc1')
        k.lines.append('  s_waitcnt vmcnt(0)')
        k.lines.append(f'  v_readfirstlane_b32 {st1}, {t2}')
        k.lines.append(f'  v_mov_b32 {t2}, 1')
        k.lines.append(f'  s_cmp_lg_u32 {st1}, 15')
        k.lines.append(f'  s_cbranch_scc1 {lab}')
        k.lines.append(f'  s_add_u32 {so}, {so}, {go_off - cnt_off}')
        k.lines.append(f'  buffer_store_dword {t2}, {t1}, {sws}, {so} offen sc1')
        k.raw(f'{lab}:')
        k._join()
        k.i('s_mov_b64 exec, -1')
        k.vm = [dict(regs=set(), tag=None)]
        tsz()

    def poll(go_off, sel, pw=4):
        lab = k.newlabel('poll')
        k.i(f's_cmp_lg_u32 {wave}, {pw}')
        k.i(f's_cbranch_scc1 {lab}_x')
        k.i(f's_lshl_b32 {so}, {sel}, 8')
        k.i(f's_add_u32 {so}, {so}, {WS_CNT + go_off}')
        k.i(f'v_mov_b32 {t1}, 0')
        k.i(f's_mov_b32 {st1}, 0')
        k.i('s_mov_b32 exec_lo, 1')
        k.i('s_mov_b32 exec_hi, 0')
        k.raw(f'{lab}:')
        k.lines.append(f'  buffer_load_dword {t2}, {t1}, {sws}, {so} offen sc1')
        k.lines.append('  s_waitcnt vmcnt(0)')
        k.lines.append(f'  v_readfirstlane_b32 {st2}, {t2}')
        k.lines.append(f'  s_add_u32 {st1}, {st1}, 1')
        k.lines.append(f'  s_cmp_ge_u32 {st1}, {SPIN_MAX}')
        k.lines.append(f'  s_cbranch_scc1 {lab}_d')
        k.lines.append(f'  s_cmp_eq_u32 {st2}, 0')
        k.lines.append(f'  s_cbranch_scc1 {lab}')
        k.raw(f'{lab}_d:')
        k.i('s_mov_b64 exec, -1')
        k.raw(f'{lab}_x:')
        k._join()

    def x1_addr(ttg_, nt_, sreg, sspec):
        k.i(f's_lshr_b32 {so}, {ttg_}, 3')
        k.i(f's_mul_i32 {so}, {so}, 20')
        k.i(f's_lshr_b32 {st1}, {nt_}, 1')
        k.i(f's_mul_i32 {st1}, {st1}, 5')
        k.i(f's_add_u32 {so}, {so}, {st1}')
        k.i(f's_lshl_b32 {so}, {so}, 13')
        k.i(f's_add_u32 {so}, {so}, {WS_X1}')
        k.i(f's_and_b32 {st1}, {nt_}, 1')
        k.i(f's_and_b32 {st2}, {ttg_}, 7')
        k.i(f's_lshl_b32 {sreg}, {st1}, 14')
        k.i(f's_add_u32 {sreg}, {sreg}, {so}')
        k.i(f's_lshl_b32 {sspec}, {st2}, 10')
        k.i(f's_add_u32 {sreg}, {sreg}, {sspec}')
        k.i(f's_lshl_b32 {st1}, {st1}, 12')
        k.i(f's_lshl_b32 {st2}, {st2}, 9')
        k.i(f's_add_u32 {sspec}, {so}, {st1}')
        k.i(f's_add_u32 {sspec}, {sspec}, {st2}')
        k.i(f's_add_u32 {sspec}, {sspec}, {4 * 8192}')

    k.i(f's_cmp_ge_u32 {wave}, 4')
    k.i('s_cbranch_scc1 m_l2')
    nts2 = k.nts
    sxx = k.srd(px, S * D * 2)
    ttg = k.s()
    tp, kh2 = k.s(), k.s()
    k.i(f's_and_b32 {tp}, {wave}, 1')
    k.i(f's_lshr_b32 {kh2}, {wave}, 1')
    AF = k.v(32)
    PQf = k.v(32)
    PLf = k.v(16)
    O = k.v(32)
    Xf = k.v(32)
    WA = k.v(20)
    acc = k.v(40)
    xv, gav = AF[0:10], PQf[0:20]
    carry = k.v(2, align=1)
    a0, a1, woa = k.v(), k.v(), k.v(2, align=1)
    aL = k.v(8, align=1)
    k.i(f's_lshl_b32 {ttg}, {mt2}, 2')
    k.i(f's_lshl_b32 {so}, {tp}, 1')
    k.i(f's_add_u32 {ttg}, {ttg}, {so}')
    k.i(f's_add_u32 {ttg}, {ttg}, {kh2}')
    k.i(f's_mul_i32 {st1}, {kh2}, 1920')
    k.i(f's_add_u32 {st1}, {st1}, {RING2}')
    k.i(f'v_add_u32 {a0}, {st1}, {l16}')
    k.i(f'v_lshrrev_b32 {t1}, 2, {n}')
    k.i(f'v_and_b32 {t2}, 3, {n}')
    k.i(f'v_cmp_eq_u32 vcc, 0, {t2}')
    k.i(f'v_cndmask_b32 {t1}, 4, {t1}, vcc')
    k.i(f'v_lshlrev_b32 {t1}, 4, {t1}')
    k.i(f'v_add_u32 {t1}, {st1}, {t1}')
    k.i(f'v_add_u32 {t1}, 1280, {t1}')
    k.i(f'v_lshl_add_u32 {a1}, {G}, 7, {t1}')
    k.i(f'v_add_u32 {t1}, 512, {t1}')
    k.i(f'v_lshlrev_b32 {t2}, 4, {n}')
    k.i(f'v_add_u32 {t2}, {st1}, {t2}')
    k.i(f'v_add_u32 {t2}, 1024, {t2}')
    k.i(f's_add_u32 {st1}, {st1}, {1280 + 512 + 112}')
    k.i(f'v_mov_b32 {t3}, {st1}')
    for rho in range(4):
        k.i(f'v_cmp_eq_u32 vcc, {rho}, {G}')
        k.i(f'v_cndmask_b32 {aL[2 * rho]}, {t3}, {t2}, vcc')
        k.i(f'v_cndmask_b32 {aL[2 * rho + 1]}, {t3}, {t1}, vcc')
    spqc = k.s()
    k.i(f's_lshl_b32 {so}, {tp}, 12')
    k.i(f's_lshl_b32 {st1}, {kh2}, 10')
    k.i(f's_add_u32 {so}, {so}, {st1}')
    k.i(f's_mul_i32 {spqc}, {mt2}, 163840')
    k.i(f's_add_u32 {spqc}, {spqc}, {so}')
    k.i(f's_add_u32 {spqc}, {spqc}, {WS_PHIQ}')

    def ldq(s):
        L = []
        if s % 4 == 0:
            L.append(f's_add_u32 {st2}, {spqc}, {(16 + s // 4) * 8192}')
            for t in range(2):
                q = (((s // 4) & 1) * 2 + t) * 4
                L.append(f'buffer_load_dwordx4 {PLf[q:q + 4]}, {l16}, {sws}, {st2} offen offset:{2048 * t}')
        L.append(f's_add_u32 {st2}, {spqc}, {s * 8192}')
        for t in range(2):
            L.append(f'buffer_load_dwordx4 {PQf[((s % 4) * 2 + t) * 4:((s % 4) * 2 + t) * 4 + 4]}, {l16}, {sws}, {st2} offen offset:{2048 * t}')
        return L

    k.i(f's_mul_i32 {so}, {kh2}, 5120')
    k.i(f's_add_u32 {so}, {so}, {WOFB}')
    k.i(f'v_add_u32 {woa[0]}, {so}, {l16}')
    k.i(f'v_add_u32 {woa[1]}, 51200, {woa[0]}')
    k.i('s_barrier')
    k.ts()
    for s in range(3):
        for x in ldq(s):
            k.i(x)

    def rd2(s):
        L = []
        b = s & 1
        sl = (s % 4) * SL2
        A = AF[b * 16:b * 16 + 16]
        rho = s & 3
        L.append(f'ds_read_b128 {A[8:12]}, {aL[2 * rho]} offset:{sl}')
        L.append(f'ds_read_b128 {A[12:16]}, {aL[2 * rho + 1]} offset:{sl}')
        L.append(f'ds_read_b128 {A[4:8]}, {a1} offset:{sl}')
        L.append(f'ds_read_b128 {A[0:4]}, {a0} offset:{sl}')
        return L

    def om(s):
        L = []
        b = s & 1
        A = AF[b * 16:b * 16 + 16]
        for t in range(2):
            q = (((s // 4) & 1) * 2 + t) * 4
            for tl in range(2):
                o = O[((b * 2 + t) * 2 + tl) * 4:((b * 2 + t) * 2 + tl) * 4 + 4]
                L.append(f'v_mfma_f32_16x16x32_bf16 {o}, {A[8 + tl * 4:8 + tl * 4 + 4]}, {PLf[q:q + 4]}, 0')
        for t in range(2):
            for tl in (1, 0):
                o = O[((b * 2 + t) * 2 + tl) * 4:((b * 2 + t) * 2 + tl) * 4 + 4]
                L.append(f'v_mfma_f32_16x16x32_bf16 {o}, {A[tl * 4:tl * 4 + 4]}, {PQf[((s % 4) * 2 + t) * 4:((s % 4) * 2 + t) * 4 + 4]}, {o}')
        return L

    def xf(j, t):
        return Xf[((j % 4) * 2 + t) * 4:((j % 4) * 2 + t) * 4 + 4]

    def ov(s):
        L = []
        b = s & 1
        os_ = [O[(b * 2 + t) * 8:(b * 2 + t) * 8 + 8] for t in range(2)]
        for o in os_:
            L.append(f'v_add_f32 {o[5]}, {fhex(1e-6)}, {o[5]}')
        for o in os_:
            L.append(f'v_rcp_f32 {o[5]}, {o[5]}')
        for t, o in enumerate(os_):
            for q in range(4):
                L.append(f'v_mul_f32 {o[q]}, {o[q]}, {o[5]}')
            L.append(f'v_mul_f32 {o[4] if s & 1 else o[6]}, {o[4]}, {o[5]}')
        for t, o in enumerate(os_):
            if s & 1:
                vals = [carry[t]] + [o[q] for q in range(5)]
                idx0 = 5 * s - 1
            else:
                vals = [o[q] for q in range(4)]
                idx0 = 5 * s
            for p in range(len(vals) // 2):
                idx = idx0 + 2 * p
                L.append(f'v_cvt_pk_bf16_f32 {xf(idx >> 3, t)[(idx & 7) >> 1]}, {vals[2 * p]}, {vals[2 * p + 1]}')
            if not s & 1:
                L.append(f'v_mov_b32 {carry[t]}, {o[6]}')
        return L

    def wrd(j):
        off = ((2 * j + 2) % 20) * 5120
        areg, o = (woa[0], off) if off < 51200 else (woa[1], off - 51200)
        return [f'ds_read_b128 {WA[ct * 4:ct * 4 + 4]}, {areg} offset:{o + ct * 1024}' for ct in range(5)]

    def wm(j):
        return [f'v_mfma_f32_16x16x32_bf16 {acc[(ct * 2 + t) * 4:(ct * 2 + t) * 4 + 4]}, {WA[ct * 4:ct * 4 + 4]}, {xf(j, t)}, {0 if j == 0 else acc[(ct * 2 + t) * 4:(ct * 2 + t) * 4 + 4]}' for ct in range(5) for t in range(2)]

    def done_after(s):
        return (5 * s + (5 if s & 1 else 4)) // 8

    k.i('s_barrier')
    k.ts()
    for x in rd2(0) + wrd(0):
        k.i(x)
    jm = 0
    nlate = 5
    for s in range(18):
        if s == 8:
            k.ts()
        if s == 15:
            k.i(f's_mul_i32 {so}, {ttg}, {16 * 1280}')
            k.i(f's_mul_i32 {st1}, {nt2}, 160')
            k.i(f's_add_u32 {so}, {so}, {st1}')
            k.i(f'v_mul_u32_u24 {t2}, 1280, {n}')
            k.i(f'v_lshl_add_u32 {t2}, {G}, 3, {t2}')
            for ct in range(5):
                k.i(f'buffer_load_dwordx2 {xv[2 * ct:2 * ct + 2]}, {t2}, {sxx}, {so} offen offset:{32 * ct}')
            k.i(f'v_lshlrev_b32 {t2}, 4, {G}')
            k.i(f's_mul_i32 {st1}, {nt2}, 320')
            k.i(f's_add_u32 {so}, {st1}, {WS_MOD + 2 * 2560}')
            for ct in range(5):
                k.i(f'buffer_load_dwordx4 {gav[4 * ct:4 * ct + 4]}, {t2}, {sws}, {so} offen offset:{64 * ct}')
        fill = []
        if s + 1 < 16:
            tsy(s in (9, 10))
            if nlate < len(k.lg):
                k.wait(lg=nlate)
            tsy(s in (9, 10))
            k.i('s_barrier')
            tsy(s in (9, 10))
            tsy(s in (9, 10))
            fill += rd2(s + 1)
        if s + 3 < 16:
            fill += ldq(s + 3)
        lim = done_after(s - 2) if s >= 2 else 0
        Mw, late = [], []
        if jm < lim:
            Mw = wm(jm)
            jm += 1
            if jm < 10:
                late = wrd(jm)
        assert jm >= lim
        Mo = om(s) if s < 16 else []
        V = ov(s - 1) if 1 <= s <= 16 else []
        M = Mo + Mw
        if os.environ.get('X_NOC'):
            M, V = M[:1], []
        if os.environ.get('X_NORD'):
            fill, late = [], []
        if M:
            interleave(k, M, fill + V)
        else:
            for x in fill + V:
                k.i(x)
        for x in late:
            k.i(x)
        nlate = len(late)
    assert jm == 10
    k.i(f's_mul_i32 {so}, {wave}, 5120')
    k.i(f'v_add_u32 {t1}, {so}, {l16}')
    k.i(f's_xor_b32 {st1}, {wave}, 2')
    k.i(f's_mul_i32 {st1}, {st1}, 5120')
    k.i(f'v_add_u32 {t3}, {st1}, {l16}')
    mk2 = k.s(2)
    k.i(f's_cmp_eq_u32 {kh2}, 1')
    k.i(f's_cselect_b64 {mk2}, -1, 0')
    Sd, Kp = O[0:20], Xf[0:20]
    for ct in range(5):
        for r in range(4):
            a0_, a1_ = acc[(ct * 2) * 4 + r], acc[(ct * 2 + 1) * 4 + r]
            k.i(f'v_cndmask_b32 {Sd[4 * ct + r]}, {a1_}, {a0_}, {mk2}')
            k.i(f'v_cndmask_b32 {Kp[4 * ct + r]}, {a0_}, {a1_}, {mk2}')
        k.i(f'ds_write_b128 {t1}, {Sd[4 * ct:4 * ct + 4]} offset:{1024 * ct}')
    k.ts()
    k.barrier()
    for ct in range(5):
        k.i(f'ds_read_b128 {acc[4 * ct:4 * ct + 4]}, {t3} offset:{1024 * ct}')
    for i in range(20):
        k.i(f'v_add_f32 {acc[i]}, {acc[i]}, {Kp[i]}')
    cp = O[20:28]
    k.i(f'v_cmp_lt_u32 vcc, 111, v0')
    k.i(f'v_mov_b32 {t3}, {1792 - 112}')
    k.i(f'v_cndmask_b32 {t2}, 0, {t3}, vcc')
    k.i(f'v_add_u32 {t2}, {t2}, v0')
    k.i(f's_mul_i32 {so}, {nt3}, 112')
    k.i(f'v_add_u32 {t2}, {so}, {t2}')
    k.i(f'v_lshlrev_b32 {t2}, 2, {t2}')
    s12 = AF[10:12]
    xe = AF[12:16]
    k.i(f'v_mov_b32 {s12[0]}, 0')
    k.i(f'v_mov_b32 {s12[1]}, 0')
    xo = AF[16:28]
    for ct in range(5):
        for q in range(2):
            k.i(f'v_lshlrev_b32 {xe[2 * q]}, 16, {xv[2 * ct + q]}')
            k.i(f'v_and_b32 {xe[2 * q + 1]}, 0xffff0000, {xv[2 * ct + q]}')
        for r in range(4):
            k.i(f'v_fmac_f32 {xe[r]}, {acc[4 * ct + r]}, {gav[4 * ct + r]}')
        for q in range(2):
            k.i(f'v_cvt_pk_bf16_f32 {xo[2 * ct + q]}, {xe[2 * q]}, {xe[2 * q + 1]}')
        for q in range(2):
            k.i(f'v_lshlrev_b32 {xe[2 * q]}, 16, {xo[2 * ct + q]}')
            k.i(f'v_and_b32 {xe[2 * q + 1]}, 0xffff0000, {xo[2 * ct + q]}')
        for r in range(4):
            k.i(f'v_add_f32 {s12[0]}, {s12[0]}, {xe[r]}')
            k.i(f'v_fmac_f32 {s12[1]}, {xe[r]}, {xe[r]}')
    sreg, sspec = k.s(), k.s()
    x1_addr(ttg, nt2, sreg, sspec)
    l8 = AF[28]
    k.i(f'v_lshlrev_b32 {l8}, 3, {lane}')
    k.i(f'buffer_store_dwordx4 {xo[0:4]}, {l16}, {sws}, {sreg} offen sc1')
    k.i(f's_add_u32 {sreg}, {sreg}, 8192')
    k.i(f'buffer_store_dwordx4 {xo[4:8]}, {l16}, {sws}, {sreg} offen sc1')
    k.i(f'buffer_store_dwordx2 {xo[8:10]}, {l8}, {sws}, {sspec} offen sc1')
    xsum4(k, s12[0], t1)
    xsum4(k, s12[1], t1)
    k.i(f's_lshl_b32 {so}, {ttg}, 10')
    k.i(f's_lshl_b32 {st1}, {nt2}, 3')
    k.i(f's_add_u32 {so}, {so}, {st1}')
    k.i(f's_add_u32 {so}, {so}, {WS_ST}')
    k.i(f'v_lshlrev_b32 {t1}, 6, {n}')
    k.i('s_mov_b32 exec_lo, 0xffff')
    k.i('s_mov_b32 exec_hi, 0')
    k.i(f'buffer_store_dwordx2 {s12}, {t1}, {sws}, {so} offen sc1')
    k.i('s_mov_b64 exec, -1')
    for p in range(8):
        k.i(f's_mov_b32 {so}, {WS_CSB + p * 3584 * 4}')
        k.i(f'buffer_load_dword {cp[p]}, {t2}, {sws}, {so} offen sc1')
    k.i('s_barrier')
    k.ts()
    sel = k.s()
    k.i(f's_lshr_b32 {sel}, {mt2}, 1')
    signal(0, C2, G2, sel)
    k.i(f'v_add_f32 {cp[0]}, {cp[0]}, {cp[2]}')
    k.i(f'v_add_f32 {cp[4]}, {cp[4]}, {cp[6]}')
    k.i(f'v_add_f32 {cp[1]}, {cp[1]}, {cp[3]}')
    k.i(f'v_add_f32 {cp[5]}, {cp[5]}, {cp[7]}')
    k.i(f'v_add_f32 {cp[0]}, {cp[0]}, {cp[4]}')
    k.i(f'v_add_f32 {cp[1]}, {cp[1]}, {cp[5]}')
    k.i(f'v_mov_b32 {t2}, 0')
    k.i(f'v_cmp_lt_u32 vcc, 63, v0')
    k.i(f'v_cndmask_b32 {t2}, {t2}, 64, vcc')
    k.i(f'v_mov_b32 {t3}, -48')
    k.i(f'v_cmp_lt_u32 vcc, 111, v0')
    k.i(f'v_cndmask_b32 {t2}, {t2}, {t3}, vcc')
    k.i(f'v_cmp_lt_u32 vcc, 175, v0')
    k.i(f'v_cndmask_b32 {t2}, {t2}, 0, vcc')
    k.i(f'v_add_u32 {t2}, {t2}, v0')
    k.i(f'v_lshlrev_b32 {t2}, 2, {t2}')
    k.i(f'v_add_u32 {t2}, {CSL}, {t2}')
    k.i(f'ds_write_b32 {t2}, {cp[0]}')
    k.i(f'ds_write_b32 {t2}, {cp[1]} offset:1024')

    k.release(mk_common)
    l8 = k.v()
    k.i(f'v_lshlrev_b32 {l8}, 3, {lane}')
    th3, cg = k.s(), k.s()
    k.i(f's_and_b32 {th3}, {wave}, 1')
    k.i(f's_lshr_b32 {cg}, {wave}, 1')
    acc = k.v(112)
    Fr = k.v(88)
    stv = k.v(16)
    mu, sd, rr = k.v(4, align=1), k.v(4, align=1), k.v(4, align=1)
    cb8 = stv[8:16]
    wa = k.v(2, align=1)
    xa = k.v(2, align=1)
    xs = k.v(2, align=1)
    csa = k.v()
    k.i(f's_mul_i32 {so}, {cg}, 7168')
    k.i(f'v_add_u32 {wa[0]}, {so}, {l16}')
    k.i(f'v_add_u32 {wa[1]}, 67584, {wa[0]}')
    k.i(f's_lshl_b32 {so}, {th3}, 12')
    k.i(f's_add_u32 {so}, {so}, 57344')
    k.i(f'v_add_u32 {xa[0]}, {so}, {l16}')
    k.i(f'v_add_u32 {xa[1]}, {124928 - 57344}, {xa[0]}')
    k.i(f's_lshl_b32 {so}, {th3}, 11')
    k.i(f's_add_u32 {so}, {so}, 57344')
    k.i(f'v_add_u32 {xs[0]}, {so}, {l8}')
    k.i(f'v_add_u32 {xs[1]}, {124928 - 57344}, {xs[0]}')
    k.i(f's_mul_i32 {so}, {cg}, 448')
    k.i(f's_add_u32 {so}, {so}, {CSL}')
    k.i(f'v_lshlrev_b32 {csa}, 4, {G}')
    k.i(f'v_add_u32 {csa}, {so}, {csa}')
    k.i(f'v_lshlrev_b32 {t1}, 6, {n}')
    k.i(f'v_lshl_add_u32 {t1}, {G}, 4, {t1}')
    k.i(f's_lshl_b32 {so}, {mt3}, 1')
    k.i(f's_add_u32 {so}, {so}, {th3}')
    mt4o = k.s()
    k.i(f's_mov_b32 {mt4o}, {so}')
    k.i(f's_lshl_b32 {so}, {so}, 12')
    k.i(f's_add_u32 {so}, {so}, {WS_ST}')
    k.barrier()
    k.ts()
    for tt in range(4):
        k.i(f'buffer_load_dwordx4 {stv[4 * tt:4 * tt + 4]}, {t1}, {sws}, {so} offen offset:{1024 * tt} sc1')

    def xfr(J, tt):
        b = ((J & 1) * 11 + tt) * 4
        return Fr[b:b + 4]

    def wfr(J, i):
        b = ((J & 1) * 11 + 4 + i) * 4
        return Fr[b:b + 4]

    def prep3(J):
        L = []
        wb = W3[(J // 2) % 4] + (J & 1) * 14336
        wreg, wo_ = (wa[0], wb) if wb < 67584 else (wa[1], wb - 67584)
        xb = X3[J % 5]
        xi, xo_ = (0, xb - 57344) if xb < 124928 else (1, xb - 124928)
        xl = []
        for tt in range(4):
            if J % 5 == 4:
                xl.append([f'ds_read_b64 {xfr(J, tt)[0:2]}, {xs[xi]} offset:{xo_ + tt * 512}',
                           f'ds_read_b64 {xfr(J, tt)[2:4]}, {xs[xi]} offset:{xo_ + 4096 + tt * 512}'])
            else:
                xl.append([f'ds_read_b128 {xfr(J, tt)}, {xa[xi]} offset:{xo_ + tt * 1024}'])
        L.append(f'ds_read_b128 {wfr(J, 0)}, {wreg} offset:{wo_}')
        for tt in range(4):
            L += xl[tt]
        for i in range(1, 7):
            L.append(f'ds_read_b128 {wfr(J, i)}, {wreg} offset:{wo_ + i * 1024}')
        return L

    def mf3(J):
        L = []
        for i in range(7):
            for tt in range(4):
                a = acc[(i * 4 + tt) * 4:(i * 4 + tt) * 4 + 4]
                L.append(f'v_mfma_f32_16x16x32_bf16 {a}, {wfr(J, i)}, {xfr(J, tt)}, {0 if J == 0 else a}')
        return L

    def stats_code():
        L = []
        for tt in range(4):
            a = stv[4 * tt:4 * tt + 4]
            L.append(f'v_add_f32 {a[0]}, {a[0]}, {a[2]}')
            L.append(f'v_add_f32 {a[1]}, {a[1]}, {a[3]}')
            for x in (a[0], a[1]):
                L.append(f'v_mov_b32 {a[2]}, {x}')
                L.append(f'v_permlane32_swap_b32 {x}, {a[2]}')
                L.append(f'v_add_f32 {x}, {x}, {a[2]}')
                L.append(f'v_mov_b32 {a[2]}, {x}')
                L.append(f'v_permlane16_swap_b32 {x}, {a[2]}')
                L.append(f'v_add_f32 {x}, {x}, {a[2]}')
            L.append(f'v_mul_f32 {mu[tt]}, {fhex(1.0 / 640)}, {a[0]}')
            L.append(f'v_mul_f32 {a[1]}, {fhex(1.0 / 640)}, {a[1]}')
            L.append(f'v_fma_f32 {a[1]}, -{mu[tt]}, {mu[tt]}, {a[1]}')
            L.append(f'v_max_f32 {a[1]}, 0, {a[1]}')
            L.append(f'v_add_f32 {a[1]}, {fhex(1e-5)}, {a[1]}')
            L.append(f'v_sqrt_f32 {sd[tt]}, {a[1]}')
            L.append(f'v_rsq_f32 {rr[tt]}, {a[1]}')
        return L

    def init_code(i):
        L = []
        for tt in range(4):
            a = acc[(i * 4 + tt) * 4:(i * 4 + tt) * 4 + 4]
            for r in range(4):
                L.append(f'v_fmac_f32 {a[r]}, {cb8[4 + r]}, {sd[tt]}')
            for r in range(4):
                L.append(f'v_fma_f32 {a[r]}, -{mu[tt]}, {cb8[r]}, {a[r]}')
        return L

    k.barrier()
    k.ts()
    for x in prep3(0):
        k.i(x)
    st_l = stats_code()
    for J in range(20):
        if J == 10:
            k.ts()
        M = mf3(J)
        if J + 1 < 20:
            k.barrier()
            fill = prep3(J + 1)
        else:
            fill = []
        if J in (2, 3):
            h = len(st_l) // 2
            fill = fill + (st_l[:h] if J == 2 else st_l[h:])
            interleave(k, M, fill, lead=2)
        elif 4 <= J < 11:
            i = J - 4
            M = M[4 * i:] + M[:4 * i]
            pre = [f'ds_read_b128 {cb8[0:4]}, {csa} offset:{i * 64}', f'ds_read_b128 {cb8[4:8]}, {csa} offset:{1024 + i * 64}']
            interleave(k, M[:12], pre + fill[:8])
            interleave(k, M[12:], fill[8:] + init_code(i))
        else:
            interleave(k, M, fill, lead=6)
    k.ts()
    k.raw('m_p3epi:')
    KK = -2.0 * 0.7978845608028654 * LOG2E
    c1, c3, ir2 = stv[0:4], stv[4:8], stv[8:12]
    for tt in range(4):
        k.i(f'v_mul_f32 {c1[tt]}, {fhex(KK)}, {rr[tt]}')
        k.i(f'v_mul_f32 {c3[tt]}, {rr[tt]}, {rr[tt]}')
        k.i(f'v_mul_f32 {c3[tt]}, {c3[tt]}, {c1[tt]}')
        k.i(f'v_mul_f32 {c3[tt]}, {fhex(0.044715)}, {c3[tt]}')
        k.i(f'v_mul_f32 {ir2[tt]}, {sd[tt]}, {sd[tt]}')
    EXB = 151552
    k.i(f's_lshl_b32 {so}, {th3}, 12')
    k.i(f's_add_u32 {so}, {so}, {EXB}')
    k.i(f'v_add_u32 {t1}, {so}, {l16}')
    sact, sasp = k.s(), k.s()
    k.i(f's_mul_i32 {sact}, {mt4o}, 56')
    k.i(f's_lshr_b32 {st1}, {nt3}, 1')
    k.i(f's_add_u32 {sasp}, {sact}, {st1}')
    k.i(f's_lshl_b32 {sasp}, {sasp}, 12')
    k.i(f's_and_b32 {st1}, {nt3}, 1')
    k.i(f's_lshl_b32 {st1}, {st1}, 11')
    k.i(f's_add_u32 {sasp}, {sasp}, {st1}')
    k.i(f's_add_u32 {sasp}, {sasp}, {WS_ACT}')
    k.i(f's_mul_i32 {st1}, {nt3}, 3')
    k.i(f's_add_u32 {sact}, {sact}, {st1}')
    k.i(f's_add_u32 {sact}, {sact}, 8')
    k.i(f's_lshl_b32 {sact}, {sact}, 12')
    k.i(f's_add_u32 {sact}, {sact}, {WS_ACT}')
    k.barrier()
    T = Fr[0:16]
    OUT = Fr[16:48]
    UX = Fr[48:64]

    def geglu(g, u, tt, o2, ti):
        t = T[(ti % 4) * 4:(ti % 4) * 4 + 4]
        for r in range(4):
            k.i(f'v_mul_f32 {t[r]}, {g[r]}, {g[r]}')
        for r in range(4):
            k.i(f'v_fma_f32 {t[r]}, {t[r]}, {c3[tt]}, {c1[tt]}')
        for r in range(4):
            k.i(f'v_mul_f32 {t[r]}, {t[r]}, {g[r]}')
        for r in range(4):
            k.i(f'v_exp_f32 {t[r]}, {t[r]}')
        for r in range(4):
            k.i(f'v_mul_f32 {u[r]}, {u[r]}, {g[r]}')
        for r in range(4):
            k.i(f'v_fma_f32 {t[r]}, {t[r]}, {ir2[tt]}, {ir2[tt]}')
        for r in range(4):
            k.i(f'v_rcp_f32 {t[r]}, {t[r]}')
        for r in range(4):
            k.i(f'v_mul_f32 {u[r]}, {u[r]}, {t[r]}')
        k.i(f'v_cvt_pk_bf16_f32 {o2[0]}, {u[0]}, {u[1]}')
        k.i(f'v_cvt_pk_bf16_f32 {o2[1]}, {u[2]}, {u[3]}')

    def A(i, tt):
        return acc[(i * 4 + tt) * 4:(i * 4 + tt) * 4 + 4]

    k.i(f's_cmp_eq_u32 {cg}, 1')
    k.i('s_cbranch_scc1 p3_epi1')
    stx = (list(k.vm), list(k.lg))
    cnt = 0
    for tt in range(4):
        o = OUT[tt * 4:tt * 4 + 4]
        geglu(A(0, tt), A(4, tt), tt, o[0:2], cnt)
        geglu(A(1, tt), A(5, tt), tt, o[2:4], cnt + 1)
        cnt += 2
        k.i(f'buffer_store_dwordx4 {o}, {l16}, {sws}, {sact} offen offset:{1024 * tt} sc1')
        if tt == 0:
            k.i('s_barrier')
            for t2_ in range(4):
                k.i(f'ds_read_b128 {UX[t2_ * 4:t2_ * 4 + 4]}, {t1} offset:{1024 * t2_}')
    k.i(f's_add_u32 {sact}, {sact}, 4096')
    for tt in range(4):
        o = OUT[16 + tt * 4:16 + tt * 4 + 4]
        geglu(A(2, tt), A(6, tt), tt, o[0:2], cnt)
        geglu(A(3, tt), UX[tt * 4:tt * 4 + 4], tt, o[2:4], cnt + 1)
        cnt += 2
        k.i(f'buffer_store_dwordx4 {o}, {l16}, {sws}, {sact} offen offset:{1024 * tt} sc1')
    k.i('s_branch p3_epid')
    k.raw('p3_epi1:')
    k._join()
    k.vm, k.lg = list(stx[0]), list(stx[1])
    for tt in range(4):
        k.i(f'ds_write_b128 {t1}, {A(0, tt)} offset:{1024 * tt}')
    k.barrier()
    k.i(f's_add_u32 {sact}, {sact}, 8192')
    cnt = 0
    for tt in range(4):
        o = OUT[tt * 4:tt * 4 + 4]
        geglu(A(1, tt), A(4, tt), tt, o[0:2], cnt)
        geglu(A(2, tt), A(5, tt), tt, o[2:4], cnt + 1)
        cnt += 2
        k.i(f'buffer_store_dwordx4 {o}, {l16}, {sws}, {sact} offen offset:{1024 * tt} sc1')
    for tp in range(2):
        o = OUT[16 + tp * 4:16 + tp * 4 + 4]
        geglu(A(3, 2 * tp), A(6, 2 * tp), 2 * tp, o[0:2], cnt)
        geglu(A(3, 2 * tp + 1), A(6, 2 * tp + 1), 2 * tp + 1, o[2:4], cnt + 1)
        cnt += 2
        k.i(f'buffer_store_dwordx4 {o}, {l16}, {sws}, {sasp} offen offset:{1024 * tp} sc1')
    k.raw('p3_epid:')
    k._join()
    k.lines.append('  s_waitcnt lgkmcnt(0)')
    k.lg = []
    k.force_wait = True
    k.ts()
    signal(1, 8192, 12288, mt3)
    k.force_wait = False

    k.release(mk_common)
    l8 = k.v()
    k.i(f'v_lshlrev_b32 {l8}, 3, {lane}')
    th4, kh = k.s(), k.s()
    k.i(f's_and_b32 {th4}, {wave}, 1')
    k.i(f's_lshr_b32 {kh}, {wave}, 1')
    acc = k.v(40)
    Fr = k.v(56)
    wa = k.v(2, align=1)
    xa, xsp = k.v(), k.v()
    k.i(f's_mul_i32 {so}, {kh}, 5120')
    k.i(f'v_add_u32 {wa[0]}, {so}, {l16}')
    k.i(f'v_add_u32 {wa[1]}, 61440, {wa[0]}')
    k.i(f's_lshl_b32 {so}, {kh}, 12')
    k.i(f's_add_u32 {so}, {so}, {X4[0]}')
    k.i(f's_lshl_b32 {st1}, {th4}, 11')
    k.i(f's_add_u32 {st1}, {st1}, {so}')
    k.i(f'v_add_u32 {xa}, {st1}, {l16}')
    k.i(f's_lshl_b32 {st1}, {th4}, 10')
    k.i(f's_add_u32 {st1}, {st1}, {so}')
    k.i(f'v_add_u32 {xsp}, {st1}, {l16}')
    xv = k.v(12)
    gbv = k.v(20)
    ttg = k.s()
    k.i(f's_lshl_b32 {ttg}, {mt2}, 2')
    k.i(f's_lshl_b32 {so}, {th4}, 1')
    k.i(f's_add_u32 {ttg}, {ttg}, {so}')
    k.i(f's_add_u32 {ttg}, {ttg}, {kh}')
    sreg, sspec = k.s(), k.s()
    x1_addr(ttg, nt2, sreg, sspec)
    k.i(f'buffer_load_dwordx4 {xv[0:4]}, {l16}, {sws}, {sreg} offen sc1')
    k.i(f's_add_u32 {sreg}, {sreg}, 8192')
    k.i(f'buffer_load_dwordx4 {xv[4:8]}, {l16}, {sws}, {sreg} offen sc1')
    k.i(f'buffer_load_dwordx2 {xv[8:10]}, {l8}, {sws}, {sspec} offen sc1')
    k.i(f'v_lshlrev_b32 {t2}, 4, {G}')
    k.i(f's_mul_i32 {st1}, {nt2}, 320')
    k.i(f's_add_u32 {so}, {st1}, {WS_MOD + 5 * 2560}')
    for ct in range(5):
        k.i(f'buffer_load_dwordx4 {gbv[4 * ct:4 * ct + 4]}, {t2}, {sws}, {so} offen offset:{64 * ct}')
    sout = k.srd(po, S * D * 2)
    k.barrier()
    k.ts()
    NS4 = 14
    steps = [(s, h) for s in range(NS4) for h in range(2) if 4 * s + 2 * h < 54]

    def prep4(idx):
        s, h = steps[idx]
        b = idx & 1
        L = []
        wb = W4[s % 5] + h * 10240
        wreg, wo_ = (wa[0], wb) if wb < 61440 else (wa[1], wb - 61440)
        xo_ = (s % 3) * 16384 + h * 8192
        L.append(f'ds_read_b128 {Fr[(b * 7 + 2) * 4:(b * 7 + 2) * 4 + 4]}, {wreg} offset:{wo_}')
        for t in range(2):
            x = Fr[(b * 7 + t) * 4:(b * 7 + t) * 4 + 4]
            if s < 2:
                L.append(f'ds_read_b64 {x[0:2]}, {xsp} offset:{xo_ + t * 8}')
                L.append(f'ds_read_b64 {x[2:4]}, {xsp} offset:{xo_ + 2048 + t * 8}')
            else:
                L.append(f'ds_read_b128 {x}, {xa} offset:{xo_ + t * 1024}')
        for ct in range(1, 5):
            L.append(f'ds_read_b128 {Fr[(b * 7 + 2 + ct) * 4:(b * 7 + 2 + ct) * 4 + 4]}, {wreg} offset:{wo_ + ct * 1024}')
        return L

    def mf4(idx):
        b = idx & 1
        L = []
        for ct in range(5):
            for t in range(2):
                a = acc[(ct * 2 + t) * 4:(ct * 2 + t) * 4 + 4]
                L.append(f'v_mfma_f32_16x16x32_bf16 {a}, {Fr[(b * 7 + 2 + ct) * 4:(b * 7 + 2 + ct) * 4 + 4]}, {Fr[(b * 7 + t) * 4:(b * 7 + t) * 4 + 4]}, {0 if idx == 0 else a}')
        return L

    k.barrier()
    k.ts()
    for x in prep4(0):
        k.i(x)
    for idx in range(len(steps)):
        if idx == 14:
            k.ts()
        if idx + 1 < len(steps):
            if steps[idx + 1][1] == 0:
                k.barrier()
            interleave(k, mf4(idx), prep4(idx + 1), lead=2)
        else:
            for x in mf4(idx):
                k.i(x)
    k.ts()
    k.i(f's_mul_i32 {so}, {wave}, 5120')
    k.i(f'v_add_u32 {t1}, {so}, {l16}')
    k.i(f's_xor_b32 {st1}, {wave}, 2')
    k.i(f's_mul_i32 {st1}, {st1}, 5120')
    k.i(f'v_add_u32 {t3}, {st1}, {l16}')
    mk = k.s(2)
    k.i(f's_cmp_eq_u32 {kh}, 1')
    k.i(f's_cselect_b64 {mk}, -1, 0')
    Sd = Fr[0:20]
    Kp = Fr[20:40]
    for ct in range(5):
        for r in range(4):
            a0_, a1_ = acc[(ct * 2) * 4 + r], acc[(ct * 2 + 1) * 4 + r]
            k.i(f'v_cndmask_b32 {Sd[4 * ct + r]}, {a1_}, {a0_}, {mk}')
            k.i(f'v_cndmask_b32 {Kp[4 * ct + r]}, {a0_}, {a1_}, {mk}')
        k.i(f'ds_write_b128 {t1}, {Sd[4 * ct:4 * ct + 4]} offset:{1024 * ct}')
    k.barrier()
    Rv = acc[0:20]
    for ct in range(5):
        k.i(f'ds_read_b128 {Rv[4 * ct:4 * ct + 4]}, {t3} offset:{1024 * ct}')
    k.i(f's_mul_i32 {so}, {ttg}, {16 * 1280}')
    k.i(f's_mul_i32 {st1}, {nt2}, 160')
    k.i(f's_add_u32 {so}, {so}, {st1}')
    k.i(f'v_mul_u32_u24 {t1}, 1280, {n}')
    k.i(f'v_lshl_add_u32 {t1}, {G}, 3, {t1}')
    xe = Fr[40:44]
    for ct in range(5):
        for q in range(2):
            k.i(f'v_lshlrev_b32 {xe[2 * q]}, 16, {xv[2 * ct + q]}')
            k.i(f'v_and_b32 {xe[2 * q + 1]}, 0xffff0000, {xv[2 * ct + q]}')
        for r in range(4):
            k.i(f'v_add_f32 {Kp[4 * ct + r]}, {Kp[4 * ct + r]}, {Rv[4 * ct + r]}')
        for r in range(4):
            k.i(f'v_fmac_f32 {xe[r]}, {Kp[4 * ct + r]}, {gbv[4 * ct + r]}')
        o = Fr[44 + 2 * ct:44 + 2 * ct + 2]
        for q in range(2):
            k.i(f'v_cvt_pk_bf16_f32 {o[q]}, {xe[2 * q]}, {xe[2 * q + 1]}')
        k.i(f'buffer_store_dwordx2 {o}, {t1}, {sout}, {so} offen offset:{32 * ct}')
    k.ts_end()
    k.i('s_endpgm')

    k.reset_state()
    k.release(mk_common)
    k.nts = nts2
    k.label('m_l2')
    lw = k.s()
    k.i(f's_sub_u32 {lw}, {wave}, 4')
    skv2, spq = k.s(), k.s()
    kvw = k.v(2, align=1)
    KR = k.v(40)
    ob = k.v(8)
    k.i(f's_lshr_b32 {st2}, {lw}, 1')
    k.i(f's_and_b32 {st1}, {lw}, 1')
    k.i(f's_mul_i32 {skv2}, {st2}, {16 * KVS}')
    k.i(f's_mul_i32 {so}, {st1}, 1792')
    k.i(f's_add_u32 {skv2}, {skv2}, {so}')
    k.i(f's_add_u32 {skv2}, {skv2}, {WS_KV}')
    k.i(f's_mul_i32 {st1}, {st1}, 112')
    k.i(f's_mul_i32 {st2}, {st2}, 1920')
    k.i(f's_add_u32 {st2}, {st2}, {RING2}')
    u1, u2_, u3 = KR[0], KR[1], KR[2]
    for i in range(2):
        k.i(f'v_add_u32 {t1}, {st1}, {lane}')
        k.i(f'v_add_u32 {t1}, {64 * i}, {t1}')
        k.i(f'v_mul_u32_u24 {t2}, 6554, {t1}')
        k.i(f'v_lshrrev_b32 {t2}, 16, {t2}')
        k.i(f'v_mul_u32_u24 {t3}, 10, {t2}')
        k.i(f'v_sub_u32 {t3}, {t1}, {t3}')
        k.i(f'v_mul_u32_u24 {u1}, 52, {t2}')
        k.i(f'v_lshrrev_b32 {u1}, 8, {u1}')
        k.i(f'v_mul_u32_u24 {u2_}, 5, {u1}')
        k.i(f'v_sub_u32 {u2_}, {t2}, {u2_}')
        k.i(f'v_lshrrev_b32 {u3}, 1, {t3}')
        k.i(f'v_lshl_add_u32 {kvw[i]}, {u1}, 2, {u2_}')
        k.i(f'v_lshlrev_b32 {kvw[i]}, 4, {kvw[i]}')
        k.i(f'v_lshl_add_u32 {kvw[i]}, {u3}, 8, {kvw[i]}')
        k.i(f'v_cmp_lt_u32 vcc, 20, {t2}')
        k.i(f'v_cndmask_b32 {u1}, {u1}, 5, vcc')
        k.i(f'v_lshlrev_b32 {u1}, 4, {u1}')
        k.i(f'v_lshl_add_u32 {u1}, {u3}, 7, {u1}')
        k.i(f'v_add_u32 {u1}, 1280, {u1}')
        k.i(f'v_cmp_eq_u32 vcc, 4, {u2_}')
        k.i(f'v_cndmask_b32 {kvw[i]}, {kvw[i]}, {u1}, vcc')
        k.i(f'v_cmp_lt_u32 vcc, 19, {t2}')
        k.i(f'v_cndmask_b32 {kvw[i]}, {kvw[i]}, {u1}, vcc')
        k.i(f'v_and_b32 {t3}, 1, {t3}')
        k.i(f'v_lshl_add_u32 {kvw[i]}, {t3}, 3, {kvw[i]}')
        k.i(f'v_add_u32 {kvw[i]}, {st2}, {kvw[i]}')
    dpq = k.s()
    k.i(f's_and_b32 {dpq}, {lw}, 1')
    k.i(f's_lshl_b32 {dpq}, {dpq}, 12')
    k.i(f's_mul_i32 {spq}, {mt2}, 163840')
    k.i(f's_add_u32 {spq}, {spq}, {dpq}')
    k.i(f's_add_u32 {spq}, {spq}, {WS_PHIQ}')
    sw3, dlo, dhi, sx3, dx3 = k.s(), k.s(), k.s(), k.s(), k.s()
    cw3, cx3 = k.s(), k.s()
    if os.environ.get('ROT3', '0') == '1':
        k.i(f's_add_u32 {cx3}, {nt3}, {mt3}')
        k.i(f's_and_b32 {cx3}, {cx3}, 3')
        k.i(f's_mul_i32 {cx3}, {cx3}, 5')
    else:
        k.i(f's_mov_b32 {cx3}, 0')
    k.i(f's_lshr_b32 {cw3}, {lw}, 1')
    k.i(f's_add_u32 {cw3}, {cw3}, {cx3}')
    k.i(f's_and_b32 {sw3}, {lw}, 1')
    k.i(f's_mul_i32 {sw3}, {sw3}, {112 * 1024}')
    k.i(f's_mul_i32 {so}, {nt3}, 7168')
    k.i(f's_add_u32 {sw3}, {sw3}, {so}')
    k.i(f's_add_u32 {sw3}, {sw3}, {WS_WGU}')
    k.i(f's_lshr_b32 {so}, {lw}, 1')
    k.i(f's_mul_i32 {so}, {so}, 14336')
    k.i(f's_and_b32 {st1}, {lw}, 1')
    k.i(f's_lshl_b32 {dlo}, {st1}, 12')
    k.i(f's_add_u32 {dlo}, {dlo}, {so}')
    k.i(f's_mul_i32 {dhi}, {st1}, 3072')
    k.i(f's_add_u32 {dhi}, {dhi}, 8192')
    k.i(f's_add_u32 {dhi}, {dhi}, {so}')
    k.i(f's_lshl_b32 {dx3}, {lw}, 11')
    k.i(f's_mul_i32 {sx3}, {mt3}, {20 * 8192}')
    k.i(f's_add_u32 {sx3}, {sx3}, {dx3}')
    k.i(f's_add_u32 {sx3}, {sx3}, {WS_X1}')

    def w3(p):
        k.i(f's_mul_i32 {so}, {cw3}, {2 * 112 * 1024}')
        k.i(f's_add_u32 {so}, {so}, {sw3}')
        k.i(f's_add_u32 {cw3}, {cw3}, 2')
        k.i(f's_cmp_ge_u32 {cw3}, 20')
        k.i(f's_cselect_b32 {st1}, 20, 0')
        k.i(f's_sub_u32 {cw3}, {cw3}, {st1}')
        k.i(f's_add_u32 m0, {dlo}, {W3[p % 4]}')
        for cc in range(4):
            k.i(f'buffer_load_dwordx4 {l16}, {sws}, {so} offen offset:{1024 * cc} lds', tag=f'w3_{p}')
        k.i(f's_add_u32 {so}, {so}, 4096')
        k.i(f's_add_u32 m0, {dhi}, {W3[p % 4]}')
        for cc in range(3):
            k.i(f'buffer_load_dwordx4 {l16}, {sws}, {so} offen offset:{1024 * cc} lds', tag=f'w3_{p}')

    def x3(J):
        k.i(f's_lshl_b32 {so}, {cx3}, 13')
        k.i(f's_add_u32 {so}, {so}, {sx3}')
        k.i(f's_add_u32 {cx3}, {cx3}, 1')
        k.i(f's_cmp_eq_u32 {cx3}, 20')
        k.i(f's_cselect_b32 {cx3}, 0, {cx3}')
        k.i(f's_add_u32 m0, {dx3}, {X3[J % 5]}')
        for i in range(2):
            k.i(f'buffer_load_dwordx4 {l16}, {sws}, {so} offen offset:{1024 * i} lds', tag=f'x3_{J}')

    sw4, sx4, dw4, dx4 = k.s(), k.s(), k.s(), k.s()
    r4 = k.s()
    if os.environ.get('ROT', '1') == '1':
        k.i(f's_mul_i32 {r4}, {nt2}, 6')
        k.i(f's_and_b32 {so}, {mt2}, 3')
        k.i(f's_mul_i32 {so}, {so}, 11')
        k.i(f's_add_u32 {r4}, {r4}, {so}')
    else:
        k.i(f's_mov_b32 {r4}, 0')
    k.i(f's_add_u32 {r4}, {r4}, {lw}')

    def e4(s):
        if s < 2:
            k.i(f's_add_u32 {st2}, {r4}, {4 * s}')
            k.i(f's_and_b32 {st2}, {st2}, 7')
        else:
            k.i(f's_add_u32 {st2}, {r4}, {4 * s - 8}')
            for _ in range(2):
                k.i(f's_cmp_ge_u32 {st2}, 46')
                k.i(f's_cselect_b32 {st1}, 46, 0')
                k.i(f's_sub_u32 {st2}, {st2}, {st1}')
            k.i(f's_add_u32 {st2}, {st2}, 8')

    k.i(f's_mul_i32 {sw4}, {nt2}, 5120')
    k.i(f's_add_u32 {sw4}, {sw4}, {WS_WDF}')
    k.i(f's_mul_i32 {dw4}, {lw}, 5120')
    k.i(f's_lshl_b32 {dx4}, {lw}, 12')
    k.i(f's_mul_i32 {sx4}, {mt2}, {56 * 4096}')
    k.i(f's_add_u32 {sx4}, {sx4}, {WS_ACT}')

    def w4(s):
        e4(s)
        k.i(f's_mul_i32 {so}, {st2}, 40960')
        k.i(f's_add_u32 {so}, {so}, {sw4}')
        k.i(f's_add_u32 m0, {dw4}, {W4[s % 5]}')
        for cc in range(4):
            k.i(f'buffer_load_dwordx4 {l16}, {sws}, {so} offen offset:{1024 * cc} lds', tag=f'w4_{s}')
        k.i(f's_add_u32 {so}, {so}, 4096')
        k.i(f's_add_u32 m0, {dw4}, {W4[s % 5] + 4096}')
        k.i(f'buffer_load_dwordx4 {l16}, {sws}, {so} offen lds', tag=f'w4_{s}')

    def x4(s):
        e4(s)
        k.i(f's_lshl_b32 {so}, {st2}, 12')
        k.i(f's_add_u32 {so}, {so}, {sx4}')
        k.i(f's_add_u32 m0, {dx4}, {X4[s % 3]}')
        for cc in range(4):
            k.i(f'buffer_load_dwordx4 {l16}, {sws}, {so} offen offset:{1024 * cc} lds', tag=f'x4_{s}')

    def ldk(s):
        k.i(f's_add_u32 {so}, {skv2}, {s * KVS}')
        for i in range(2):
            k.i(f'buffer_load_dwordx4 {KR[((s % 5) * 2 + i) * 4:((s % 5) * 2 + i) * 4 + 4]}, {l16}, {sws}, {so} offen offset:{1024 * i}')

    def stk(s):
        for i in range(2):
            kr = KR[((s % 5) * 2 + i) * 4:((s % 5) * 2 + i) * 4 + 4]
            o = ob[((s & 1) * 2 + i) * 2:((s & 1) * 2 + i) * 2 + 2]
            k.i(f'v_cvt_pk_bf16_f32 {o[0]}, {kr[0]}, {kr[1]}')
            k.i(f'v_cvt_pk_bf16_f32 {o[1]}, {kr[2]}, {kr[3]}')
            k.i(f'ds_write_b64 {kvw[i]}, {o} offset:{(s % 4) * SL2}')

    poll(G1, sx, 6)
    k.i('s_barrier')
    k.ts()
    for s in range(5):
        ldk(s)
    k.i(f's_mul_i32 {so}, {lw}, {SL2}')
    k.i(f'v_and_b32 {t1}, 1, {lane}')
    k.i(f'v_mul_u32_u24 {t1}, 1920, {t1}')
    k.i(f'v_add_u32 {t1}, {so}, {t1}')
    zz = k.v(4)
    for q in range(4):
        k.i(f'v_mov_b32 {zz[q]}, 0')
    stk(0)
    k.i(f'ds_write_b128 {t1}, {zz} offset:{RING2 + 1280 + 512 + 112}')
    for s in range(16):
        if s + 1 < 16:
            if s == 0:
                k.wait(lg=0)
            stk(s + 1) if s > 0 else None
        if s > 0:
            k.wait(lg=2 if s + 1 < 16 else 0)
        k.i('s_barrier')
        if s == 0:
            stk(1)
        if s in (0, 8):
            k.ts()
        if s == 5:
            k.i(f's_cmp_lg_u32 {wave}, 7')
            k.i('s_cbranch_scc1 m_nowr')
            k.i(f's_and_b32 {so}, s2, 15')
            k.i(f's_lshl_b32 {so}, {so}, 8')
            k.i(f's_add_u32 {so}, {so}, {WS_CNT + CW}')
            k.i(f'v_mov_b32 {t1}, 0')
            k.i(f'v_mov_b32 {t2}, 1')
            k.i('s_mov_b32 exec_lo, 1')
            k.i('s_mov_b32 exec_hi, 0')
            k.lines.append(f'  buffer_atomic_add {t2}, {t1}, {sws}, {so} offen sc1')
            k.i('s_mov_b64 exec, -1')
            k.raw('m_nowr:')
            k._join()
        if s + 5 < 16:
            ldk(s + 5)
    k.raw('m_l2j:')
    k.reset_state()
    if True:
        if True:
            k.i(f'v_lshlrev_b32 {t1}, 8, {n}')
            k.i(f's_mov_b32 {so}, {WS_CNT + CW}')
            k.i(f's_mov_b32 {st1}, 0')
            k.raw('m_wr:')
            for x in [f'buffer_load_dword {t2}, {t1}, {sws}, {so} offen sc1', 's_waitcnt vmcnt(0)',
                      f'v_cmp_gt_u32 vcc, 16, {t2}', f's_add_u32 {st1}, {st1}, 1', f's_cmp_ge_u32 {st1}, {SPIN_MAX}',
                      's_cbranch_scc1 m_wrd', 's_nop 1', 's_cbranch_vccnz m_wr']:
                k.lines.append('  ' + x)
            k.raw('m_wrd:')
            k._join()
            k.vm = []
            w3(0)
    k.ts()
    k.i('s_barrier')
    k.i('s_barrier')
    NPRE3 = int(os.environ.get('NPRE3', 2))
    for p in range(1, NPRE3):
        w3(p)
    k.ts()
    poll(G2, mt3)
    k.i('s_barrier')
    k.ts()
    LAX = 4
    for J in range(LAX):
        x3(J)
        if J >= 1 and NPRE3 + J - 1 < 4:
            w3(NPRE3 + J - 1)
    for J in range(20):
        if J % 2 == 0:
            k.wait_tag(f'w3_{J // 2}')
        k.wait_tag(f'x3_{J}')
        k.i('s_barrier')
        if J == 0:
            k.ts()
        if J == 10:
            k.ts()
        if J + LAX < 20:
            x3(J + LAX)
        if J % 2 == 0 and J >= 2 and J // 2 + 3 < 10:
            w3(J // 2 + 3)
        if J == 8 and os.environ.get('CPF', '1') == '1':
            mk_ = k.mark()
            k.i(f's_cmp_lg_u32 {wave}, 5')
            k.i('s_cbranch_scc1 m_nocpf')
            code_pf('m_p3epi', 'm_l2', 'a')
            k.raw('m_nocpf:')
            k._join()
            k.release(mk_)
        if J == 16:
            w4(0)
        if J == 17:
            w4(1)
    k.ts()
    k.i('s_barrier')
    k.i('s_barrier')
    w4(2)
    w4(3)
    w4(4)
    k.ts()
    k.i(f's_lshr_b32 {st2}, {mt2}, 1')
    sel = k.s()
    k.i(f's_mov_b32 {sel}, {st2}')
    poll(12288, sel)
    k.i('s_barrier')
    k.ts()
    x4(0)
    x4(1)
    for s in range(NS4):
        k.wait_tag(f'w4_{s}')
        k.wait_tag(f'x4_{s}')
        k.i('s_barrier')
        if s in (0, 7):
            k.ts()
        if s + 2 < NS4:
            x4(s + 2)
        if s >= 1 and s + 4 < NS4:
            w4(s + 4)
    k.ts()
    k.i('s_barrier')
    k.ts_end()
    k.label('p1_end')
    k.i('s_endpgm')
    return k, 256, 512, 163840


GENS = [gen_main]
```

```python
import os
from g2_common import *

SPIN_MAX = 400000
C2, G2, C3, G3, C1G, C1T, G1, CW = 0, 4096, 8192, 12288, 16384, 20480, 24576, 28672


def R_(base, n):
    return R('v', base, n)


def gen_main():
    k = Kernel('p1_kernel')
    TSX = os.environ.get('TSX')

    def tsx():
        if TSX == '1':
            k.ts()

    def tsz():
        if TSX == '3':
            k.ts()

    def tsy(c=True):
        if TSX == '2' and c:
            k.ts()

    c = common_prologue(k, 256, 'p1_end', 1)
    lane, G, n, l16, wave = c.lane, c.G, c.n, c.l16, c.wave
    KPS, LA, NST, NSL = 1, int(os.environ.get('P1_LA', 4)), 20, 8
    LQK, LV, LPK, LSIDE, LCS = 0, 129024, 40960, 141824, 0
    WOFB = 57344
    LMOD = 162304
    LCNT = 163840 - 64
    sx, sy, so, st1, st2 = k.s(), k.s(), k.s(), k.s(), k.s()
    mt2, nt2, mt3, nt3 = k.s(), k.s(), k.s(), k.s()
    px, po = k.s(2), k.s(2)
    rot2 = k.s()
    t1, t2, t3 = k.v(), k.v(), k.v()
    sws = k.s(4)
    mk_common = k.mark()

    def code_pf(lab_from, lab_to, tag):
        pc = k.s(2)
        k.lines.append(f'  s_getpc_b64 {pc}')
        k.lines.append(f'm_pc{tag}:')
        k.lines.append(f'  s_add_u32 {pc[0]}, {pc[0]}, {lab_from}-m_pc{tag}')
        k.lines.append(f'  s_addc_u32 {pc[1]}, {pc[1]}, ({lab_from}-m_pc{tag})>>32')
        k.i(f'v_lshlrev_b32 {t1}, 12, {lane}')
        k.i(f's_lshl_b32 {so}, {sy}, 7')
        k.i(f'v_add_u32 {t1}, {so}, {t1}')
        k.lines.append(f'  v_cmp_gt_u32 vcc, {lab_to}-{lab_from}-4, {t1}')
        k.lines.append(f'  s_and_saveexec_b64 {k.s(2)}, vcc')
        k.lines.append(f'  s_cbranch_execz m_pcx{tag}')
        k.lines.append(f'  global_load_dword {t2}, {t1}, {pc}')
        k.lines.append(f'm_pcx{tag}:')
        k.i('s_mov_b64 exec, -1')

    mt, hp = k.s(), k.s()
    k.i(f's_and_b32 {sx}, s2, 7')
    k.i(f's_lshr_b32 {sy}, s2, 3')
    k.i(f's_lshr_b32 {mt}, {sx}, 1')
    k.i(f's_lshl_b32 {mt}, {mt}, 2')
    k.i(f's_and_b32 {hp}, {sy}, 3')
    k.i(f's_add_u32 {mt}, {mt}, {hp}')
    k.i(f's_and_b32 {hp}, {sx}, 1')
    k.i(f's_lshl_b32 {hp}, {hp}, 3')
    k.i(f's_lshr_b32 {so}, {sy}, 2')
    k.i(f's_add_u32 {hp}, {hp}, {so}')
    hw, sg_, sm0 = k.s(), k.s(), k.s()
    k.i(f's_and_b32 {hw}, {wave}, 3')
    k.i(f's_mul_i32 {sg_}, {hp}, 163840')
    k.i(f's_add_u32 {sg_}, {sg_}, {WS_WP}')
    k.i(f's_mul_i32 {so}, {mt}, 163840')
    k.i(f's_add_u32 {so}, {so}, {WS_XN - 8192}')
    k.i(f's_cmp_ge_u32 {hw}, 2')
    k.i(f's_cselect_b32 {sg_}, {so}, {sg_}')
    k.i(f's_lshl_b32 {sm0}, {hw}, 12')
    k.i(f's_add_u32 {sg_}, {sg_}, {sm0}')
    k.i(f's_mov_b32 {sws[0]}, {c.ws[0]}')
    k.i(f's_and_b32 {sws[1]}, {c.ws[1]}, 0xffff')
    k.i(f's_mov_b32 {sws[2]}, {WS_END}')
    k.i(f's_mov_b32 {sws[3]}, 0x00020000')

    cur1 = k.s()
    if os.environ.get('ROT1', '0') == '1':
        k.i(f's_and_b32 {cur1}, {hp}, 7')
        k.i(f's_mul_i32 {cur1}, {cur1}, 5')
        k.i(f's_lshr_b32 {cur1}, {cur1}, 1')
        k.i(f's_and_b32 {so}, {mt}, 3')
        k.i(f's_mul_i32 {so}, {so}, 5')
        k.i(f's_add_u32 {cur1}, {cur1}, {so}')
        k.i(f's_cmp_ge_u32 {cur1}, 20')
        k.i(f's_cselect_b32 {so}, 20, 0')
        k.i(f's_sub_u32 {cur1}, {cur1}, {so}')
        k.i(f's_lshl_b32 {cur1}, {cur1}, 13')
    else:
        k.i(f's_mov_b32 {cur1}, 0')

    def dma_stage(s):
        k.i(f's_add_u32 {st1}, {sg_}, {cur1}')
        k.i(f's_add_u32 {cur1}, {cur1}, 8192')
        k.i(f's_cmp_eq_u32 {cur1}, 163840')
        k.i(f's_cselect_b32 {cur1}, 0, {cur1}')
        k.i(f's_add_u32 m0, {sm0}, {(s % 8) * 16384}')
        for i in range(4):
            k.i(f'buffer_load_dwordx4 {l16}, {sws}, {st1} offen offset:{1024 * i} lds', tag=f'w{s}')

    k.i(f's_cmp_lt_u32 {wave}, 4')
    k.i('s_cbranch_scc1 m_setup')
    NPRE = 3
    for s in range(NPRE):
        dma_stage(s)
    vm_L = list(k.vm)
    k.raw('m_setup:')
    k._join()
    k.vm = []
    k.i(f's_load_dwordx2 {px}, s[0:1], {KA_X}')
    k.i(f's_load_dwordx2 {po}, s[0:1], {KA_OUT}')
    k.i(f's_lshl_b32 {mt2}, {sx}, 2')
    k.i(f's_and_b32 {nt2}, {sy}, 3')
    k.i(f's_add_u32 {mt2}, {mt2}, {nt2}')
    k.i(f's_lshr_b32 {nt2}, {sy}, 2')
    k.i(f's_and_b32 {mt3}, {sx}, 1')
    k.i(f's_lshl_b32 {mt3}, {mt3}, 3')
    k.i(f's_and_b32 {nt3}, {sy}, 7')
    k.i(f's_add_u32 {mt3}, {mt3}, {nt3}')
    k.i(f's_lshr_b32 {nt3}, {sx}, 1')
    k.i(f's_lshl_b32 {nt3}, {nt3}, 2')
    k.i(f's_lshr_b32 {so}, {sy}, 3')
    k.i(f's_add_u32 {nt3}, {nt3}, {so}')
    k.i(f's_mov_b32 {rot2}, 0')
    k.i(f'v_lshlrev_b32 {t1}, 2, {n}')
    k.i(f'v_add_u32 {t1}, {LCNT}, {t1}')
    k.i(f'v_mov_b32 {t2}, 0')
    k.i(f'ds_write_b32 {t1}, {t2}')
    sty, srowA, srowB, sdst, scol, ks, p_ = k.s(), k.s(), k.s(), k.s(), k.s(), k.s(), k.s()
    ssd = k.s(4)
    mk_tmp = k.mark()
    ska, sstr, cblk, u2, q_, t_, t2_ = k.s(), k.s(), k.s(), k.s(), k.s(), k.s(), k.s()
    k.i(f's_mul_i32 {ks}, s2, 1214')
    k.i(f's_lshr_b32 {ks}, {ks}, 16')
    k.i(f's_mul_i32 {t_}, {ks}, 54')
    k.i(f's_sub_u32 {cblk}, s2, {t_}')
    k.i(f's_cmp_ge_u32 s2, 216')
    k.i(f's_cselect_b32 {t_}, 100, {wave}')
    k.i(f's_cmp_lt_u32 {t_}, 5')
    k.i(f's_cselect_b32 {sty}, 0, 3')
    k.i(f's_min_u32 {ks}, {ks}, 3')
    k.i(f's_lshl_b32 {t2_}, {wave}, 2')
    k.i(f's_lshr_b32 {t2_}, 0x47520, {t2_}')
    k.i(f's_and_b32 {t2_}, {t2_}, 15')
    k.i(f's_mul_i32 {srowA}, {ks}, 10')
    k.i(f's_add_u32 {srowA}, {srowA}, {t2_}')
    k.i(f's_cmp_eq_u32 {wave}, 4')
    k.i(f's_cselect_b32 {t2_}, 5, 1')
    k.i(f's_add_u32 {srowB}, {srowA}, {t2_}')
    k.i(f's_cmp_ge_u32 {cblk}, 27')
    k.i(f's_cselect_b32 {ska}, {KA_WU}, {KA_WG}')
    k.i(f's_cselect_b32 {t_}, 27, 0')
    k.i(f's_cselect_b32 {t2_}, 112, 0')
    k.i(f's_sub_u32 {t_}, {cblk}, {t_}')
    k.i(f's_lshl_b32 {scol}, {t_}, 7')
    k.i(f's_lshl_b32 {t_}, {t_}, 2')
    k.i(f's_add_u32 {p_}, {t_}, {t2_}')
    k.i(f's_mul_i32 {sdst}, {ks}, 5')
    k.i(f's_add_u32 {sdst}, {sdst}, {wave}')
    k.i(f's_mul_i32 {sdst}, {sdst}, 224')
    k.i(f's_add_u32 {sdst}, {sdst}, {p_}')
    k.i(f's_lshl_b32 {sdst}, {sdst}, 10')
    k.i(f's_add_u32 {sdst}, {sdst}, {WS_WGU}')
    k.i(f's_mov_b32 {sstr}, {F * 2}')
    k.i(f's_load_dwordx2 {ssd[0:2]}, s[0:1], {ska}')
    k.i(f's_lshl_b32 {srowA}, {srowA}, 4')
    k.i(f's_lshl_b32 {srowB}, {srowB}, 4')
    SA = k.v(4, align=1)
    k.i(f'v_and_b32 {t3}, 7, {lane}')
    k.i(f'v_lshlrev_b32 {t3}, 4, {t3}')
    k.i(f'v_lshrrev_b32 {t1}, 3, {lane}')
    for i in range(4):
        k.i(f'v_add_u32 {t2}, {srowA if i < 2 else srowB}, {t1}')
        if i & 1:
            k.i(f'v_add_u32 {t2}, 8, {t2}')
        k.i(f'v_mul_lo_u32 {t2}, {t2}, {sstr}')
        k.i(f'v_add_u32 {SA[i]}, {t2}, {t3}')
    k.ns = mk_tmp[2]
    E = Ctx()
    PR = k.v(16, align=1)
    E.sq, E.skv = k.s(), k.s()
    hh, ft = k.s(), k.s()

    def epi_addr(tmp):
        hq, qa, ql, ka = tmp[0], PR[0], PR[1], PR[2]
        sq = E.sq
        E.qa, E.ql, E.ka, E.qk_a, E.sgl, E.ka2 = qa, ql, ka, PR[3], PR[14], PR[15]
        hd, sg = tmp[2], tmp[3]
        k.i(f'v_and_b32 {hd}, 1, {G}')
        k.i(f'v_lshrrev_b32 {sg}, 1, {G}')
        k.i(f'v_lshlrev_b32 {PR[14]}, 31, {sg}')
        k.i(f'v_xor_b32 {PR[14]}, {fhex(LOG2E)}, {PR[14]}')
        k.i(f's_lshl_b32 {so}, {hp}, 1')
        k.i(f'v_add_u32 {hq}, {so}, {hd}')
        k.i(f'v_and_b32 {tmp[4]}, 15, {hq}')
        k.i(f'v_lshrrev_b32 {tmp[5]}, 4, {hq}')
        k.i(f'v_lshlrev_b32 {tmp[5]}, 10, {tmp[5]}')
        k.i(f'v_lshl_add_u32 {tmp[5]}, {n}, 4, {tmp[5]}')
        k.i(f'v_lshl_add_u32 {qa}, {tmp[4]}, 13, {tmp[5]}')
        k.i(f'v_lshl_add_u32 {qa}, {sg}, 9, {qa}')
        k.i(f'v_lshrrev_b32 {ql}, 2, {tmp[4]}')
        k.i(f'v_add_u32 {ql}, 16, {ql}')
        k.i(f'v_lshl_add_u32 {ql}, {ql}, 13, {tmp[5]}')
        k.i(f'v_and_b32 {tmp[4]}, 3, {hq}')
        k.i(f'v_lshl_add_u32 {ql}, {tmp[4]}, 8, {ql}')
        k.i(f'v_lshl_add_u32 {ql}, {sg}, 3, {ql}')
        k.i(f'v_mul_u32_u24 {ka}, 160, {n}')
        k.i(f'v_mul_u32_u24 {tmp[4]}, 80, {hd}')
        k.i(f'v_add_u32 {ka}, {ka}, {tmp[4]}')
        k.i(f's_mul_i32 {so}, {wave}, 2560')
        k.i(f's_add_u32 {so}, {so}, {LPK}')
        k.i(f'v_add_u32 {ka}, {so}, {ka}')
        k.i(f'v_lshl_add_u32 {PR[15]}, {sg}, 3, {ka}')
        k.i(f'v_add_u32 {PR[15]}, 64, {PR[15]}')
        k.i(f'v_lshl_add_u32 {ka}, {sg}, 5, {ka}')
        k.i(f's_lshl_b32 {sq}, {mt}, 1')
        k.i(f's_lshr_b32 {so}, {wave}, 2')
        k.i(f's_add_u32 {sq}, {sq}, {so}')
        k.i(f's_mul_i32 {sq}, {sq}, 163840')
        k.i(f's_and_b32 {so}, {wave}, 3')
        k.i(f's_lshl_b32 {so}, {so}, 11')
        k.i(f's_add_u32 {sq}, {sq}, {so}')
        k.i(f's_add_u32 {sq}, {sq}, {WS_PHIQ}')
        k.i(f's_mul_i32 {so}, {wave}, 5120')
        k.i(f's_add_u32 {so}, {so}, {LQK}')
        k.i(f'v_lshlrev_b32 {PR[3]}, 8, {hd}')
        k.i(f'v_lshl_add_u32 {PR[3]}, {n}, 4, {PR[3]}')
        k.i(f'v_add_u32 {PR[3]}, {so}, {PR[3]}')
        k.i(f's_cmp_ge_u32 {wave}, 3')
        k.i(f's_cselect_b32 {hh}, 1, 0')
        k.i(f's_mul_i32 {ft}, {hh}, 3')
        k.i(f's_sub_u32 {ft}, {wave}, {ft}')
        tb, ta = PR[4], PR[5]
        E.tb, E.ta = tb, ta
        rr_, cc_ = tmp[4], tmp[5]
        k.i(f'v_lshrrev_b32 {rr_}, 2, {lane}')
        k.i(f'v_and_b32 {cc_}, 3, {lane}')
        k.i(f'v_mul_u32_u24 {tb}, 160, {rr_}')
        k.i(f'v_lshl_add_u32 {tb}, {cc_}, 3, {tb}')
        k.i(f's_mul_i32 {so}, {hh}, 80')
        k.i(f's_lshl_b32 {st1}, {ft}, 5')
        k.i(f's_add_u32 {so}, {so}, {st1}')
        k.i(f's_add_u32 {so}, {so}, {LPK}')
        k.i(f'v_add_u32 {tb}, {so}, {tb}')
        k.i(f'v_mul_u32_u24 {ta}, 96, {rr_}')
        k.i(f'v_lshl_add_u32 {ta}, {cc_}, 3, {ta}')
        k.i(f's_lshl_b32 {so}, {hh}, 5')
        k.i(f's_add_u32 {so}, {so}, {LV}')
        k.i(f'v_add_u32 {ta}, {so}, {ta}')
        aa = PR[6:14]
        E.aa = aa
        fo, dr = tmp[6], tmp[7]
        k.i(f's_lshl_b32 {so}, {ft}, 4')
        k.i(f'v_add_u32 {fo}, {so}, {n}')
        k.i(f'v_cmp_lt_u32 vcc, 39, {fo}')
        k.i(f'v_lshlrev_b32 {fo}, 2, {fo}')
        big = tmp[1]
        k.i(f'v_mov_b32 {big}, 0x7f000000')
        k.i(f'v_cndmask_b32 {fo}, {fo}, {big}, vcc')
        k.i(f's_lshl_b32 {so}, {hh}, 3')
        for dt in range(2):
            for r in range(4):
                a = aa[dt * 4 + r]
                k.i(f'v_lshlrev_b32 {dr}, 2, {G}')
                k.i(f'v_add_u32 {dr}, {16 * dt + r}, {dr}')
                k.i(f'v_subrev_u32 {dr}, {so}, {dr}')
                k.i(f'v_cmp_lt_u32 vcc, 20, {dr}')
                k.i(f'v_mul_u32_u24 {a}, 160, {dr}')
                k.i(f'v_add_u32 {a}, {a}, {fo}')
                k.i(f'v_cndmask_b32 {a}, {a}, {big}, vcc')
        skv = E.skv
        k.i(f's_lshl_b32 {skv}, {hp}, 1')
        k.i(f's_add_u32 {skv}, {skv}, {hh}')
        k.i(f's_mul_i32 {skv}, {skv}, {KVS}')
        k.i(f's_add_u32 {skv}, {skv}, {WS_KV}')

    swo = k.s()
    k.i(f's_mul_i32 {swo}, {nt2}, 5120')
    k.i(f's_add_u32 {swo}, {swo}, {WS_WOF}')

    def wof_jj(sbase, add):
        k.i(f's_add_u32 {st2}, {sbase}, {add}')
        k.i(f's_lshr_b32 {so}, {st2}, 1')
        k.i(f's_and_b32 {st1}, {st2}, 1')
        k.i(f's_mul_i32 {st1}, {st1}, 10')
        k.i(f's_add_u32 {so}, {so}, {st1}')
        k.i(f's_mul_i32 {so}, {so}, 40960')
        k.i(f's_add_u32 {so}, {so}, {swo}')
        k.i(f's_add_u32 {st2}, {st2}, 2')
        k.i(f's_cmp_ge_u32 {st2}, 20')
        k.i(f's_cselect_b32 {st1}, 20, 0')
        k.i(f's_sub_u32 {st2}, {st2}, {st1}')
        k.i(f's_mul_i32 {st1}, {st2}, 5120')
        k.i(f's_add_u32 {st1}, {st1}, {WOFB}')
        k.i(f's_and_b32 {st2}, {mt2}, 3')
        k.i(f's_lshl_b32 {st2}, {st2}, 10')
        for cc in range(5):
            k.i(f's_add_u32 m0, {st1}, {st2}')
            k.i(f's_add_u32 {rot2}, {so}, {st2}')
            k.i(f'buffer_load_dwordx4 {l16}, {sws}, {rot2} offen lds', tag='wof')
            if cc < 4:
                k.i(f's_add_u32 {st2}, {st2}, 1024')
                k.i(f's_cmp_eq_u32 {st2}, 5120')
                k.i(f's_cselect_b32 {st2}, 0, {st2}')

    mk_p1 = k.mark()
    RR = k.v(168)
    epi_addr(RR[0:8])
    k.i(f's_and_b32 {ssd[1]}, {ssd[1]}, 0xffff')
    k.i(f's_mov_b32 {ssd[2]}, {D * F * 2}')
    k.i(f's_mov_b32 {ssd[3]}, 0x00020000')
    k.release(mk_p1)
    k.wait(lg=0)
    k.i(f's_cmp_ge_u32 {wave}, 4')
    k.i('s_cbranch_scc1 m_l1')
    nts0 = k.nts
    mk_f = k.mark()
    fp = k.v(12, align=1)
    k.i(f's_mul_i32 {so}, {ks}, 160')
    k.i(f'v_min_u32 {t1}, 159, v0')
    k.i(f'v_add_u32 {t2}, {so}, {t1}')
    k.i(f'v_lshlrev_b32 {t2}, 2, {t2}')
    k.i(f's_sub_u32 {st1}, s2, 216')
    k.i(f's_min_u32 {so}, {st1}, 4')
    k.i(f's_lshl_b32 {so}, {so}, 8')
    k.i(f'v_add_u32 {t3}, {so}, v0')
    k.i(f'v_cmp_lt_u32 vcc, 639, {t3}')
    k.i(f'v_mov_b32 {fp[0]}, {3200 - 640}')
    k.i(f'v_mov_b32 {fp[1]}, 1280')
    k.i(f'v_cndmask_b32 {fp[0]}, {fp[1]}, {fp[0]}, vcc')
    k.i(f'v_add_u32 {t3}, {t3}, {fp[0]}')
    k.i(f'v_lshlrev_b32 {t3}, 2, {t3}')
    for ks_ in range(4):
        k.i(f's_mov_b32 {so}, {WS_MODP + ks_ * 15360 + 3 * 2560}')
        k.i(f'buffer_load_dword {fp[ks_]}, {t2}, {sws}, {so} offen')
        k.i(f'buffer_load_dword {fp[4 + ks_]}, {t2}, {sws}, {so} offen offset:2560')
    k.i(f's_cmp_ge_u32 {st1}, 5')
    k.i('s_cbranch_scc1 m_nofin')
    vmk = list(k.vm)
    for ks_ in range(4):
        k.i(f's_mov_b32 {so}, {WS_MODP + ks_ * 15360}')
        k.i(f'buffer_load_dword {fp[8 + ks_]}, {t3}, {sws}, {so} offen')
    k.i(f'v_add_f32 {fp[8]}, {fp[8]}, {fp[9]}')
    k.i(f'v_add_f32 {fp[10]}, {fp[10]}, {fp[11]}')
    k.i(f'v_add_f32 {fp[8]}, {fp[8]}, {fp[10]}')
    round_bf16(k, fp[8], fp[8])
    k.i(f'buffer_store_dword {fp[8]}, {t3}, {sws}, 0 offen offset:{WS_MOD} sc1')
    k.raw('m_nofin:')
    k._join()
    k.vm = vmk
    for o_ in (0, 4):
        k.i(f'v_add_f32 {fp[o_]}, {fp[o_]}, {fp[o_ + 1]}')
        k.i(f'v_add_f32 {fp[o_ + 2]}, {fp[o_ + 2]}, {fp[o_ + 3]}')
        k.i(f'v_add_f32 {fp[o_]}, {fp[o_]}, {fp[o_ + 2]}')
        round_bf16(k, fp[o_], fp[o_])
    k.i(f'v_add_f32 {fp[4]}, 1.0, {fp[4]}')
    round_bf16(k, fp[4], fp[4])
    k.i(f'v_lshlrev_b32 {t1}, 2, {t1}')
    k.i(f'v_add_u32 {t1}, {LMOD}, {t1}')
    k.i(f'ds_write_b32 {t1}, {fp[0]}')
    k.i(f'ds_write_b32 {t1}, {fp[4]} offset:640')
    k.release(mk_f)
    acc = k.v(64)
    Fr = k.v(64)
    R = k.v(40)
    th, ch = k.s(), k.s()
    k.i(f's_and_b32 {th}, {wave}, 1')
    k.i(f's_lshr_b32 {ch}, {wave}, 1')
    ha, wa = k.v(2, align=1), k.v(2, align=1)
    k.i(f's_lshl_b32 {so}, {th}, 12')
    k.i(f's_add_u32 {so}, {so}, 8192')
    k.i(f'v_add_u32 {ha[0]}, {so}, {l16}')
    k.i(f'v_add_u32 {ha[1]}, 65536, {ha[0]}')
    k.i(f's_lshl_b32 {so}, {ch}, 12')
    k.i(f'v_add_u32 {wa[0]}, {so}, {l16}')
    k.i(f'v_add_u32 {wa[1]}, 65536, {wa[0]}')

    def prep(J):
        L = []
        b = J & 1
        blk = J % 8
        for i in range(4):
            o = (blk & 3) * 16384 + i * 1024
            L.append(f'ds_read_b128 {Fr[(b * 8 + 4 + i) * 4:(b * 8 + 4 + i) * 4 + 4]}, {wa[blk >> 2]} offset:{o}')
            L.append(f'ds_read_b128 {Fr[(b * 8 + i) * 4:(b * 8 + i) * 4 + 4]}, {ha[blk >> 2]} offset:{o}')
        return L

    def mfmas(J):
        L = []
        b = J & 1
        for d in range(7):
            for ci in range(4):
                ti = d - ci
                if 0 <= ti < 4:
                    a = acc[(ci * 4 + ti) * 4:(ci * 4 + ti) * 4 + 4]
                    L.append(f'v_mfma_f32_16x16x32_bf16 {a}, {Fr[(b * 8 + 4 + ci) * 4:(b * 8 + 4 + ci) * 4 + 4]}, {Fr[(b * 8 + ti) * 4:(b * 8 + ti) * 4 + 4]}, {0 if J == 0 else a}')
        return L

    k.ts()
    k.barrier()
    k.ts()
    for x in prep(0):
        k.i(x)
    for J in range(20):
        if J == 10:
            k.ts()
        if J + 1 < 20:
            if (J + 1) % KPS == 0:
                k.barrier()
            interleave(k, mfmas(J), prep(J + 1), lead=4)
        else:
            for x in mfmas(J):
                k.i(x)
    k.ts()
    da = R[8]
    k.i(f's_mul_i32 {so}, {th}, {4 * 5120}')
    k.i(f's_add_u32 {so}, {so}, {LQK}')
    k.i(f'v_add_u32 {da}, {so}, {l16}')
    k.i(f's_cmp_eq_u32 {ch}, 1')
    k.i('s_cbranch_scc1 p1_dump1')
    stx = (list(k.vm), list(k.lg))
    for ci in range(4):
        for ti in range(4):
            k.i(f'ds_write_b128 {da}, {acc[(ci * 4 + ti) * 4:(ci * 4 + ti) * 4 + 4]} offset:{ti * 5120 + ci * 1024}')
    k.i('s_branch p1_dumped')
    k.raw('p1_dump1:')
    k._join()
    k.vm, k.lg = list(stx[0]), list(stx[1])
    for ti in range(4):
        k.i(f'ds_write_b128 {da}, {acc[ti * 4:ti * 4 + 4]} offset:{ti * 5120 + 4096}')
    va = R[9]
    k.i(f'v_mul_u32_u24 {va}, 96, {n}')
    k.i(f'v_lshl_add_u32 {va}, {G}, 3, {va}')
    k.i(f's_mul_i32 {so}, {th}, {64 * 96}')
    k.i(f's_add_u32 {so}, {so}, {LV}')
    k.i(f'v_add_u32 {va}, {so}, {va}')
    m1, m3 = k.s(2), k.s(2)
    k.i(f'v_cmp_eq_u32 {m1}, 1, {G}')
    k.i(f'v_cmp_eq_u32 {m3}, 3, {G}')
    for ci in range(1, 4):
        for ti in range(4):
            a = acc[(ci * 4 + ti) * 4:(ci * 4 + ti) * 4 + 4]
            if ci == 2:
                k.i(f'v_cndmask_b32 {a[0]}, {a[0]}, 1.0, {m1}')
            if ci == 3:
                k.i(f'v_cndmask_b32 {a[0]}, {a[0]}, 1.0, {m3}')
            o = R[12 + ((ci * 4 + ti) % 8) * 2:12 + ((ci * 4 + ti) % 8) * 2 + 2]
            k.i(f'v_cvt_pk_bf16_f32 {o[0]}, {a[0]}, {a[1]}')
            k.i(f'v_cvt_pk_bf16_f32 {o[1]}, {a[2]}, {a[3]}')
            k.i(f'ds_write_b64 {va}, {o} offset:{ti * 16 * 96 + (ci - 1) * 32}')
    k.raw('p1_dumped:')
    k._join()
    k.lines.append('  s_waitcnt lgkmcnt(0)')
    k.lg = []
    assert acc.base == RR.base
    k.i('s_branch m_j1')
    nts1 = k.nts
    k.reset_state()
    k.release(mk_p1)
    k.vm = list(vm_L)
    k.nts = nts0
    k.label('m_l1')
    nxt = NPRE
    k.ts()
    for s in range(NST):
        if s == NST // 2:
            k.ts()
        k.wait_tag(f'w{s}')
        k.barrier()
        if s == 0:
            k.ts()
        cnt = 0
        while nxt < NST and nxt <= min(s + LA, s - 1 + NSL) and cnt < 2:
            dma_stage(nxt)
            nxt += 1
            cnt += 1
        if 16 <= s <= 18:
            wof_jj(hw, 4 * (s - 16))
    k.ts()
    assert k.nts == nts1
    k.raw('m_j1:')
    k.reset_state()
    k.release(mk_p1)
    R = k.v(168)
    tmp = R[0:8]
    P, ph = R[8:28], R[28:40]
    cb, sb = R[152:160], R[160:168]
    k.i(f's_cmp_lg_u32 {sty}, 0')
    k.i('s_cbranch_scc1 m_noside')
    k.i(f's_lshl_b32 {so}, {wave}, 12')
    k.i(f's_add_u32 {so}, {so}, {LSIDE}')
    for i in range(4):
        k.i(f's_add_u32 m0, {so}, {1024 * i}')
        k.i(f'buffer_load_dwordx4 {SA[i]}, {ssd}, {scol} offen lds', tag='side')
    k.raw('m_noside:')
    k._join()
    qa, ql, ka, qk_a, sgl, sq = E.qa, E.ql, E.ka, E.qk_a, E.sgl, E.sq
    tb, ta, aa, skv = E.tb, E.ta, E.aa, E.skv

    def softmax(P, ph, tmp):
        mx, s0, s1 = tmp[0], tmp[1], tmp[2]
        for i in range(20):
            k.i(f'v_mul_f32 {P[i]}, {P[i]}, {sgl}')
        k.i(f'v_max3_f32 {mx}, {P[0]}, {P[1]}, {P[2]}')
        k.i(f'v_max3_f32 {s0}, {P[3]}, {P[4]}, {P[5]}')
        for i in range(6, 18, 4):
            k.i(f'v_max3_f32 {mx}, {mx}, {P[i]}, {P[i + 1]}')
            k.i(f'v_max3_f32 {s0}, {s0}, {P[i + 2]}, {P[i + 3]}')
        k.i(f'v_max3_f32 {mx}, {mx}, {P[18]}, {P[19]}')
        k.i(f'v_max_f32 {mx}, {mx}, {s0}')
        for i in range(20):
            k.i(f'v_sub_f32 {P[i]}, {P[i]}, {mx}')
        for i in range(20):
            k.i(f'v_exp_f32 {P[i]}, {P[i]}')
        k.i(f'v_add_f32 {s0}, {P[0]}, {P[1]}')
        k.i(f'v_add_f32 {s1}, {P[2]}, {P[3]}')
        for i in range(4, 20, 2):
            k.i(f'v_add_f32 {s0}, {s0}, {P[i]}')
            k.i(f'v_add_f32 {s1}, {s1}, {P[i + 1]}')
        k.i(f'v_add_f32 {s0}, {s0}, {s1}')
        k.i(f'v_rcp_f32 {s0}, {s0}')
        for i in range(20):
            k.i(f'v_mul_f32 {P[i]}, {P[i]}, {s0}')
        for i in range(10):
            k.i(f'v_cvt_pk_bf16_f32 {ph[i]}, {P[2 * i]}, {P[2 * i + 1]}')

    k.i('s_barrier')
    k.ts()
    PQ, phq = R[40:60], R[60:72]
    for t in range(5):
        k.i(f'ds_read_b128 {P[4 * t:4 * t + 4]}, {qk_a} offset:{1024 * t}')
    for t in range(5):
        k.i(f'ds_read_b128 {PQ[4 * t:4 * t + 4]}, {qk_a} offset:{1024 * t + 512}')
    softmax(P, ph, tmp)
    k.i(f'ds_write_b128 {ka}, {ph[0:4]}')
    k.i(f'ds_write_b128 {ka}, {ph[4:8]} offset:16')
    k.i(f'ds_write_b64 {E.ka2}, {ph[8:10]}')
    k.barrier()
    k.ts()
    Bf, Af, Dd = R[104:120], R[120:152], R[8:16]
    for kk in range(4):
        for hf in range(2):
            k.i(f'ds_read_b64_tr_b16 {Bf[kk * 4 + 2 * hf:kk * 4 + 2 * hf + 2]}, {tb} offset:{(kk * 32 + hf * 16) * 160}')
        for dt in range(2):
            for hf in range(2):
                b = (kk * 2 + dt) * 4 + 2 * hf
                k.i(f'ds_read_b64_tr_b16 {Af[b:b + 2]}, {ta} offset:{(kk * 32 + hf * 16) * 96 + dt * 32}')
    for kk in range(4):
        for dt in range(2):
            d = Dd[dt * 4:dt * 4 + 4]
            k.i(f'v_mfma_f32_16x16x32_bf16 {d}, {Af[(kk * 2 + dt) * 4:(kk * 2 + dt) * 4 + 4]}, {Bf[kk * 4:kk * 4 + 4]}, {0 if kk == 0 else d}')
    for i in range(8):
        k.i(f'buffer_atomic_add_f32 {Dd[i]}, {aa[i]}, {sws}, {skv} offen')
    k.ts()
    softmax(PQ, phq, tmp)
    k.i(f'buffer_store_dwordx4 {phq[0:4]}, {qa}, {sws}, {sq} offen sc1')
    k.i(f'buffer_store_dwordx4 {phq[4:8]}, {qa}, {sws}, {sq} offen offset:256 sc1')
    k.i(f'buffer_store_dwordx2 {phq[8:10]}, {ql}, {sws}, {sq} offen sc1', tag='pub')
    k.ts()
    k.wait_tag('pub')
    k.i('s_barrier')
    k.ts()
    k.i(f's_cmp_lg_u32 {wave}, 7')
    k.i(f's_cbranch_scc1 m_arr')
    k.i('s_mov_b32 exec_lo, 1')
    k.i('s_mov_b32 exec_hi, 0')
    k.i(f's_and_b32 {so}, s2, 15')
    k.i(f's_lshl_b32 {so}, {so}, 8')
    k.i(f's_add_u32 {so}, {so}, {WS_CNT + C1G}')
    k.i(f'v_mov_b32 {t1}, 0')
    k.i(f'v_mov_b32 {t2}, 1')
    for x in [f'buffer_atomic_add {t2}, {t1}, {sws}, {so} offen sc0 sc1', 's_waitcnt vmcnt(0)',
              f'v_readfirstlane_b32 {st1}, {t2}', f'v_mov_b32 {t2}, 1', f's_cmp_lg_u32 {st1}, 15', 's_cbranch_scc1 m_arr',
              f's_mov_b32 {so}, {WS_CNT + C1T}',
              f'buffer_atomic_add {t2}, {t1}, {sws}, {so} offen sc0 sc1', 's_waitcnt vmcnt(0)',
              f'v_readfirstlane_b32 {st1}, {t2}', f's_cmp_lg_u32 {st1}, 15', 's_cbranch_scc1 m_arr',
              's_mov_b32 exec_lo, 0xff', f'v_mov_b32 {t2}, 1', f'v_lshlrev_b32 {t1}, 8, {lane}', f's_mov_b32 {so}, {WS_CNT + G1}',
              f'buffer_store_dword {t2}, {t1}, {sws}, {so} offen sc1']:
        k.lines.append('  ' + x)
    k.raw('m_arr:')
    k._join()
    k.i('s_mov_b64 exec, -1')
    tsx()
    k.vm = []
    k.i(f's_cmp_lg_u32 {sty}, 0')
    k.i(f's_cbranch_scc1 m_nostore')
    Wf = R[16:32]
    k.i(f'v_lshrrev_b32 {tmp[0]}, 2, {lane}')
    k.i(f'v_lshlrev_b32 {tmp[0]}, 7, {tmp[0]}')
    k.i(f'v_and_b32 {tmp[1]}, 3, {lane}')
    k.i(f'v_lshl_add_u32 {tmp[0]}, {tmp[1]}, 3, {tmp[0]}')
    k.i(f's_lshl_b32 {so}, {wave}, 12')
    k.i(f's_add_u32 {so}, {so}, {LSIDE}')
    k.i(f'v_add_u32 {tmp[0]}, {so}, {tmp[0]}')
    for c4 in range(4):
        for hf in range(2):
            k.i(f'ds_read_b64_tr_b16 {Wf[c4 * 4 + 2 * hf:c4 * 4 + 2 * hf + 2]}, {tmp[0]} offset:{hf * 2048 + c4 * 32}')
    Bs, Bo = R[72:76], R[76:80]
    k.i(f's_mul_i32 {st2}, {ks}, 160')
    k.i(f's_sub_u32 {so}, {srowA}, {st2}')
    k.i(f's_sub_u32 {st1}, {srowB}, {st2}')
    k.i(f's_lshl_b32 {so}, {so}, 2')
    k.i(f's_lshl_b32 {st1}, {st1}, 2')
    k.i(f'v_lshlrev_b32 {tmp[1]}, 4, {G}')
    k.i(f'v_add_u32 {tmp[1]}, {LMOD}, {tmp[1]}')
    k.i(f'v_add_u32 {tmp[2]}, {so}, {tmp[1]}')
    k.i(f'v_add_u32 {tmp[3]}, {st1}, {tmp[1]}')
    k.i(f'ds_read_b128 {sb[0:4]}, {tmp[2]}')
    k.i(f'ds_read_b128 {sb[4:8]}, {tmp[3]}')
    k.i(f'ds_read_b128 {cb[0:4]}, {tmp[2]} offset:640')
    k.i(f'ds_read_b128 {cb[4:8]}, {tmp[3]} offset:640')
    for q in range(4):
        k.i(f'v_cvt_pk_bf16_f32 {Bs[q]}, {sb[2 * q]}, {sb[2 * q + 1]}')
        k.i(f'v_mov_b32 {Bo[q]}, 0x3f803f80')
    Db, Dc = R[80:96], R[96:112]
    for c4 in range(4):
        k.i(f'v_mfma_f32_16x16x32_bf16 {Db[c4 * 4:c4 * 4 + 4]}, {Wf[c4 * 4:c4 * 4 + 4]}, {Bs}, 0')
    for c4 in range(4):
        for q in range(4):
            w = Wf[c4 * 4 + q]
            lo, hi = tmp[2 + (q & 1) * 2], tmp[3 + (q & 1) * 2]
            k.i(f'v_lshlrev_b32 {lo}, 16, {w}')
            k.i(f'v_and_b32 {hi}, 0xffff0000, {w}')
            k.i(f'v_mul_f32 {lo}, {lo}, {cb[2 * q]}')
            k.i(f'v_mul_f32 {hi}, {hi}, {cb[2 * q + 1]}')
            k.i(f'v_cvt_pk_bf16_f32 {w}, {lo}, {hi}')
    for c4 in range(4):
        k.i(f'v_mfma_f32_16x16x32_bf16 {Dc[c4 * 4:c4 * 4 + 4]}, {Wf[c4 * 4:c4 * 4 + 4]}, {Bo}, 0')
    k.i(f'v_lshlrev_b32 {tmp[1]}, 4, {G}')
    k.i(f's_lshl_b32 {so}, {wave}, 9')
    k.i(f's_add_u32 {so}, {so}, {LCS}')
    k.i(f'v_add_u32 {tmp[1]}, {so}, {tmp[1]}')
    k.i('s_mov_b32 exec_lo, 0x00010001')
    k.i('s_mov_b32 exec_hi, 0x00010001')
    for c4 in range(4):
        k.i(f'ds_write_b128 {tmp[1]}, {Dc[c4 * 4:c4 * 4 + 4]} offset:{c4 * 64}')
        k.i(f'ds_write_b128 {tmp[1]}, {Db[c4 * 4:c4 * 4 + 4]} offset:{256 + c4 * 64}')
    k.i('s_mov_b64 exec, -1')
    k.wait(lg=0)
    k.i(f's_cmp_eq_u32 {scol}, {26 * 128}')
    k.i(f's_cselect_b32 {so}, 4096, 0')
    k.i(f's_add_u32 {so}, {so}, {sdst}')
    for c4 in range(4):
        k.lines.append(f'  buffer_store_dwordx4 {Wf[c4 * 4:c4 * 4 + 4]}, {l16}, {sws}, {sdst if c4 < 3 else so} offen offset:{1024 * c4} sc1')
    k.raw('m_nostore:')
    k._join()
    tsx()
    k.i('s_barrier')
    tsx()
    wof_jj(wave, 12)
    tsx()
    k.i(f's_cmp_ge_u32 {wave}, 2')
    k.i(f's_cselect_b32 {so}, 1000, s2')
    k.i(f's_cmp_ge_u32 {so}, 216')
    k.i(f's_cbranch_scc1 m_nocs')
    k.i(f'v_lshlrev_b32 {tmp[0]}, 2, v0')
    k.i(f'v_add_u32 {tmp[0]}, {LCS}, {tmp[0]}')
    for w in range(5):
        k.i(f'ds_read_b32 {tmp[1 + w]}, {tmp[0]} offset:{512 * w}')
    k.i(f'v_add_f32 {tmp[1]}, {tmp[1]}, {tmp[2]}')
    k.i(f'v_add_f32 {tmp[3]}, {tmp[3]}, {tmp[4]}')
    k.i(f'v_add_f32 {tmp[1]}, {tmp[1]}, {tmp[5]}')
    k.i(f'v_add_f32 {tmp[1]}, {tmp[1]}, {tmp[3]}')
    k.i(f's_lshl_b32 {so}, {ks}, 1')
    k.i(f's_add_u32 {so}, {so}, {wave}')
    k.i(f's_mul_i32 {so}, {so}, {3584 * 4}')
    k.i(f's_lshl_b32 {st1}, {p_}, 6')
    k.i(f's_add_u32 {so}, {so}, {st1}')
    k.i(f's_add_u32 {so}, {so}, {WS_CSB}')
    k.i(f'v_lshlrev_b32 {tmp[0]}, 2, {lane}')
    k.i(f's_cmp_eq_u32 {scol}, {26 * 128}')
    k.i(f's_cselect_b32 {st1}, 256, 0')
    k.i(f'v_mov_b32 {tmp[2]}, {st1}')
    k.i(f'v_cmp_lt_u32 vcc, 47, {lane}')
    k.i(f'v_cndmask_b32 {tmp[2]}, 0, {tmp[2]}, vcc')
    k.i(f'v_add_u32 {tmp[0]}, {tmp[0]}, {tmp[2]}')
    k.i(f'buffer_store_dword {tmp[1]}, {tmp[0]}, {sws}, {so} offen sc1')
    k.raw('m_nocs:')
    k.reset_state()
    k.release(mk_common)
    k.ts()

    RING2, SL2, PLB = 24576, 4096, 0
    W3 = [67584, 96256, 0, 28672]
    X3 = [124928, 133120, 141312, 149504, 57344]
    CSL = 157696
    W4 = [0, 20480, 40960, 61440, 81920]
    X4 = [102400, 118784, 135168]

    def signal(idx, cnt_off, go_off, sel):
        lab = k.newlabel('sig')
        k.wait(vm=0)
        tsz()
        k.i(f'v_mov_b32 {t1}, {LCNT + 4 * idx}')
        k.i(f'v_mov_b32 {t2}, 1')
        k.i('s_mov_b32 exec_lo, 1')
        k.i('s_mov_b32 exec_hi, 0')
        k.i(f'ds_add_rtn_u32 {t3}, {t1}, {t2}')
        k.i(f'v_readfirstlane_b32 {so}, {t3}')
        k.i(f's_cmp_lg_u32 {so}, 3')
        k.i(f's_cbranch_scc1 {lab}')
        k.i(f's_lshl_b32 {so}, {sel}, 8')
        k.i(f's_add_u32 {so}, {so}, {WS_CNT + cnt_off}')
        k.i(f'v_mov_b32 {t1}, 0')
        k.lines.append(f'  buffer_atomic_add {t2}, {t1}, {sws}, {so} offen sc0 sc1')
        k.lines.append('  s_waitcnt vmcnt(0)')
        k.lines.append(f'  v_readfirstlane_b32 {st1}, {t2}')
        k.lines.append(f'  v_mov_b32 {t2}, 1')
        k.lines.append(f'  s_cmp_lg_u32 {st1}, 15')
        k.lines.append(f'  s_cbranch_scc1 {lab}')
        k.lines.append(f'  s_add_u32 {so}, {so}, {go_off - cnt_off}')
        k.lines.append(f'  buffer_store_dword {t2}, {t1}, {sws}, {so} offen sc1')
        k.raw(f'{lab}:')
        k._join()
        k.i('s_mov_b64 exec, -1')
        k.vm = [dict(regs=set(), tag=None)]
        tsz()

    def poll(go_off, sel, pw=4):
        lab = k.newlabel('poll')
        k.i(f's_cmp_lg_u32 {wave}, {pw}')
        k.i(f's_cbranch_scc1 {lab}_x')
        k.i(f's_lshl_b32 {so}, {sel}, 8')
        k.i(f's_add_u32 {so}, {so}, {WS_CNT + go_off}')
        k.i(f'v_mov_b32 {t1}, 0')
        k.i(f's_mov_b32 {st1}, 0')
        k.i('s_mov_b32 exec_lo, 1')
        k.i('s_mov_b32 exec_hi, 0')
        k.raw(f'{lab}:')
        k.lines.append(f'  buffer_load_dword {t2}, {t1}, {sws}, {so} offen sc1')
        k.lines.append('  s_waitcnt vmcnt(0)')
        k.lines.append(f'  v_readfirstlane_b32 {st2}, {t2}')
        k.lines.append(f'  s_add_u32 {st1}, {st1}, 1')
        k.lines.append(f'  s_cmp_ge_u32 {st1}, {SPIN_MAX}')
        k.lines.append(f'  s_cbranch_scc1 {lab}_d')
        k.lines.append(f'  s_cmp_eq_u32 {st2}, 0')
        k.lines.append(f'  s_cbranch_scc1 {lab}')
        k.raw(f'{lab}_d:')
        k.i('s_mov_b64 exec, -1')
        k.raw(f'{lab}_x:')
        k._join()

    def x1_addr(ttg_, nt_, sreg, sspec):
        k.i(f's_lshr_b32 {so}, {ttg_}, 3')
        k.i(f's_mul_i32 {so}, {so}, 20')
        k.i(f's_lshr_b32 {st1}, {nt_}, 1')
        k.i(f's_mul_i32 {st1}, {st1}, 5')
        k.i(f's_add_u32 {so}, {so}, {st1}')
        k.i(f's_lshl_b32 {so}, {so}, 13')
        k.i(f's_add_u32 {so}, {so}, {WS_X1}')
        k.i(f's_and_b32 {st1}, {nt_}, 1')
        k.i(f's_and_b32 {st2}, {ttg_}, 7')
        k.i(f's_lshl_b32 {sreg}, {st1}, 14')
        k.i(f's_add_u32 {sreg}, {sreg}, {so}')
        k.i(f's_lshl_b32 {sspec}, {st2}, 10')
        k.i(f's_add_u32 {sreg}, {sreg}, {sspec}')
        k.i(f's_lshl_b32 {st1}, {st1}, 12')
        k.i(f's_lshl_b32 {st2}, {st2}, 9')
        k.i(f's_add_u32 {sspec}, {so}, {st1}')
        k.i(f's_add_u32 {sspec}, {sspec}, {st2}')
        k.i(f's_add_u32 {sspec}, {sspec}, {4 * 8192}')

    k.i(f's_cmp_ge_u32 {wave}, 4')
    k.i('s_cbranch_scc1 m_l2')
    nts2 = k.nts
    sxx = k.srd(px, S * D * 2)
    ttg = k.s()
    tp, kh2 = k.s(), k.s()
    k.i(f's_and_b32 {tp}, {wave}, 1')
    k.i(f's_lshr_b32 {kh2}, {wave}, 1')
    AF = k.v(32)
    PQf = k.v(32)
    PLf = k.v(16)
    O = k.v(32)
    Xf = k.v(32)
    WA = k.v(20)
    acc = k.v(40)
    xv, gav = AF[0:10], PQf[0:20]
    carry = k.v(2, align=1)
    a0, a1, woa = k.v(), k.v(), k.v(2, align=1)
    aL = k.v(8, align=1)
    k.i(f's_lshl_b32 {ttg}, {mt2}, 2')
    k.i(f's_lshl_b32 {so}, {tp}, 1')
    k.i(f's_add_u32 {ttg}, {ttg}, {so}')
    k.i(f's_add_u32 {ttg}, {ttg}, {kh2}')
    k.i(f's_mul_i32 {st1}, {kh2}, 1920')
    k.i(f's_add_u32 {st1}, {st1}, {RING2}')
    k.i(f'v_add_u32 {a0}, {st1}, {l16}')
    k.i(f'v_lshrrev_b32 {t1}, 2, {n}')
    k.i(f'v_and_b32 {t2}, 3, {n}')
    k.i(f'v_cmp_eq_u32 vcc, 0, {t2}')
    k.i(f'v_cndmask_b32 {t1}, 4, {t1}, vcc')
    k.i(f'v_lshlrev_b32 {t1}, 4, {t1}')
    k.i(f'v_add_u32 {t1}, {st1}, {t1}')
    k.i(f'v_add_u32 {t1}, 1280, {t1}')
    k.i(f'v_lshl_add_u32 {a1}, {G}, 7, {t1}')
    k.i(f'v_add_u32 {t1}, 512, {t1}')
    k.i(f'v_lshlrev_b32 {t2}, 4, {n}')
    k.i(f'v_add_u32 {t2}, {st1}, {t2}')
    k.i(f'v_add_u32 {t2}, 1024, {t2}')
    k.i(f's_add_u32 {st1}, {st1}, {1280 + 512 + 112}')
    k.i(f'v_mov_b32 {t3}, {st1}')
    for rho in range(4):
        k.i(f'v_cmp_eq_u32 vcc, {rho}, {G}')
        k.i(f'v_cndmask_b32 {aL[2 * rho]}, {t3}, {t2}, vcc')
        k.i(f'v_cndmask_b32 {aL[2 * rho + 1]}, {t3}, {t1}, vcc')
    spqc = k.s()
    k.i(f's_lshl_b32 {so}, {tp}, 12')
    k.i(f's_lshl_b32 {st1}, {kh2}, 10')
    k.i(f's_add_u32 {so}, {so}, {st1}')
    k.i(f's_mul_i32 {spqc}, {mt2}, 163840')
    k.i(f's_add_u32 {spqc}, {spqc}, {so}')
    k.i(f's_add_u32 {spqc}, {spqc}, {WS_PHIQ}')

    def ldq(s):
        L = []
        if s % 4 == 0:
            L.append(f's_add_u32 {st2}, {spqc}, {(16 + s // 4) * 8192}')
            for t in range(2):
                q = (((s // 4) & 1) * 2 + t) * 4
                L.append(f'buffer_load_dwordx4 {PLf[q:q + 4]}, {l16}, {sws}, {st2} offen offset:{2048 * t}')
        L.append(f's_add_u32 {st2}, {spqc}, {s * 8192}')
        for t in range(2):
            L.append(f'buffer_load_dwordx4 {PQf[((s % 4) * 2 + t) * 4:((s % 4) * 2 + t) * 4 + 4]}, {l16}, {sws}, {st2} offen offset:{2048 * t}')
        return L

    k.i(f's_mul_i32 {so}, {kh2}, 5120')
    k.i(f's_add_u32 {so}, {so}, {WOFB}')
    k.i(f'v_add_u32 {woa[0]}, {so}, {l16}')
    k.i(f'v_add_u32 {woa[1]}, 51200, {woa[0]}')
    k.i('s_barrier')
    k.ts()
    for s in range(3):
        for x in ldq(s):
            k.i(x)

    def rd2(s):
        L = []
        b = s & 1
        sl = (s % 4) * SL2
        A = AF[b * 16:b * 16 + 16]
        rho = s & 3
        L.append(f'ds_read_b128 {A[8:12]}, {aL[2 * rho]} offset:{sl}')
        L.append(f'ds_read_b128 {A[12:16]}, {aL[2 * rho + 1]} offset:{sl}')
        L.append(f'ds_read_b128 {A[4:8]}, {a1} offset:{sl}')
        L.append(f'ds_read_b128 {A[0:4]}, {a0} offset:{sl}')
        return L

    def om(s):
        L = []
        b = s & 1
        A = AF[b * 16:b * 16 + 16]
        for t in range(2):
            q = (((s // 4) & 1) * 2 + t) * 4
            for tl in range(2):
                o = O[((b * 2 + t) * 2 + tl) * 4:((b * 2 + t) * 2 + tl) * 4 + 4]
                L.append(f'v_mfma_f32_16x16x32_bf16 {o}, {A[8 + tl * 4:8 + tl * 4 + 4]}, {PLf[q:q + 4]}, 0')
        for t in range(2):
            for tl in (1, 0):
                o = O[((b * 2 + t) * 2 + tl) * 4:((b * 2 + t) * 2 + tl) * 4 + 4]
                L.append(f'v_mfma_f32_16x16x32_bf16 {o}, {A[tl * 4:tl * 4 + 4]}, {PQf[((s % 4) * 2 + t) * 4:((s % 4) * 2 + t) * 4 + 4]}, {o}')
        return L

    def xf(j, t):
        return Xf[((j % 4) * 2 + t) * 4:((j % 4) * 2 + t) * 4 + 4]

    def ov(s):
        L = []
        b = s & 1
        os_ = [O[(b * 2 + t) * 8:(b * 2 + t) * 8 + 8] for t in range(2)]
        for o in os_:
            L.append(f'v_add_f32 {o[5]}, {fhex(1e-6)}, {o[5]}')
        for o in os_:
            L.append(f'v_rcp_f32 {o[5]}, {o[5]}')
        for t, o in enumerate(os_):
            for q in range(4):
                L.append(f'v_mul_f32 {o[q]}, {o[q]}, {o[5]}')
            L.append(f'v_mul_f32 {o[4] if s & 1 else o[6]}, {o[4]}, {o[5]}')
        for t, o in enumerate(os_):
            if s & 1:
                vals = [carry[t]] + [o[q] for q in range(5)]
                idx0 = 5 * s - 1
            else:
                vals = [o[q] for q in range(4)]
                idx0 = 5 * s
            for p in range(len(vals) // 2):
                idx = idx0 + 2 * p
                L.append(f'v_cvt_pk_bf16_f32 {xf(idx >> 3, t)[(idx & 7) >> 1]}, {vals[2 * p]}, {vals[2 * p + 1]}')
            if not s & 1:
                L.append(f'v_mov_b32 {carry[t]}, {o[6]}')
        return L

    def wrd(j):
        off = ((2 * j + 2) % 20) * 5120
        areg, o = (woa[0], off) if off < 51200 else (woa[1], off - 51200)
        return [f'ds_read_b128 {WA[ct * 4:ct * 4 + 4]}, {areg} offset:{o + ct * 1024}' for ct in range(5)]

    def wm(j):
        return [f'v_mfma_f32_16x16x32_bf16 {acc[(ct * 2 + t) * 4:(ct * 2 + t) * 4 + 4]}, {WA[ct * 4:ct * 4 + 4]}, {xf(j, t)}, {0 if j == 0 else acc[(ct * 2 + t) * 4:(ct * 2 + t) * 4 + 4]}' for ct in range(5) for t in range(2)]

    def done_after(s):
        return (5 * s + (5 if s & 1 else 4)) // 8

    k.i('s_barrier')
    k.ts()
    for x in rd2(0) + wrd(0):
        k.i(x)
    jm = 0
    nlate = 5
    for s in range(18):
        if s == 8:
            k.ts()
        if s == 15:
            k.i(f's_mul_i32 {so}, {ttg}, {16 * 1280}')
            k.i(f's_mul_i32 {st1}, {nt2}, 160')
            k.i(f's_add_u32 {so}, {so}, {st1}')
            k.i(f'v_mul_u32_u24 {t2}, 1280, {n}')
            k.i(f'v_lshl_add_u32 {t2}, {G}, 3, {t2}')
            for ct in range(5):
                k.i(f'buffer_load_dwordx2 {xv[2 * ct:2 * ct + 2]}, {t2}, {sxx}, {so} offen offset:{32 * ct}')
            k.i(f'v_lshlrev_b32 {t2}, 4, {G}')
            k.i(f's_mul_i32 {st1}, {nt2}, 320')
            k.i(f's_add_u32 {so}, {st1}, {WS_MOD + 2 * 2560}')
            for ct in range(5):
                k.i(f'buffer_load_dwordx4 {gav[4 * ct:4 * ct + 4]}, {t2}, {sws}, {so} offen offset:{64 * ct}')
        fill = []
        if s + 1 < 16:
            tsy(s in (9, 10))
            if nlate < len(k.lg):
                k.wait(lg=nlate)
            tsy(s in (9, 10))
            k.i('s_barrier')
            tsy(s in (9, 10))
            tsy(s in (9, 10))
            fill += rd2(s + 1)
        if s + 3 < 16:
            fill += ldq(s + 3)
        lim = done_after(s - 2) if s >= 2 else 0
        Mw, late = [], []
        if jm < lim:
            Mw = wm(jm)
            jm += 1
            if jm < 10:
                late = wrd(jm)
        assert jm >= lim
        Mo = om(s) if s < 16 else []
        V = ov(s - 1) if 1 <= s <= 16 else []
        M = Mo + Mw
        if os.environ.get('X_NOC'):
            M, V = M[:1], []
        if os.environ.get('X_NORD'):
            fill, late = [], []
        if M:
            interleave(k, M, fill + V)
        else:
            for x in fill + V:
                k.i(x)
        for x in late:
            k.i(x)
        nlate = len(late)
    assert jm == 10
    k.i(f's_mul_i32 {so}, {wave}, 5120')
    k.i(f'v_add_u32 {t1}, {so}, {l16}')
    k.i(f's_xor_b32 {st1}, {wave}, 2')
    k.i(f's_mul_i32 {st1}, {st1}, 5120')
    k.i(f'v_add_u32 {t3}, {st1}, {l16}')
    mk2 = k.s(2)
    k.i(f's_cmp_eq_u32 {kh2}, 1')
    k.i(f's_cselect_b64 {mk2}, -1, 0')
    Sd, Kp = O[0:20], Xf[0:20]
    for ct in range(5):
        for r in range(4):
            a0_, a1_ = acc[(ct * 2) * 4 + r], acc[(ct * 2 + 1) * 4 + r]
            k.i(f'v_cndmask_b32 {Sd[4 * ct + r]}, {a1_}, {a0_}, {mk2}')
            k.i(f'v_cndmask_b32 {Kp[4 * ct + r]}, {a0_}, {a1_}, {mk2}')
        k.i(f'ds_write_b128 {t1}, {Sd[4 * ct:4 * ct + 4]} offset:{1024 * ct}')
    k.ts()
    k.barrier()
    for ct in range(5):
        k.i(f'ds_read_b128 {acc[4 * ct:4 * ct + 4]}, {t3} offset:{1024 * ct}')
    for i in range(20):
        k.i(f'v_add_f32 {acc[i]}, {acc[i]}, {Kp[i]}')
    cp = O[20:28]
    k.i(f'v_cmp_lt_u32 vcc, 111, v0')
    k.i(f'v_mov_b32 {t3}, {1792 - 112}')
    k.i(f'v_cndmask_b32 {t2}, 0, {t3}, vcc')
    k.i(f'v_add_u32 {t2}, {t2}, v0')
    k.i(f's_mul_i32 {so}, {nt3}, 112')
    k.i(f'v_add_u32 {t2}, {so}, {t2}')
    k.i(f'v_lshlrev_b32 {t2}, 2, {t2}')
    s12 = AF[10:12]
    xe = AF[12:16]
    k.i(f'v_mov_b32 {s12[0]}, 0')
    k.i(f'v_mov_b32 {s12[1]}, 0')
    xo = AF[16:28]
    for ct in range(5):
        for q in range(2):
            k.i(f'v_lshlrev_b32 {xe[2 * q]}, 16, {xv[2 * ct + q]}')
            k.i(f'v_and_b32 {xe[2 * q + 1]}, 0xffff0000, {xv[2 * ct + q]}')
        for r in range(4):
            k.i(f'v_fmac_f32 {xe[r]}, {acc[4 * ct + r]}, {gav[4 * ct + r]}')
        for q in range(2):
            k.i(f'v_cvt_pk_bf16_f32 {xo[2 * ct + q]}, {xe[2 * q]}, {xe[2 * q + 1]}')
        for q in range(2):
            k.i(f'v_lshlrev_b32 {xe[2 * q]}, 16, {xo[2 * ct + q]}')
            k.i(f'v_and_b32 {xe[2 * q + 1]}, 0xffff0000, {xo[2 * ct + q]}')
        for r in range(4):
            k.i(f'v_add_f32 {s12[0]}, {s12[0]}, {xe[r]}')
            k.i(f'v_fmac_f32 {s12[1]}, {xe[r]}, {xe[r]}')
    sreg, sspec = k.s(), k.s()
    x1_addr(ttg, nt2, sreg, sspec)
    l8 = AF[28]
    k.i(f'v_lshlrev_b32 {l8}, 3, {lane}')
    k.i(f'buffer_store_dwordx4 {xo[0:4]}, {l16}, {sws}, {sreg} offen sc1')
    k.i(f's_add_u32 {sreg}, {sreg}, 8192')
    k.i(f'buffer_store_dwordx4 {xo[4:8]}, {l16}, {sws}, {sreg} offen sc1')
    k.i(f'buffer_store_dwordx2 {xo[8:10]}, {l8}, {sws}, {sspec} offen sc1')
    xsum4(k, s12[0], t1)
    xsum4(k, s12[1], t1)
    k.i(f's_lshl_b32 {so}, {ttg}, 10')
    k.i(f's_lshl_b32 {st1}, {nt2}, 3')
    k.i(f's_add_u32 {so}, {so}, {st1}')
    k.i(f's_add_u32 {so}, {so}, {WS_ST}')
    k.i(f'v_lshlrev_b32 {t1}, 6, {n}')
    k.i('s_mov_b32 exec_lo, 0xffff')
    k.i('s_mov_b32 exec_hi, 0')
    k.i(f'buffer_store_dwordx2 {s12}, {t1}, {sws}, {so} offen sc1')
    k.i('s_mov_b64 exec, -1')
    for p in range(8):
        k.i(f's_mov_b32 {so}, {WS_CSB + p * 3584 * 4}')
        k.i(f'buffer_load_dword {cp[p]}, {t2}, {sws}, {so} offen sc1')
    k.i('s_barrier')
    k.ts()
    sel = k.s()
    k.i(f's_lshr_b32 {sel}, {mt2}, 1')
    signal(0, C2, G2, sel)
    k.i(f'v_add_f32 {cp[0]}, {cp[0]}, {cp[2]}')
    k.i(f'v_add_f32 {cp[4]}, {cp[4]}, {cp[6]}')
    k.i(f'v_add_f32 {cp[1]}, {cp[1]}, {cp[3]}')
    k.i(f'v_add_f32 {cp[5]}, {cp[5]}, {cp[7]}')
    k.i(f'v_add_f32 {cp[0]}, {cp[0]}, {cp[4]}')
    k.i(f'v_add_f32 {cp[1]}, {cp[1]}, {cp[5]}')
    k.i(f'v_mov_b32 {t2}, 0')
    k.i(f'v_cmp_lt_u32 vcc, 63, v0')
    k.i(f'v_cndmask_b32 {t2}, {t2}, 64, vcc')
    k.i(f'v_mov_b32 {t3}, -48')
    k.i(f'v_cmp_lt_u32 vcc, 111, v0')
    k.i(f'v_cndmask_b32 {t2}, {t2}, {t3}, vcc')
    k.i(f'v_cmp_lt_u32 vcc, 175, v0')
    k.i(f'v_cndmask_b32 {t2}, {t2}, 0, vcc')
    k.i(f'v_add_u32 {t2}, {t2}, v0')
    k.i(f'v_lshlrev_b32 {t2}, 2, {t2}')
    k.i(f'v_add_u32 {t2}, {CSL}, {t2}')
    k.i(f'ds_write_b32 {t2}, {cp[0]}')
    k.i(f'ds_write_b32 {t2}, {cp[1]} offset:1024')

    k.release(mk_common)
    l8 = k.v()
    k.i(f'v_lshlrev_b32 {l8}, 3, {lane}')
    th3, cg = k.s(), k.s()
    k.i(f's_and_b32 {th3}, {wave}, 1')
    k.i(f's_lshr_b32 {cg}, {wave}, 1')
    acc = k.v(112)
    Fr = k.v(88)
    stv = k.v(16)
    mu, sd, rr = k.v(4, align=1), k.v(4, align=1), k.v(4, align=1)
    cb8 = stv[8:16]
    wa = k.v(2, align=1)
    xa = k.v(2, align=1)
    xs = k.v(2, align=1)
    csa = k.v()
    k.i(f's_mul_i32 {so}, {cg}, 7168')
    k.i(f'v_add_u32 {wa[0]}, {so}, {l16}')
    k.i(f'v_add_u32 {wa[1]}, 67584, {wa[0]}')
    k.i(f's_lshl_b32 {so}, {th3}, 12')
    k.i(f's_add_u32 {so}, {so}, 57344')
    k.i(f'v_add_u32 {xa[0]}, {so}, {l16}')
    k.i(f'v_add_u32 {xa[1]}, {124928 - 57344}, {xa[0]}')
    k.i(f's_lshl_b32 {so}, {th3}, 11')
    k.i(f's_add_u32 {so}, {so}, 57344')
    k.i(f'v_add_u32 {xs[0]}, {so}, {l8}')
    k.i(f'v_add_u32 {xs[1]}, {124928 - 57344}, {xs[0]}')
    k.i(f's_mul_i32 {so}, {cg}, 448')
    k.i(f's_add_u32 {so}, {so}, {CSL}')
    k.i(f'v_lshlrev_b32 {csa}, 4, {G}')
    k.i(f'v_add_u32 {csa}, {so}, {csa}')
    k.i(f'v_lshlrev_b32 {t1}, 6, {n}')
    k.i(f'v_lshl_add_u32 {t1}, {G}, 4, {t1}')
    k.i(f's_lshl_b32 {so}, {mt3}, 1')
    k.i(f's_add_u32 {so}, {so}, {th3}')
    mt4o = k.s()
    k.i(f's_mov_b32 {mt4o}, {so}')
    k.i(f's_lshl_b32 {so}, {so}, 12')
    k.i(f's_add_u32 {so}, {so}, {WS_ST}')
    k.barrier()
    k.ts()
    for tt in range(4):
        k.i(f'buffer_load_dwordx4 {stv[4 * tt:4 * tt + 4]}, {t1}, {sws}, {so} offen offset:{1024 * tt} sc1')

    def xfr(J, tt):
        b = ((J & 1) * 11 + tt) * 4
        return Fr[b:b + 4]

    def wfr(J, i):
        b = ((J & 1) * 11 + 4 + i) * 4
        return Fr[b:b + 4]

    def prep3(J):
        L = []
        wb = W3[(J // 2) % 4] + (J & 1) * 14336
        wreg, wo_ = (wa[0], wb) if wb < 67584 else (wa[1], wb - 67584)
        xb = X3[J % 5]
        xi, xo_ = (0, xb - 57344) if xb < 124928 else (1, xb - 124928)
        xl = []
        for tt in range(4):
            if J % 5 == 4:
                xl.append([f'ds_read_b64 {xfr(J, tt)[0:2]}, {xs[xi]} offset:{xo_ + tt * 512}',
                           f'ds_read_b64 {xfr(J, tt)[2:4]}, {xs[xi]} offset:{xo_ + 4096 + tt * 512}'])
            else:
                xl.append([f'ds_read_b128 {xfr(J, tt)}, {xa[xi]} offset:{xo_ + tt * 1024}'])
        L.append(f'ds_read_b128 {wfr(J, 0)}, {wreg} offset:{wo_}')
        for tt in range(4):
            L += xl[tt]
        for i in range(1, 7):
            L.append(f'ds_read_b128 {wfr(J, i)}, {wreg} offset:{wo_ + i * 1024}')
        return L

    def mf3(J):
        L = []
        for i in range(7):
            for tt in range(4):
                a = acc[(i * 4 + tt) * 4:(i * 4 + tt) * 4 + 4]
                L.append(f'v_mfma_f32_16x16x32_bf16 {a}, {wfr(J, i)}, {xfr(J, tt)}, {0 if J == 0 else a}')
        return L

    def stats_code():
        L = []
        for tt in range(4):
            a = stv[4 * tt:4 * tt + 4]
            L.append(f'v_add_f32 {a[0]}, {a[0]}, {a[2]}')
            L.append(f'v_add_f32 {a[1]}, {a[1]}, {a[3]}')
            for x in (a[0], a[1]):
                L.append(f'v_mov_b32 {a[2]}, {x}')
                L.append(f'v_permlane32_swap_b32 {x}, {a[2]}')
                L.append(f'v_add_f32 {x}, {x}, {a[2]}')
                L.append(f'v_mov_b32 {a[2]}, {x}')
                L.append(f'v_permlane16_swap_b32 {x}, {a[2]}')
                L.append(f'v_add_f32 {x}, {x}, {a[2]}')
            L.append(f'v_mul_f32 {mu[tt]}, {fhex(1.0 / 640)}, {a[0]}')
            L.append(f'v_mul_f32 {a[1]}, {fhex(1.0 / 640)}, {a[1]}')
            L.append(f'v_fma_f32 {a[1]}, -{mu[tt]}, {mu[tt]}, {a[1]}')
            L.append(f'v_max_f32 {a[1]}, 0, {a[1]}')
            L.append(f'v_add_f32 {a[1]}, {fhex(1e-5)}, {a[1]}')
            L.append(f'v_sqrt_f32 {sd[tt]}, {a[1]}')
            L.append(f'v_rsq_f32 {rr[tt]}, {a[1]}')
        return L

    def init_code(i):
        L = []
        for tt in range(4):
            a = acc[(i * 4 + tt) * 4:(i * 4 + tt) * 4 + 4]
            for r in range(4):
                L.append(f'v_fmac_f32 {a[r]}, {cb8[4 + r]}, {sd[tt]}')
            for r in range(4):
                L.append(f'v_fma_f32 {a[r]}, -{mu[tt]}, {cb8[r]}, {a[r]}')
        return L

    k.barrier()
    k.ts()
    for x in prep3(0):
        k.i(x)
    st_l = stats_code()
    for J in range(20):
        if J == 10:
            k.ts()
        M = mf3(J)
        if J + 1 < 20:
            k.barrier()
            fill = prep3(J + 1)
        else:
            fill = []
        if J in (2, 3):
            h = len(st_l) // 2
            fill = fill + (st_l[:h] if J == 2 else st_l[h:])
            interleave(k, M, fill, lead=2)
        elif 4 <= J < 11:
            i = J - 4
            M = M[4 * i:] + M[:4 * i]
            pre = [f'ds_read_b128 {cb8[0:4]}, {csa} offset:{i * 64}', f'ds_read_b128 {cb8[4:8]}, {csa} offset:{1024 + i * 64}']
            interleave(k, M[:12], pre + fill[:8])
            interleave(k, M[12:], fill[8:] + init_code(i))
        else:
            interleave(k, M, fill, lead=6)
    k.ts()
    k.raw('m_p3epi:')
    KK = -2.0 * 0.7978845608028654 * LOG2E
    c1, c3, ir2 = stv[0:4], stv[4:8], stv[8:12]
    for tt in range(4):
        k.i(f'v_mul_f32 {c1[tt]}, {fhex(KK)}, {rr[tt]}')
        k.i(f'v_mul_f32 {c3[tt]}, {rr[tt]}, {rr[tt]}')
        k.i(f'v_mul_f32 {c3[tt]}, {c3[tt]}, {c1[tt]}')
        k.i(f'v_mul_f32 {c3[tt]}, {fhex(0.044715)}, {c3[tt]}')
        k.i(f'v_mul_f32 {ir2[tt]}, {sd[tt]}, {sd[tt]}')
    EXB = 151552
    k.i(f's_lshl_b32 {so}, {th3}, 12')
    k.i(f's_add_u32 {so}, {so}, {EXB}')
    k.i(f'v_add_u32 {t1}, {so}, {l16}')
    sact, sasp = k.s(), k.s()
    k.i(f's_mul_i32 {sact}, {mt4o}, 56')
    k.i(f's_lshr_b32 {st1}, {nt3}, 1')
    k.i(f's_add_u32 {sasp}, {sact}, {st1}')
    k.i(f's_lshl_b32 {sasp}, {sasp}, 12')
    k.i(f's_and_b32 {st1}, {nt3}, 1')
    k.i(f's_lshl_b32 {st1}, {st1}, 11')
    k.i(f's_add_u32 {sasp}, {sasp}, {st1}')
    k.i(f's_add_u32 {sasp}, {sasp}, {WS_ACT}')
    k.i(f's_mul_i32 {st1}, {nt3}, 3')
    k.i(f's_add_u32 {sact}, {sact}, {st1}')
    k.i(f's_add_u32 {sact}, {sact}, 8')
    k.i(f's_lshl_b32 {sact}, {sact}, 12')
    k.i(f's_add_u32 {sact}, {sact}, {WS_ACT}')
    k.barrier()
    T = Fr[0:16]
    OUT = Fr[16:48]
    UX = Fr[48:64]
    CP = Fr[64:88]
    for tt in range(4):
        for j_, src in enumerate((c1, c3, ir2)):
            k.i(f'v_mov_b32 {CP[tt * 6 + 2 * j_]}, {src[tt]}')
            k.i(f'v_mov_b32 {CP[tt * 6 + 2 * j_ + 1]}, {src[tt]}')

    def geglu(g, u, tt, o2, ti):
        t = T[(ti % 4) * 4:(ti % 4) * 4 + 4]
        cc = CP[tt * 6:tt * 6 + 6]
        for h in (0, 2):
            k.i(f'v_pk_mul_f32 {t[h:h + 2]}, {g[h:h + 2]}, {g[h:h + 2]}')
        for h in (0, 2):
            k.i(f'v_pk_fma_f32 {t[h:h + 2]}, {t[h:h + 2]}, {cc[2:4]}, {cc[0:2]}')
        for h in (0, 2):
            k.i(f'v_pk_mul_f32 {t[h:h + 2]}, {t[h:h + 2]}, {g[h:h + 2]}')
        for r in range(4):
            k.i(f'v_exp_f32 {t[r]}, {t[r]}')
        for h in (0, 2):
            k.i(f'v_pk_mul_f32 {u[h:h + 2]}, {u[h:h + 2]}, {g[h:h + 2]}')
        for h in (0, 2):
            k.i(f'v_pk_fma_f32 {t[h:h + 2]}, {t[h:h + 2]}, {cc[4:6]}, {cc[4:6]}')
        for r in range(4):
            k.i(f'v_rcp_f32 {t[r]}, {t[r]}')
        for h in (0, 2):
            k.i(f'v_pk_mul_f32 {u[h:h + 2]}, {u[h:h + 2]}, {t[h:h + 2]}')
        k.i(f'v_cvt_pk_bf16_f32 {o2[0]}, {u[0]}, {u[1]}')
        k.i(f'v_cvt_pk_bf16_f32 {o2[1]}, {u[2]}, {u[3]}')

    def A(i, tt):
        return acc[(i * 4 + tt) * 4:(i * 4 + tt) * 4 + 4]

    k.i(f's_cmp_eq_u32 {cg}, 1')
    k.i('s_cbranch_scc1 p3_epi1')
    stx = (list(k.vm), list(k.lg))
    cnt = 0
    for tt in range(4):
        o = OUT[tt * 4:tt * 4 + 4]
        geglu(A(0, tt), A(4, tt), tt, o[0:2], cnt)
        geglu(A(1, tt), A(5, tt), tt, o[2:4], cnt + 1)
        cnt += 2
        k.i(f'buffer_store_dwordx4 {o}, {l16}, {sws}, {sact} offen offset:{1024 * tt} sc1')
        if tt == 0:
            k.i('s_barrier')
            for t2_ in range(4):
                k.i(f'ds_read_b128 {UX[t2_ * 4:t2_ * 4 + 4]}, {t1} offset:{1024 * t2_}')
    k.i(f's_add_u32 {sact}, {sact}, 4096')
    for tt in range(4):
        o = OUT[16 + tt * 4:16 + tt * 4 + 4]
        geglu(A(2, tt), A(6, tt), tt, o[0:2], cnt)
        geglu(A(3, tt), UX[tt * 4:tt * 4 + 4], tt, o[2:4], cnt + 1)
        cnt += 2
        k.i(f'buffer_store_dwordx4 {o}, {l16}, {sws}, {sact} offen offset:{1024 * tt} sc1')
    k.i('s_branch p3_epid')
    k.raw('p3_epi1:')
    k._join()
    k.vm, k.lg = list(stx[0]), list(stx[1])
    for tt in range(4):
        k.i(f'ds_write_b128 {t1}, {A(0, tt)} offset:{1024 * tt}')
    k.barrier()
    k.i(f's_add_u32 {sact}, {sact}, 8192')
    cnt = 0
    for tt in range(4):
        o = OUT[tt * 4:tt * 4 + 4]
        geglu(A(1, tt), A(4, tt), tt, o[0:2], cnt)
        geglu(A(2, tt), A(5, tt), tt, o[2:4], cnt + 1)
        cnt += 2
        k.i(f'buffer_store_dwordx4 {o}, {l16}, {sws}, {sact} offen offset:{1024 * tt} sc1')
    for tp in range(2):
        o = OUT[16 + tp * 4:16 + tp * 4 + 4]
        geglu(A(3, 2 * tp), A(6, 2 * tp), 2 * tp, o[0:2], cnt)
        geglu(A(3, 2 * tp + 1), A(6, 2 * tp + 1), 2 * tp + 1, o[2:4], cnt + 1)
        cnt += 2
        k.i(f'buffer_store_dwordx4 {o}, {l16}, {sws}, {sasp} offen offset:{1024 * tp} sc1')
    k.raw('p3_epid:')
    k._join()
    k.lines.append('  s_waitcnt lgkmcnt(0)')
    k.lg = []
    k.force_wait = True
    k.ts()
    signal(1, 8192, 12288, mt3)
    k.force_wait = False

    k.release(mk_common)
    l8 = k.v()
    k.i(f'v_lshlrev_b32 {l8}, 3, {lane}')
    th4, kh = k.s(), k.s()
    k.i(f's_and_b32 {th4}, {wave}, 1')
    k.i(f's_lshr_b32 {kh}, {wave}, 1')
    acc = k.v(40)
    Fr = k.v(56)
    wa = k.v(2, align=1)
    xa, xsp = k.v(), k.v()
    k.i(f's_mul_i32 {so}, {kh}, 5120')
    k.i(f'v_add_u32 {wa[0]}, {so}, {l16}')
    k.i(f'v_add_u32 {wa[1]}, 61440, {wa[0]}')
    k.i(f's_lshl_b32 {so}, {kh}, 12')
    k.i(f's_add_u32 {so}, {so}, {X4[0]}')
    k.i(f's_lshl_b32 {st1}, {th4}, 11')
    k.i(f's_add_u32 {st1}, {st1}, {so}')
    k.i(f'v_add_u32 {xa}, {st1}, {l16}')
    k.i(f's_lshl_b32 {st1}, {th4}, 10')
    k.i(f's_add_u32 {st1}, {st1}, {so}')
    k.i(f'v_add_u32 {xsp}, {st1}, {l16}')
    xv = k.v(12)
    gbv = k.v(20)
    ttg = k.s()
    k.i(f's_lshl_b32 {ttg}, {mt2}, 2')
    k.i(f's_lshl_b32 {so}, {th4}, 1')
    k.i(f's_add_u32 {ttg}, {ttg}, {so}')
    k.i(f's_add_u32 {ttg}, {ttg}, {kh}')
    sreg, sspec = k.s(), k.s()
    x1_addr(ttg, nt2, sreg, sspec)
    k.i(f'buffer_load_dwordx4 {xv[0:4]}, {l16}, {sws}, {sreg} offen sc1')
    k.i(f's_add_u32 {sreg}, {sreg}, 8192')
    k.i(f'buffer_load_dwordx4 {xv[4:8]}, {l16}, {sws}, {sreg} offen sc1')
    k.i(f'buffer_load_dwordx2 {xv[8:10]}, {l8}, {sws}, {sspec} offen sc1')
    k.i(f'v_lshlrev_b32 {t2}, 4, {G}')
    k.i(f's_mul_i32 {st1}, {nt2}, 320')
    k.i(f's_add_u32 {so}, {st1}, {WS_MOD + 5 * 2560}')
    for ct in range(5):
        k.i(f'buffer_load_dwordx4 {gbv[4 * ct:4 * ct + 4]}, {t2}, {sws}, {so} offen offset:{64 * ct}')
    sout = k.srd(po, S * D * 2)
    k.barrier()
    k.ts()
    NS4 = 14
    steps = [(s, h) for s in range(NS4) for h in range(2) if 4 * s + 2 * h < 54]

    def prep4(idx):
        s, h = steps[idx]
        b = idx & 1
        L = []
        wb = W4[s % 5] + h * 10240
        wreg, wo_ = (wa[0], wb) if wb < 61440 else (wa[1], wb - 61440)
        xo_ = (s % 3) * 16384 + h * 8192
        L.append(f'ds_read_b128 {Fr[(b * 7 + 2) * 4:(b * 7 + 2) * 4 + 4]}, {wreg} offset:{wo_}')
        for t in range(2):
            x = Fr[(b * 7 + t) * 4:(b * 7 + t) * 4 + 4]
            if s < 2:
                L.append(f'ds_read_b64 {x[0:2]}, {xsp} offset:{xo_ + t * 8}')
                L.append(f'ds_read_b64 {x[2:4]}, {xsp} offset:{xo_ + 2048 + t * 8}')
            else:
                L.append(f'ds_read_b128 {x}, {xa} offset:{xo_ + t * 1024}')
        for ct in range(1, 5):
            L.append(f'ds_read_b128 {Fr[(b * 7 + 2 + ct) * 4:(b * 7 + 2 + ct) * 4 + 4]}, {wreg} offset:{wo_ + ct * 1024}')
        return L

    def mf4(idx):
        b = idx & 1
        L = []
        for ct in range(5):
            for t in range(2):
                a = acc[(ct * 2 + t) * 4:(ct * 2 + t) * 4 + 4]
                L.append(f'v_mfma_f32_16x16x32_bf16 {a}, {Fr[(b * 7 + 2 + ct) * 4:(b * 7 + 2 + ct) * 4 + 4]}, {Fr[(b * 7 + t) * 4:(b * 7 + t) * 4 + 4]}, {0 if idx == 0 else a}')
        return L

    k.barrier()
    k.ts()
    for x in prep4(0):
        k.i(x)
    for idx in range(len(steps)):
        if idx == 14:
            k.ts()
        if idx + 1 < len(steps):
            if steps[idx + 1][1] == 0:
                k.barrier()
            interleave(k, mf4(idx), prep4(idx + 1), lead=2)
        else:
            for x in mf4(idx):
                k.i(x)
    k.ts()
    k.i(f's_mul_i32 {so}, {wave}, 5120')
    k.i(f'v_add_u32 {t1}, {so}, {l16}')
    k.i(f's_xor_b32 {st1}, {wave}, 2')
    k.i(f's_mul_i32 {st1}, {st1}, 5120')
    k.i(f'v_add_u32 {t3}, {st1}, {l16}')
    mk = k.s(2)
    k.i(f's_cmp_eq_u32 {kh}, 1')
    k.i(f's_cselect_b64 {mk}, -1, 0')
    Sd = Fr[0:20]
    Kp = Fr[20:40]
    for ct in range(5):
        for r in range(4):
            a0_, a1_ = acc[(ct * 2) * 4 + r], acc[(ct * 2 + 1) * 4 + r]
            k.i(f'v_cndmask_b32 {Sd[4 * ct + r]}, {a1_}, {a0_}, {mk}')
            k.i(f'v_cndmask_b32 {Kp[4 * ct + r]}, {a0_}, {a1_}, {mk}')
        k.i(f'ds_write_b128 {t1}, {Sd[4 * ct:4 * ct + 4]} offset:{1024 * ct}')
    k.barrier()
    Rv = acc[0:20]
    for ct in range(5):
        k.i(f'ds_read_b128 {Rv[4 * ct:4 * ct + 4]}, {t3} offset:{1024 * ct}')
    k.i(f's_mul_i32 {so}, {ttg}, {16 * 1280}')
    k.i(f's_mul_i32 {st1}, {nt2}, 160')
    k.i(f's_add_u32 {so}, {so}, {st1}')
    k.i(f'v_mul_u32_u24 {t1}, 1280, {n}')
    k.i(f'v_lshl_add_u32 {t1}, {G}, 3, {t1}')
    xe = Fr[40:44]
    for ct in range(5):
        for q in range(2):
            k.i(f'v_lshlrev_b32 {xe[2 * q]}, 16, {xv[2 * ct + q]}')
            k.i(f'v_and_b32 {xe[2 * q + 1]}, 0xffff0000, {xv[2 * ct + q]}')
        for r in range(4):
            k.i(f'v_add_f32 {Kp[4 * ct + r]}, {Kp[4 * ct + r]}, {Rv[4 * ct + r]}')
        for r in range(4):
            k.i(f'v_fmac_f32 {xe[r]}, {Kp[4 * ct + r]}, {gbv[4 * ct + r]}')
        o = Fr[44 + 2 * ct:44 + 2 * ct + 2]
        for q in range(2):
            k.i(f'v_cvt_pk_bf16_f32 {o[q]}, {xe[2 * q]}, {xe[2 * q + 1]}')
        k.i(f'buffer_store_dwordx2 {o}, {t1}, {sout}, {so} offen offset:{32 * ct}')
    k.ts_end()
    k.i('s_endpgm')

    k.reset_state()
    k.release(mk_common)
    k.nts = nts2
    k.label('m_l2')
    lw = k.s()
    k.i(f's_sub_u32 {lw}, {wave}, 4')
    skv2, spq = k.s(), k.s()
    kvw = k.v(2, align=1)
    KR = k.v(40)
    ob = k.v(8)
    k.i(f's_lshr_b32 {st2}, {lw}, 1')
    k.i(f's_and_b32 {st1}, {lw}, 1')
    k.i(f's_mul_i32 {skv2}, {st2}, {16 * KVS}')
    k.i(f's_mul_i32 {so}, {st1}, 1792')
    k.i(f's_add_u32 {skv2}, {skv2}, {so}')
    k.i(f's_add_u32 {skv2}, {skv2}, {WS_KV}')
    k.i(f's_mul_i32 {st1}, {st1}, 112')
    k.i(f's_mul_i32 {st2}, {st2}, 1920')
    k.i(f's_add_u32 {st2}, {st2}, {RING2}')
    u1, u2_, u3 = KR[0], KR[1], KR[2]
    for i in range(2):
        k.i(f'v_add_u32 {t1}, {st1}, {lane}')
        k.i(f'v_add_u32 {t1}, {64 * i}, {t1}')
        k.i(f'v_mul_u32_u24 {t2}, 6554, {t1}')
        k.i(f'v_lshrrev_b32 {t2}, 16, {t2}')
        k.i(f'v_mul_u32_u24 {t3}, 10, {t2}')
        k.i(f'v_sub_u32 {t3}, {t1}, {t3}')
        k.i(f'v_mul_u32_u24 {u1}, 52, {t2}')
        k.i(f'v_lshrrev_b32 {u1}, 8, {u1}')
        k.i(f'v_mul_u32_u24 {u2_}, 5, {u1}')
        k.i(f'v_sub_u32 {u2_}, {t2}, {u2_}')
        k.i(f'v_lshrrev_b32 {u3}, 1, {t3}')
        k.i(f'v_lshl_add_u32 {kvw[i]}, {u1}, 2, {u2_}')
        k.i(f'v_lshlrev_b32 {kvw[i]}, 4, {kvw[i]}')
        k.i(f'v_lshl_add_u32 {kvw[i]}, {u3}, 8, {kvw[i]}')
        k.i(f'v_cmp_lt_u32 vcc, 20, {t2}')
        k.i(f'v_cndmask_b32 {u1}, {u1}, 5, vcc')
        k.i(f'v_lshlrev_b32 {u1}, 4, {u1}')
        k.i(f'v_lshl_add_u32 {u1}, {u3}, 7, {u1}')
        k.i(f'v_add_u32 {u1}, 1280, {u1}')
        k.i(f'v_cmp_eq_u32 vcc, 4, {u2_}')
        k.i(f'v_cndmask_b32 {kvw[i]}, {kvw[i]}, {u1}, vcc')
        k.i(f'v_cmp_lt_u32 vcc, 19, {t2}')
        k.i(f'v_cndmask_b32 {kvw[i]}, {kvw[i]}, {u1}, vcc')
        k.i(f'v_and_b32 {t3}, 1, {t3}')
        k.i(f'v_lshl_add_u32 {kvw[i]}, {t3}, 3, {kvw[i]}')
        k.i(f'v_add_u32 {kvw[i]}, {st2}, {kvw[i]}')
    dpq = k.s()
    k.i(f's_and_b32 {dpq}, {lw}, 1')
    k.i(f's_lshl_b32 {dpq}, {dpq}, 12')
    k.i(f's_mul_i32 {spq}, {mt2}, 163840')
    k.i(f's_add_u32 {spq}, {spq}, {dpq}')
    k.i(f's_add_u32 {spq}, {spq}, {WS_PHIQ}')
    sw3, dlo, dhi, sx3, dx3 = k.s(), k.s(), k.s(), k.s(), k.s()
    cw3, cx3 = k.s(), k.s()
    if os.environ.get('ROT3', '0') == '1':
        k.i(f's_add_u32 {cx3}, {nt3}, {mt3}')
        k.i(f's_and_b32 {cx3}, {cx3}, 3')
        k.i(f's_mul_i32 {cx3}, {cx3}, 5')
    else:
        k.i(f's_mov_b32 {cx3}, 0')
    k.i(f's_lshr_b32 {cw3}, {lw}, 1')
    k.i(f's_add_u32 {cw3}, {cw3}, {cx3}')
    k.i(f's_and_b32 {sw3}, {lw}, 1')
    k.i(f's_mul_i32 {sw3}, {sw3}, {112 * 1024}')
    k.i(f's_mul_i32 {so}, {nt3}, 7168')
    k.i(f's_add_u32 {sw3}, {sw3}, {so}')
    k.i(f's_add_u32 {sw3}, {sw3}, {WS_WGU}')
    k.i(f's_lshr_b32 {so}, {lw}, 1')
    k.i(f's_mul_i32 {so}, {so}, 14336')
    k.i(f's_and_b32 {st1}, {lw}, 1')
    k.i(f's_lshl_b32 {dlo}, {st1}, 12')
    k.i(f's_add_u32 {dlo}, {dlo}, {so}')
    k.i(f's_mul_i32 {dhi}, {st1}, 3072')
    k.i(f's_add_u32 {dhi}, {dhi}, 8192')
    k.i(f's_add_u32 {dhi}, {dhi}, {so}')
    k.i(f's_lshl_b32 {dx3}, {lw}, 11')
    k.i(f's_mul_i32 {sx3}, {mt3}, {20 * 8192}')
    k.i(f's_add_u32 {sx3}, {sx3}, {dx3}')
    k.i(f's_add_u32 {sx3}, {sx3}, {WS_X1}')

    def w3(p):
        k.i(f's_mul_i32 {so}, {cw3}, {2 * 112 * 1024}')
        k.i(f's_add_u32 {so}, {so}, {sw3}')
        k.i(f's_add_u32 {cw3}, {cw3}, 2')
        k.i(f's_cmp_ge_u32 {cw3}, 20')
        k.i(f's_cselect_b32 {st1}, 20, 0')
        k.i(f's_sub_u32 {cw3}, {cw3}, {st1}')
        k.i(f's_add_u32 m0, {dlo}, {W3[p % 4]}')
        for cc in range(4):
            k.i(f'buffer_load_dwordx4 {l16}, {sws}, {so} offen offset:{1024 * cc} lds', tag=f'w3_{p}')
        k.i(f's_add_u32 {so}, {so}, 4096')
        k.i(f's_add_u32 m0, {dhi}, {W3[p % 4]}')
        for cc in range(3):
            k.i(f'buffer_load_dwordx4 {l16}, {sws}, {so} offen offset:{1024 * cc} lds', tag=f'w3_{p}')

    def x3(J):
        k.i(f's_lshl_b32 {so}, {cx3}, 13')
        k.i(f's_add_u32 {so}, {so}, {sx3}')
        k.i(f's_add_u32 {cx3}, {cx3}, 1')
        k.i(f's_cmp_eq_u32 {cx3}, 20')
        k.i(f's_cselect_b32 {cx3}, 0, {cx3}')
        k.i(f's_add_u32 m0, {dx3}, {X3[J % 5]}')
        for i in range(2):
            k.i(f'buffer_load_dwordx4 {l16}, {sws}, {so} offen offset:{1024 * i} lds', tag=f'x3_{J}')

    sw4, sx4, dw4, dx4 = k.s(), k.s(), k.s(), k.s()
    r4 = k.s()
    if os.environ.get('ROT', '1') == '1':
        k.i(f's_mul_i32 {r4}, {nt2}, 6')
        k.i(f's_and_b32 {so}, {mt2}, 3')
        k.i(f's_mul_i32 {so}, {so}, 11')
        k.i(f's_add_u32 {r4}, {r4}, {so}')
    else:
        k.i(f's_mov_b32 {r4}, 0')
    k.i(f's_add_u32 {r4}, {r4}, {lw}')

    def e4(s):
        if s < 2:
            k.i(f's_add_u32 {st2}, {r4}, {4 * s}')
            k.i(f's_and_b32 {st2}, {st2}, 7')
        else:
            k.i(f's_add_u32 {st2}, {r4}, {4 * s - 8}')
            for _ in range(2):
                k.i(f's_cmp_ge_u32 {st2}, 46')
                k.i(f's_cselect_b32 {st1}, 46, 0')
                k.i(f's_sub_u32 {st2}, {st2}, {st1}')
            k.i(f's_add_u32 {st2}, {st2}, 8')

    k.i(f's_mul_i32 {sw4}, {nt2}, 5120')
    k.i(f's_add_u32 {sw4}, {sw4}, {WS_WDF}')
    k.i(f's_mul_i32 {dw4}, {lw}, 5120')
    k.i(f's_lshl_b32 {dx4}, {lw}, 12')
    k.i(f's_mul_i32 {sx4}, {mt2}, {56 * 4096}')
    k.i(f's_add_u32 {sx4}, {sx4}, {WS_ACT}')

    def w4(s):
        e4(s)
        k.i(f's_mul_i32 {so}, {st2}, 40960')
        k.i(f's_add_u32 {so}, {so}, {sw4}')
        k.i(f's_add_u32 m0, {dw4}, {W4[s % 5]}')
        for cc in range(4):
            k.i(f'buffer_load_dwordx4 {l16}, {sws}, {so} offen offset:{1024 * cc} lds', tag=f'w4_{s}')
        k.i(f's_add_u32 {so}, {so}, 4096')
        k.i(f's_add_u32 m0, {dw4}, {W4[s % 5] + 4096}')
        k.i(f'buffer_load_dwordx4 {l16}, {sws}, {so} offen lds', tag=f'w4_{s}')

    def x4(s):
        e4(s)
        k.i(f's_lshl_b32 {so}, {st2}, 12')
        k.i(f's_add_u32 {so}, {so}, {sx4}')
        k.i(f's_add_u32 m0, {dx4}, {X4[s % 3]}')
        for cc in range(4):
            k.i(f'buffer_load_dwordx4 {l16}, {sws}, {so} offen offset:{1024 * cc} lds', tag=f'x4_{s}')

    def ldk(s):
        k.i(f's_add_u32 {so}, {skv2}, {s * KVS}')
        for i in range(2):
            k.i(f'buffer_load_dwordx4 {KR[((s % 5) * 2 + i) * 4:((s % 5) * 2 + i) * 4 + 4]}, {l16}, {sws}, {so} offen offset:{1024 * i}')

    def stk(s):
        for i in range(2):
            kr = KR[((s % 5) * 2 + i) * 4:((s % 5) * 2 + i) * 4 + 4]
            o = ob[((s & 1) * 2 + i) * 2:((s & 1) * 2 + i) * 2 + 2]
            k.i(f'v_cvt_pk_bf16_f32 {o[0]}, {kr[0]}, {kr[1]}')
            k.i(f'v_cvt_pk_bf16_f32 {o[1]}, {kr[2]}, {kr[3]}')
            k.i(f'ds_write_b64 {kvw[i]}, {o} offset:{(s % 4) * SL2}')

    poll(G1, sx, 6)
    k.i('s_barrier')
    k.ts()
    for s in range(5):
        ldk(s)
    k.i(f's_mul_i32 {so}, {lw}, {SL2}')
    k.i(f'v_and_b32 {t1}, 1, {lane}')
    k.i(f'v_mul_u32_u24 {t1}, 1920, {t1}')
    k.i(f'v_add_u32 {t1}, {so}, {t1}')
    zz = k.v(4)
    for q in range(4):
        k.i(f'v_mov_b32 {zz[q]}, 0')
    stk(0)
    k.i(f'ds_write_b128 {t1}, {zz} offset:{RING2 + 1280 + 512 + 112}')
    for s in range(16):
        if s + 1 < 16:
            if s == 0:
                k.wait(lg=0)
            stk(s + 1) if s > 0 else None
        if s > 0:
            k.wait(lg=2 if s + 1 < 16 else 0)
        k.i('s_barrier')
        if s == 0:
            stk(1)
        if s in (0, 8):
            k.ts()
        if s == 5:
            k.i(f's_cmp_lg_u32 {wave}, 7')
            k.i('s_cbranch_scc1 m_nowr')
            k.i(f's_and_b32 {so}, s2, 15')
            k.i(f's_lshl_b32 {so}, {so}, 8')
            k.i(f's_add_u32 {so}, {so}, {WS_CNT + CW}')
            k.i(f'v_mov_b32 {t1}, 0')
            k.i(f'v_mov_b32 {t2}, 1')
            k.i('s_mov_b32 exec_lo, 1')
            k.i('s_mov_b32 exec_hi, 0')
            k.lines.append(f'  buffer_atomic_add {t2}, {t1}, {sws}, {so} offen sc1')
            k.i('s_mov_b64 exec, -1')
            k.raw('m_nowr:')
            k._join()
        if s + 5 < 16:
            ldk(s + 5)
        if s == 11:
            k.lines.append('  s_waitcnt lgkmcnt(0)')
            k.i(f'v_lshlrev_b32 {t1}, 8, {n}')
            k.i(f's_mov_b32 {so}, {WS_CNT + CW}')
            k.i(f's_mov_b32 {st1}, 0')
            k.raw('m_wr:')
            for x in [f'buffer_load_dword {t2}, {t1}, {sws}, {so} offen sc1', 's_waitcnt vmcnt(0)',
                      f'v_cmp_gt_u32 vcc, 16, {t2}', f's_add_u32 {st1}, {st1}, 1', f's_cmp_ge_u32 {st1}, {SPIN_MAX}',
                      's_cbranch_scc1 m_wrd', 's_nop 1', 's_cbranch_vccnz m_wr']:
                k.lines.append('  ' + x)
            k.raw('m_wrd:')
            k._join()
            k.vm = []
            if os.environ.get('TOUCH3', '1') == '1':
                for i_ in range(2):
                    k.i(f's_lshl_b32 {so}, {lw}, 9')
                    k.i(f's_and_b32 {st1}, {mt3}, 7')
                    k.i(f's_add_u32 {so}, {so}, {st1}')
                    k.i(f's_add_u32 {so}, {so}, {2048 * i_}')
                    k.i(f'v_lshlrev_b32 {t1}, 3, {lane}')
                    k.i(f'v_add_u32 {t1}, {so}, {t1}')
                    k.i(f'v_min_u32 {t1}, 2239, {t1}')
                    k.i(f'v_mul_u32_u24 {t2}, 4682, {t1}')
                    k.i(f'v_lshrrev_b32 {t2}, 18, {t2}')
                    k.i(f'v_mul_u32_u24 {t3}, 56, {t2}')
                    k.i(f'v_sub_u32 {t1}, {t1}, {t3}')
                    k.i(f'v_mul_u32_u24 {t2}, {112 * 1024}, {t2}')
                    k.i(f'v_lshl_add_u32 {t1}, {t1}, 7, {t2}')
                    k.i(f's_mul_i32 {so}, {nt3}, 7168')
                    k.i(f's_add_u32 {so}, {so}, {WS_WGU}')
                    if i_ == 1:
                        k.i(f's_cmp_lg_u32 {lw}, 0')
                        k.i('s_cbranch_scc1 m_not3')
                    k.lines.append(f'  buffer_load_dword {zz[i_]}, {t1}, {sws}, {so} offen')
                k.raw('m_not3:')
                k._join()
    k.raw('m_l2j:')
    k.reset_state()
    if True:
        if True:
            w3(0)
    k.ts()
    k.i('s_barrier')
    k.i('s_barrier')
    NPRE3 = int(os.environ.get('NPRE3', 2))
    for p in range(1, NPRE3):
        w3(p)
    k.ts()
    poll(G2, mt3)
    k.i('s_barrier')
    k.ts()
    LAX = 4
    TOUCH4 = os.environ.get('TOUCH4', '1') == '1'
    stq = k.s()
    k.i(f's_lshl_b32 {stq}, {lw}, 8')
    k.i(f's_and_b32 {so}, {mt2}, 3')
    k.i(f's_add_u32 {stq}, {stq}, {so}')
    for J in range(LAX):
        x3(J)
    for J in range(20):
        if J % 2 == 0:
            k.wait_tag(f'w3_{J // 2}')
        k.wait_tag(f'x3_{J}')
        k.i('s_barrier')
        if J == 0:
            k.ts()
        if J == 10:
            k.ts()
        if J + LAX < 20:
            x3(J + LAX)
        if J < 2 and NPRE3 + J < 4:
            w3(NPRE3 + J)
        if TOUCH4 and J >= 2 and J % 2 == 1 and J <= 17:
            pass
        if TOUCH4 and J in (3, 7, 11):
            i_ = (J - 3) // 4
            k.i(f's_add_u32 {so}, {stq}, {i_ * 4 * 64 * 4}')
            k.i(f'v_lshlrev_b32 {t1}, 2, {lane}')
            k.i(f'v_add_u32 {t1}, {so}, {t1}')
            k.i(f'v_min_u32 {t1}, 2159, {t1}')
            k.i(f'v_mul_u32_u24 {t2}, 1639, {t1}')
            k.i(f'v_lshrrev_b32 {t2}, 16, {t2}')
            k.i(f'v_mul_u32_u24 {t3}, 40, {t2}')
            k.i(f'v_sub_u32 {t1}, {t1}, {t3}')
            k.i(f'v_mul_u32_u24 {t2}, 40960, {t2}')
            k.i(f'v_lshl_add_u32 {t1}, {t1}, 7, {t2}')
            k.i(f'buffer_load_dword {t3}, {t1}, {sws}, {sw4} offen')
        if J % 2 == 0 and J >= 2 and J // 2 + 3 < 10:
            w3(J // 2 + 3)
        if J == 8 and os.environ.get('CPF', '1') == '1':
            mk_ = k.mark()
            k.i(f's_cmp_lg_u32 {wave}, 5')
            k.i('s_cbranch_scc1 m_nocpf')
            code_pf('m_p3epi', 'm_l2', 'a')
            k.raw('m_nocpf:')
            k._join()
            k.release(mk_)
        if J == 16:
            w4(0)
        if J == 17:
            w4(1)
    k.ts()
    k.i('s_barrier')
    k.i('s_barrier')
    w4(2)
    w4(3)
    w4(4)
    k.ts()
    k.i(f's_lshr_b32 {st2}, {mt2}, 1')
    sel = k.s()
    k.i(f's_mov_b32 {sel}, {st2}')
    poll(12288, sel)
    k.i('s_barrier')
    k.ts()
    x4(0)
    x4(1)
    for s in range(NS4):
        k.wait_tag(f'w4_{s}')
        k.wait_tag(f'x4_{s}')
        k.i('s_barrier')
        if s in (0, 7):
            k.ts()
        if s + 2 < NS4:
            x4(s + 2)
        if s >= 1 and s + 4 < NS4:
            w4(s + 4)
    k.ts()
    k.i('s_barrier')
    k.ts_end()
    k.label('p1_end')
    k.i('s_endpgm')
    return k, 256, 512, 163840


GENS = [gen_main]
```

```python
import os
from g2_common import *


def poll_flag(k, name, wave, pdb, off, t1, t2):
    sdb = k.srd(pdb, 256)
    cnt, val = k.s(), k.s()
    k.i(f's_cmp_lg_u32 {wave}, 0')
    k.i(f's_cbranch_scc1 {name}_x')
    k.i(f'v_mov_b32 {t1}, {off}')
    k.i('s_mov_b32 exec_lo, 1')
    k.i('s_mov_b32 exec_hi, 0')
    k.i(f's_mov_b32 {cnt}, 0')
    k.raw(f'{name}:')
    pv2 = k.v(2)
    k.lines.append(f'  buffer_load_dwordx2 {pv2}, {t1}, {sdb}, 0 offen sc1')
    k.lines.append('  s_waitcnt vmcnt(0)')
    k.lines.append(f'  v_and_b32 {t2}, {pv2[0]}, {pv2[1]}')
    k.lines.append('  s_nop 0')
    k.lines.append(f'  v_readfirstlane_b32 {val}, {t2}')
    k.lines.append(f'  s_add_u32 {cnt}, {cnt}, 1')
    k.lines.append(f'  s_cmp_ge_u32 {cnt}, 200000')
    k.lines.append(f'  s_cbranch_scc1 {name}_d')
    k.lines.append(f'  s_cmp_lg_u32 {val}, 0')
    k.lines.append(f'  s_cbranch_scc1 {name}_d')
    k.lines.append(f"  s_sleep {os.environ.get('P0_SLEEP', '6')}")
    k.lines.append(f'  s_branch {name}')
    k.raw(f'{name}_d:')
    k.i('s_mov_b64 exec, -1')
    k.raw(f'{name}_x:')
    k._join()
    k.i('s_barrier')

def gen_p0():
    k = Kernel('p0_kernel')
    NT = 32 if os.environ.get('P0_TLB', '1') == '1' else 0
    NWG = 80 + 128 + 80 + NT
    k.i(f's_cmp_ge_u32 s2, {NWG}')
    k.i('s_cbranch_scc1 p0_end')
    if NT:
        k.i(f's_cmp_ge_u32 s2, {NT}')
        k.i('s_cbranch_scc1 p0_main')
        k.i('v_lshrrev_b32 v1, 6, v0')
        k.i('s_lshr_b32 s3, s2, 3')
        k.i('v_readfirstlane_b32 s4, v1')
        k.i('s_lshl_b32 s3, s3, 2')
        k.i('s_add_u32 s3, s3, s4')
        k.i('s_cmp_lt_u32 s3, 12')
        k.i('s_cbranch_scc1 p0_tlb')
        k.lines.append('  s_getpc_b64 s[8:9]')
        k.lines.append('p0_pc:')
        k.lines.append('  s_add_u32 s8, s8, p1_kernel-p0_pc')
        k.lines.append('  s_addc_u32 s9, s9, 0')
        k.i('v_lshlrev_b32 v1, 7, v0')
        k.lines.append('  v_min_u32 v2, code_end-p1_kernel-4, v1')
        k.lines.append('  global_load_dword v3, v2, s[8:9]')
        for r in (1, 2):
            k.i(f'v_add_u32 v1, 32768, v1')
            k.lines.append('  v_min_u32 v2, code_end-p1_kernel-4, v1')
            k.lines.append(f'  global_load_dword v{3 + r}, v2, s[8:9]')
        k.i('s_endpgm')
        k.raw('p0_tlb:')
        order = [KA_WMOD, KA_X, KA_WQKV, KA_C, KA_WPHI, KA_WS, KA_WG, KA_WU, KA_WD, KA_WO, KA_OUT, KA_WS]
        sizes = {KA_WMOD: D * 3840 * 2, KA_X: S * D * 2, KA_WQKV: D * 1920 * 2, KA_C: D * 2, KA_WPHI: 25600, KA_WS: WS_END,
                 KA_WG: D * F * 2, KA_WU: D * F * 2, KA_WD: D * F * 2, KA_WO: D * D * 2, KA_OUT: S * D * 2}
        k.i(f's_mov_b32 s5, {order[0]}')
        k.i(f's_mov_b32 s10, {sizes[order[0]]}')
        for i in range(1, 12):
            k.i(f's_cmp_eq_u32 s3, {i}')
            k.i(f's_cselect_b32 s5, {order[i]}, s5')
            k.i(f's_cselect_b32 s10, {sizes[order[i]]}, s10')
        k.i('s_load_dwordx2 s[8:9], s[0:1], s5')
        k.i('v_and_b32 v1, 63, v0')
        k.i('v_lshlrev_b32 v1, 19, v1')
        k.i('s_cmp_eq_u32 s3, 11')
        k.i(f's_cselect_b32 s6, {32 << 20}, 0')
        k.i('s_mov_b32 s11, 0x00020000')
        k.i('s_and_b32 s9, s9, 0xffff')
        k.i('buffer_load_dword v2, v1, s[8:11], s6 offen')
        k.i('s_endpgm')
        k.reset_state()
        k.raw('p0_main:')
        k.i(f's_sub_u32 s2, s2, {NT}')
    k.ts_init(0)
    if k.TS:
        k.i('v_mov_b32 v254, v0')
    ws = k.s(2)
    k.i(f's_load_dwordx2 {ws}, s[0:1], {KA_WS}')
    pdb = k.s(2)
    k.i(f's_load_dwordx2 {pdb}, s[0:1], {KA_DBG}')
    lane = k.v()
    wave = k.s()
    k.i(f'v_and_b32 {lane}, 63, v0')
    t0 = k.v()
    k.i(f'v_lshrrev_b32 {t0}, 6, v0')
    k.i(f'v_readfirstlane_b32 {wave}, {t0}')
    k.i('s_cmp_ge_u32 s2, 208')
    k.i('s_cbranch_scc1 p0_fold')
    k.i('s_cmp_ge_u32 s2, 80')
    k.i('s_cbranch_scc1 p0_xn')
    base_mark = k.mark()
    lg_save = list(k.lg)

    pc, pw = k.s(2), k.s(2)
    k.i(f's_load_dwordx2 {pc}, s[0:1], {KA_C}')
    k.i(f's_load_dwordx2 {pw}, s[0:1], {KA_WMOD}')
    un, cb_, ks_, so = k.s(), k.s(), k.s(), k.s()
    k.i(f's_mov_b32 {un}, s2')
    sc = k.srd(pc, D * 2)
    sw = k.srd(pw, D * 3840 * 2)
    sws = k.srd(ws, WS_END)
    sdb = k.srd(pdb, 256)
    k.raw('p0_gemv:')
    k.reset_state()
    TSsave = k.TS
    k.i(f's_lshr_b32 {cb_}, {un}, 2')
    k.i(f's_and_b32 {ks_}, {un}, 3')
    rr, q, vo, vc = k.v(), k.v(), k.v(), k.v()
    k.i(f'v_lshrrev_b32 {rr}, 3, v0')
    k.i(f's_mul_i32 {so}, {ks_}, 160')
    k.i(f'v_add_u32 {rr}, {so}, {rr}')
    k.i(f'v_and_b32 {q}, 7, v0')
    k.i(f'v_mul_u32_u24 {vo}, 7680, {rr}')
    k.i(f'v_lshl_add_u32 {vo}, {q}, 4, {vo}')
    k.i(f's_lshl_b32 {so}, {cb_}, 7')
    k.i(f'v_add_u32 {vo}, {so}, {vo}')
    k.i(f'v_lshlrev_b32 {vc}, 1, {rr}')
    cv = k.v(5, align=1)
    wv = k.v(20)
    for i in range(5):
        k.i(f's_mov_b32 {so}, {32 * 7680 * i}')
        k.i(f'buffer_load_dwordx4 {wv[4 * i:4 * i + 4]}, {vo}, {sw}, {so} offen')
        if i == 0:
            for i2 in range(5):
                k.i(f'buffer_load_ushort {cv[i2]}, {vc}, {sc}, 0 offen offset:{64 * i2}')
    k.ts()
    acc = k.v(8, align=1)
    t1, t2 = k.v(), k.v()
    for i in range(5):
        c = cv[i]
        k.i(f'v_lshlrev_b32 {c}, 16, {c}')
        k.i(f'v_mul_f32 {t1}, {fhex(-LOG2E)}, {c}')
        k.i(f'v_exp_f32 {t1}, {t1}')
        k.i(f'v_add_f32 {t1}, 1.0, {t1}')
        k.i(f'v_rcp_f32 {t1}, {t1}')
        k.i(f'v_mul_f32 {c}, {c}, {t1}')
        round_bf16(k, c, c)
    k.ts()
    for i in range(5):
        for j in range(4):
            w = wv[4 * i + j]
            k.i(f'v_lshlrev_b32 {t1}, 16, {w}')
            k.i(f'v_and_b32 {t2}, 0xffff0000, {w}')
            op = 'v_mul_f32' if i == 0 else 'v_fmac_f32'
            k.i(f'{op} {acc[2 * j]}, {t1}, {cv[i]}')
            k.i(f'{op} {acc[2 * j + 1]}, {t2}, {cv[i]}')
    k.ts()
    for j in range(8):
        k.i(f'v_add_f32 {acc[j]}, {acc[j]}, {acc[j]} row_ror:8 {DPP}')
    la = k.v()
    k.i(f'v_lshrrev_b32 {la}, 4, v0')
    k.i(f'v_lshlrev_b32 {la}, 8, {la}')
    k.i(f'v_lshl_add_u32 {la}, {q}, 5, {la}')
    a8 = k.v(8)
    for j in range(8):
        k.i(f'v_mov_b32 {a8[j]}, {acc[j]}')
    k.i('s_mov_b32 exec_lo, 0x00ff00ff')
    k.i('s_mov_b32 exec_hi, 0x00ff00ff')
    k.i(f'ds_write_b128 {la}, {a8[0:4]}')
    k.i(f'ds_write_b128 {la}, {a8[4:8]} offset:16')
    k.i('s_mov_b64 exec, -1')
    k.barrier()
    k.i(f's_cmp_lg_u32 {wave}, 0')
    k.i('s_cbranch_scc1 p0_gemv_done')
    k.i(f'v_lshlrev_b32 {la}, 2, v0')
    pv = wv[0:16]
    for j in range(16):
        k.i(f'ds_read_b32 {pv[j]}, {la} offset:{256 * j}')
    for st in (8, 4, 2, 1):
        for j in range(st):
            k.i(f'v_add_f32 {pv[j]}, {pv[j]}, {pv[j + st]}')
    k.i(f's_mul_i32 {so}, {ks_}, 15360')
    k.i(f's_lshl_b32 {cb_}, {cb_}, 8')
    k.i(f's_add_u32 {so}, {so}, {cb_}')
    k.i(f's_add_u32 {so}, {so}, {WS_MODP}')
    k.i(f'buffer_store_dword {pv[0]}, {la}, {sws}, {so} offen sc1')
    k.i(f's_cmp_ge_u32 {un}, 80')
    k.i(f's_cbranch_scc1 p0_gemv_done')
    k.i(f's_and_b32 {cb_}, {un}, 1')
    k.i(f's_lshl_b32 {ks_}, {cb_}, 6')
    k.i(f's_lshl_b32 {cb_}, {cb_}, 2')
    k.i(f'v_mov_b32 {t1}, 1')
    k.i(f'v_mov_b32 {t2}, 0')
    k.i('s_mov_b32 exec_lo, 1')
    k.i('s_mov_b32 exec_hi, 0')
    k.wait(vm=0)
    k.lines.append(f'  buffer_atomic_add {t1}, {t2}, {sdb}, {ks_} offen sc0 sc1')
    k.lines.append('  s_waitcnt vmcnt(0)')
    k.lines.append(f'  v_readfirstlane_b32 {so}, {t1}')
    k.lines.append(f'  v_mov_b32 {t1}, 1')
    k.lines.append(f'  s_cmp_lg_u32 {so}, 39')
    k.lines.append('  s_cbranch_scc1 p0_gemv_done')
    k.lines.append(f'  buffer_store_dword {t1}, {t2}, {sdb}, {cb_} offen offset:128 sc1')
    k.raw('p0_gemv_done:')
    k._join()
    k.i('s_mov_b64 exec, -1')
    k.lines.append('  s_waitcnt lgkmcnt(0)')
    k.i('s_barrier')
    k.i(f's_add_u32 {un}, {un}, 80')
    k.i(f's_cmp_lt_u32 {un}, 240')
    k.i('s_cbranch_scc1 p0_gemv')
    k.ts()
    k.ts_end()
    k.i('s_endpgm')

    k.release(base_mark)
    k.reset_state()
    k.lg = list(lg_save)
    k.nts = 1
    k.label('p0_fold')
    pq, pp = k.s(2), k.s(2)
    k.i(f's_load_dwordx2 {pq}, s[0:1], {KA_WQKV}')
    k.i(f's_load_dwordx2 {pp}, s[0:1], {KA_WPHI}')
    bb, hg4, J = k.s(), k.s(), k.s()
    k.i(f's_sub_u32 {bb}, s2, 208')
    k.i(f's_and_b32 {hg4}, {bb}, 1')
    k.i(f's_lshl_b32 {hg4}, {hg4}, 1')
    k.i(f's_bfe_u32 {J}, {bb}, 0x10001')
    k.i(f's_add_u32 {hg4}, {hg4}, {J}')
    k.i(f's_lshr_b32 {J}, {bb}, 2')
    PHI, ZERO = 32768, 40448
    G, n, l16 = k.v(), k.v(), k.v()
    k.i(f'v_lshrrev_b32 {G}, 4, {lane}')
    k.i(f'v_and_b32 {n}, 15, {lane}')
    k.i(f'v_lshlrev_b32 {l16}, 4, {lane}')
    t1, t2, t3, t4 = k.v(), k.v(), k.v(), k.v()
    da = k.v(8, align=1)
    for i in range(8):
        k.i(f'v_add_u32 {t1}, {256 * i}, v0')
        if i == 7:
            k.i(f'v_min_u32 {t1}, 1919, {t1}')
        k.i(f'v_mul_u32_u24 {t2}, 2185, {t1}')
        k.i(f'v_lshrrev_b32 {t2}, 17, {t2}')
        k.i(f'v_mul_u32_u24 {t3}, 60, {t2}')
        k.i(f'v_sub_u32 {t1}, {t1}, {t3}')
        k.i(f'v_mov_b32 {t3}, 1920')
        k.i(f'v_mov_b32 {t4}, -320')
        k.i(f'v_cmp_gt_u32 vcc, 40, {t1}')
        k.i(f'v_cndmask_b32 {t3}, {t3}, {t4}, vcc')
        k.i(f'v_mov_b32 {t4}, 1280')
        k.i(f'v_cmp_gt_u32 vcc, 20, {t1}')
        k.i(f'v_cndmask_b32 {t3}, {t3}, {t4}, vcc')
        k.i(f'v_lshl_add_u32 {t3}, {t1}, 4, {t3}')
        k.i(f'v_mul_u32_u24 {t2}, 3840, {t2}')
        k.i(f'v_add_u32 {da[i]}, {t2}, {t3}')
    sq = k.srd(pq, D * 1920 * 2)
    sph = k.srd(pp, 32 * 400 * 2)
    sws = k.srd(ws, WS_END)
    so, so2 = k.s(), k.s()
    k.i(f's_mul_i32 {so}, {J}, {32 * 3840}')
    k.i(f's_mul_i32 {so2}, {hg4}, 320')
    k.i(f's_add_u32 {so}, {so}, {so2}')
    k.i(f's_lshl_b32 {so2}, {wave}, 10')
    for i in range(8):
        k.i(f's_add_u32 m0, {so2}, {4096 * i}')
        k.i(f'buffer_load_dwordx4 {da[i]}, {sq}, {so} offen lds', tag='t')
    k.i(f's_mul_i32 {so}, {hg4}, 6400')
    k.i(f's_add_u32 {so}, {so}, {so2}')
    k.i(f's_add_u32 m0, {so2}, {PHI}')
    k.i(f'buffer_load_dwordx4 {l16}, {sph}, {so} offen lds', tag='t')
    k.i(f's_cmp_eq_u32 {wave}, 3')
    k.i('s_cbranch_scc1 p0_nophi')
    k.i(f's_add_u32 {so}, {so}, 4096')
    k.i(f's_add_u32 m0, {so2}, {PHI + 4096}')
    k.i(f'buffer_load_dwordx4 {l16}, {sph}, {so} offen lds', tag='t')
    k.raw('p0_nophi:')
    k._join()
    k.ts()
    k.i(f'v_lshlrev_b32 {t1}, 2, {lane}')
    k.i(f'v_mov_b32 {t2}, 0')
    k.i(f'ds_write_b32 {t1}, {t2} offset:{ZERO}')
    w80 = k.s()
    k.i(f's_mul_i32 {w80}, {wave}, 80')
    aa = k.v(3, align=1)
    k.i(f'v_lshrrev_b32 {t1}, 2, {n}')
    k.i(f'v_lshlrev_b32 {t1}, 3, {t1}')
    k.i(f'v_and_b32 {t2}, 3, {n}')
    k.i(f'v_add_u32 {t1}, {t1}, {t2}')
    k.i(f'v_mul_u32_u24 {t1}, 960, {t1}')
    k.i(f'v_add_u32 {t1}, {w80}, {t1}')
    for s_ in range(3):
        k.i(f'v_add_u32 {t2}, {4 * s_}, {G}')
        k.i(f'v_min_u32 {t2}, 9, {t2}')
        k.i(f'v_cmp_lt_u32 vcc, 4, {t2}')
        k.i(f'v_mov_b32 {t4}, 240')
        k.i(f'v_cndmask_b32 {t3}, 0, {t4}, vcc')
        k.i(f'v_lshl_add_u32 {t3}, {t2}, 4, {t3}')
        k.i(f'v_add_u32 {aa[s_]}, {t1}, {t3}')
    ba = k.v(6, align=1)
    rp, cc = k.v(), k.v()
    k.i(f'v_lshrrev_b32 {rp}, 2, {n}')
    k.i(f'v_and_b32 {cc}, 3, {n}')
    hb = k.v()
    k.i(f'v_and_b32 {hb}, 1, {cc}')
    k.i(f'v_mul_u32_u24 {hb}, 800, {hb}')
    k.i(f's_mul_i32 {so}, {wave}, 1600')
    k.i(f's_add_u32 {so}, {so}, {PHI}')
    k.i(f'v_add_u32 {hb}, {so}, {hb}')
    zr = k.v()
    k.i(f'v_mov_b32 {zr}, {ZERO}')
    k8 = k.v()
    k.i(f'v_lshl_add_u32 {k8}, {G}, 3, {rp}')
    for s_ in range(3):
        for hf in range(2):
            k.i(f'v_add_u32 {t1}, {32 * s_ + 4 * hf}, {k8}')
            k.i(f'v_mul_u32_u24 {t2}, 3277, {t1}')
            k.i(f'v_lshrrev_b32 {t2}, 16, {t2}')
            k.i(f'v_mul_u32_u24 {t3}, 20, {t2}')
            k.i(f'v_sub_u32 {t3}, {t1}, {t3}')
            k.i(f'v_mul_u32_u24 {t3}, 40, {t3}')
            k.i(f'v_add_u32 {t3}, {t3}, {hb}')
            k.i(f'v_cmp_eq_u32 vcc, {t2}, {cc}')
            k.i(f'v_cndmask_b32 {ba[2 * s_ + hf]}, {zr}, {t3}, vcc')
    va = k.v(6, align=1)
    k.i(f'v_mul_u32_u24 {t1}, 960, {k8}')
    k.i(f'v_add_u32 {t1}, 640, {t1}')
    k.i(f'v_add_u32 {t1}, {w80}, {t1}')
    for c3 in range(3):
        k.i(f'v_add_u32 {t2}, {4 * c3}, {cc}')
        k.i(f'v_cmp_lt_u32 vcc, 5, {t2}')
        k.i(f'v_cndmask_b32 {t3}, 0, 1, vcc')
        k.i(f'v_sub_u32 {t3}, {t2}, {t3}')
        k.i(f'v_lshl_add_u32 {t3}, {t3}, 3, {t1}')
        k.i(f'v_add_u32 {t4}, 3840, {t3}')
        if c3 >= 1:
            k.i(f'v_cmp_eq_u32 vcc, {5 if c3 == 1 else 11}, {t2}')
            k.i(f'v_cndmask_b32 {va[2 * c3]}, {t3}, {zr}, vcc')
            k.i(f'v_cndmask_b32 {va[2 * c3 + 1]}, {t4}, {zr}, vcc')
        else:
            k.i(f'v_mov_b32 {va[0]}, {t3}')
            k.i(f'v_mov_b32 {va[1]}, {t4}')
    k.lines.append('  s_waitcnt vmcnt(0)')
    k.vm = []
    k.barrier()
    k.ts()
    A = k.v(24)
    B = k.v(60)
    Vf = k.v(12)
    for p in range(2):
        for s_ in range(3):
            k.i(f'ds_read_b128 {A[(p * 3 + s_) * 4:(p * 3 + s_) * 4 + 4]}, {aa[s_]} offset:{p * 3840}')
    for ct in range(5):
        for s_ in range(3):
            for hf in range(2):
                b_ = (ct * 3 + s_) * 4 + 2 * hf
                k.i(f'ds_read_b64_tr_b16 {B[b_:b_ + 2]}, {ba[2 * s_ + hf]} offset:{8 * ct}')
    for c3 in range(3):
        for hf in range(2):
            k.i(f'ds_read_b64_tr_b16 {Vf[c3 * 4 + 2 * hf:c3 * 4 + 2 * hf + 2]}, {va[2 * c3 + hf]}')
    k.i(f's_lshl_b32 {so}, {hg4}, 2')
    k.i(f's_add_u32 {so}, {so}, {wave}')
    k.i(f's_mul_i32 {so}, {so}, 20')
    k.i(f's_add_u32 {so}, {so}, {J}')
    k.i(f's_lshl_b32 {so}, {so}, 13')
    k.i(f's_add_u32 {so}, {so}, {WS_WP}')
    k.i(f's_add_u32 {so2}, {so}, 4096')
    Dm = k.v(16)
    o = k.v(8)
    STF = os.environ.get('P0_ST', '')
    for ct in range(5):
        d8 = Dm[(ct & 1) * 8:(ct & 1) * 8 + 8]
        for p in range(2):
            d = d8[p * 4:p * 4 + 4]
            for s_ in range(3):
                k.i(f'v_mfma_f32_16x16x32_bf16 {d}, {A[(p * 3 + s_) * 4:(p * 3 + s_) * 4 + 4]}, {B[(ct * 3 + s_) * 4:(ct * 3 + s_) * 4 + 4]}, {0 if s_ == 0 else d}')
        if ct >= 1:
            pd = Dm[((ct - 1) & 1) * 8:((ct - 1) & 1) * 8 + 8]
            oo = o[((ct - 1) & 1) * 4:((ct - 1) & 1) * 4 + 4]
            for j in range(4):
                k.i(f'v_cvt_pk_bf16_f32 {oo[j]}, {pd[2 * j]}, {pd[2 * j + 1]}')
            k.i(f'buffer_store_dwordx4 {oo}, {l16}, {sws}, {so} offen offset:{(ct - 1) * 1024} {STF}')
    for c3 in range(3):
        k.i(f'buffer_store_dwordx4 {Vf[c3 * 4:c3 * 4 + 4]}, {l16}, {sws}, {so2} offen offset:{(c3 + 1) * 1024} {STF}')
    oo = o[0:4]
    for j in range(4):
        k.i(f'v_cvt_pk_bf16_f32 {oo[j]}, {Dm[2 * j]}, {Dm[2 * j + 1]}')
    k.i(f'buffer_store_dwordx4 {oo}, {l16}, {sws}, {so2} offen {STF}')
    k.ts()
    k.ts_end()
    k.i('s_endpgm')

    k.release(base_mark)
    k.reset_state()
    k.lg = list(lg_save)
    k.nts = 1
    k.label('p0_xn')
    px = k.s(2)
    k.i(f's_load_dwordx2 {px}, s[0:1], {KA_X}')
    tt = k.s()
    tq = k.s()
    k.i(f's_sub_u32 {tq}, s2, 80')
    k.i(f's_bfe_u32 {tt}, {tq}, 0x20001')
    k.i(f's_lshl_b32 {tt}, {tt}, 5')
    sq_ = k.s()
    k.i(f's_lshr_b32 {sq_}, {tq}, 3')
    k.i(f's_lshl_b32 {sq_}, {sq_}, 1')
    k.i(f's_add_u32 {tt}, {tt}, {sq_}')
    k.i(f's_and_b32 {sq_}, {tq}, 1')
    k.i(f's_add_u32 {tt}, {tt}, {sq_}')
    sxx = k.srd(px, S * D * 2)
    sws = k.srd(ws, WS_END)
    nrow, j_, vo, t1, t2 = k.v(), k.v(), k.v(), k.v(), k.v()
    k.i(f'v_lshrrev_b32 {nrow}, 4, v0')
    k.i(f'v_and_b32 {j_}, 15, v0')
    k.i(f'v_mul_u32_u24 {vo}, 1280, {nrow}')
    k.i(f'v_lshl_add_u32 {vo}, {j_}, 4, {vo}')
    so = k.s()
    k.i(f's_mul_i32 {so}, {tt}, 20480')
    xr = k.v(20)
    for i in range(5):
        k.i(f'buffer_load_dwordx4 {xr[4 * i:4 * i + 4]}, {vo}, {sxx}, {so} offen offset:{256 * i}')
    sv = k.s(2)
    so3 = k.s()
    k.i(f's_mul_i32 {so3}, {tt}, 1280')
    k.i(f's_add_u32 {so3}, {so3}, {WS_CNT}')
    k.i(f'v_lshlrev_b32 {t1}, 2, v0')
    k.i(f'v_mov_b32 {t2}, 0')
    k.i(f'buffer_store_dword {t2}, {t1}, {sws}, {so3} offen sc1')
    k.i(f'v_cmp_gt_u32 vcc, 64, v0')
    k.i(f's_and_saveexec_b64 {sv}, vcc')
    k.i(f'buffer_store_dword {t2}, {t1}, {sws}, {so3} offen offset:1024 sc1')
    k.i(f's_mov_b64 exec, {sv}')
    k.ts()
    k.wait(vm=2)
    k.ts()
    xf = k.v(40)
    sm = k.v()
    for i in range(20):
        k.i(f'v_lshlrev_b32 {xf[2 * i]}, 16, {xr[i]}')
        k.i(f'v_and_b32 {xf[2 * i + 1]}, 0xffff0000, {xr[i]}')
    k.i(f'v_add_f32 {sm}, {xf[0]}, {xf[1]}')
    k.i(f'v_add_f32 {t1}, {xf[2]}, {xf[3]}')
    for i in range(4, 40, 2):
        k.i(f'v_add_f32 {sm}, {sm}, {xf[i]}')
        k.i(f'v_add_f32 {t1}, {t1}, {xf[i + 1]}')
    k.i(f'v_add_f32 {sm}, {sm}, {t1}')
    for r in (1, 2, 4, 8):
        k.i(f'v_add_f32 {sm}, {sm}, {sm} row_ror:{r} {DPP}')
    k.i(f'v_mul_f32 {sm}, {fhex(1.0 / 640)}, {sm}')
    for i in range(40):
        k.i(f'v_sub_f32 {xf[i]}, {xf[i]}, {sm}')
    k.i(f'v_mul_f32 {sm}, {xf[0]}, {xf[0]}')
    k.i(f'v_mul_f32 {t1}, {xf[1]}, {xf[1]}')
    for i in range(2, 40, 2):
        k.i(f'v_fmac_f32 {sm}, {xf[i]}, {xf[i]}')
        k.i(f'v_fmac_f32 {t1}, {xf[i + 1]}, {xf[i + 1]}')
    k.i(f'v_add_f32 {sm}, {sm}, {t1}')
    for r in (1, 2, 4, 8):
        k.i(f'v_add_f32 {sm}, {sm}, {sm} row_ror:{r} {DPP}')
    k.i(f'v_mov_b32 {t1}, {fhex(1e-5)}')
    k.i(f'v_fmac_f32 {t1}, {fhex(1.0 / 640)}, {sm}')
    k.i(f'v_rsq_f32 {t1}, {t1}')
    for i in range(40):
        k.i(f'v_mul_f32 {xf[i]}, {xf[i]}, {t1}')
    for i in range(20):
        k.i(f'v_cvt_pk_bf16_f32 {xr[i]}, {xf[2 * i]}, {xf[2 * i + 1]}')
    k.i(f'v_lshlrev_b32 {t1}, 8, {j_}')
    k.i(f'v_lshl_add_u32 {t1}, {nrow}, 4, {t1}')
    for i in range(5):
        k.i(f'ds_write_b128 {t1}, {xr[4 * i:4 * i + 4]} offset:{4096 * i}')
    k.barrier()
    k.i(f'v_lshlrev_b32 {t1}, 4, v0')
    for i in range(5):
        k.i(f'ds_read_b128 {xr[4 * i:4 * i + 4]}, {t1} offset:{4096 * i}')
    for i in range(20):
        k.i(f'v_lshlrev_b32 {xf[2 * i]}, 16, {xr[i]}')
        k.i(f'v_and_b32 {xf[2 * i + 1]}, 0xffff0000, {xr[i]}')
    cfa = k.v()
    k.i(f'v_lshlrev_b32 {cfa}, 5, {nrow}')
    k.ts()
    k.wait_all()
    mk_r = k.mark()
    sty, srowA, srowB, sdst, scol, ska, sstr = k.s(), k.s(), k.s(), k.s(), k.s(), k.s(), k.s()
    ks, cblk, u2, q_, p_, t_, t2_, rr_ = k.s(), k.s(), k.s(), k.s(), k.s(), k.s(), k.s(), k.s()
    so_keep = so
    so, st1 = k.s(), k.s()
    k.i(f's_lshl_b32 {rr_}, {tq}, 2')
    k.i(f's_add_u32 {rr_}, {rr_}, {wave}')
    k.raw('p0_rloop:')
    k._join()
    k.vm = []
    k.lg = []
    k.i(f's_mov_b32 {u2}, {rr_}')
    k.i(f's_cmp_lt_u32 {rr_}, 540')
    k.i(f's_cbranch_scc1 p0_sd_wdf')
    k.i(f's_sub_u32 {u2}, {u2}, 540')
    k.i(f's_mov_b32 {sty}, 2')
    k.i(f's_mul_i32 {q_}, {u2}, 6554')
    k.i(f's_lshr_b32 {q_}, {q_}, 16')
    k.i(f's_mul_i32 {t_}, {q_}, 10')
    k.i(f's_sub_u32 {t_}, {u2}, {t_}')
    k.i(f's_lshl_b32 {scol}, {t_}, 7')
    k.i(f's_mul_i32 {sdst}, {q_}, 40')
    k.i(f's_lshl_b32 {t_}, {t_}, 2')
    k.i(f's_add_u32 {sdst}, {sdst}, {t_}')
    k.i(f's_lshl_b32 {sdst}, {sdst}, 10')
    k.i(f's_add_u32 {sdst}, {sdst}, {WS_WOF}')
    k.i(f's_mul_i32 {t_}, {q_}, 52')
    k.i(f's_lshr_b32 {t_}, {t_}, 8')
    k.i(f's_mul_i32 {srowA}, {t_}, 160')
    k.i(f's_mul_i32 {t_}, {t_}, 5')
    k.i(f's_sub_u32 {srowB}, {q_}, {t_}')
    k.i(f's_mov_b32 {ska}, {KA_WO}')
    k.i(f's_mov_b32 {sstr}, 1280')
    k.i(f's_branch p0_sd_done')
    k.raw('p0_sd_wdf:')
    k.i(f's_mul_i32 {q_}, {u2}, 6554')
    k.i(f's_lshr_b32 {q_}, {q_}, 16')
    k.i(f's_mul_i32 {t_}, {q_}, 10')
    k.i(f's_sub_u32 {t_}, {u2}, {t_}')
    k.i(f's_lshl_b32 {scol}, {t_}, 7')
    k.i(f's_mul_i32 {sdst}, {q_}, 40')
    k.i(f's_lshl_b32 {t_}, {t_}, 2')
    k.i(f's_add_u32 {sdst}, {sdst}, {t_}')
    k.i(f's_lshl_b32 {sdst}, {sdst}, 10')
    k.i(f's_add_u32 {sdst}, {sdst}, {WS_WDF}')
    k.i(f's_sub_u32 {t_}, {q_}, 8')
    k.i(f's_and_b32 {t_}, {t_}, 63')
    k.i(f's_mul_i32 {p_}, {t_}, 86')
    k.i(f's_lshr_b32 {p_}, {p_}, 8')
    k.i(f's_lshl_b32 {srowA}, {t_}, 1')
    k.i(f's_add_u32 {srowA}, {srowA}, {p_}')
    k.i(f's_add_u32 {srowB}, {srowA}, 1')
    k.i(f's_mul_i32 {t_}, {q_}, 14')
    k.i(f's_add_u32 {t2_}, {t_}, 13')
    k.i(f's_min_u32 {t2_}, {t2_}, 107')
    k.i(f's_add_u32 {t_}, {t_}, 6')
    k.i(f's_cmp_lt_u32 {q_}, 8')
    k.i(f's_cselect_b32 {srowA}, {t_}, {srowA}')
    k.i(f's_cselect_b32 {srowB}, {t2_}, {srowB}')
    k.i(f's_lshl_b32 {srowA}, {srowA}, 4')
    k.i(f's_lshl_b32 {srowB}, {srowB}, 4')
    k.i(f's_mov_b32 {sty}, 1')
    k.i(f's_mov_b32 {ska}, {KA_WD}')
    k.i(f's_mov_b32 {sstr}, 1280')
    k.i(f's_branch p0_sd_done')
    k.raw('p0_sd_done:')
    psd = k.s(2)
    k.i(f's_load_dwordx2 {psd}, s[0:1], {ska}')
    G, n, l16 = k.v(), k.v(), k.v()
    k.i(f'v_lshrrev_b32 {G}, 4, {lane}')
    k.i(f'v_and_b32 {n}, 15, {lane}')
    k.i(f'v_lshlrev_b32 {l16}, 4, {lane}')
    tmp = k.v(8, align=1)
    rho, r1, r2, r3, ad, cc = tmp[0], tmp[1], tmp[2], tmp[3], tmp[4], tmp[5]
    SA = k.v(4, align=1)
    k.i(f'v_and_b32 {cc}, 7, {lane}')
    k.i(f'v_lshlrev_b32 {cc}, 4, {cc}')
    msk = k.s(2)
    k.i(f's_cmp_eq_u32 {sty}, 2')
    k.i(f's_cselect_b64 {msk}, -1, 0')
    k.i(f's_lshl_b32 {st1}, {srowB}, 3')
    for i in range(4):
        k.i(f'v_lshrrev_b32 {rho}, 3, {lane}')
        k.i(f'v_add_u32 {rho}, {8 * i}, {rho}')
        if i < 2:
            k.i(f'v_add_u32 {r1}, {srowA}, {rho}')
        else:
            k.i(f'v_add_u32 {r1}, {srowB}, {rho}')
            k.i(f'v_subrev_u32 {r1}, 16, {r1}')
        k.i(f'v_and_b32 {r2}, 3, {rho}')
        k.i(f'v_add_u32 {r2}, {st1}, {r2}')
        if i >= 2:
            k.i(f'v_add_u32 {r2}, 4, {r2}')
        k.i(f'v_and_b32 {r2}, 63, {r2}')
        k.i(f'v_mul_u32_u24 {r3}, 52, {r2}')
        k.i(f'v_lshrrev_b32 {r3}, 8, {r3}')
        k.i(f'v_mad_u32_u24 {r2}, {r3}, 15, {r2}')
        k.i(f'v_bfe_u32 {r3}, {rho}, 2, 2')
        k.i(f'v_mad_u32_u24 {r2}, {r3}, 5, {r2}')
        k.i(f'v_add_u32 {r2}, {srowA}, {r2}')
        k.i(f'v_cndmask_b32 {r1}, {r1}, {r2}, {msk}')
        k.i(f'v_mul_lo_u32 {ad}, {r1}, {sstr}')
        k.i(f'v_add_u32 {SA[i]}, {ad}, {cc}')
    ssd = k.s(4)
    k.i(f's_mov_b32 {ssd[0]}, {psd[0]}')
    k.i(f's_and_b32 {ssd[1]}, {psd[1]}, 0xffff')
    k.i(f's_mov_b32 {ssd[2]}, {D * F * 2}')
    k.i(f's_cmp_eq_u32 {sty}, 2')
    k.i(f's_cselect_b32 {ssd[2]}, {D * D * 2}, {ssd[2]}')
    k.i(f's_mov_b32 {ssd[3]}, 0x00020000')
    k.i(f's_lshl_b32 {so}, {wave}, 12')
    k.i(f's_add_u32 {so}, {so}, 24576')
    for i in range(4):
        k.i(f's_add_u32 m0, {so}, {1024 * i}')
        k.i(f'buffer_load_dwordx4 {SA[i]}, {ssd}, {scol} offen lds', tag='side')
    Wf = k.v(16)
    k.i(f'v_lshrrev_b32 {tmp[0]}, 2, {lane}')
    k.i(f'v_lshlrev_b32 {tmp[0]}, 7, {tmp[0]}')
    k.i(f'v_and_b32 {tmp[1]}, 3, {lane}')
    k.i(f'v_lshl_add_u32 {tmp[0]}, {tmp[1]}, 3, {tmp[0]}')
    k.i(f'v_add_u32 {tmp[0]}, {so}, {tmp[0]}')
    k.lines.append('  s_waitcnt vmcnt(0)')
    k.vm = []
    for c4 in range(4):
        for hf in range(2):
            k.i(f'ds_read_b64_tr_b16 {Wf[c4 * 4 + 2 * hf:c4 * 4 + 2 * hf + 2]}, {tmp[0]} offset:{hf * 2048 + c4 * 32}')
    k.wait(lg=0)
    STF = os.environ.get('P0_ST', '')
    for c4 in range(4):
        k.i(f'buffer_store_dwordx4 {Wf[c4 * 4:c4 * 4 + 4]}, {l16}, {sws}, {sdst} offen offset:{1024 * c4} {STF}')
    k.i(f's_add_u32 {rr_}, {rr_}, 512')
    k.i(f's_cmp_lt_u32 {rr_}, 740')
    k.i('s_cbranch_scc1 p0_rloop')
    so = so_keep
    k.release(mk_r)
    k.ts()
    poll_flag(k, 'p0_pollA', wave, pdb, 128, t1, t2)
    k.ts()
    cfs = k.v(80)
    k.i(f'v_lshlrev_b32 {t2}, 2, v0')
    for ks in range(4):
        k.i(f's_mov_b32 {so3}, {WS_MODP + ks * 15360}')
        for i in range(4):
            k.i(f'buffer_load_dword {cfs[ks * 5 + i]}, {t2}, {sws}, {so3} offen offset:{1024 * i} sc1')
        k.i(f's_mov_b32 {so3}, {WS_MODP + ks * 15360 + 4096}')
        k.i(f'buffer_load_dword {cfs[ks * 5 + 4]}, {t2}, {sws}, {so3} offen sc1')
    k.i(f'v_cmp_lt_u32 vcc, 127, v0')
    for i in range(5):
        a_ = cfs[i]
        k.i(f'v_add_f32 {a_}, {a_}, {cfs[5 + i]}')
        k.i(f'v_add_f32 {cfs[10 + i]}, {cfs[10 + i]}, {cfs[15 + i]}')
        k.i(f'v_add_f32 {a_}, {a_}, {cfs[10 + i]}')
        round_bf16(k, a_, a_)
        if i >= 2:
            k.i(f'v_add_f32 {t1}, 1.0, {a_}')
            round_bf16(k, t1, t1)
            if i == 2:
                k.i(f'v_cndmask_b32 {a_}, {a_}, {t1}, vcc')
            else:
                k.i(f'v_mov_b32 {a_}, {t1}')
        k.i(f'ds_write_b32 {t2}, {a_} offset:{1024 * i}')
    k.barrier()
    for i in range(5):
        for q in range(2):
            k.i(f'ds_read_b128 {cfs[16 * i + 4 * q:16 * i + 4 * q + 4]}, {cfa} offset:{512 * i + 16 * q}')
            k.i(f'ds_read_b128 {cfs[16 * i + 8 + 4 * q:16 * i + 8 + 4 * q + 4]}, {cfa} offset:{2560 + 512 * i + 16 * q}')
    k.i(f's_lshr_b32 {so}, {tt}, 3')
    k.i(f's_mul_i32 {so}, {so}, 20')
    k.i(f's_add_u32 {so}, {so}, {wave}')
    k.i(f's_lshl_b32 {so}, {so}, 13')
    k.i(f's_and_b32 {so3}, {tt}, 7')
    k.i(f's_lshl_b32 {so3}, {so3}, 10')
    k.i(f's_add_u32 {so}, {so}, {so3}')
    k.i(f's_add_u32 {so}, {so}, {WS_XN}')
    k.i(f'v_lshlrev_b32 {t2}, 4, {lane}')
    for i in range(5):
        for e in range(8):
            k.i(f'v_fma_f32 {xf[8 * i + e]}, {xf[8 * i + e]}, {cfs[16 * i + 8 + e]}, {cfs[16 * i + e]}')
        for q in range(4):
            k.i(f'v_cvt_pk_bf16_f32 {xr[4 * i + q]}, {xf[8 * i + 2 * q]}, {xf[8 * i + 2 * q + 1]}')
        k.i(f's_add_u32 {so3}, {so}, {4 * 8192 * i}')
        k.i(f'buffer_store_dwordx4 {xr[4 * i:4 * i + 4]}, {t2}, {sws}, {so3} offen ' + os.environ.get('P0_ST', ''))
    k.ts()
    k.ts_end()
    k.i('s_endpgm')

    k.label('p0_end')
    k.i('s_endpgm')
    return k, NWG, 256, 40960
```

```python
import os, sys
from g2_common import *
if os.environ.get('TS'):
    Kernel.TS = True
import g7_p0, g5_main
gens = [g7_p0.gen_p0, g5_main.gen_main]
HEADER = '''; adaLN + hedgehog linear attention + GEGLU FFN, gfx950. Generated by my own generator scripts.
; Kernarg: 0 A_x, 8 A_wqkv, 16 A_w_phi, 24 A_wo, 32 B_x, 40 B_w_gate, 48 B_w_up, 56 B_w_down, 64 c, 72 w_mod, 80 out, 88 debug, 96 ws'''.split('\n')
n = int(sys.argv[2]) if len(sys.argv) > 2 else len(gens)
ks, launches = [], []
for g in gens[:n]:
    k, grid, block, lds = g()
    ks.append(k)
    launches.append((k.name, grid, block, lds))
    print(k.name, 'vgpr', k.hi_v, 'agpr', k.hi_a, 'sgpr', k.hi_s, 'instr', k.ninstr, 'lds', lds, file=sys.stderr)
open(sys.argv[1], 'w').write(build_file(HEADER, launches, ks))
```

```python
import os
from g2_common import *

SPIN_MAX = 400000
C2, G2, C3, G3, C1G, C1T, G1, CW = 0, 4096, 8192, 12288, 16384, 20480, 24576, 28672


def R_(base, n):
    return R('v', base, n)


def gen_main():
    k = Kernel('p1_kernel')
    TSX = os.environ.get('TSX')

    def tsx():
        if TSX == '1':
            k.ts()

    def tsz():
        if TSX == '3':
            k.ts()

    def tsy(c=True):
        if TSX == '2' and c:
            k.ts()

    c = common_prologue(k, 256, 'p1_end', 1)
    lane, G, n, l16, wave = c.lane, c.G, c.n, c.l16, c.wave
    KPS, LA, NST, NSL = 1, int(os.environ.get('P1_LA', 4)), 20, 8
    LQK, LV, LPK, LSIDE, LCS = 0, 129024, 40960, 141824, 0
    WOFB = 57344
    LMOD = 162304
    LCNT = 163840 - 64
    sx, sy, so, st1, st2 = k.s(), k.s(), k.s(), k.s(), k.s()
    mt2, nt2, mt3, nt3 = k.s(), k.s(), k.s(), k.s()
    px, po = k.s(2), k.s(2)
    rot2 = k.s()
    t1, t2, t3 = k.v(), k.v(), k.v()
    sws = k.s(4)
    mk_common = k.mark()

    def code_pf(lab_from, lab_to, tag):
        pc = k.s(2)
        k.lines.append(f'  s_getpc_b64 {pc}')
        k.lines.append(f'm_pc{tag}:')
        k.lines.append(f'  s_add_u32 {pc[0]}, {pc[0]}, {lab_from}-m_pc{tag}')
        k.lines.append(f'  s_addc_u32 {pc[1]}, {pc[1]}, ({lab_from}-m_pc{tag})>>32')
        k.i(f'v_lshlrev_b32 {t1}, 12, {lane}')
        k.i(f's_lshl_b32 {so}, {sy}, 7')
        k.i(f'v_add_u32 {t1}, {so}, {t1}')
        k.lines.append(f'  v_cmp_gt_u32 vcc, {lab_to}-{lab_from}-4, {t1}')
        k.lines.append(f'  s_and_saveexec_b64 {k.s(2)}, vcc')
        k.lines.append(f'  s_cbranch_execz m_pcx{tag}')
        k.lines.append(f'  global_load_dword {t2}, {t1}, {pc}')
        k.lines.append(f'm_pcx{tag}:')
        k.i('s_mov_b64 exec, -1')

    mt, hp = k.s(), k.s()
    k.i(f's_and_b32 {sx}, s2, 7')
    k.i(f's_lshr_b32 {sy}, s2, 3')
    k.i(f's_lshr_b32 {mt}, {sx}, 1')
    k.i(f's_lshl_b32 {mt}, {mt}, 2')
    k.i(f's_and_b32 {hp}, {sy}, 3')
    k.i(f's_add_u32 {mt}, {mt}, {hp}')
    k.i(f's_and_b32 {hp}, {sx}, 1')
    k.i(f's_lshl_b32 {hp}, {hp}, 3')
    k.i(f's_lshr_b32 {so}, {sy}, 2')
    k.i(f's_add_u32 {hp}, {hp}, {so}')
    hw, sg_, sm0 = k.s(), k.s(), k.s()
    k.i(f's_and_b32 {hw}, {wave}, 3')
    k.i(f's_mul_i32 {sg_}, {hp}, 163840')
    k.i(f's_add_u32 {sg_}, {sg_}, {WS_WP}')
    k.i(f's_mul_i32 {so}, {mt}, 163840')
    k.i(f's_add_u32 {so}, {so}, {WS_XN - 8192}')
    k.i(f's_cmp_ge_u32 {hw}, 2')
    k.i(f's_cselect_b32 {sg_}, {so}, {sg_}')
    k.i(f's_lshl_b32 {sm0}, {hw}, 12')
    k.i(f's_add_u32 {sg_}, {sg_}, {sm0}')
    k.i(f's_mov_b32 {sws[0]}, {c.ws[0]}')
    k.i(f's_and_b32 {sws[1]}, {c.ws[1]}, 0xffff')
    k.i(f's_mov_b32 {sws[2]}, {WS_END}')
    k.i(f's_mov_b32 {sws[3]}, 0x00020000')

    cur1 = k.s()
    if os.environ.get('ROT1', '0') == '1':
        k.i(f's_and_b32 {cur1}, {hp}, 7')
        k.i(f's_mul_i32 {cur1}, {cur1}, 5')
        k.i(f's_lshr_b32 {cur1}, {cur1}, 1')
        k.i(f's_and_b32 {so}, {mt}, 3')
        k.i(f's_mul_i32 {so}, {so}, 5')
        k.i(f's_add_u32 {cur1}, {cur1}, {so}')
        k.i(f's_cmp_ge_u32 {cur1}, 20')
        k.i(f's_cselect_b32 {so}, 20, 0')
        k.i(f's_sub_u32 {cur1}, {cur1}, {so}')
        k.i(f's_lshl_b32 {cur1}, {cur1}, 13')
    else:
        k.i(f's_mov_b32 {cur1}, 0')

    def dma_stage(s):
        k.i(f's_add_u32 {st1}, {sg_}, {cur1}')
        k.i(f's_add_u32 {cur1}, {cur1}, 8192')
        k.i(f's_cmp_eq_u32 {cur1}, 163840')
        k.i(f's_cselect_b32 {cur1}, 0, {cur1}')
        k.i(f's_add_u32 m0, {sm0}, {(s % 8) * 16384}')
        for i in range(4):
            k.i(f'buffer_load_dwordx4 {l16}, {sws}, {st1} offen offset:{1024 * i} lds', tag=f'w{s}')

    k.i(f's_cmp_lt_u32 {wave}, 4')
    k.i('s_cbranch_scc1 m_setup')
    NPRE = 3
    for s in range(NPRE):
        dma_stage(s)
    vm_L = list(k.vm)
    k.raw('m_setup:')
    k._join()
    k.vm = []
    k.i(f's_load_dwordx2 {px}, s[0:1], {KA_X}')
    k.i(f's_load_dwordx2 {po}, s[0:1], {KA_OUT}')
    k.i(f's_lshl_b32 {mt2}, {sx}, 2')
    k.i(f's_and_b32 {nt2}, {sy}, 3')
    k.i(f's_add_u32 {mt2}, {mt2}, {nt2}')
    k.i(f's_lshr_b32 {nt2}, {sy}, 2')
    k.i(f's_and_b32 {mt3}, {sx}, 1')
    k.i(f's_lshl_b32 {mt3}, {mt3}, 3')
    k.i(f's_and_b32 {nt3}, {sy}, 7')
    k.i(f's_add_u32 {mt3}, {mt3}, {nt3}')
    k.i(f's_lshr_b32 {nt3}, {sx}, 1')
    k.i(f's_lshl_b32 {nt3}, {nt3}, 2')
    k.i(f's_lshr_b32 {so}, {sy}, 3')
    k.i(f's_add_u32 {nt3}, {nt3}, {so}')
    k.i(f's_mov_b32 {rot2}, 0')
    k.i(f'v_lshlrev_b32 {t1}, 2, {n}')
    k.i(f'v_add_u32 {t1}, {LCNT}, {t1}')
    k.i(f'v_mov_b32 {t2}, 0')
    k.i(f'ds_write_b32 {t1}, {t2}')
    sty, srowA, srowB, sdst, scol, ks, p_ = k.s(), k.s(), k.s(), k.s(), k.s(), k.s(), k.s()
    ssd = k.s(4)
    mk_tmp = k.mark()
    ska, sstr, cblk, u2, q_, t_, t2_ = k.s(), k.s(), k.s(), k.s(), k.s(), k.s(), k.s()
    k.i(f's_mul_i32 {ks}, s2, 1214')
    k.i(f's_lshr_b32 {ks}, {ks}, 16')
    k.i(f's_mul_i32 {t_}, {ks}, 54')
    k.i(f's_sub_u32 {cblk}, s2, {t_}')
    k.i(f's_cmp_ge_u32 s2, 216')
    k.i(f's_cselect_b32 {t_}, 100, {wave}')
    k.i(f's_cmp_lt_u32 {t_}, 5')
    k.i(f's_cselect_b32 {sty}, 0, 3')
    k.i(f's_min_u32 {ks}, {ks}, 3')
    k.i(f's_lshl_b32 {t2_}, {wave}, 2')
    k.i(f's_lshr_b32 {t2_}, 0x47520, {t2_}')
    k.i(f's_and_b32 {t2_}, {t2_}, 15')
    k.i(f's_mul_i32 {srowA}, {ks}, 10')
    k.i(f's_add_u32 {srowA}, {srowA}, {t2_}')
    k.i(f's_cmp_eq_u32 {wave}, 4')
    k.i(f's_cselect_b32 {t2_}, 5, 1')
    k.i(f's_add_u32 {srowB}, {srowA}, {t2_}')
    k.i(f's_cmp_ge_u32 {cblk}, 27')
    k.i(f's_cselect_b32 {ska}, {KA_WU}, {KA_WG}')
    k.i(f's_cselect_b32 {t_}, 27, 0')
    k.i(f's_cselect_b32 {t2_}, 112, 0')
    k.i(f's_sub_u32 {t_}, {cblk}, {t_}')
    k.i(f's_lshl_b32 {scol}, {t_}, 7')
    k.i(f's_lshl_b32 {t_}, {t_}, 2')
    k.i(f's_add_u32 {p_}, {t_}, {t2_}')
    k.i(f's_mul_i32 {sdst}, {ks}, 5')
    k.i(f's_add_u32 {sdst}, {sdst}, {wave}')
    k.i(f's_mul_i32 {sdst}, {sdst}, 224')
    k.i(f's_add_u32 {sdst}, {sdst}, {p_}')
    k.i(f's_lshl_b32 {sdst}, {sdst}, 10')
    k.i(f's_add_u32 {sdst}, {sdst}, {WS_WGU}')
    k.i(f's_mov_b32 {sstr}, {F * 2}')
    k.i(f's_load_dwordx2 {ssd[0:2]}, s[0:1], {ska}')
    k.i(f's_lshl_b32 {srowA}, {srowA}, 4')
    k.i(f's_lshl_b32 {srowB}, {srowB}, 4')
    SA = k.v(4, align=1)
    k.i(f'v_and_b32 {t3}, 7, {lane}')
    k.i(f'v_lshlrev_b32 {t3}, 4, {t3}')
    k.i(f'v_lshrrev_b32 {t1}, 3, {lane}')
    for i in range(4):
        k.i(f'v_add_u32 {t2}, {srowA if i < 2 else srowB}, {t1}')
        if i & 1:
            k.i(f'v_add_u32 {t2}, 8, {t2}')
        k.i(f'v_mul_lo_u32 {t2}, {t2}, {sstr}')
        k.i(f'v_add_u32 {SA[i]}, {t2}, {t3}')
    k.ns = mk_tmp[2]
    E = Ctx()
    PR = k.v(16, align=1)
    E.sq, E.skv = k.s(), k.s()
    hh, ft = k.s(), k.s()

    def epi_addr(tmp):
        hq, qa, ql, ka = tmp[0], PR[0], PR[1], PR[2]
        sq = E.sq
        E.qa, E.ql, E.ka, E.qk_a, E.sgl, E.ka2 = qa, ql, ka, PR[3], PR[14], PR[15]
        hd, sg = tmp[2], tmp[3]
        k.i(f'v_and_b32 {hd}, 1, {G}')
        k.i(f'v_lshrrev_b32 {sg}, 1, {G}')
        k.i(f'v_lshlrev_b32 {PR[14]}, 31, {sg}')
        k.i(f'v_xor_b32 {PR[14]}, {fhex(LOG2E)}, {PR[14]}')
        k.i(f's_lshl_b32 {so}, {hp}, 1')
        k.i(f'v_add_u32 {hq}, {so}, {hd}')
        k.i(f'v_and_b32 {tmp[4]}, 15, {hq}')
        k.i(f'v_lshrrev_b32 {tmp[5]}, 4, {hq}')
        k.i(f'v_lshlrev_b32 {tmp[5]}, 10, {tmp[5]}')
        k.i(f'v_lshl_add_u32 {tmp[5]}, {n}, 4, {tmp[5]}')
        k.i(f'v_lshl_add_u32 {qa}, {tmp[4]}, 13, {tmp[5]}')
        k.i(f'v_lshl_add_u32 {qa}, {sg}, 9, {qa}')
        k.i(f'v_lshrrev_b32 {ql}, 2, {tmp[4]}')
        k.i(f'v_add_u32 {ql}, 16, {ql}')
        k.i(f'v_lshl_add_u32 {ql}, {ql}, 13, {tmp[5]}')
        k.i(f'v_and_b32 {tmp[4]}, 3, {hq}')
        k.i(f'v_lshl_add_u32 {ql}, {tmp[4]}, 8, {ql}')
        k.i(f'v_lshl_add_u32 {ql}, {sg}, 3, {ql}')
        k.i(f'v_mul_u32_u24 {ka}, 160, {n}')
        k.i(f'v_mul_u32_u24 {tmp[4]}, 80, {hd}')
        k.i(f'v_add_u32 {ka}, {ka}, {tmp[4]}')
        k.i(f's_mul_i32 {so}, {wave}, 2560')
        k.i(f's_add_u32 {so}, {so}, {LPK}')
        k.i(f'v_add_u32 {ka}, {so}, {ka}')
        k.i(f'v_lshl_add_u32 {PR[15]}, {sg}, 3, {ka}')
        k.i(f'v_add_u32 {PR[15]}, 64, {PR[15]}')
        k.i(f'v_lshl_add_u32 {ka}, {sg}, 5, {ka}')
        k.i(f's_lshl_b32 {sq}, {mt}, 1')
        k.i(f's_lshr_b32 {so}, {wave}, 2')
        k.i(f's_add_u32 {sq}, {sq}, {so}')
        k.i(f's_mul_i32 {sq}, {sq}, 163840')
        k.i(f's_and_b32 {so}, {wave}, 3')
        k.i(f's_lshl_b32 {so}, {so}, 11')
        k.i(f's_add_u32 {sq}, {sq}, {so}')
        k.i(f's_add_u32 {sq}, {sq}, {WS_PHIQ}')
        k.i(f's_mul_i32 {so}, {wave}, 5120')
        k.i(f's_add_u32 {so}, {so}, {LQK}')
        k.i(f'v_lshlrev_b32 {PR[3]}, 8, {hd}')
        k.i(f'v_lshl_add_u32 {PR[3]}, {n}, 4, {PR[3]}')
        k.i(f'v_add_u32 {PR[3]}, {so}, {PR[3]}')
        k.i(f's_cmp_ge_u32 {wave}, 3')
        k.i(f's_cselect_b32 {hh}, 1, 0')
        k.i(f's_mul_i32 {ft}, {hh}, 3')
        k.i(f's_sub_u32 {ft}, {wave}, {ft}')
        tb, ta = PR[4], PR[5]
        E.tb, E.ta = tb, ta
        rr_, cc_ = tmp[4], tmp[5]
        k.i(f'v_lshrrev_b32 {rr_}, 2, {lane}')
        k.i(f'v_and_b32 {cc_}, 3, {lane}')
        k.i(f'v_mul_u32_u24 {tb}, 160, {rr_}')
        k.i(f'v_lshl_add_u32 {tb}, {cc_}, 3, {tb}')
        k.i(f's_mul_i32 {so}, {hh}, 80')
        k.i(f's_lshl_b32 {st1}, {ft}, 5')
        k.i(f's_add_u32 {so}, {so}, {st1}')
        k.i(f's_add_u32 {so}, {so}, {LPK}')
        k.i(f'v_add_u32 {tb}, {so}, {tb}')
        k.i(f'v_mul_u32_u24 {ta}, 96, {rr_}')
        k.i(f'v_lshl_add_u32 {ta}, {cc_}, 3, {ta}')
        k.i(f's_lshl_b32 {so}, {hh}, 5')
        k.i(f's_add_u32 {so}, {so}, {LV}')
        k.i(f'v_add_u32 {ta}, {so}, {ta}')
        aa = PR[6:14]
        E.aa = aa
        fo, dr = tmp[6], tmp[7]
        k.i(f's_lshl_b32 {so}, {ft}, 4')
        k.i(f'v_add_u32 {fo}, {so}, {n}')
        k.i(f'v_cmp_lt_u32 vcc, 39, {fo}')
        k.i(f'v_lshlrev_b32 {fo}, 2, {fo}')
        big = tmp[1]
        k.i(f'v_mov_b32 {big}, 0x7f000000')
        k.i(f'v_cndmask_b32 {fo}, {fo}, {big}, vcc')
        k.i(f's_lshl_b32 {so}, {hh}, 3')
        for dt in range(2):
            for r in range(4):
                a = aa[dt * 4 + r]
                k.i(f'v_lshlrev_b32 {dr}, 2, {G}')
                k.i(f'v_add_u32 {dr}, {16 * dt + r}, {dr}')
                k.i(f'v_subrev_u32 {dr}, {so}, {dr}')
                k.i(f'v_cmp_lt_u32 vcc, 20, {dr}')
                k.i(f'v_mul_u32_u24 {a}, 160, {dr}')
                k.i(f'v_add_u32 {a}, {a}, {fo}')
                k.i(f'v_cndmask_b32 {a}, {a}, {big}, vcc')
        skv = E.skv
        k.i(f's_lshl_b32 {skv}, {hp}, 1')
        k.i(f's_add_u32 {skv}, {skv}, {hh}')
        k.i(f's_mul_i32 {skv}, {skv}, {KVS}')
        k.i(f's_add_u32 {skv}, {skv}, {WS_KV}')

    swo = k.s()
    k.i(f's_mul_i32 {swo}, {nt2}, 5120')
    k.i(f's_add_u32 {swo}, {swo}, {WS_WOF}')

    def wof_jj(sbase, add):
        k.i(f's_add_u32 {st2}, {sbase}, {add}')
        k.i(f's_lshr_b32 {so}, {st2}, 1')
        k.i(f's_and_b32 {st1}, {st2}, 1')
        k.i(f's_mul_i32 {st1}, {st1}, 10')
        k.i(f's_add_u32 {so}, {so}, {st1}')
        k.i(f's_mul_i32 {so}, {so}, 40960')
        k.i(f's_add_u32 {so}, {so}, {swo}')
        k.i(f's_add_u32 {st2}, {st2}, 2')
        k.i(f's_cmp_ge_u32 {st2}, 20')
        k.i(f's_cselect_b32 {st1}, 20, 0')
        k.i(f's_sub_u32 {st2}, {st2}, {st1}')
        k.i(f's_mul_i32 {st1}, {st2}, 5120')
        k.i(f's_add_u32 {st1}, {st1}, {WOFB}')
        k.i(f's_and_b32 {st2}, {mt2}, 3')
        k.i(f's_lshl_b32 {st2}, {st2}, 10')
        for cc in range(5):
            k.i(f's_add_u32 m0, {st1}, {st2}')
            k.i(f's_add_u32 {rot2}, {so}, {st2}')
            k.i(f'buffer_load_dwordx4 {l16}, {sws}, {rot2} offen lds', tag='wof')
            if cc < 4:
                k.i(f's_add_u32 {st2}, {st2}, 1024')
                k.i(f's_cmp_eq_u32 {st2}, 5120')
                k.i(f's_cselect_b32 {st2}, 0, {st2}')

    mk_p1 = k.mark()
    RR = k.v(168)
    epi_addr(RR[0:8])
    k.i(f's_and_b32 {ssd[1]}, {ssd[1]}, 0xffff')
    k.i(f's_mov_b32 {ssd[2]}, {D * F * 2}')
    k.i(f's_mov_b32 {ssd[3]}, 0x00020000')
    k.release(mk_p1)
    k.wait(lg=0)
    k.i(f's_cmp_ge_u32 {wave}, 4')
    k.i('s_cbranch_scc1 m_l1')
    nts0 = k.nts
    mk_f = k.mark()
    fp = k.v(12, align=1)
    k.i(f's_mul_i32 {so}, {ks}, 160')
    k.i(f'v_min_u32 {t1}, 159, v0')
    k.i(f'v_add_u32 {t2}, {so}, {t1}')
    k.i(f'v_lshlrev_b32 {t2}, 2, {t2}')
    k.i(f's_sub_u32 {st1}, s2, 216')
    k.i(f's_min_u32 {so}, {st1}, 4')
    k.i(f's_lshl_b32 {so}, {so}, 8')
    k.i(f'v_add_u32 {t3}, {so}, v0')
    k.i(f'v_cmp_lt_u32 vcc, 639, {t3}')
    k.i(f'v_mov_b32 {fp[0]}, {3200 - 640}')
    k.i(f'v_mov_b32 {fp[1]}, 1280')
    k.i(f'v_cndmask_b32 {fp[0]}, {fp[1]}, {fp[0]}, vcc')
    k.i(f'v_add_u32 {t3}, {t3}, {fp[0]}')
    k.i(f'v_lshlrev_b32 {t3}, 2, {t3}')
    for ks_ in range(4):
        k.i(f's_mov_b32 {so}, {WS_MODP + ks_ * 15360 + 3 * 2560}')
        k.i(f'buffer_load_dword {fp[ks_]}, {t2}, {sws}, {so} offen')
        k.i(f'buffer_load_dword {fp[4 + ks_]}, {t2}, {sws}, {so} offen offset:2560')
    k.i(f's_cmp_ge_u32 {st1}, 5')
    k.i('s_cbranch_scc1 m_nofin')
    vmk = list(k.vm)
    for ks_ in range(4):
        k.i(f's_mov_b32 {so}, {WS_MODP + ks_ * 15360}')
        k.i(f'buffer_load_dword {fp[8 + ks_]}, {t3}, {sws}, {so} offen')
    k.i(f'v_add_f32 {fp[8]}, {fp[8]}, {fp[9]}')
    k.i(f'v_add_f32 {fp[10]}, {fp[10]}, {fp[11]}')
    k.i(f'v_add_f32 {fp[8]}, {fp[8]}, {fp[10]}')
    round_bf16(k, fp[8], fp[8])
    k.i(f'buffer_store_dword {fp[8]}, {t3}, {sws}, 0 offen offset:{WS_MOD} sc1')
    k.raw('m_nofin:')
    k._join()
    k.vm = vmk
    for o_ in (0, 4):
        k.i(f'v_add_f32 {fp[o_]}, {fp[o_]}, {fp[o_ + 1]}')
        k.i(f'v_add_f32 {fp[o_ + 2]}, {fp[o_ + 2]}, {fp[o_ + 3]}')
        k.i(f'v_add_f32 {fp[o_]}, {fp[o_]}, {fp[o_ + 2]}')
        round_bf16(k, fp[o_], fp[o_])
    k.i(f'v_add_f32 {fp[4]}, 1.0, {fp[4]}')
    round_bf16(k, fp[4], fp[4])
    k.i(f'v_lshlrev_b32 {t1}, 2, {t1}')
    k.i(f'v_add_u32 {t1}, {LMOD}, {t1}')
    k.i(f'ds_write_b32 {t1}, {fp[0]}')
    k.i(f'ds_write_b32 {t1}, {fp[4]} offset:640')
    k.release(mk_f)
    acc = k.v(64)
    Fr = k.v(64)
    R = k.v(40)
    th, ch = k.s(), k.s()
    k.i(f's_and_b32 {th}, {wave}, 1')
    k.i(f's_lshr_b32 {ch}, {wave}, 1')
    ha, wa = k.v(2, align=1), k.v(2, align=1)
    k.i(f's_lshl_b32 {so}, {th}, 12')
    k.i(f's_add_u32 {so}, {so}, 8192')
    k.i(f'v_add_u32 {ha[0]}, {so}, {l16}')
    k.i(f'v_add_u32 {ha[1]}, 65536, {ha[0]}')
    k.i(f's_lshl_b32 {so}, {ch}, 12')
    k.i(f'v_add_u32 {wa[0]}, {so}, {l16}')
    k.i(f'v_add_u32 {wa[1]}, 65536, {wa[0]}')

    def prep(J):
        L = []
        b = J & 1
        blk = J % 8
        for i in range(4):
            o = (blk & 3) * 16384 + i * 1024
            L.append(f'ds_read_b128 {Fr[(b * 8 + 4 + i) * 4:(b * 8 + 4 + i) * 4 + 4]}, {wa[blk >> 2]} offset:{o}')
            L.append(f'ds_read_b128 {Fr[(b * 8 + i) * 4:(b * 8 + i) * 4 + 4]}, {ha[blk >> 2]} offset:{o}')
        return L

    def mfmas(J):
        L = []
        b = J & 1
        for d in range(7):
            for ci in range(4):
                ti = d - ci
                if 0 <= ti < 4:
                    a = acc[(ci * 4 + ti) * 4:(ci * 4 + ti) * 4 + 4]
                    L.append(f'v_mfma_f32_16x16x32_bf16 {a}, {Fr[(b * 8 + 4 + ci) * 4:(b * 8 + 4 + ci) * 4 + 4]}, {Fr[(b * 8 + ti) * 4:(b * 8 + ti) * 4 + 4]}, {0 if J == 0 else a}')
        return L

    k.ts()
    k.barrier()
    k.ts()
    for x in prep(0):
        k.i(x)
    for J in range(20):
        if J == 10:
            k.ts()
        if J + 1 < 20:
            if (J + 1) % KPS == 0:
                k.barrier()
            interleave(k, mfmas(J), prep(J + 1), lead=4)
        else:
            for x in mfmas(J):
                k.i(x)
    k.ts()
    da = R[8]
    k.i(f's_mul_i32 {so}, {th}, {4 * 5120}')
    k.i(f's_add_u32 {so}, {so}, {LQK}')
    k.i(f'v_add_u32 {da}, {so}, {l16}')
    k.i(f's_cmp_eq_u32 {ch}, 1')
    k.i('s_cbranch_scc1 p1_dump1')
    stx = (list(k.vm), list(k.lg))
    for ci in range(4):
        for ti in range(4):
            k.i(f'ds_write_b128 {da}, {acc[(ci * 4 + ti) * 4:(ci * 4 + ti) * 4 + 4]} offset:{ti * 5120 + ci * 1024}')
    k.i('s_branch p1_dumped')
    k.raw('p1_dump1:')
    k._join()
    k.vm, k.lg = list(stx[0]), list(stx[1])
    for ti in range(4):
        k.i(f'ds_write_b128 {da}, {acc[ti * 4:ti * 4 + 4]} offset:{ti * 5120 + 4096}')
    va = R[9]
    k.i(f'v_mul_u32_u24 {va}, 96, {n}')
    k.i(f'v_lshl_add_u32 {va}, {G}, 3, {va}')
    k.i(f's_mul_i32 {so}, {th}, {64 * 96}')
    k.i(f's_add_u32 {so}, {so}, {LV}')
    k.i(f'v_add_u32 {va}, {so}, {va}')
    m1, m3 = k.s(2), k.s(2)
    k.i(f'v_cmp_eq_u32 {m1}, 1, {G}')
    k.i(f'v_cmp_eq_u32 {m3}, 3, {G}')
    for ci in range(1, 4):
        for ti in range(4):
            a = acc[(ci * 4 + ti) * 4:(ci * 4 + ti) * 4 + 4]
            if ci == 2:
                k.i(f'v_cndmask_b32 {a[0]}, {a[0]}, 1.0, {m1}')
            if ci == 3:
                k.i(f'v_cndmask_b32 {a[0]}, {a[0]}, 1.0, {m3}')
            o = R[12 + ((ci * 4 + ti) % 8) * 2:12 + ((ci * 4 + ti) % 8) * 2 + 2]
            k.i(f'v_cvt_pk_bf16_f32 {o[0]}, {a[0]}, {a[1]}')
            k.i(f'v_cvt_pk_bf16_f32 {o[1]}, {a[2]}, {a[3]}')
            k.i(f'ds_write_b64 {va}, {o} offset:{ti * 16 * 96 + (ci - 1) * 32}')
    k.raw('p1_dumped:')
    k._join()
    k.lines.append('  s_waitcnt lgkmcnt(0)')
    k.lg = []
    assert acc.base == RR.base
    k.i('s_branch m_j1')
    nts1 = k.nts
    k.reset_state()
    k.release(mk_p1)
    k.vm = list(vm_L)
    k.nts = nts0
    k.label('m_l1')
    nxt = NPRE
    k.ts()
    for s in range(NST):
        if s == NST // 2:
            k.ts()
        k.wait_tag(f'w{s}')
        k.barrier()
        if s == 0:
            k.ts()
        cnt = 0
        while nxt < NST and nxt <= min(s + LA, s - 1 + NSL) and cnt < 2:
            dma_stage(nxt)
            nxt += 1
            cnt += 1
        if 16 <= s <= 18 and os.environ.get('EARLYWOF', '1') == '1':
            wof_jj(hw, 4 * (s - 16))
    k.ts()
    assert k.nts == nts1
    k.raw('m_j1:')
    k.reset_state()
    k.release(mk_p1)
    R = k.v(168)
    tmp = R[0:8]
    P, ph = R[8:28], R[28:40]
    cb, sb = R[152:160], R[160:168]
    k.i(f's_cmp_lg_u32 {sty}, 0')
    k.i('s_cbranch_scc1 m_noside')
    k.i(f's_lshl_b32 {so}, {wave}, 12')
    k.i(f's_add_u32 {so}, {so}, {LSIDE}')
    for i in range(4):
        k.i(f's_add_u32 m0, {so}, {1024 * i}')
        k.i(f'buffer_load_dwordx4 {SA[i]}, {ssd}, {scol} offen lds', tag='side')
    k.raw('m_noside:')
    k._join()
    qa, ql, ka, qk_a, sgl, sq = E.qa, E.ql, E.ka, E.qk_a, E.sgl, E.sq
    tb, ta, aa, skv = E.tb, E.ta, E.aa, E.skv

    def softmax(P, ph, tmp):
        mx, s0, s1 = tmp[0], tmp[1], tmp[2]
        for i in range(20):
            k.i(f'v_mul_f32 {P[i]}, {P[i]}, {sgl}')
        k.i(f'v_max3_f32 {mx}, {P[0]}, {P[1]}, {P[2]}')
        k.i(f'v_max3_f32 {s0}, {P[3]}, {P[4]}, {P[5]}')
        for i in range(6, 18, 4):
            k.i(f'v_max3_f32 {mx}, {mx}, {P[i]}, {P[i + 1]}')
            k.i(f'v_max3_f32 {s0}, {s0}, {P[i + 2]}, {P[i + 3]}')
        k.i(f'v_max3_f32 {mx}, {mx}, {P[18]}, {P[19]}')
        k.i(f'v_max_f32 {mx}, {mx}, {s0}')
        for i in range(20):
            k.i(f'v_sub_f32 {P[i]}, {P[i]}, {mx}')
        for i in range(20):
            k.i(f'v_exp_f32 {P[i]}, {P[i]}')
        k.i(f'v_add_f32 {s0}, {P[0]}, {P[1]}')
        k.i(f'v_add_f32 {s1}, {P[2]}, {P[3]}')
        for i in range(4, 20, 2):
            k.i(f'v_add_f32 {s0}, {s0}, {P[i]}')
            k.i(f'v_add_f32 {s1}, {s1}, {P[i + 1]}')
        k.i(f'v_add_f32 {s0}, {s0}, {s1}')
        k.i(f'v_rcp_f32 {s0}, {s0}')
        for i in range(20):
            k.i(f'v_mul_f32 {P[i]}, {P[i]}, {s0}')
        for i in range(10):
            k.i(f'v_cvt_pk_bf16_f32 {ph[i]}, {P[2 * i]}, {P[2 * i + 1]}')

    k.i('s_barrier')
    k.ts()
    PQ, phq = R[40:60], R[60:72]
    for t in range(5):
        k.i(f'ds_read_b128 {P[4 * t:4 * t + 4]}, {qk_a} offset:{1024 * t}')
    for t in range(5):
        k.i(f'ds_read_b128 {PQ[4 * t:4 * t + 4]}, {qk_a} offset:{1024 * t + 512}')
    softmax(P, ph, tmp)
    k.i(f'ds_write_b128 {ka}, {ph[0:4]}')
    k.i(f'ds_write_b128 {ka}, {ph[4:8]} offset:16')
    k.i(f'ds_write_b64 {E.ka2}, {ph[8:10]}')
    k.barrier()
    k.ts()
    Bf, Af, Dd = R[104:120], R[120:152], R[8:16]
    for kk in range(4):
        for hf in range(2):
            k.i(f'ds_read_b64_tr_b16 {Bf[kk * 4 + 2 * hf:kk * 4 + 2 * hf + 2]}, {tb} offset:{(kk * 32 + hf * 16) * 160}')
        for dt in range(2):
            for hf in range(2):
                b = (kk * 2 + dt) * 4 + 2 * hf
                k.i(f'ds_read_b64_tr_b16 {Af[b:b + 2]}, {ta} offset:{(kk * 32 + hf * 16) * 96 + dt * 32}')
    for kk in range(4):
        for dt in range(2):
            d = Dd[dt * 4:dt * 4 + 4]
            k.i(f'v_mfma_f32_16x16x32_bf16 {d}, {Af[(kk * 2 + dt) * 4:(kk * 2 + dt) * 4 + 4]}, {Bf[kk * 4:kk * 4 + 4]}, {0 if kk == 0 else d}')
    for i in range(8):
        k.i(f'buffer_atomic_add_f32 {Dd[i]}, {aa[i]}, {sws}, {skv} offen')
    k.ts()
    softmax(PQ, phq, tmp)
    k.i(f'buffer_store_dwordx4 {phq[0:4]}, {qa}, {sws}, {sq} offen sc1')
    k.i(f'buffer_store_dwordx4 {phq[4:8]}, {qa}, {sws}, {sq} offen offset:256 sc1')
    k.i(f'buffer_store_dwordx2 {phq[8:10]}, {ql}, {sws}, {sq} offen sc1', tag='pub')
    k.ts()
    k.wait_tag('pub')
    k.i('s_barrier')
    k.ts()
    k.i(f's_cmp_lg_u32 {wave}, 7')
    k.i(f's_cbranch_scc1 m_arr')
    k.i('s_mov_b32 exec_lo, 1')
    k.i('s_mov_b32 exec_hi, 0')
    k.i(f's_and_b32 {so}, s2, 15')
    k.i(f's_lshl_b32 {so}, {so}, 8')
    k.i(f's_add_u32 {so}, {so}, {WS_CNT + C1G}')
    k.i(f'v_mov_b32 {t1}, 0')
    k.i(f'v_mov_b32 {t2}, 1')
    for x in [f'buffer_atomic_add {t2}, {t1}, {sws}, {so} offen sc0 sc1', 's_waitcnt vmcnt(0)',
              f'v_readfirstlane_b32 {st1}, {t2}', f'v_mov_b32 {t2}, 1', f's_cmp_lg_u32 {st1}, 15', 's_cbranch_scc1 m_arr',
              f's_mov_b32 {so}, {WS_CNT + C1T}',
              f'buffer_atomic_add {t2}, {t1}, {sws}, {so} offen sc0 sc1', 's_waitcnt vmcnt(0)',
              f'v_readfirstlane_b32 {st1}, {t2}', f's_cmp_lg_u32 {st1}, 15', 's_cbranch_scc1 m_arr',
              's_mov_b32 exec_lo, 0xff', f'v_mov_b32 {t2}, 1', f'v_lshlrev_b32 {t1}, 8, {lane}', f's_mov_b32 {so}, {WS_CNT + G1}',
              f'buffer_store_dword {t2}, {t1}, {sws}, {so} offen sc1']:
        k.lines.append('  ' + x)
    k.raw('m_arr:')
    k._join()
    k.i('s_mov_b64 exec, -1')
    tsx()
    k.vm = []
    k.i(f's_cmp_lg_u32 {sty}, 0')
    k.i(f's_cbranch_scc1 m_nostore')
    Wf = R[16:32]
    k.i(f'v_lshrrev_b32 {tmp[0]}, 2, {lane}')
    k.i(f'v_lshlrev_b32 {tmp[0]}, 7, {tmp[0]}')
    k.i(f'v_and_b32 {tmp[1]}, 3, {lane}')
    k.i(f'v_lshl_add_u32 {tmp[0]}, {tmp[1]}, 3, {tmp[0]}')
    k.i(f's_lshl_b32 {so}, {wave}, 12')
    k.i(f's_add_u32 {so}, {so}, {LSIDE}')
    k.i(f'v_add_u32 {tmp[0]}, {so}, {tmp[0]}')
    for c4 in range(4):
        for hf in range(2):
            k.i(f'ds_read_b64_tr_b16 {Wf[c4 * 4 + 2 * hf:c4 * 4 + 2 * hf + 2]}, {tmp[0]} offset:{hf * 2048 + c4 * 32}')
    Bs, Bo = R[72:76], R[76:80]
    k.i(f's_mul_i32 {st2}, {ks}, 160')
    k.i(f's_sub_u32 {so}, {srowA}, {st2}')
    k.i(f's_sub_u32 {st1}, {srowB}, {st2}')
    k.i(f's_lshl_b32 {so}, {so}, 2')
    k.i(f's_lshl_b32 {st1}, {st1}, 2')
    k.i(f'v_lshlrev_b32 {tmp[1]}, 4, {G}')
    k.i(f'v_add_u32 {tmp[1]}, {LMOD}, {tmp[1]}')
    k.i(f'v_add_u32 {tmp[2]}, {so}, {tmp[1]}')
    k.i(f'v_add_u32 {tmp[3]}, {st1}, {tmp[1]}')
    k.i(f'ds_read_b128 {sb[0:4]}, {tmp[2]}')
    k.i(f'ds_read_b128 {sb[4:8]}, {tmp[3]}')
    k.i(f'ds_read_b128 {cb[0:4]}, {tmp[2]} offset:640')
    k.i(f'ds_read_b128 {cb[4:8]}, {tmp[3]} offset:640')
    for q in range(4):
        k.i(f'v_cvt_pk_bf16_f32 {Bs[q]}, {sb[2 * q]}, {sb[2 * q + 1]}')
        k.i(f'v_mov_b32 {Bo[q]}, 0x3f803f80')
    Db, Dc = R[80:96], R[96:112]
    for c4 in range(4):
        k.i(f'v_mfma_f32_16x16x32_bf16 {Db[c4 * 4:c4 * 4 + 4]}, {Wf[c4 * 4:c4 * 4 + 4]}, {Bs}, 0')
    for c4 in range(4):
        for q in range(4):
            w = Wf[c4 * 4 + q]
            lo, hi = tmp[2 + (q & 1) * 2], tmp[3 + (q & 1) * 2]
            k.i(f'v_lshlrev_b32 {lo}, 16, {w}')
            k.i(f'v_and_b32 {hi}, 0xffff0000, {w}')
            k.i(f'v_mul_f32 {lo}, {lo}, {cb[2 * q]}')
            k.i(f'v_mul_f32 {hi}, {hi}, {cb[2 * q + 1]}')
            k.i(f'v_cvt_pk_bf16_f32 {w}, {lo}, {hi}')
    for c4 in range(4):
        k.i(f'v_mfma_f32_16x16x32_bf16 {Dc[c4 * 4:c4 * 4 + 4]}, {Wf[c4 * 4:c4 * 4 + 4]}, {Bo}, 0')
    k.i(f'v_lshlrev_b32 {tmp[1]}, 4, {G}')
    k.i(f's_lshl_b32 {so}, {wave}, 9')
    k.i(f's_add_u32 {so}, {so}, {LCS}')
    k.i(f'v_add_u32 {tmp[1]}, {so}, {tmp[1]}')
    k.i('s_mov_b32 exec_lo, 0x00010001')
    k.i('s_mov_b32 exec_hi, 0x00010001')
    for c4 in range(4):
        k.i(f'ds_write_b128 {tmp[1]}, {Dc[c4 * 4:c4 * 4 + 4]} offset:{c4 * 64}')
        k.i(f'ds_write_b128 {tmp[1]}, {Db[c4 * 4:c4 * 4 + 4]} offset:{256 + c4 * 64}')
    k.i('s_mov_b64 exec, -1')
    k.wait(lg=0)
    k.i(f's_cmp_eq_u32 {scol}, {26 * 128}')
    k.i(f's_cselect_b32 {so}, 4096, 0')
    k.i(f's_add_u32 {so}, {so}, {sdst}')
    for c4 in range(4):
        k.lines.append(f'  buffer_store_dwordx4 {Wf[c4 * 4:c4 * 4 + 4]}, {l16}, {sws}, {sdst if c4 < 3 else so} offen offset:{1024 * c4} sc1')
    k.raw('m_nostore:')
    k._join()
    tsx()
    k.i('s_barrier')
    tsx()
    if os.environ.get('EARLYWOF', '1') == '1':
        wof_jj(wave, 12)
    else:
        wof_jj(wave, 0)
        wof_jj(wave, 8)
        k.i(f's_cmp_ge_u32 {wave}, 4')
        k.i('s_cbranch_scc1 m_w3x')
        wof_jj(wave, 16)
        k.raw('m_w3x:')
        k._join()
        k.lines.append('  s_waitcnt vmcnt(0)')
    tsx()
    k.i(f's_cmp_ge_u32 {wave}, 2')
    k.i(f's_cselect_b32 {so}, 1000, s2')
    k.i(f's_cmp_ge_u32 {so}, 216')
    k.i(f's_cbranch_scc1 m_nocs')
    k.i(f'v_lshlrev_b32 {tmp[0]}, 2, v0')
    k.i(f'v_add_u32 {tmp[0]}, {LCS}, {tmp[0]}')
    for w in range(5):
        k.i(f'ds_read_b32 {tmp[1 + w]}, {tmp[0]} offset:{512 * w}')
    k.i(f'v_add_f32 {tmp[1]}, {tmp[1]}, {tmp[2]}')
    k.i(f'v_add_f32 {tmp[3]}, {tmp[3]}, {tmp[4]}')
    k.i(f'v_add_f32 {tmp[1]}, {tmp[1]}, {tmp[5]}')
    k.i(f'v_add_f32 {tmp[1]}, {tmp[1]}, {tmp[3]}')
    k.i(f's_lshl_b32 {so}, {ks}, 1')
    k.i(f's_add_u32 {so}, {so}, {wave}')
    k.i(f's_mul_i32 {so}, {so}, {3584 * 4}')
    k.i(f's_lshl_b32 {st1}, {p_}, 6')
    k.i(f's_add_u32 {so}, {so}, {st1}')
    k.i(f's_add_u32 {so}, {so}, {WS_CSB}')
    k.i(f'v_lshlrev_b32 {tmp[0]}, 2, {lane}')
    k.i(f's_cmp_eq_u32 {scol}, {26 * 128}')
    k.i(f's_cselect_b32 {st1}, 256, 0')
    k.i(f'v_mov_b32 {tmp[2]}, {st1}')
    k.i(f'v_cmp_lt_u32 vcc, 47, {lane}')
    k.i(f'v_cndmask_b32 {tmp[2]}, 0, {tmp[2]}, vcc')
    k.i(f'v_add_u32 {tmp[0]}, {tmp[0]}, {tmp[2]}')
    k.i(f'buffer_store_dword {tmp[1]}, {tmp[0]}, {sws}, {so} offen sc1')
    k.raw('m_nocs:')
    k.reset_state()
    k.release(mk_common)
    k.ts()

    RING2, SL2, PLB = 24576, 4096, 0
    W3 = [67584, 96256, 0, 28672]
    X3 = [124928, 133120, 141312, 149504, 57344]
    CSL = 157696
    W4 = [0, 20480, 40960, 61440, 81920]
    X4 = [102400, 118784, 135168]

    def signal(idx, cnt_off, go_off, sel):
        lab = k.newlabel('sig')
        k.wait(vm=0)
        tsz()
        k.i(f'v_mov_b32 {t1}, {LCNT + 4 * idx}')
        k.i(f'v_mov_b32 {t2}, 1')
        k.i('s_mov_b32 exec_lo, 1')
        k.i('s_mov_b32 exec_hi, 0')
        k.i(f'ds_add_rtn_u32 {t3}, {t1}, {t2}')
        k.i(f'v_readfirstlane_b32 {so}, {t3}')
        k.i(f's_cmp_lg_u32 {so}, 3')
        k.i(f's_cbranch_scc1 {lab}')
        k.i(f's_lshl_b32 {so}, {sel}, 8')
        k.i(f's_add_u32 {so}, {so}, {WS_CNT + cnt_off}')
        k.i(f'v_mov_b32 {t1}, 0')
        k.lines.append(f'  buffer_atomic_add {t2}, {t1}, {sws}, {so} offen sc0 sc1')
        k.lines.append('  s_waitcnt vmcnt(0)')
        k.lines.append(f'  v_readfirstlane_b32 {st1}, {t2}')
        k.lines.append(f'  v_mov_b32 {t2}, 1')
        k.lines.append(f'  s_cmp_lg_u32 {st1}, 15')
        k.lines.append(f'  s_cbranch_scc1 {lab}')
        k.lines.append(f'  s_add_u32 {so}, {so}, {go_off - cnt_off}')
        k.lines.append(f'  buffer_store_dword {t2}, {t1}, {sws}, {so} offen sc1')
        k.raw(f'{lab}:')
        k._join()
        k.i('s_mov_b64 exec, -1')
        k.vm = [dict(regs=set(), tag=None)]
        tsz()

    def poll(go_off, sel, pw=4):
        lab = k.newlabel('poll')
        k.i(f's_cmp_lg_u32 {wave}, {pw}')
        k.i(f's_cbranch_scc1 {lab}_x')
        k.i(f's_lshl_b32 {so}, {sel}, 8')
        k.i(f's_add_u32 {so}, {so}, {WS_CNT + go_off}')
        k.i(f'v_mov_b32 {t1}, 0')
        k.i(f's_mov_b32 {st1}, 0')
        k.i('s_mov_b32 exec_lo, 1')
        k.i('s_mov_b32 exec_hi, 0')
        k.raw(f'{lab}:')
        k.lines.append(f'  buffer_load_dword {t2}, {t1}, {sws}, {so} offen sc1')
        k.lines.append('  s_waitcnt vmcnt(0)')
        k.lines.append(f'  v_readfirstlane_b32 {st2}, {t2}')
        k.lines.append(f'  s_add_u32 {st1}, {st1}, 1')
        k.lines.append(f'  s_cmp_ge_u32 {st1}, {SPIN_MAX}')
        k.lines.append(f'  s_cbranch_scc1 {lab}_d')
        k.lines.append(f'  s_cmp_eq_u32 {st2}, 0')
        k.lines.append(f'  s_cbranch_scc1 {lab}')
        k.raw(f'{lab}_d:')
        k.i('s_mov_b64 exec, -1')
        k.raw(f'{lab}_x:')
        k._join()

    def x1_addr(ttg_, nt_, sreg, sspec):
        k.i(f's_lshr_b32 {so}, {ttg_}, 3')
        k.i(f's_mul_i32 {so}, {so}, 20')
        k.i(f's_lshr_b32 {st1}, {nt_}, 1')
        k.i(f's_mul_i32 {st1}, {st1}, 5')
        k.i(f's_add_u32 {so}, {so}, {st1}')
        k.i(f's_lshl_b32 {so}, {so}, 13')
        k.i(f's_add_u32 {so}, {so}, {WS_X1}')
        k.i(f's_and_b32 {st1}, {nt_}, 1')
        k.i(f's_and_b32 {st2}, {ttg_}, 7')
        k.i(f's_lshl_b32 {sreg}, {st1}, 14')
        k.i(f's_add_u32 {sreg}, {sreg}, {so}')
        k.i(f's_lshl_b32 {sspec}, {st2}, 10')
        k.i(f's_add_u32 {sreg}, {sreg}, {sspec}')
        k.i(f's_lshl_b32 {st1}, {st1}, 12')
        k.i(f's_lshl_b32 {st2}, {st2}, 9')
        k.i(f's_add_u32 {sspec}, {so}, {st1}')
        k.i(f's_add_u32 {sspec}, {sspec}, {st2}')
        k.i(f's_add_u32 {sspec}, {sspec}, {4 * 8192}')

    k.i(f's_cmp_ge_u32 {wave}, 4')
    k.i('s_cbranch_scc1 m_l2')
    nts2 = k.nts
    sxx = k.srd(px, S * D * 2)
    ttg = k.s()
    tp, kh2 = k.s(), k.s()
    k.i(f's_and_b32 {tp}, {wave}, 1')
    k.i(f's_lshr_b32 {kh2}, {wave}, 1')
    AF = k.v(32)
    PQf = k.v(32)
    PLf = k.v(16)
    O = k.v(32)
    Xf = k.v(32)
    WA = k.v(20)
    acc = k.v(40)
    xv, gav = AF[0:10], PQf[0:20]
    carry = k.v(2, align=1)
    a0, a1, woa = k.v(), k.v(), k.v(2, align=1)
    aL = k.v(8, align=1)
    k.i(f's_lshl_b32 {ttg}, {mt2}, 2')
    k.i(f's_lshl_b32 {so}, {tp}, 1')
    k.i(f's_add_u32 {ttg}, {ttg}, {so}')
    k.i(f's_add_u32 {ttg}, {ttg}, {kh2}')
    k.i(f's_mul_i32 {st1}, {kh2}, 1920')
    k.i(f's_add_u32 {st1}, {st1}, {RING2}')
    k.i(f'v_add_u32 {a0}, {st1}, {l16}')
    k.i(f'v_lshrrev_b32 {t1}, 2, {n}')
    k.i(f'v_and_b32 {t2}, 3, {n}')
    k.i(f'v_cmp_eq_u32 vcc, 0, {t2}')
    k.i(f'v_cndmask_b32 {t1}, 4, {t1}, vcc')
    k.i(f'v_lshlrev_b32 {t1}, 4, {t1}')
    k.i(f'v_add_u32 {t1}, {st1}, {t1}')
    k.i(f'v_add_u32 {t1}, 1280, {t1}')
    k.i(f'v_lshl_add_u32 {a1}, {G}, 7, {t1}')
    k.i(f'v_add_u32 {t1}, 512, {t1}')
    k.i(f'v_lshlrev_b32 {t2}, 4, {n}')
    k.i(f'v_add_u32 {t2}, {st1}, {t2}')
    k.i(f'v_add_u32 {t2}, 1024, {t2}')
    k.i(f's_add_u32 {st1}, {st1}, {1280 + 512 + 112}')
    k.i(f'v_mov_b32 {t3}, {st1}')
    for rho in range(4):
        k.i(f'v_cmp_eq_u32 vcc, {rho}, {G}')
        k.i(f'v_cndmask_b32 {aL[2 * rho]}, {t3}, {t2}, vcc')
        k.i(f'v_cndmask_b32 {aL[2 * rho + 1]}, {t3}, {t1}, vcc')
    spqc = k.s()
    k.i(f's_lshl_b32 {so}, {tp}, 12')
    k.i(f's_lshl_b32 {st1}, {kh2}, 10')
    k.i(f's_add_u32 {so}, {so}, {st1}')
    k.i(f's_mul_i32 {spqc}, {mt2}, 163840')
    k.i(f's_add_u32 {spqc}, {spqc}, {so}')
    k.i(f's_add_u32 {spqc}, {spqc}, {WS_PHIQ}')

    def ldq(s):
        L = []
        if s % 4 == 0:
            L.append(f's_add_u32 {st2}, {spqc}, {(16 + s // 4) * 8192}')
            for t in range(2):
                q = (((s // 4) & 1) * 2 + t) * 4
                L.append(f'buffer_load_dwordx4 {PLf[q:q + 4]}, {l16}, {sws}, {st2} offen offset:{2048 * t}')
        L.append(f's_add_u32 {st2}, {spqc}, {s * 8192}')
        for t in range(2):
            L.append(f'buffer_load_dwordx4 {PQf[((s % 4) * 2 + t) * 4:((s % 4) * 2 + t) * 4 + 4]}, {l16}, {sws}, {st2} offen offset:{2048 * t}')
        return L

    k.i(f's_mul_i32 {so}, {kh2}, 5120')
    k.i(f's_add_u32 {so}, {so}, {WOFB}')
    k.i(f'v_add_u32 {woa[0]}, {so}, {l16}')
    k.i(f'v_add_u32 {woa[1]}, 51200, {woa[0]}')
    k.i('s_barrier')
    k.ts()
    for s in range(3):
        for x in ldq(s):
            k.i(x)

    def rd2(s):
        L = []
        b = s & 1
        sl = (s % 4) * SL2
        A = AF[b * 16:b * 16 + 16]
        rho = s & 3
        L.append(f'ds_read_b128 {A[8:12]}, {aL[2 * rho]} offset:{sl}')
        L.append(f'ds_read_b128 {A[12:16]}, {aL[2 * rho + 1]} offset:{sl}')
        L.append(f'ds_read_b128 {A[4:8]}, {a1} offset:{sl}')
        L.append(f'ds_read_b128 {A[0:4]}, {a0} offset:{sl}')
        return L

    def om(s):
        L = []
        b = s & 1
        A = AF[b * 16:b * 16 + 16]
        for t in range(2):
            q = (((s // 4) & 1) * 2 + t) * 4
            for tl in range(2):
                o = O[((b * 2 + t) * 2 + tl) * 4:((b * 2 + t) * 2 + tl) * 4 + 4]
                L.append(f'v_mfma_f32_16x16x32_bf16 {o}, {A[8 + tl * 4:8 + tl * 4 + 4]}, {PLf[q:q + 4]}, 0')
        for t in range(2):
            for tl in (1, 0):
                o = O[((b * 2 + t) * 2 + tl) * 4:((b * 2 + t) * 2 + tl) * 4 + 4]
                L.append(f'v_mfma_f32_16x16x32_bf16 {o}, {A[tl * 4:tl * 4 + 4]}, {PQf[((s % 4) * 2 + t) * 4:((s % 4) * 2 + t) * 4 + 4]}, {o}')
        return L

    def xf(j, t):
        return Xf[((j % 4) * 2 + t) * 4:((j % 4) * 2 + t) * 4 + 4]

    def ov(s):
        L = []
        b = s & 1
        os_ = [O[(b * 2 + t) * 8:(b * 2 + t) * 8 + 8] for t in range(2)]
        for o in os_:
            L.append(f'v_add_f32 {o[5]}, {fhex(1e-6)}, {o[5]}')
        for o in os_:
            L.append(f'v_rcp_f32 {o[5]}, {o[5]}')
        for t, o in enumerate(os_):
            for q in range(4):
                L.append(f'v_mul_f32 {o[q]}, {o[q]}, {o[5]}')
            L.append(f'v_mul_f32 {o[4] if s & 1 else o[6]}, {o[4]}, {o[5]}')
        for t, o in enumerate(os_):
            if s & 1:
                vals = [carry[t]] + [o[q] for q in range(5)]
                idx0 = 5 * s - 1
            else:
                vals = [o[q] for q in range(4)]
                idx0 = 5 * s
            for p in range(len(vals) // 2):
                idx = idx0 + 2 * p
                L.append(f'v_cvt_pk_bf16_f32 {xf(idx >> 3, t)[(idx & 7) >> 1]}, {vals[2 * p]}, {vals[2 * p + 1]}')
            if not s & 1:
                L.append(f'v_mov_b32 {carry[t]}, {o[6]}')
        return L

    def wrd(j):
        off = ((2 * j + 2) % 20) * 5120
        areg, o = (woa[0], off) if off < 51200 else (woa[1], off - 51200)
        return [f'ds_read_b128 {WA[ct * 4:ct * 4 + 4]}, {areg} offset:{o + ct * 1024}' for ct in range(5)]

    def wm(j):
        return [f'v_mfma_f32_16x16x32_bf16 {acc[(ct * 2 + t) * 4:(ct * 2 + t) * 4 + 4]}, {WA[ct * 4:ct * 4 + 4]}, {xf(j, t)}, {0 if j == 0 else acc[(ct * 2 + t) * 4:(ct * 2 + t) * 4 + 4]}' for ct in range(5) for t in range(2)]

    def done_after(s):
        return (5 * s + (5 if s & 1 else 4)) // 8

    k.i('s_barrier')
    k.ts()
    for x in rd2(0) + wrd(0):
        k.i(x)
    jm = 0
    nlate = 5
    for s in range(18):
        if s == 8:
            k.ts()
        if s == 15:
            k.i(f's_mul_i32 {so}, {ttg}, {16 * 1280}')
            k.i(f's_mul_i32 {st1}, {nt2}, 160')
            k.i(f's_add_u32 {so}, {so}, {st1}')
            k.i(f'v_mul_u32_u24 {t2}, 1280, {n}')
            k.i(f'v_lshl_add_u32 {t2}, {G}, 3, {t2}')
            for ct in range(5):
                k.i(f'buffer_load_dwordx2 {xv[2 * ct:2 * ct + 2]}, {t2}, {sxx}, {so} offen offset:{32 * ct}')
            k.i(f'v_lshlrev_b32 {t2}, 4, {G}')
            k.i(f's_mul_i32 {st1}, {nt2}, 320')
            k.i(f's_add_u32 {so}, {st1}, {WS_MOD + 2 * 2560}')
            for ct in range(5):
                k.i(f'buffer_load_dwordx4 {gav[4 * ct:4 * ct + 4]}, {t2}, {sws}, {so} offen offset:{64 * ct}')
        fill = []
        if s + 1 < 16:
            tsy(s in (9, 10))
            if nlate < len(k.lg):
                k.wait(lg=nlate)
            tsy(s in (9, 10))
            k.i('s_barrier')
            tsy(s in (9, 10))
            tsy(s in (9, 10))
            fill += rd2(s + 1)
        if s + 3 < 16:
            fill += ldq(s + 3)
        lim = done_after(s - 2) if s >= 2 else 0
        Mw, late = [], []
        if jm < lim:
            Mw = wm(jm)
            jm += 1
            if jm < 10:
                late = wrd(jm)
        assert jm >= lim
        Mo = om(s) if s < 16 else []
        V = ov(s - 1) if 1 <= s <= 16 else []
        M = Mo + Mw
        if os.environ.get('X_NOC'):
            M, V = M[:1], []
        if os.environ.get('X_NORD'):
            fill, late = [], []
        if M:
            interleave(k, M, fill + V)
        else:
            for x in fill + V:
                k.i(x)
        for x in late:
            k.i(x)
        nlate = len(late)
    assert jm == 10
    k.i(f's_mul_i32 {so}, {wave}, 5120')
    k.i(f'v_add_u32 {t1}, {so}, {l16}')
    k.i(f's_xor_b32 {st1}, {wave}, 2')
    k.i(f's_mul_i32 {st1}, {st1}, 5120')
    k.i(f'v_add_u32 {t3}, {st1}, {l16}')
    mk2 = k.s(2)
    k.i(f's_cmp_eq_u32 {kh2}, 1')
    k.i(f's_cselect_b64 {mk2}, -1, 0')
    Sd, Kp = O[0:20], Xf[0:20]
    for ct in range(5):
        for r in range(4):
            a0_, a1_ = acc[(ct * 2) * 4 + r], acc[(ct * 2 + 1) * 4 + r]
            k.i(f'v_cndmask_b32 {Sd[4 * ct + r]}, {a1_}, {a0_}, {mk2}')
            k.i(f'v_cndmask_b32 {Kp[4 * ct + r]}, {a0_}, {a1_}, {mk2}')
        k.i(f'ds_write_b128 {t1}, {Sd[4 * ct:4 * ct + 4]} offset:{1024 * ct}')
    k.ts()
    k.barrier()
    for ct in range(5):
        k.i(f'ds_read_b128 {acc[4 * ct:4 * ct + 4]}, {t3} offset:{1024 * ct}')
    for i in range(20):
        k.i(f'v_add_f32 {acc[i]}, {acc[i]}, {Kp[i]}')
    cp = O[20:28]
    k.i(f'v_cmp_lt_u32 vcc, 111, v0')
    k.i(f'v_mov_b32 {t3}, {1792 - 112}')
    k.i(f'v_cndmask_b32 {t2}, 0, {t3}, vcc')
    k.i(f'v_add_u32 {t2}, {t2}, v0')
    k.i(f's_mul_i32 {so}, {nt3}, 112')
    k.i(f'v_add_u32 {t2}, {so}, {t2}')
    k.i(f'v_lshlrev_b32 {t2}, 2, {t2}')
    s12 = AF[10:12]
    xe = AF[12:16]
    k.i(f'v_mov_b32 {s12[0]}, 0')
    k.i(f'v_mov_b32 {s12[1]}, 0')
    xo = AF[16:28]
    for ct in range(5):
        for q in range(2):
            k.i(f'v_lshlrev_b32 {xe[2 * q]}, 16, {xv[2 * ct + q]}')
            k.i(f'v_and_b32 {xe[2 * q + 1]}, 0xffff0000, {xv[2 * ct + q]}')
        for r in range(4):
            k.i(f'v_fmac_f32 {xe[r]}, {acc[4 * ct + r]}, {gav[4 * ct + r]}')
        for q in range(2):
            k.i(f'v_cvt_pk_bf16_f32 {xo[2 * ct + q]}, {xe[2 * q]}, {xe[2 * q + 1]}')
        for q in range(2):
            k.i(f'v_lshlrev_b32 {xe[2 * q]}, 16, {xo[2 * ct + q]}')
            k.i(f'v_and_b32 {xe[2 * q + 1]}, 0xffff0000, {xo[2 * ct + q]}')
        for r in range(4):
            k.i(f'v_add_f32 {s12[0]}, {s12[0]}, {xe[r]}')
            k.i(f'v_fmac_f32 {s12[1]}, {xe[r]}, {xe[r]}')
    sreg, sspec = k.s(), k.s()
    x1_addr(ttg, nt2, sreg, sspec)
    l8 = AF[28]
    k.i(f'v_lshlrev_b32 {l8}, 3, {lane}')
    k.i(f'buffer_store_dwordx4 {xo[0:4]}, {l16}, {sws}, {sreg} offen sc1')
    k.i(f's_add_u32 {sreg}, {sreg}, 8192')
    k.i(f'buffer_store_dwordx4 {xo[4:8]}, {l16}, {sws}, {sreg} offen sc1')
    k.i(f'buffer_store_dwordx2 {xo[8:10]}, {l8}, {sws}, {sspec} offen sc1')
    xsum4(k, s12[0], t1)
    xsum4(k, s12[1], t1)
    k.i(f's_lshl_b32 {so}, {ttg}, 10')
    k.i(f's_lshl_b32 {st1}, {nt2}, 3')
    k.i(f's_add_u32 {so}, {so}, {st1}')
    k.i(f's_add_u32 {so}, {so}, {WS_ST}')
    k.i(f'v_lshlrev_b32 {t1}, 6, {n}')
    k.i('s_mov_b32 exec_lo, 0xffff')
    k.i('s_mov_b32 exec_hi, 0')
    k.i(f'buffer_store_dwordx2 {s12}, {t1}, {sws}, {so} offen sc1')
    k.i('s_mov_b64 exec, -1')
    for p in range(8):
        k.i(f's_mov_b32 {so}, {WS_CSB + p * 3584 * 4}')
        k.i(f'buffer_load_dword {cp[p]}, {t2}, {sws}, {so} offen sc1')
    k.i('s_barrier')
    k.ts()
    sel = k.s()
    k.i(f's_lshr_b32 {sel}, {mt2}, 1')
    signal(0, C2, G2, sel)
    k.i(f'v_add_f32 {cp[0]}, {cp[0]}, {cp[2]}')
    k.i(f'v_add_f32 {cp[4]}, {cp[4]}, {cp[6]}')
    k.i(f'v_add_f32 {cp[1]}, {cp[1]}, {cp[3]}')
    k.i(f'v_add_f32 {cp[5]}, {cp[5]}, {cp[7]}')
    k.i(f'v_add_f32 {cp[0]}, {cp[0]}, {cp[4]}')
    k.i(f'v_add_f32 {cp[1]}, {cp[1]}, {cp[5]}')
    k.i(f'v_mov_b32 {t2}, 0')
    k.i(f'v_cmp_lt_u32 vcc, 63, v0')
    k.i(f'v_cndmask_b32 {t2}, {t2}, 64, vcc')
    k.i(f'v_mov_b32 {t3}, -48')
    k.i(f'v_cmp_lt_u32 vcc, 111, v0')
    k.i(f'v_cndmask_b32 {t2}, {t2}, {t3}, vcc')
    k.i(f'v_cmp_lt_u32 vcc, 175, v0')
    k.i(f'v_cndmask_b32 {t2}, {t2}, 0, vcc')
    k.i(f'v_add_u32 {t2}, {t2}, v0')
    k.i(f'v_lshlrev_b32 {t2}, 2, {t2}')
    k.i(f'v_add_u32 {t2}, {CSL}, {t2}')
    k.i(f'ds_write_b32 {t2}, {cp[0]}')
    k.i(f'ds_write_b32 {t2}, {cp[1]} offset:1024')

    k.release(mk_common)
    l8 = k.v()
    k.i(f'v_lshlrev_b32 {l8}, 3, {lane}')
    th3, cg = k.s(), k.s()
    k.i(f's_and_b32 {th3}, {wave}, 1')
    k.i(f's_lshr_b32 {cg}, {wave}, 1')
    acc = k.v(112)
    Fr = k.v(88)
    stv = k.v(16)
    mu, sd, rr = k.v(4, align=1), k.v(4, align=1), k.v(4, align=1)
    cb8 = stv[8:16]
    wa = k.v(2, align=1)
    xa = k.v(2, align=1)
    xs = k.v(2, align=1)
    csa = k.v()
    k.i(f's_mul_i32 {so}, {cg}, 7168')
    k.i(f'v_add_u32 {wa[0]}, {so}, {l16}')
    k.i(f'v_add_u32 {wa[1]}, 67584, {wa[0]}')
    k.i(f's_lshl_b32 {so}, {th3}, 12')
    k.i(f's_add_u32 {so}, {so}, 57344')
    k.i(f'v_add_u32 {xa[0]}, {so}, {l16}')
    k.i(f'v_add_u32 {xa[1]}, {124928 - 57344}, {xa[0]}')
    k.i(f's_lshl_b32 {so}, {th3}, 11')
    k.i(f's_add_u32 {so}, {so}, 57344')
    k.i(f'v_add_u32 {xs[0]}, {so}, {l8}')
    k.i(f'v_add_u32 {xs[1]}, {124928 - 57344}, {xs[0]}')
    k.i(f's_mul_i32 {so}, {cg}, 448')
    k.i(f's_add_u32 {so}, {so}, {CSL}')
    k.i(f'v_lshlrev_b32 {csa}, 4, {G}')
    k.i(f'v_add_u32 {csa}, {so}, {csa}')
    k.i(f'v_lshlrev_b32 {t1}, 6, {n}')
    k.i(f'v_lshl_add_u32 {t1}, {G}, 4, {t1}')
    k.i(f's_lshl_b32 {so}, {mt3}, 1')
    k.i(f's_add_u32 {so}, {so}, {th3}')
    mt4o = k.s()
    k.i(f's_mov_b32 {mt4o}, {so}')
    k.i(f's_lshl_b32 {so}, {so}, 12')
    k.i(f's_add_u32 {so}, {so}, {WS_ST}')
    k.barrier()
    k.ts()
    for tt in range(4):
        k.i(f'buffer_load_dwordx4 {stv[4 * tt:4 * tt + 4]}, {t1}, {sws}, {so} offen offset:{1024 * tt} sc1')

    def xfr(J, tt):
        b = ((J & 1) * 11 + tt) * 4
        return Fr[b:b + 4]

    def wfr(J, i):
        b = ((J & 1) * 11 + 4 + i) * 4
        return Fr[b:b + 4]

    def prep3(J):
        L = []
        wb = W3[(J // 2) % 4] + (J & 1) * 14336
        wreg, wo_ = (wa[0], wb) if wb < 67584 else (wa[1], wb - 67584)
        xb = X3[J % 5]
        xi, xo_ = (0, xb - 57344) if xb < 124928 else (1, xb - 124928)
        xl = []
        for tt in range(4):
            if J % 5 == 4:
                xl.append([f'ds_read_b64 {xfr(J, tt)[0:2]}, {xs[xi]} offset:{xo_ + tt * 512}',
                           f'ds_read_b64 {xfr(J, tt)[2:4]}, {xs[xi]} offset:{xo_ + 4096 + tt * 512}'])
            else:
                xl.append([f'ds_read_b128 {xfr(J, tt)}, {xa[xi]} offset:{xo_ + tt * 1024}'])
        L.append(f'ds_read_b128 {wfr(J, 0)}, {wreg} offset:{wo_}')
        for tt in range(4):
            L += xl[tt]
        for i in range(1, 7):
            L.append(f'ds_read_b128 {wfr(J, i)}, {wreg} offset:{wo_ + i * 1024}')
        return L

    def mf3(J):
        L = []
        for i in range(7):
            for tt in range(4):
                a = acc[(i * 4 + tt) * 4:(i * 4 + tt) * 4 + 4]
                L.append(f'v_mfma_f32_16x16x32_bf16 {a}, {wfr(J, i)}, {xfr(J, tt)}, {0 if J == 0 else a}')
        return L

    def stats_code():
        L = []
        for tt in range(4):
            a = stv[4 * tt:4 * tt + 4]
            L.append(f'v_add_f32 {a[0]}, {a[0]}, {a[2]}')
            L.append(f'v_add_f32 {a[1]}, {a[1]}, {a[3]}')
            for x in (a[0], a[1]):
                L.append(f'v_mov_b32 {a[2]}, {x}')
                L.append(f'v_permlane32_swap_b32 {x}, {a[2]}')
                L.append(f'v_add_f32 {x}, {x}, {a[2]}')
                L.append(f'v_mov_b32 {a[2]}, {x}')
                L.append(f'v_permlane16_swap_b32 {x}, {a[2]}')
                L.append(f'v_add_f32 {x}, {x}, {a[2]}')
            L.append(f'v_mul_f32 {mu[tt]}, {fhex(1.0 / 640)}, {a[0]}')
            L.append(f'v_mul_f32 {a[1]}, {fhex(1.0 / 640)}, {a[1]}')
            L.append(f'v_fma_f32 {a[1]}, -{mu[tt]}, {mu[tt]}, {a[1]}')
            L.append(f'v_max_f32 {a[1]}, 0, {a[1]}')
            L.append(f'v_add_f32 {a[1]}, {fhex(1e-5)}, {a[1]}')
            L.append(f'v_sqrt_f32 {sd[tt]}, {a[1]}')
            L.append(f'v_rsq_f32 {rr[tt]}, {a[1]}')
        return L

    def init_code(i):
        L = []
        for tt in range(4):
            a = acc[(i * 4 + tt) * 4:(i * 4 + tt) * 4 + 4]
            for r in range(4):
                L.append(f'v_fmac_f32 {a[r]}, {cb8[4 + r]}, {sd[tt]}')
            for r in range(4):
                L.append(f'v_fma_f32 {a[r]}, -{mu[tt]}, {cb8[r]}, {a[r]}')
        return L

    k.barrier()
    k.ts()
    for x in prep3(0):
        k.i(x)
    st_l = stats_code()
    for J in range(20):
        if J == 10:
            k.ts()
        M = mf3(J)
        if J + 1 < 20:
            k.barrier()
            fill = prep3(J + 1)
        else:
            fill = []
        if J in (2, 3):
            h = len(st_l) // 2
            fill = fill + (st_l[:h] if J == 2 else st_l[h:])
            interleave(k, M, fill, lead=2)
        elif 4 <= J < 11:
            i = J - 4
            M = M[4 * i:] + M[:4 * i]
            pre = [f'ds_read_b128 {cb8[0:4]}, {csa} offset:{i * 64}', f'ds_read_b128 {cb8[4:8]}, {csa} offset:{1024 + i * 64}']
            interleave(k, M[:12], pre + fill[:8])
            interleave(k, M[12:], fill[8:] + init_code(i))
        else:
            interleave(k, M, fill, lead=6)
    k.ts()
    k.raw('m_p3epi:')
    KK = -2.0 * 0.7978845608028654 * LOG2E
    c1, c3, ir2 = stv[0:4], stv[4:8], stv[8:12]
    for tt in range(4):
        k.i(f'v_mul_f32 {c1[tt]}, {fhex(KK)}, {rr[tt]}')
        k.i(f'v_mul_f32 {c3[tt]}, {rr[tt]}, {rr[tt]}')
        k.i(f'v_mul_f32 {c3[tt]}, {c3[tt]}, {c1[tt]}')
        k.i(f'v_mul_f32 {c3[tt]}, {fhex(0.044715)}, {c3[tt]}')
        k.i(f'v_mul_f32 {ir2[tt]}, {sd[tt]}, {sd[tt]}')
    EXB = 151552
    k.i(f's_lshl_b32 {so}, {th3}, 12')
    k.i(f's_add_u32 {so}, {so}, {EXB}')
    k.i(f'v_add_u32 {t1}, {so}, {l16}')
    sact, sasp = k.s(), k.s()
    k.i(f's_mul_i32 {sact}, {mt4o}, 56')
    k.i(f's_lshr_b32 {st1}, {nt3}, 1')
    k.i(f's_add_u32 {sasp}, {sact}, {st1}')
    k.i(f's_lshl_b32 {sasp}, {sasp}, 12')
    k.i(f's_and_b32 {st1}, {nt3}, 1')
    k.i(f's_lshl_b32 {st1}, {st1}, 11')
    k.i(f's_add_u32 {sasp}, {sasp}, {st1}')
    k.i(f's_add_u32 {sasp}, {sasp}, {WS_ACT}')
    k.i(f's_mul_i32 {st1}, {nt3}, 3')
    k.i(f's_add_u32 {sact}, {sact}, {st1}')
    k.i(f's_add_u32 {sact}, {sact}, 8')
    k.i(f's_lshl_b32 {sact}, {sact}, 12')
    k.i(f's_add_u32 {sact}, {sact}, {WS_ACT}')
    k.barrier()
    T = Fr[0:16]
    OUT = Fr[16:48]
    UX = Fr[48:64]
    CP = Fr[64:88]
    for tt in range(4):
        for j_, src in enumerate((c1, c3, ir2)):
            k.i(f'v_mov_b32 {CP[tt * 6 + 2 * j_]}, {src[tt]}')
            k.i(f'v_mov_b32 {CP[tt * 6 + 2 * j_ + 1]}, {src[tt]}')

    def geglu(g, u, tt, o2, ti):
        t = T[(ti % 4) * 4:(ti % 4) * 4 + 4]
        cc = CP[tt * 6:tt * 6 + 6]
        for h in (0, 2):
            k.i(f'v_pk_mul_f32 {t[h:h + 2]}, {g[h:h + 2]}, {g[h:h + 2]}')
        for h in (0, 2):
            k.i(f'v_pk_fma_f32 {t[h:h + 2]}, {t[h:h + 2]}, {cc[2:4]}, {cc[0:2]}')
        for h in (0, 2):
            k.i(f'v_pk_mul_f32 {t[h:h + 2]}, {t[h:h + 2]}, {g[h:h + 2]}')
        for r in range(4):
            k.i(f'v_exp_f32 {t[r]}, {t[r]}')
        for h in (0, 2):
            k.i(f'v_pk_mul_f32 {u[h:h + 2]}, {u[h:h + 2]}, {g[h:h + 2]}')
        for h in (0, 2):
            k.i(f'v_pk_fma_f32 {t[h:h + 2]}, {t[h:h + 2]}, {cc[4:6]}, {cc[4:6]}')
        for r in range(4):
            k.i(f'v_rcp_f32 {t[r]}, {t[r]}')
        for h in (0, 2):
            k.i(f'v_pk_mul_f32 {u[h:h + 2]}, {u[h:h + 2]}, {t[h:h + 2]}')
        k.i(f'v_cvt_pk_bf16_f32 {o2[0]}, {u[0]}, {u[1]}')
        k.i(f'v_cvt_pk_bf16_f32 {o2[1]}, {u[2]}, {u[3]}')

    def A(i, tt):
        return acc[(i * 4 + tt) * 4:(i * 4 + tt) * 4 + 4]

    k.i(f's_cmp_eq_u32 {cg}, 1')
    k.i('s_cbranch_scc1 p3_epi1')
    stx = (list(k.vm), list(k.lg))
    cnt = 0
    for tt in range(4):
        o = OUT[tt * 4:tt * 4 + 4]
        geglu(A(0, tt), A(4, tt), tt, o[0:2], cnt)
        geglu(A(1, tt), A(5, tt), tt, o[2:4], cnt + 1)
        cnt += 2
        k.i(f'buffer_store_dwordx4 {o}, {l16}, {sws}, {sact} offen offset:{1024 * tt} sc1')
        if tt == 0:
            k.i('s_barrier')
            for t2_ in range(4):
                k.i(f'ds_read_b128 {UX[t2_ * 4:t2_ * 4 + 4]}, {t1} offset:{1024 * t2_}')
    k.i(f's_add_u32 {sact}, {sact}, 4096')
    for tt in range(4):
        o = OUT[16 + tt * 4:16 + tt * 4 + 4]
        geglu(A(2, tt), A(6, tt), tt, o[0:2], cnt)
        geglu(A(3, tt), UX[tt * 4:tt * 4 + 4], tt, o[2:4], cnt + 1)
        cnt += 2
        k.i(f'buffer_store_dwordx4 {o}, {l16}, {sws}, {sact} offen offset:{1024 * tt} sc1')
    k.i('s_branch p3_epid')
    k.raw('p3_epi1:')
    k._join()
    k.vm, k.lg = list(stx[0]), list(stx[1])
    for tt in range(4):
        k.i(f'ds_write_b128 {t1}, {A(0, tt)} offset:{1024 * tt}')
    k.barrier()
    k.i(f's_add_u32 {sact}, {sact}, 8192')
    cnt = 0
    for tt in range(4):
        o = OUT[tt * 4:tt * 4 + 4]
        geglu(A(1, tt), A(4, tt), tt, o[0:2], cnt)
        geglu(A(2, tt), A(5, tt), tt, o[2:4], cnt + 1)
        cnt += 2
        k.i(f'buffer_store_dwordx4 {o}, {l16}, {sws}, {sact} offen offset:{1024 * tt} sc1')
    for tp in range(2):
        o = OUT[16 + tp * 4:16 + tp * 4 + 4]
        geglu(A(3, 2 * tp), A(6, 2 * tp), 2 * tp, o[0:2], cnt)
        geglu(A(3, 2 * tp + 1), A(6, 2 * tp + 1), 2 * tp + 1, o[2:4], cnt + 1)
        cnt += 2
        k.i(f'buffer_store_dwordx4 {o}, {l16}, {sws}, {sasp} offen offset:{1024 * tp} sc1')
    k.raw('p3_epid:')
    k._join()
    k.lines.append('  s_waitcnt lgkmcnt(0)')
    k.lg = []
    k.force_wait = True
    k.ts()
    signal(1, 8192, 12288, mt3)
    k.force_wait = False

    k.release(mk_common)
    l8 = k.v()
    k.i(f'v_lshlrev_b32 {l8}, 3, {lane}')
    th4, kh = k.s(), k.s()
    k.i(f's_and_b32 {th4}, {wave}, 1')
    k.i(f's_lshr_b32 {kh}, {wave}, 1')
    acc = k.v(40)
    Fr = k.v(56)
    wa = k.v(2, align=1)
    xa, xsp = k.v(), k.v()
    k.i(f's_mul_i32 {so}, {kh}, 5120')
    k.i(f'v_add_u32 {wa[0]}, {so}, {l16}')
    k.i(f'v_add_u32 {wa[1]}, 61440, {wa[0]}')
    k.i(f's_lshl_b32 {so}, {kh}, 12')
    k.i(f's_add_u32 {so}, {so}, {X4[0]}')
    k.i(f's_lshl_b32 {st1}, {th4}, 11')
    k.i(f's_add_u32 {st1}, {st1}, {so}')
    k.i(f'v_add_u32 {xa}, {st1}, {l16}')
    k.i(f's_lshl_b32 {st1}, {th4}, 10')
    k.i(f's_add_u32 {st1}, {st1}, {so}')
    k.i(f'v_add_u32 {xsp}, {st1}, {l16}')
    xv = k.v(12)
    gbv = k.v(20)
    ttg = k.s()
    k.i(f's_lshl_b32 {ttg}, {mt2}, 2')
    k.i(f's_lshl_b32 {so}, {th4}, 1')
    k.i(f's_add_u32 {ttg}, {ttg}, {so}')
    k.i(f's_add_u32 {ttg}, {ttg}, {kh}')
    sreg, sspec = k.s(), k.s()
    x1_addr(ttg, nt2, sreg, sspec)
    k.i(f'buffer_load_dwordx4 {xv[0:4]}, {l16}, {sws}, {sreg} offen sc1')
    k.i(f's_add_u32 {sreg}, {sreg}, 8192')
    k.i(f'buffer_load_dwordx4 {xv[4:8]}, {l16}, {sws}, {sreg} offen sc1')
    k.i(f'buffer_load_dwordx2 {xv[8:10]}, {l8}, {sws}, {sspec} offen sc1')
    k.i(f'v_lshlrev_b32 {t2}, 4, {G}')
    k.i(f's_mul_i32 {st1}, {nt2}, 320')
    k.i(f's_add_u32 {so}, {st1}, {WS_MOD + 5 * 2560}')
    for ct in range(5):
        k.i(f'buffer_load_dwordx4 {gbv[4 * ct:4 * ct + 4]}, {t2}, {sws}, {so} offen offset:{64 * ct}')
    sout = k.srd(po, S * D * 2)
    k.barrier()
    k.ts()
    NS4 = 14
    steps = [(s, h) for s in range(NS4) for h in range(2) if 4 * s + 2 * h < 54]

    def prep4(idx):
        s, h = steps[idx]
        b = idx & 1
        L = []
        wb = W4[s % 5] + h * 10240
        wreg, wo_ = (wa[0], wb) if wb < 61440 else (wa[1], wb - 61440)
        xo_ = (s % 3) * 16384 + h * 8192
        L.append(f'ds_read_b128 {Fr[(b * 7 + 2) * 4:(b * 7 + 2) * 4 + 4]}, {wreg} offset:{wo_}')
        for t in range(2):
            x = Fr[(b * 7 + t) * 4:(b * 7 + t) * 4 + 4]
            if s < 2:
                L.append(f'ds_read_b64 {x[0:2]}, {xsp} offset:{xo_ + t * 8}')
                L.append(f'ds_read_b64 {x[2:4]}, {xsp} offset:{xo_ + 2048 + t * 8}')
            else:
                L.append(f'ds_read_b128 {x}, {xa} offset:{xo_ + t * 1024}')
        for ct in range(1, 5):
            L.append(f'ds_read_b128 {Fr[(b * 7 + 2 + ct) * 4:(b * 7 + 2 + ct) * 4 + 4]}, {wreg} offset:{wo_ + ct * 1024}')
        return L

    def mf4(idx):
        b = idx & 1
        L = []
        for ct in range(5):
            for t in range(2):
                a = acc[(ct * 2 + t) * 4:(ct * 2 + t) * 4 + 4]
                L.append(f'v_mfma_f32_16x16x32_bf16 {a}, {Fr[(b * 7 + 2 + ct) * 4:(b * 7 + 2 + ct) * 4 + 4]}, {Fr[(b * 7 + t) * 4:(b * 7 + t) * 4 + 4]}, {0 if idx == 0 else a}')
        return L

    k.barrier()
    k.ts()
    for x in prep4(0):
        k.i(x)
    for idx in range(len(steps)):
        if idx == 14:
            k.ts()
        if idx + 1 < len(steps):
            if steps[idx + 1][1] == 0:
                k.barrier()
            interleave(k, mf4(idx), prep4(idx + 1), lead=2)
        else:
            for x in mf4(idx):
                k.i(x)
    k.ts()
    k.i(f's_mul_i32 {so}, {wave}, 5120')
    k.i(f'v_add_u32 {t1}, {so}, {l16}')
    k.i(f's_xor_b32 {st1}, {wave}, 2')
    k.i(f's_mul_i32 {st1}, {st1}, 5120')
    k.i(f'v_add_u32 {t3}, {st1}, {l16}')
    mk = k.s(2)
    k.i(f's_cmp_eq_u32 {kh}, 1')
    k.i(f's_cselect_b64 {mk}, -1, 0')
    Sd = Fr[0:20]
    Kp = Fr[20:40]
    for ct in range(5):
        for r in range(4):
            a0_, a1_ = acc[(ct * 2) * 4 + r], acc[(ct * 2 + 1) * 4 + r]
            k.i(f'v_cndmask_b32 {Sd[4 * ct + r]}, {a1_}, {a0_}, {mk}')
            k.i(f'v_cndmask_b32 {Kp[4 * ct + r]}, {a0_}, {a1_}, {mk}')
        k.i(f'ds_write_b128 {t1}, {Sd[4 * ct:4 * ct + 4]} offset:{1024 * ct}')
    k.barrier()
    Rv = acc[0:20]
    for ct in range(5):
        k.i(f'ds_read_b128 {Rv[4 * ct:4 * ct + 4]}, {t3} offset:{1024 * ct}')
    k.i(f's_mul_i32 {so}, {ttg}, {16 * 1280}')
    k.i(f's_mul_i32 {st1}, {nt2}, 160')
    k.i(f's_add_u32 {so}, {so}, {st1}')
    k.i(f'v_mul_u32_u24 {t1}, 1280, {n}')
    k.i(f'v_lshl_add_u32 {t1}, {G}, 3, {t1}')
    xe = Fr[40:44]
    for ct in range(5):
        for q in range(2):
            k.i(f'v_lshlrev_b32 {xe[2 * q]}, 16, {xv[2 * ct + q]}')
            k.i(f'v_and_b32 {xe[2 * q + 1]}, 0xffff0000, {xv[2 * ct + q]}')
        for r in range(4):
            k.i(f'v_add_f32 {Kp[4 * ct + r]}, {Kp[4 * ct + r]}, {Rv[4 * ct + r]}')
        for r in range(4):
            k.i(f'v_fmac_f32 {xe[r]}, {Kp[4 * ct + r]}, {gbv[4 * ct + r]}')
        o = Fr[44 + 2 * ct:44 + 2 * ct + 2]
        for q in range(2):
            k.i(f'v_cvt_pk_bf16_f32 {o[q]}, {xe[2 * q]}, {xe[2 * q + 1]}')
        k.i(f'buffer_store_dwordx2 {o}, {t1}, {sout}, {so} offen offset:{32 * ct}')
    k.ts_end()
    k.i('s_endpgm')

    k.reset_state()
    k.release(mk_common)
    k.nts = nts2
    k.label('m_l2')
    lw = k.s()
    k.i(f's_sub_u32 {lw}, {wave}, 4')
    skv2, spq = k.s(), k.s()
    kvw = k.v(2, align=1)
    KR = k.v(40)
    ob = k.v(8)
    k.i(f's_lshr_b32 {st2}, {lw}, 1')
    k.i(f's_and_b32 {st1}, {lw}, 1')
    k.i(f's_mul_i32 {skv2}, {st2}, {16 * KVS}')
    k.i(f's_mul_i32 {so}, {st1}, 1792')
    k.i(f's_add_u32 {skv2}, {skv2}, {so}')
    k.i(f's_add_u32 {skv2}, {skv2}, {WS_KV}')
    k.i(f's_mul_i32 {st1}, {st1}, 112')
    k.i(f's_mul_i32 {st2}, {st2}, 1920')
    k.i(f's_add_u32 {st2}, {st2}, {RING2}')
    u1, u2_, u3 = KR[0], KR[1], KR[2]
    for i in range(2):
        k.i(f'v_add_u32 {t1}, {st1}, {lane}')
        k.i(f'v_add_u32 {t1}, {64 * i}, {t1}')
        k.i(f'v_mul_u32_u24 {t2}, 6554, {t1}')
        k.i(f'v_lshrrev_b32 {t2}, 16, {t2}')
        k.i(f'v_mul_u32_u24 {t3}, 10, {t2}')
        k.i(f'v_sub_u32 {t3}, {t1}, {t3}')
        k.i(f'v_mul_u32_u24 {u1}, 52, {t2}')
        k.i(f'v_lshrrev_b32 {u1}, 8, {u1}')
        k.i(f'v_mul_u32_u24 {u2_}, 5, {u1}')
        k.i(f'v_sub_u32 {u2_}, {t2}, {u2_}')
        k.i(f'v_lshrrev_b32 {u3}, 1, {t3}')
        k.i(f'v_lshl_add_u32 {kvw[i]}, {u1}, 2, {u2_}')
        k.i(f'v_lshlrev_b32 {kvw[i]}, 4, {kvw[i]}')
        k.i(f'v_lshl_add_u32 {kvw[i]}, {u3}, 8, {kvw[i]}')
        k.i(f'v_cmp_lt_u32 vcc, 20, {t2}')
        k.i(f'v_cndmask_b32 {u1}, {u1}, 5, vcc')
        k.i(f'v_lshlrev_b32 {u1}, 4, {u1}')
        k.i(f'v_lshl_add_u32 {u1}, {u3}, 7, {u1}')
        k.i(f'v_add_u32 {u1}, 1280, {u1}')
        k.i(f'v_cmp_eq_u32 vcc, 4, {u2_}')
        k.i(f'v_cndmask_b32 {kvw[i]}, {kvw[i]}, {u1}, vcc')
        k.i(f'v_cmp_lt_u32 vcc, 19, {t2}')
        k.i(f'v_cndmask_b32 {kvw[i]}, {kvw[i]}, {u1}, vcc')
        k.i(f'v_and_b32 {t3}, 1, {t3}')
        k.i(f'v_lshl_add_u32 {kvw[i]}, {t3}, 3, {kvw[i]}')
        k.i(f'v_add_u32 {kvw[i]}, {st2}, {kvw[i]}')
    dpq = k.s()
    k.i(f's_and_b32 {dpq}, {lw}, 1')
    k.i(f's_lshl_b32 {dpq}, {dpq}, 12')
    k.i(f's_mul_i32 {spq}, {mt2}, 163840')
    k.i(f's_add_u32 {spq}, {spq}, {dpq}')
    k.i(f's_add_u32 {spq}, {spq}, {WS_PHIQ}')
    sw3, dlo, dhi, sx3, dx3 = k.s(), k.s(), k.s(), k.s(), k.s()
    cw3, cx3 = k.s(), k.s()
    if os.environ.get('ROT3', '0') == '1':
        k.i(f's_add_u32 {cx3}, {nt3}, {mt3}')
        k.i(f's_and_b32 {cx3}, {cx3}, 3')
        k.i(f's_mul_i32 {cx3}, {cx3}, 5')
    else:
        k.i(f's_mov_b32 {cx3}, 0')
    k.i(f's_lshr_b32 {cw3}, {lw}, 1')
    k.i(f's_add_u32 {cw3}, {cw3}, {cx3}')
    k.i(f's_and_b32 {sw3}, {lw}, 1')
    k.i(f's_mul_i32 {sw3}, {sw3}, {112 * 1024}')
    k.i(f's_mul_i32 {so}, {nt3}, 7168')
    k.i(f's_add_u32 {sw3}, {sw3}, {so}')
    k.i(f's_add_u32 {sw3}, {sw3}, {WS_WGU}')
    k.i(f's_lshr_b32 {so}, {lw}, 1')
    k.i(f's_mul_i32 {so}, {so}, 14336')
    k.i(f's_and_b32 {st1}, {lw}, 1')
    k.i(f's_lshl_b32 {dlo}, {st1}, 12')
    k.i(f's_add_u32 {dlo}, {dlo}, {so}')
    k.i(f's_mul_i32 {dhi}, {st1}, 3072')
    k.i(f's_add_u32 {dhi}, {dhi}, 8192')
    k.i(f's_add_u32 {dhi}, {dhi}, {so}')
    k.i(f's_lshl_b32 {dx3}, {lw}, 11')
    k.i(f's_mul_i32 {sx3}, {mt3}, {20 * 8192}')
    k.i(f's_add_u32 {sx3}, {sx3}, {dx3}')
    k.i(f's_add_u32 {sx3}, {sx3}, {WS_X1}')

    def w3(p):
        k.i(f's_mul_i32 {so}, {cw3}, {2 * 112 * 1024}')
        k.i(f's_add_u32 {so}, {so}, {sw3}')
        k.i(f's_add_u32 {cw3}, {cw3}, 2')
        k.i(f's_cmp_ge_u32 {cw3}, 20')
        k.i(f's_cselect_b32 {st1}, 20, 0')
        k.i(f's_sub_u32 {cw3}, {cw3}, {st1}')
        k.i(f's_add_u32 m0, {dlo}, {W3[p % 4]}')
        for cc in range(4):
            k.i(f'buffer_load_dwordx4 {l16}, {sws}, {so} offen offset:{1024 * cc} lds', tag=f'w3_{p}')
        k.i(f's_add_u32 {so}, {so}, 4096')
        k.i(f's_add_u32 m0, {dhi}, {W3[p % 4]}')
        for cc in range(3):
            k.i(f'buffer_load_dwordx4 {l16}, {sws}, {so} offen offset:{1024 * cc} lds', tag=f'w3_{p}')

    def x3(J):
        k.i(f's_lshl_b32 {so}, {cx3}, 13')
        k.i(f's_add_u32 {so}, {so}, {sx3}')
        k.i(f's_add_u32 {cx3}, {cx3}, 1')
        k.i(f's_cmp_eq_u32 {cx3}, 20')
        k.i(f's_cselect_b32 {cx3}, 0, {cx3}')
        k.i(f's_add_u32 m0, {dx3}, {X3[J % 5]}')
        for i in range(2):
            k.i(f'buffer_load_dwordx4 {l16}, {sws}, {so} offen offset:{1024 * i} lds', tag=f'x3_{J}')

    sw4, sx4, dw4, dx4 = k.s(), k.s(), k.s(), k.s()
    r4 = k.s()
    if os.environ.get('ROT', '1') == '1':
        k.i(f's_mul_i32 {r4}, {nt2}, 6')
        k.i(f's_and_b32 {so}, {mt2}, 3')
        k.i(f's_mul_i32 {so}, {so}, 11')
        k.i(f's_add_u32 {r4}, {r4}, {so}')
    else:
        k.i(f's_mov_b32 {r4}, 0')
    k.i(f's_add_u32 {r4}, {r4}, {lw}')

    def e4(s):
        if s < 2:
            k.i(f's_add_u32 {st2}, {r4}, {4 * s}')
            k.i(f's_and_b32 {st2}, {st2}, 7')
        else:
            k.i(f's_add_u32 {st2}, {r4}, {4 * s - 8}')
            for _ in range(2):
                k.i(f's_cmp_ge_u32 {st2}, 46')
                k.i(f's_cselect_b32 {st1}, 46, 0')
                k.i(f's_sub_u32 {st2}, {st2}, {st1}')
            k.i(f's_add_u32 {st2}, {st2}, 8')

    k.i(f's_mul_i32 {sw4}, {nt2}, 5120')
    k.i(f's_add_u32 {sw4}, {sw4}, {WS_WDF}')
    k.i(f's_mul_i32 {dw4}, {lw}, 5120')
    k.i(f's_lshl_b32 {dx4}, {lw}, 12')
    k.i(f's_mul_i32 {sx4}, {mt2}, {56 * 4096}')
    k.i(f's_add_u32 {sx4}, {sx4}, {WS_ACT}')

    def w4(s):
        e4(s)
        k.i(f's_mul_i32 {so}, {st2}, 40960')
        k.i(f's_add_u32 {so}, {so}, {sw4}')
        k.i(f's_add_u32 m0, {dw4}, {W4[s % 5]}')
        for cc in range(4):
            k.i(f'buffer_load_dwordx4 {l16}, {sws}, {so} offen offset:{1024 * cc} lds', tag=f'w4_{s}')
        k.i(f's_add_u32 {so}, {so}, 4096')
        k.i(f's_add_u32 m0, {dw4}, {W4[s % 5] + 4096}')
        k.i(f'buffer_load_dwordx4 {l16}, {sws}, {so} offen lds', tag=f'w4_{s}')

    def x4(s):
        e4(s)
        k.i(f's_lshl_b32 {so}, {st2}, 12')
        k.i(f's_add_u32 {so}, {so}, {sx4}')
        k.i(f's_add_u32 m0, {dx4}, {X4[s % 3]}')
        for cc in range(4):
            k.i(f'buffer_load_dwordx4 {l16}, {sws}, {so} offen offset:{1024 * cc} lds', tag=f'x4_{s}')

    def ldk(s):
        k.i(f's_add_u32 {so}, {skv2}, {s * KVS}')
        for i in range(2):
            k.i(f'buffer_load_dwordx4 {KR[((s % 5) * 2 + i) * 4:((s % 5) * 2 + i) * 4 + 4]}, {l16}, {sws}, {so} offen offset:{1024 * i}')

    def stk(s):
        for i in range(2):
            kr = KR[((s % 5) * 2 + i) * 4:((s % 5) * 2 + i) * 4 + 4]
            o = ob[((s & 1) * 2 + i) * 2:((s & 1) * 2 + i) * 2 + 2]
            k.i(f'v_cvt_pk_bf16_f32 {o[0]}, {kr[0]}, {kr[1]}')
            k.i(f'v_cvt_pk_bf16_f32 {o[1]}, {kr[2]}, {kr[3]}')
            k.i(f'ds_write_b64 {kvw[i]}, {o} offset:{(s % 4) * SL2}')

    poll(G1, sx, 6)
    k.i('s_barrier')
    k.ts()
    for s in range(5):
        ldk(s)
    k.i(f's_mul_i32 {so}, {lw}, {SL2}')
    k.i(f'v_and_b32 {t1}, 1, {lane}')
    k.i(f'v_mul_u32_u24 {t1}, 1920, {t1}')
    k.i(f'v_add_u32 {t1}, {so}, {t1}')
    zz = k.v(4)
    for q in range(4):
        k.i(f'v_mov_b32 {zz[q]}, 0')
    stk(0)
    k.i(f'ds_write_b128 {t1}, {zz} offset:{RING2 + 1280 + 512 + 112}')
    for s in range(16):
        if s + 1 < 16:
            if s == 0:
                k.wait(lg=0)
            stk(s + 1) if s > 0 else None
        if s > 0:
            k.wait(lg=2 if s + 1 < 16 else 0)
        k.i('s_barrier')
        if s == 0:
            stk(1)
        if s in (0, 8):
            k.ts()
        if s == 5:
            k.i(f's_cmp_lg_u32 {wave}, 7')
            k.i('s_cbranch_scc1 m_nowr')
            k.i(f's_and_b32 {so}, s2, 15')
            k.i(f's_lshl_b32 {so}, {so}, 8')
            k.i(f's_add_u32 {so}, {so}, {WS_CNT + CW}')
            k.i(f'v_mov_b32 {t1}, 0')
            k.i(f'v_mov_b32 {t2}, 1')
            k.i('s_mov_b32 exec_lo, 1')
            k.i('s_mov_b32 exec_hi, 0')
            k.lines.append(f'  buffer_atomic_add {t2}, {t1}, {sws}, {so} offen sc1')
            k.i('s_mov_b64 exec, -1')
            k.raw('m_nowr:')
            k._join()
        if s + 5 < 16:
            ldk(s + 5)
        if s == 11:
            k.lines.append('  s_waitcnt lgkmcnt(0)')
            k.i(f'v_lshlrev_b32 {t1}, 8, {n}')
            k.i(f's_mov_b32 {so}, {WS_CNT + CW}')
            k.i(f's_mov_b32 {st1}, 0')
            k.raw('m_wr:')
            for x in [f'buffer_load_dword {t2}, {t1}, {sws}, {so} offen sc1', 's_waitcnt vmcnt(0)',
                      f'v_cmp_gt_u32 vcc, 16, {t2}', f's_add_u32 {st1}, {st1}, 1', f's_cmp_ge_u32 {st1}, {SPIN_MAX}',
                      's_cbranch_scc1 m_wrd', 's_nop 1', 's_cbranch_vccnz m_wr']:
                k.lines.append('  ' + x)
            k.raw('m_wrd:')
            k._join()
            k.vm = []
            if os.environ.get('TOUCH3', '0') == '1':
                for i_ in range(2):
                    k.i(f's_lshl_b32 {so}, {lw}, 9')
                    k.i(f's_and_b32 {st1}, {mt3}, 7')
                    k.i(f's_add_u32 {so}, {so}, {st1}')
                    k.i(f's_add_u32 {so}, {so}, {2048 * i_}')
                    k.i(f'v_lshlrev_b32 {t1}, 3, {lane}')
                    k.i(f'v_add_u32 {t1}, {so}, {t1}')
                    k.i(f'v_min_u32 {t1}, 2239, {t1}')
                    k.i(f'v_mul_u32_u24 {t2}, 4682, {t1}')
                    k.i(f'v_lshrrev_b32 {t2}, 18, {t2}')
                    k.i(f'v_mul_u32_u24 {t3}, 56, {t2}')
                    k.i(f'v_sub_u32 {t1}, {t1}, {t3}')
                    k.i(f'v_mul_u32_u24 {t2}, {112 * 1024}, {t2}')
                    k.i(f'v_lshl_add_u32 {t1}, {t1}, 7, {t2}')
                    k.i(f's_mul_i32 {so}, {nt3}, 7168')
                    k.i(f's_add_u32 {so}, {so}, {WS_WGU}')
                    if i_ == 1:
                        k.i(f's_cmp_lg_u32 {lw}, 0')
                        k.i('s_cbranch_scc1 m_not3')
                    k.lines.append(f'  buffer_load_dword {zz[i_]}, {t1}, {sws}, {so} offen')
                k.raw('m_not3:')
                k._join()
    k.raw('m_l2j:')
    k.reset_state()
    if True:
        if True:
            w3(0)
    k.ts()
    k.i('s_barrier')
    k.i('s_barrier')
    NPRE3 = int(os.environ.get('NPRE3', 2))
    for p in range(1, NPRE3):
        w3(p)
    k.ts()
    poll(G2, mt3)
    k.i('s_barrier')
    k.ts()
    LAX = 4
    TOUCH4 = os.environ.get('TOUCH4', '1') == '1'
    stq = k.s()
    k.i(f's_lshl_b32 {stq}, {lw}, 8')
    k.i(f's_and_b32 {so}, {mt2}, 3')
    k.i(f's_add_u32 {stq}, {stq}, {so}')
    for J in range(LAX):
        x3(J)
    for J in range(20):
        if J % 2 == 0:
            k.wait_tag(f'w3_{J // 2}')
        k.wait_tag(f'x3_{J}')
        k.i('s_barrier')
        if J == 0:
            k.ts()
        if J == 10:
            k.ts()
        if J + LAX < 20:
            x3(J + LAX)
        if J < 2 and NPRE3 + J < 4:
            w3(NPRE3 + J)
        if TOUCH4 and J >= 2 and J % 2 == 1 and J <= 17:
            pass
        if TOUCH4 and J in (3, 7, 11):
            i_ = (J - 3) // 4
            k.i(f's_add_u32 {so}, {stq}, {i_ * 4 * 64 * 4}')
            k.i(f'v_lshlrev_b32 {t1}, 2, {lane}')
            k.i(f'v_add_u32 {t1}, {so}, {t1}')
            k.i(f'v_min_u32 {t1}, 2159, {t1}')
            k.i(f'v_mul_u32_u24 {t2}, 1639, {t1}')
            k.i(f'v_lshrrev_b32 {t2}, 16, {t2}')
            k.i(f'v_mul_u32_u24 {t3}, 40, {t2}')
            k.i(f'v_sub_u32 {t1}, {t1}, {t3}')
            k.i(f'v_mul_u32_u24 {t2}, 40960, {t2}')
            k.i(f'v_lshl_add_u32 {t1}, {t1}, 7, {t2}')
            k.i(f'buffer_load_dword {t3}, {t1}, {sws}, {sw4} offen')
        if J % 2 == 0 and J >= 2 and J // 2 + 3 < 10:
            w3(J // 2 + 3)
        if J == 8 and os.environ.get('CPF', '1') == '1':
            mk_ = k.mark()
            k.i(f's_cmp_lg_u32 {wave}, 5')
            k.i('s_cbranch_scc1 m_nocpf')
            code_pf('m_p3epi', 'm_l2', 'a')
            k.raw('m_nocpf:')
            k._join()
            k.release(mk_)
        if J == 16:
            w4(0)
        if J == 17:
            w4(1)
    k.ts()
    k.i('s_barrier')
    k.i('s_barrier')
    w4(2)
    w4(3)
    w4(4)
    k.ts()
    k.i(f's_lshr_b32 {st2}, {mt2}, 1')
    sel = k.s()
    k.i(f's_mov_b32 {sel}, {st2}')
    poll(12288, sel)
    k.i('s_barrier')
    k.ts()
    x4(0)
    x4(1)
    for s in range(NS4):
        k.wait_tag(f'w4_{s}')
        k.wait_tag(f'x4_{s}')
        k.i('s_barrier')
        if s in (0, 7):
            k.ts()
        if s + 2 < NS4:
            x4(s + 2)
        if s >= 1 and s + 4 < NS4:
            w4(s + 4)
    k.ts()
    k.i('s_barrier')
    k.ts_end()
    k.label('p1_end')
    k.i('s_endpgm')
    return k, 256, 512, 163840


GENS = [gen_main]
```

```python
import re

TRANS = ('v_exp_f32', 'v_log_f32', 'v_rcp_f32', 'v_rsq_f32', 'v_sqrt_f32', 'v_sin_f32', 'v_cos_f32')

_reg_re = re.compile(r'^(-|\|)?(abs\()?([vsa])(\d+|\[(\d+):(\d+)\])\)?\|?$')


def parse_reg(tok):
    tok = tok.strip()
    if tok in ('vcc',):
        return [('s', 106), ('s', 107)]
    if tok == 'vcc_lo':
        return [('s', 106)]
    if tok == 'vcc_hi':
        return [('s', 107)]
    if tok == 'exec':
        return [('s', 126), ('s', 127)]
    if tok == 'exec_lo':
        return [('s', 126)]
    if tok == 'exec_hi':
        return [('s', 127)]
    if tok == 'm0':
        return [('s', 124)]
    m = _reg_re.match(tok)
    if not m:
        return []
    kind = m.group(3)
    if m.group(5) is not None:
        return [(kind, i) for i in range(int(m.group(5)), int(m.group(6)) + 1)]
    return [(kind, int(m.group(4)))]


class R:
    def __init__(self, kind, base, n):
        self.kind, self.base, self.n = kind, base, n

    def __getitem__(self, i):
        if isinstance(i, slice):
            a = i.start or 0
            b = i.stop if i.stop is not None else self.n
            assert 0 <= a < b <= self.n, (a, b, self.n)
            return R(self.kind, self.base + a, b - a)
        assert 0 <= i < self.n, (i, self.n)
        return R(self.kind, self.base + i, 1)

    def __str__(self):
        if self.n == 1:
            return f'{self.kind}{self.base}'
        return f'{self.kind}[{self.base}:{self.base + self.n - 1}]'

    __repr__ = __str__

    def __format__(self, spec):
        return str(self)


def mfma_passes(op):
    if '32x32x16' in op or '32x32x8' in op:
        return 8
    if '16x16x32' in op or '16x16x16' in op:
        return 4
    if '_4b_' in op:
        return 8
    if '_2b_' in op:
        return 16
    if '_16b_' in op:
        return 2
    raise ValueError(op)


class Kernel:
    def __init__(self, name, max_v=256, max_a=256):
        self.name = name
        self.lines = []
        self.nv = 1
        self.na = 0
        self.ns = 4
        self.max_v, self.max_a = max_v, max_a
        self.hi_v = 1
        self.hi_a = 0
        self.hi_s = 4
        self.reset_state()
        self.nlabel = 0
        self.ninstr = 0

    def v(self, n=1, align=None):
        if align is None:
            align = 1 if n == 1 else (2 if n < 4 else 4)
        b = (self.nv + align - 1) // align * align
        self.nv = b + n
        assert self.nv <= (250 if self.TS else self.max_v), f'{self.name}: out of VGPRs ({self.nv})'
        self.hi_v = max(self.hi_v, self.nv)
        return R('v', b, n)

    def a(self, n=1, align=4):
        b = (self.na + align - 1) // align * align
        self.na = b + n
        assert self.na <= self.max_a, f'{self.name}: out of AGPRs'
        self.hi_a = max(self.hi_a, self.na)
        return R('a', b, n)

    def s(self, n=1, align=None):
        if align is None:
            align = 1 if n == 1 else (2 if n < 4 else 4)
        b = (self.ns + align - 1) // align * align
        self.ns = b + n
        assert self.ns <= (97 if self.TS else 100), f'{self.name}: out of SGPRs'
        self.hi_s = max(self.hi_s, self.ns)
        return R('s', b, n)

    def mark(self):
        return (self.nv, self.na, self.ns)

    def release(self, m):
        self.nv, self.na, self.ns = m

    def reset_state(self):
        self.pos = 0
        self.lastw = {}
        self.mfma_c_read = {}
        self.store_data = {}
        self.vm = []
        self.lg = []
        self.m0w = -100

    def raw(self, s):
        self.lines.append(s)

    def comment(self, s):
        self.lines.append('; ' + s)

    def label(self, name):
        self.lines.append(f'{name}:')
        self._join()

    def _join(self):
        self.lastw = {}
        self.mfma_c_read = {}
        self.store_data = {}

    def newlabel(self, p='L'):
        self.nlabel += 1
        return f'{self.name}_{p}{self.nlabel}'

    def nop(self, n):
        while n > 0:
            k = min(n, 16)
            self.lines.append(f'  s_nop {k - 1}')
            self.pos += k
            self.ninstr += 1
            n -= k

    def _emit_wait(self, vm=None, lg=None):
        parts = []
        if vm is not None:
            parts.append(f'vmcnt({vm})')
            self.vm = self.vm[len(self.vm) - vm:] if vm > 0 else []
        if lg is not None:
            parts.append(f'lgkmcnt({lg})')
            self.lg = self.lg[len(self.lg) - lg:] if lg > 0 else []
        if parts:
            self.lines.append('  s_waitcnt ' + ' '.join(parts))
            self.pos += 1
            self.ninstr += 1

    def wait(self, vm=None, lg=None):
        if vm is not None:
            vm = min(vm, 63)
            if vm >= len(self.vm) and not self.force_wait:
                vm = None
        if lg is not None:
            lg = min(lg, 15)
            if lg >= len(self.lg) and not self.force_wait:
                lg = None
        if vm is not None and vm > len(self.vm):
            self.lines.append(f'  s_waitcnt vmcnt({vm})')
            self.pos += 1
            vm = None
        if lg is not None and lg > len(self.lg):
            self.lines.append(f'  s_waitcnt lgkmcnt({lg})')
            self.pos += 1
            lg = None
        self._emit_wait(vm, lg)

    force_wait = False

    def wait_all(self):
        self.lines.append('  s_waitcnt vmcnt(0) lgkmcnt(0)')
        self.pos += 1
        self.vm = []
        self.lg = []

    def wait_tag(self, tag):
        idx = -1
        for i, e in enumerate(self.vm):
            if e['tag'] == tag:
                idx = i
        if idx >= 0:
            n = len(self.vm) - 1 - idx
            if n <= 63:
                self._emit_wait(vm=n)
            else:
                self.vm = self.vm[idx + 1:]

    def _need_waits(self, regs):
        regs = set(regs)
        vm = lg = None
        idx = -1
        for i, e in enumerate(self.vm):
            if e['regs'] & regs:
                idx = i
        if idx >= 0:
            n = len(self.vm) - 1 - idx
            if n <= 62:
                vm = n
            else:
                self.vm = self.vm[idx + 1:]
        idx = -1
        for i, e in enumerate(self.lg):
            if e['regs'] & regs:
                idx = i
        if idx >= 0:
            if any(e['smem'] for e in self.lg):
                lg = 0
            else:
                n = len(self.lg) - 1 - idx
                if n <= 14:
                    lg = n
                else:
                    lg = 15 if n > 15 else n
                    lg = min(lg, 15)
                    lg = 14 if n > 14 else n
        self._emit_wait(vm, lg)

    def i(self, text, tag=None):
        text = text.strip()
        sp = text.split(None, 1)
        op = sp[0]
        rest = sp[1] if len(sp) > 1 else ''
        ops = [o.strip() for o in rest.split(',')] if rest else []
        mods = ''
        if ops:
            last = ops[-1].split()
            if len(last) > 1:
                ops[-1] = last[0]
                mods = ' '.join(last[1:])
        base = op.replace('_e32', '').replace('_e64', '').replace('_dpp', '').replace('_sdwa', '')
        w, r = [], []
        kind = None
        passes = 0
        is_dpp = ('row_' in mods) or ('quad_perm' in mods) or op.endswith('_dpp') or ('wave_' in mods)
        lds_dma = False
        if base.startswith('v_mfma'):
            kind = 'mfma'
            passes = mfma_passes(base)
            w = parse_reg(ops[0])
            ra, rb, rc = parse_reg(ops[1]), parse_reg(ops[2]), parse_reg(ops[3])
            r = ra + rb + rc
        elif base.startswith('v_cmp'):
            kind = 'valu'
            w = parse_reg(ops[0])
            for o in ops[1:]:
                r += parse_reg(o)
            if base.startswith('v_cmpx'):
                w += parse_reg('exec')
        elif base.startswith('v_'):
            kind = 'trans' if base in TRANS else 'valu'
            w = parse_reg(ops[0])
            k = 1
            if '_co_' in base or base in ('v_mad_u64_u32', 'v_div_scale_f32'):
                w += parse_reg(ops[1])
                k = 2
            for o in ops[k:]:
                r += parse_reg(o)
            if base in ('v_fmac_f32', 'v_pk_fmac_f16', 'v_dot2c_f32_bf16', 'v_writelane_b32') or 'fmac' in base:
                r += parse_reg(ops[0])
            if base.startswith('v_permlane') and 'swap' in base:
                w += parse_reg(ops[1])
                r += parse_reg(ops[0])
            if is_dpp or 'op_sel' in mods and base.startswith('v_cvt'):
                r += parse_reg(ops[0])
        elif base.startswith('s_load') or base.startswith('s_buffer_load') or base in ('s_memtime', 's_memrealtime'):
            kind = 'smem'
            w = parse_reg(ops[0])
            for o in ops[1:]:
                r += parse_reg(o)
        elif base.startswith('s_'):
            kind = 'salu'
            if base.startswith('s_cmp') or base.startswith('s_cbranch') or base in ('s_branch', 's_barrier', 's_endpgm', 's_setprio', 's_sleep', 's_nop', 's_waitcnt', 's_bitcmp1_b32', 's_bitcmp0_b32'):
                for o in ops:
                    r += parse_reg(o)
                if 'vcc' in base:
                    r += parse_reg('vcc')
                if 'exec' in base:
                    r += parse_reg('exec')
            else:
                w = parse_reg(ops[0])
                for o in ops[1:]:
                    r += parse_reg(o)
                if 'saveexec' in base:
                    w += parse_reg('exec')
                    r += parse_reg('exec')
                if base in ('s_addk_i32', 's_mulk_i32', 's_cmov_b32', 's_cmov_b64'):
                    r += parse_reg(ops[0])
        elif base.startswith('ds_'):
            kind = 'ds'
            if base.startswith('ds_read') or base.startswith('ds_bpermute') or base.startswith('ds_permute') or base.startswith('ds_swizzle') or '_rtn' in base:
                w = parse_reg(ops[0])
                for o in ops[1:]:
                    r += parse_reg(o)
            else:
                for o in ops:
                    r += parse_reg(o)
        elif base.startswith('buffer_') or base.startswith('global_'):
            kind = 'vmem'
            allmods = mods.split()
            if 'lds' in allmods or '_lds_' in base:
                lds_dma = True
                for o in ops:
                    r += parse_reg(o)
                r += parse_reg('m0')
            elif '_load' in base:
                w = parse_reg(ops[0])
                for o in ops[1:]:
                    r += parse_reg(o)
            elif 'atomic' in base and 'sc0' in allmods:
                raise NotImplementedError('returning atomics: handle manually')
            else:
                for o in ops:
                    r += parse_reg(o)
        else:
            raise ValueError('unknown op ' + text)

        self._need_waits(r + w)

        need = 0

        def req(p, n):
            nonlocal need
            d = self.pos - p
            have = d - 1
            if have < n:
                need = max(need, n - have)

        isv = kind in ('valu', 'trans')
        for reg in r:
            lw = self.lastw.get(reg)
            if lw is None:
                continue
            p, k2, ps = lw
            if k2 in ('valu', 'trans'):
                if reg[0] in 'va':
                    if kind == 'mfma':
                        req(p, 2)
                    if isv and is_dpp:
                        req(p, 2)
                    if base.startswith('v_permlane'):
                        req(p, 2)
                    if base in ('v_readfirstlane_b32', 'v_readlane_b32'):
                        req(p, 1)
                    if k2 == 'trans' and kind in ('valu', 'mfma', 'vmem', 'ds'):
                        req(p, 1)
                else:
                    if isv:
                        req(p, 4 if base in ('v_readlane_b32', 'v_writelane_b32') else 2)
                    if kind == 'vmem':
                        req(p, 5)
                    if kind in ('salu', 'smem'):
                        req(p, 1)
                    if reg in (('s', 126), ('s', 127)):
                        req(p, 5)
            elif k2 == 'mfma':
                if kind == 'mfma':
                    if reg in rc and not (reg in ra or reg in rb):
                        if set(rc) == self.lastw_set.get(p, None) and ps == passes:
                            req(p, 2 if ps == 2 else 0)
                        else:
                            req(p, ps + 2)
                    else:
                        req(p, ps + 4 if ps > 2 else 5)
                else:
                    req(p, ps + 4 if ps > 2 else 5)
            elif k2 == 'salu':
                if reg == ('s', 124) and lds_dma:
                    req(p, 1)
        for reg in w:
            lw = self.lastw.get(reg)
            if lw is not None:
                p, k2, ps = lw
                if k2 == 'mfma' and kind != 'mfma':
                    req(p, ps + 4 if ps > 2 else 5)
                if k2 == 'mfma' and kind == 'mfma' and reg not in rc:
                    req(p, ps + 2)
            cr = self.mfma_c_read.get(reg)
            if cr is not None and kind != 'mfma':
                req(cr[0], cr[1] - 1)
            sd = self.store_data.get(reg)
            if sd is not None:
                req(sd, 2)
        if need > 0:
            self.nop(need)

        self.lines.append('  ' + text)
        self.ninstr += 1
        p = self.pos
        self.pos += 1
        if kind in ('valu', 'trans', 'mfma', 'salu'):
            for reg in w:
                self.lastw[reg] = (p, kind, passes)
            if kind == 'mfma':
                if not hasattr(self, 'lastw_set'):
                    self.lastw_set = {}
                self.lastw_set[p] = set(w)
                for reg in rc:
                    self.mfma_c_read[reg] = (p, passes)
        else:
            for reg in w:
                self.lastw.pop(reg, None)
        if kind == 'vmem':
            self.vm.append(dict(regs=set(w), tag=tag))
            if ('store' in base or 'atomic' in base) and ('x4' in base or 'x3' in base):
                dreg = parse_reg(ops[0]) if base.startswith('buffer_') else parse_reg(ops[1])
                for reg in dreg:
                    self.store_data[reg] = p
        elif kind == 'ds':
            self.lg.append(dict(regs=set(w), smem=False))
        elif kind == 'smem':
            self.lg.append(dict(regs=set(w), smem=True))
        if base.startswith('s_cbranch') or base == 's_branch':
            pass
        for reg in w + r:
            if reg[0] == 'v':
                self.hi_v = max(self.hi_v, reg[1] + 1)
            elif reg[0] == 'a':
                self.hi_a = max(self.hi_a, reg[1] + 1)
            elif reg[1] < 102:
                self.hi_s = max(self.hi_s, reg[1] + 1)

    lastw_set = {}

    TS = False
    WS_TS = 0x1C00000

    def ts_init(self, kidx):
        self.kidx = kidx
        self.nts = 0
        if not self.TS:
            return
        self.i('v_mov_b32 v250, 0')
        self.i('s_memrealtime s[98:99]')
        self._emit_wait(lg=0)
        self.lines.append('  v_writelane_b32 v250, s98, 0')
        self.lines.append('  v_writelane_b32 v250, s2, 63')
        self.ts()

    def ts(self):
        if not self.TS:
            return
        import os
        if self.nts >= 29 and not getattr(self, '_final', False):
            return
        self.i(f"{'s_memrealtime' if os.environ.get('TSR') else 's_memtime'} s[98:99]")
        self._emit_wait(lg=0)
        self.lines.append(f'  v_writelane_b32 v250, s98, {2 + self.nts}')
        self.nts += 1

    def ts_at(self, idx):
        if not self.TS:
            return
        self.i('s_memrealtime s[98:99]')
        self._emit_wait(lg=0)
        self.lines.append(f'  v_writelane_b32 v250, s98, {32 + idx}')

    def ts_end(self):
        if not self.TS:
            return
        self.i('s_mov_b64 exec, -1')
        self.wait_all()
        self._final = True
        self.ts()
        self._final = False
        self.i('s_memrealtime s[98:99]')
        self.i('s_load_dwordx2 s[4:5], s[0:1], 96')
        self._emit_wait(lg=0)
        self.lines.append('  v_writelane_b32 v250, s98, 1')
        self.lines.append('  v_readlane_b32 s8, v250, 63')
        self.i('s_and_b32 s5, s5, 0xffff')
        self.i('s_mov_b32 s6, 0x10000000')
        self.i('s_mov_b32 s7, 0x00020000')
        self.nop(4)
        self.i('s_lshl_b32 s8, s8, 11')
        self.i(f's_add_u32 s8, s8, {self.WS_TS + self.kidx * 1024 * 1024}')
        self.i('v_lshrrev_b32 v255, 6, v254')
        self.i('v_lshlrev_b32 v255, 8, v255')
        self.i('v_and_b32 v253, 63, v254')
        self.i('v_lshl_add_u32 v255, v253, 2, v255')
        self.i('buffer_store_dword v250, v255, s[4:7], s8 offen')
        self.nts -= 1

    def barrier(self):
        if self.lg:
            self._emit_wait(lg=0)
        self.i('s_barrier')

    def srd(self, base, nbytes):
        d = self.s(4)
        self.i(f's_mov_b32 {d[0]}, {base[0]}')
        self.i(f's_and_b32 {d[1]}, {base[1]}, 0xffff')
        self.i(f's_mov_b32 {d[2]}, {nbytes}')
        self.i(f's_mov_b32 {d[3]}, 0x00020000')
        return d

    def srd_off(self, base, off, nbytes):
        d = self.s(4)
        self.i(f's_add_u32 {d[0]}, {base[0]}, {off}')
        self.i(f's_addc_u32 {d[1]}, {base[1]}, 0')
        self.i(f's_and_b32 {d[1]}, {d[1]}, 0xffff')
        self.i(f's_mov_b32 {d[2]}, {nbytes}')
        self.i(f's_mov_b32 {d[3]}, 0x00020000')
        return d

    def text(self):
        out = [f'.globl {self.name}', '.p2align 8', f'.type {self.name},@function', f'{self.name}:']
        out += self.lines
        return '\n'.join(out)

    def desc(self):
        nv = (self.hi_v + 3) // 4 * 4
        tot = nv + self.hi_a if self.hi_a else self.hi_v
        return '\n'.join([
            '.p2align 6',
            f'.amdhsa_kernel {self.name}',
            f'  .amdhsa_next_free_vgpr {tot}',
            f'  .amdhsa_next_free_sgpr {max(self.hi_s, 8)}',
            f'  .amdhsa_accum_offset {nv}',
            '  .amdhsa_group_segment_fixed_size 0',
            '  .amdhsa_kernarg_size 104',
            '  .amdhsa_user_sgpr_count 2',
            '  .amdhsa_user_sgpr_kernarg_segment_ptr 1',
            '  .amdhsa_system_sgpr_workgroup_id_x 1',
            '.end_amdhsa_kernel'])


def build_file(header_lines, launches, kernels):
    out = list(header_lines)
    for (name, grid, block, lds) in launches:
        out.append(f'; @launch kernel={name} grid=({grid},1,1) block=({block},1,1) lds={lds}')
    out.append('.amdgcn_target "amdgcn-amd-amdhsa--gfx950"')
    out.append('.text')
    for k in kernels:
        out.append(k.text())
    out.append('code_end:')
    out.append('.section .rodata,"a"')
    for k in kernels:
        out.append(k.desc())
    return '\n'.join(out) + '\n'
```

```python
import os
from g2_common import *

SPIN_MAX = 400000
KNAME = 'adaLN_cond__linear_kernel_hedgehog__geglu_ffn__prompt_kernel'
C2, G2, C3, G3, C1G, C1T, G1, CW = 0, 4096, 8192, 12288, 16384, 20480, 24576, 28672


def R_(base, n):
    return R('v', base, n)


def gen_main():
    k = Kernel(KNAME)
    TSX = os.environ.get('TSX')

    def tsx():
        if TSX == '1':
            k.ts()

    def tsz():
        if TSX == '3':
            k.ts()

    def tsy(c=True):
        if TSX == '2' and c:
            k.ts()

    c = common_prologue(k, 256, 'p1_end', 0)
    lane, G, n, l16, wave = c.lane, c.G, c.n, c.l16, c.wave
    KPS, LA, NST, NSL = 1, int(os.environ.get('P1_LA', 4)), 20, 8
    LQK, LV, LPK, LSIDE, LCS = 0, 129024, 40960, 141824, 0
    WOFB = 57344
    LMOD = 162304
    LCNT = 163840 - 64
    sx, sy, so, st1, st2 = k.s(), k.s(), k.s(), k.s(), k.s()
    mt2, nt2, mt3, nt3 = k.s(), k.s(), k.s(), k.s()
    px, po = k.s(2), k.s(2)
    rot2 = k.s()
    t1, t2, t3 = k.v(), k.v(), k.v()
    sws = k.s(4)
    mk_common = k.mark()

    def code_pf(lab_from, lab_to, tag):
        pc = k.s(2)
        k.lines.append(f'  s_getpc_b64 {pc}')
        k.lines.append(f'm_pc{tag}:')
        k.lines.append(f'  s_add_u32 {pc[0]}, {pc[0]}, {lab_from}-m_pc{tag}')
        k.lines.append(f'  s_addc_u32 {pc[1]}, {pc[1]}, ({lab_from}-m_pc{tag})>>32')
        k.i(f'v_lshlrev_b32 {t1}, 12, {lane}')
        k.i(f's_lshl_b32 {so}, {sy}, 7')
        k.i(f'v_add_u32 {t1}, {so}, {t1}')
        k.lines.append(f'  v_cmp_gt_u32 vcc, {lab_to}-{lab_from}-4, {t1}')
        k.lines.append(f'  s_and_saveexec_b64 {k.s(2)}, vcc')
        k.lines.append(f'  s_cbranch_execz m_pcx{tag}')
        k.lines.append(f'  global_load_dword {t2}, {t1}, {pc}')
        k.lines.append(f'm_pcx{tag}:')
        k.i('s_mov_b64 exec, -1')

    mt, hp = k.s(), k.s()
    k.i(f's_and_b32 {sx}, s2, 7')
    k.i(f's_lshr_b32 {sy}, s2, 3')
    k.i(f's_lshr_b32 {mt}, {sx}, 1')
    k.i(f's_lshl_b32 {mt}, {mt}, 2')
    k.i(f's_and_b32 {hp}, {sy}, 3')
    k.i(f's_add_u32 {mt}, {mt}, {hp}')
    k.i(f's_and_b32 {hp}, {sx}, 1')
    k.i(f's_lshl_b32 {hp}, {hp}, 3')
    k.i(f's_lshr_b32 {so}, {sy}, 2')
    k.i(f's_add_u32 {hp}, {hp}, {so}')
    hw, sg_, sm0 = k.s(), k.s(), k.s()
    k.i(f's_and_b32 {hw}, {wave}, 3')
    k.i(f's_mul_i32 {sg_}, {hp}, 163840')
    k.i(f's_add_u32 {sg_}, {sg_}, {WS_WP}')
    k.i(f's_mul_i32 {so}, {mt}, 163840')
    k.i(f's_add_u32 {so}, {so}, {WS_XN - 8192}')
    k.i(f's_cmp_ge_u32 {hw}, 2')
    k.i(f's_cselect_b32 {sg_}, {so}, {sg_}')
    k.i(f's_lshl_b32 {sm0}, {hw}, 12')
    k.i(f's_add_u32 {sg_}, {sg_}, {sm0}')
    k.i(f's_mov_b32 {sws[0]}, {c.ws[0]}')
    k.i(f's_and_b32 {sws[1]}, {c.ws[1]}, 0xffff')
    k.i(f's_mov_b32 {sws[2]}, {WS_END}')
    k.i(f's_mov_b32 {sws[3]}, 0x00020000')

    cur1 = k.s()
    if os.environ.get('ROT1', '0') == '1':
        k.i(f's_and_b32 {cur1}, {hp}, 7')
        k.i(f's_mul_i32 {cur1}, {cur1}, 5')
        k.i(f's_lshr_b32 {cur1}, {cur1}, 1')
        k.i(f's_and_b32 {so}, {mt}, 3')
        k.i(f's_mul_i32 {so}, {so}, 5')
        k.i(f's_add_u32 {cur1}, {cur1}, {so}')
        k.i(f's_cmp_ge_u32 {cur1}, 20')
        k.i(f's_cselect_b32 {so}, 20, 0')
        k.i(f's_sub_u32 {cur1}, {cur1}, {so}')
        k.i(f's_lshl_b32 {cur1}, {cur1}, 13')
    else:
        k.i(f's_mov_b32 {cur1}, 0')

    def dma_stage(s):
        k.i(f's_add_u32 {st1}, {sg_}, {cur1}')
        k.i(f's_add_u32 {cur1}, {cur1}, 8192')
        k.i(f's_cmp_eq_u32 {cur1}, 163840')
        k.i(f's_cselect_b32 {cur1}, 0, {cur1}')
        k.i(f's_add_u32 m0, {sm0}, {(s % 8) * 16384}')
        for i in range(4):
            k.i(f'buffer_load_dwordx4 {l16}, {sws}, {st1} offen offset:{1024 * i} lds', tag=f'w{s}')

    FHC, FHG, FWC, FWG, CD = C2 + 128, G2 + 128, C3 + 128, G3 + 128, CW + 128
    XB = 131072
    tid = k.v()
    hwv, half, lbase, sbt = hw, k.s(), k.s(), k.s()
    jt0, ji0, jt1, ji1, sfl = k.s(), k.s(), k.s(), k.s(), k.s()
    pdb = k.s(2)
    sdb = k.s(4)
    k.i(f's_load_dwordx2 {pdb}, s[0:1], {KA_DBG}')
    k.i(f's_load_dwordx2 {px}, s[0:1], {KA_X}')
    k.i(f's_load_dwordx2 {po}, s[0:1], {KA_OUT}')
    k.i(f'v_and_b32 {tid}, 255, v0')
    k.i(f's_lshr_b32 {half}, {wave}, 2')
    k.i(f's_lshl_b32 {lbase}, {half}, 14')
    k.i(f's_add_u32 {lbase}, {lbase}, 40960')
    k.i(f's_mov_b32 {sbt}, 0')
    k.i(f'v_lshlrev_b32 {t1}, 2, {n}')
    k.i(f'v_add_u32 {t1}, {LCNT}, {t1}')
    k.i(f'v_mov_b32 {t2}, 0')
    k.i(f'ds_write_b32 {t1}, {t2}')
    def setj(t0, i0, t1_, i1):
        k.i(f's_mov_b32 {jt0}, {t0}')
        k.i(f's_add_u32 {ji0}, s2, {i0}')
        k.i(f's_mov_b32 {jt1}, {t1_}')
        k.i(f's_add_u32 {ji1}, s2, {i1}')
    k.i(f's_mov_b32 {sfl}, 0')
    k.i(f's_cmp_eq_u32 {half}, 1')
    k.i('s_cbranch_scc1 m_jh1')
    setj(1, 0, 1, 80)
    k.i('s_cmp_lt_u32 s2, 48')
    k.i('s_cbranch_scc1 m_jd')
    setj(2, -48, 0, 0)
    k.i('s_cmp_lt_u32 s2, 80')
    k.i(f's_cselect_b32 {sfl}, 1, 0')
    k.i('s_cmp_lt_u32 s2, 176')
    k.i('s_cbranch_scc1 m_jd')
    setj(3, -176, 0, 0)
    k.i('s_branch m_jd')
    k.raw('m_jh1:')
    k.i(f's_mov_b32 {sfl}, 1')
    setj(5, 0, 1, 128)
    k.i('s_cmp_lt_u32 s2, 48')
    k.i('s_cbranch_scc1 m_jd')
    setj(1, 0, 4, -48)
    k.i(f's_mov_b32 {sfl}, 0')
    k.i('s_cmp_lt_u32 s2, 80')
    k.i('s_cbranch_scc1 m_jd')
    k.i(f's_mov_b32 {sfl}, 1')
    setj(1, 96, 4, -48)
    k.i('s_cmp_lt_u32 s2, 144')
    k.i('s_cbranch_scc1 m_jd')
    setj(4, -48, 4, -16)
    k.i('s_cmp_lt_u32 s2, 176')
    k.i('s_cbranch_scc1 m_jd')
    setj(4, -16, 0, 0)
    k.i('s_cmp_lt_u32 s2, 201')
    k.i('s_cbranch_scc1 m_jd')
    setj(0, 0, 0, 0)
    k.i('s_cmp_lt_u32 s2, 247')
    k.i('s_cbranch_scc1 m_jd')
    k.i(f's_mov_b32 {sfl}, 0')
    setj(7, 0, 0, 0)
    k.i('s_cmp_lt_u32 s2, 255')
    k.i('s_cbranch_scc1 m_jd')
    setj(6, 0, 7, 0)
    k.raw('m_jd:')
    k.i(f's_mov_b32 {sdb[0]}, {pdb[0]}')
    k.i(f's_and_b32 {sdb[1]}, {pdb[1]}, 0xffff')
    k.i(f's_mov_b32 {sdb[2]}, 256')
    k.i(f's_mov_b32 {sdb[3]}, 0x00020000')
    init_at = len(k.lines)
    k.barrier()
    k.i(f's_cmp_eq_u32 {sfl}, 0')
    k.i('s_cbranch_scc1 m_disp')
    k.raw('m_setup:')
    k.reset_state()
    k.i(f's_lshl_b32 {mt2}, {sx}, 2')
    k.i(f's_and_b32 {nt2}, {sy}, 3')
    k.i(f's_add_u32 {mt2}, {mt2}, {nt2}')
    k.i(f's_lshr_b32 {nt2}, {sy}, 2')
    k.i(f's_and_b32 {mt3}, {sx}, 1')
    k.i(f's_lshl_b32 {mt3}, {mt3}, 3')
    k.i(f's_and_b32 {nt3}, {sy}, 7')
    k.i(f's_add_u32 {mt3}, {mt3}, {nt3}')
    k.i(f's_lshr_b32 {nt3}, {sx}, 1')
    k.i(f's_lshl_b32 {nt3}, {nt3}, 2')
    k.i(f's_lshr_b32 {so}, {sy}, 3')
    k.i(f's_add_u32 {nt3}, {nt3}, {so}')
    k.i(f's_mov_b32 {rot2}, 0')
    sty, srowA, srowB, sdst, scol, ks, p_ = k.s(), k.s(), k.s(), k.s(), k.s(), k.s(), k.s()
    ssd = k.s(4)
    mk_tmp = k.mark()
    ska, sstr, cblk, u2, q_, t_, t2_ = k.s(), k.s(), k.s(), k.s(), k.s(), k.s(), k.s()
    k.i(f's_mul_i32 {ks}, s2, 1214')
    k.i(f's_lshr_b32 {ks}, {ks}, 16')
    k.i(f's_mul_i32 {t_}, {ks}, 54')
    k.i(f's_sub_u32 {cblk}, s2, {t_}')
    k.i(f's_cmp_ge_u32 s2, 216')
    k.i(f's_cselect_b32 {t_}, 100, {wave}')
    k.i(f's_cmp_lt_u32 {t_}, 5')
    k.i(f's_cselect_b32 {sty}, 0, 3')
    k.i(f's_min_u32 {ks}, {ks}, 3')
    k.i(f's_lshl_b32 {t2_}, {wave}, 2')
    k.i(f's_lshr_b32 {t2_}, 0x47520, {t2_}')
    k.i(f's_and_b32 {t2_}, {t2_}, 15')
    k.i(f's_mul_i32 {srowA}, {ks}, 10')
    k.i(f's_add_u32 {srowA}, {srowA}, {t2_}')
    k.i(f's_cmp_eq_u32 {wave}, 4')
    k.i(f's_cselect_b32 {t2_}, 5, 1')
    k.i(f's_add_u32 {srowB}, {srowA}, {t2_}')
    k.i(f's_cmp_ge_u32 {cblk}, 27')
    k.i(f's_cselect_b32 {ska}, {KA_WU}, {KA_WG}')
    k.i(f's_cselect_b32 {t_}, 27, 0')
    k.i(f's_cselect_b32 {t2_}, 112, 0')
    k.i(f's_sub_u32 {t_}, {cblk}, {t_}')
    k.i(f's_lshl_b32 {scol}, {t_}, 7')
    k.i(f's_lshl_b32 {t_}, {t_}, 2')
    k.i(f's_add_u32 {p_}, {t_}, {t2_}')
    k.i(f's_mul_i32 {sdst}, {ks}, 5')
    k.i(f's_add_u32 {sdst}, {sdst}, {wave}')
    k.i(f's_mul_i32 {sdst}, {sdst}, 224')
    k.i(f's_add_u32 {sdst}, {sdst}, {p_}')
    k.i(f's_lshl_b32 {sdst}, {sdst}, 10')
    k.i(f's_add_u32 {sdst}, {sdst}, {WS_WGU}')
    k.i(f's_mov_b32 {sstr}, {F * 2}')
    k.i(f's_load_dwordx2 {ssd[0:2]}, s[0:1], {ska}')
    k.i(f's_lshl_b32 {srowA}, {srowA}, 4')
    k.i(f's_lshl_b32 {srowB}, {srowB}, 4')
    SA = k.v(4, align=1)
    k.i(f'v_and_b32 {t3}, 7, {lane}')
    k.i(f'v_lshlrev_b32 {t3}, 4, {t3}')
    k.i(f'v_lshrrev_b32 {t1}, 3, {lane}')
    for i in range(4):
        k.i(f'v_add_u32 {t2}, {srowA if i < 2 else srowB}, {t1}')
        if i & 1:
            k.i(f'v_add_u32 {t2}, 8, {t2}')
        k.i(f'v_mul_lo_u32 {t2}, {t2}, {sstr}')
        k.i(f'v_add_u32 {SA[i]}, {t2}, {t3}')
    k.ns = mk_tmp[2]
    E = Ctx()
    PR = k.v(16, align=1)
    E.sq, E.skv = k.s(), k.s()
    hh, ft = k.s(), k.s()

    def epi_addr(tmp):
        hq, qa, ql, ka = tmp[0], PR[0], PR[1], PR[2]
        sq = E.sq
        E.qa, E.ql, E.ka, E.qk_a, E.sgl, E.ka2 = qa, ql, ka, PR[3], PR[14], PR[15]
        hd, sg = tmp[2], tmp[3]
        k.i(f'v_and_b32 {hd}, 1, {G}')
        k.i(f'v_lshrrev_b32 {sg}, 1, {G}')
        k.i(f'v_lshlrev_b32 {PR[14]}, 31, {sg}')
        k.i(f'v_xor_b32 {PR[14]}, {fhex(LOG2E)}, {PR[14]}')
        k.i(f's_lshl_b32 {so}, {hp}, 1')
        k.i(f'v_add_u32 {hq}, {so}, {hd}')
        k.i(f'v_and_b32 {tmp[4]}, 15, {hq}')
        k.i(f'v_lshrrev_b32 {tmp[5]}, 4, {hq}')
        k.i(f'v_lshlrev_b32 {tmp[5]}, 10, {tmp[5]}')
        k.i(f'v_lshl_add_u32 {tmp[5]}, {n}, 4, {tmp[5]}')
        k.i(f'v_lshl_add_u32 {qa}, {tmp[4]}, 13, {tmp[5]}')
        k.i(f'v_lshl_add_u32 {qa}, {sg}, 9, {qa}')
        k.i(f'v_lshrrev_b32 {ql}, 2, {tmp[4]}')
        k.i(f'v_add_u32 {ql}, 16, {ql}')
        k.i(f'v_lshl_add_u32 {ql}, {ql}, 13, {tmp[5]}')
        k.i(f'v_and_b32 {tmp[4]}, 3, {hq}')
        k.i(f'v_lshl_add_u32 {ql}, {tmp[4]}, 8, {ql}')
        k.i(f'v_lshl_add_u32 {ql}, {sg}, 3, {ql}')
        k.i(f'v_mul_u32_u24 {ka}, 160, {n}')
        k.i(f'v_mul_u32_u24 {tmp[4]}, 80, {hd}')
        k.i(f'v_add_u32 {ka}, {ka}, {tmp[4]}')
        k.i(f's_mul_i32 {so}, {wave}, 2560')
        k.i(f's_add_u32 {so}, {so}, {LPK}')
        k.i(f'v_add_u32 {ka}, {so}, {ka}')
        k.i(f'v_lshl_add_u32 {PR[15]}, {sg}, 3, {ka}')
        k.i(f'v_add_u32 {PR[15]}, 64, {PR[15]}')
        k.i(f'v_lshl_add_u32 {ka}, {sg}, 5, {ka}')
        k.i(f's_lshl_b32 {sq}, {mt}, 1')
        k.i(f's_lshr_b32 {so}, {wave}, 2')
        k.i(f's_add_u32 {sq}, {sq}, {so}')
        k.i(f's_mul_i32 {sq}, {sq}, 163840')
        k.i(f's_and_b32 {so}, {wave}, 3')
        k.i(f's_lshl_b32 {so}, {so}, 11')
        k.i(f's_add_u32 {sq}, {sq}, {so}')
        k.i(f's_add_u32 {sq}, {sq}, {WS_PHIQ}')
        k.i(f's_mul_i32 {so}, {wave}, 5120')
        k.i(f's_add_u32 {so}, {so}, {LQK}')
        k.i(f'v_lshlrev_b32 {PR[3]}, 8, {hd}')
        k.i(f'v_lshl_add_u32 {PR[3]}, {n}, 4, {PR[3]}')
        k.i(f'v_add_u32 {PR[3]}, {so}, {PR[3]}')
        k.i(f's_cmp_ge_u32 {wave}, 3')
        k.i(f's_cselect_b32 {hh}, 1, 0')
        k.i(f's_mul_i32 {ft}, {hh}, 3')
        k.i(f's_sub_u32 {ft}, {wave}, {ft}')
        tb, ta = PR[4], PR[5]
        E.tb, E.ta = tb, ta
        rr_, cc_ = tmp[4], tmp[5]
        k.i(f'v_lshrrev_b32 {rr_}, 2, {lane}')
        k.i(f'v_and_b32 {cc_}, 3, {lane}')
        k.i(f'v_mul_u32_u24 {tb}, 160, {rr_}')
        k.i(f'v_lshl_add_u32 {tb}, {cc_}, 3, {tb}')
        k.i(f's_mul_i32 {so}, {hh}, 80')
        k.i(f's_lshl_b32 {st1}, {ft}, 5')
        k.i(f's_add_u32 {so}, {so}, {st1}')
        k.i(f's_add_u32 {so}, {so}, {LPK}')
        k.i(f'v_add_u32 {tb}, {so}, {tb}')
        k.i(f'v_mul_u32_u24 {ta}, 96, {rr_}')
        k.i(f'v_lshl_add_u32 {ta}, {cc_}, 3, {ta}')
        k.i(f's_lshl_b32 {so}, {hh}, 5')
        k.i(f's_add_u32 {so}, {so}, {LV}')
        k.i(f'v_add_u32 {ta}, {so}, {ta}')
        aa = PR[6:14]
        E.aa = aa
        fo, dr = tmp[6], tmp[7]
        k.i(f's_lshl_b32 {so}, {ft}, 4')
        k.i(f'v_add_u32 {fo}, {so}, {n}')
        k.i(f'v_cmp_lt_u32 vcc, 39, {fo}')
        k.i(f'v_lshlrev_b32 {fo}, 2, {fo}')
        big = tmp[1]
        k.i(f'v_mov_b32 {big}, 0x7f000000')
        k.i(f'v_cndmask_b32 {fo}, {fo}, {big}, vcc')
        k.i(f's_lshl_b32 {so}, {hh}, 3')
        for dt in range(2):
            for r in range(4):
                a = aa[dt * 4 + r]
                k.i(f'v_lshlrev_b32 {dr}, 2, {G}')
                k.i(f'v_add_u32 {dr}, {16 * dt + r}, {dr}')
                k.i(f'v_subrev_u32 {dr}, {so}, {dr}')
                k.i(f'v_cmp_lt_u32 vcc, 20, {dr}')
                k.i(f'v_mul_u32_u24 {a}, 160, {dr}')
                k.i(f'v_add_u32 {a}, {a}, {fo}')
                k.i(f'v_cndmask_b32 {a}, {a}, {big}, vcc')
        skv = E.skv
        k.i(f's_lshl_b32 {skv}, {hp}, 1')
        k.i(f's_add_u32 {skv}, {skv}, {hh}')
        k.i(f's_mul_i32 {skv}, {skv}, {KVS}')
        k.i(f's_add_u32 {skv}, {skv}, {WS_KV}')

    swo = k.s()
    k.i(f's_mul_i32 {swo}, {nt2}, 5120')
    k.i(f's_add_u32 {swo}, {swo}, {WS_WOF}')

    def wof_jj(sbase, add):
        k.i(f's_add_u32 {st2}, {sbase}, {add}')
        k.i(f's_lshr_b32 {so}, {st2}, 1')
        k.i(f's_and_b32 {st1}, {st2}, 1')
        k.i(f's_mul_i32 {st1}, {st1}, 10')
        k.i(f's_add_u32 {so}, {so}, {st1}')
        k.i(f's_mul_i32 {so}, {so}, 40960')
        k.i(f's_add_u32 {so}, {so}, {swo}')
        k.i(f's_add_u32 {st2}, {st2}, 2')
        k.i(f's_cmp_ge_u32 {st2}, 20')
        k.i(f's_cselect_b32 {st1}, 20, 0')
        k.i(f's_sub_u32 {st2}, {st2}, {st1}')
        k.i(f's_mul_i32 {st1}, {st2}, 5120')
        k.i(f's_add_u32 {st1}, {st1}, {WOFB}')
        k.i(f's_and_b32 {st2}, {mt2}, 3')
        k.i(f's_lshl_b32 {st2}, {st2}, 10')
        for cc in range(5):
            k.i(f's_add_u32 m0, {st1}, {st2}')
            k.i(f's_add_u32 {rot2}, {so}, {st2}')
            k.i(f'buffer_load_dwordx4 {l16}, {sws}, {rot2} offen lds', tag='wof')
            if cc < 4:
                k.i(f's_add_u32 {st2}, {st2}, 1024')
                k.i(f's_cmp_eq_u32 {st2}, 5120')
                k.i(f's_cselect_b32 {st2}, 0, {st2}')

    mk_p1 = k.mark()
    RR = k.v(168)
    epi_addr(RR[0:8])
    k.i(f's_and_b32 {ssd[1]}, {ssd[1]}, 0xffff')
    k.i(f's_mov_b32 {ssd[2]}, {D * F * 2}')
    k.i(f's_mov_b32 {ssd[3]}, 0x00020000')
    k.release(mk_p1)
    k.wait(lg=0)
    ini = [f'  s_mov_b32 {ssd[0]}, {sws[0]}', f'  s_mov_b32 {ssd[1]}, {sws[1]}', f'  s_mov_b32 {ssd[2]}, 0', f'  s_mov_b32 {ssd[3]}, 0x00020000']
    ini += [f'  v_mov_b32 {SA[i]}, 0' for i in range(4)] + [f'  v_mov_b32 {PR[i]}, 0' for i in range(16)]
    k.lines[init_at:init_at] = ini
    k.i(f's_cmp_eq_u32 {sfl}, 2')
    k.i('s_cbranch_scc1 m_main')
    mk_job = k.mark()

    def lds_spin(addr, target_s, name):
        k.i(f'v_mov_b32 {t1}, {addr}') if isinstance(addr, int) else None
        k.i(f's_mov_b32 {st1}, 0')
        k.raw(f'{name}:')
        for x in [f'ds_read_b32 {t3}, {t1}', 's_waitcnt lgkmcnt(0)', f'v_readfirstlane_b32 {st2}, {t3}', f's_add_u32 {st1}, {st1}, 1',
                  f's_cmp_ge_u32 {st1}, {SPIN_MAX * 2}', f's_cbranch_scc1 {name}_d', f's_cmp_ge_u32 {st2}, {target_s}', f's_cbranch_scc1 {name}_d', 's_sleep 1', f's_branch {name}']:
            k.lines.append('  ' + x)
        k.raw(f'{name}_d:')
        k._join()
        k.lg = []

    T1, T2, T3 = t1, t2, t3

    def subbar():
        nm = k.newlabel('sb')
        if k.lg:
            k._emit_wait(lg=0)
        k.i(f's_add_u32 {sbt}, {sbt}, 4')
        k.i(f's_lshl_b32 {st1}, {half}, 2')
        k.i(f's_add_u32 {st1}, {st1}, {LCNT + 16}')
        k.i(f'v_mov_b32 {T1}, {st1}')
        k.i(f'v_mov_b32 {T2}, 1')
        k.i('s_mov_b32 exec_lo, 1')
        k.i('s_mov_b32 exec_hi, 0')
        k.i(f'ds_add_u32 {T1}, {T2}')
        lds_spin(None, sbt, nm)
        k.i('s_mov_b64 exec, -1')

    def gpoll(srd, soff, voff, name, two=False, sleep=4):
        k.i(f'v_mov_b32 {T1}, {voff}')
        k.i(f's_mov_b32 {st1}, 0')
        pv2 = k.v(2)
        k.raw(f'{name}:')
        L = [f'buffer_load_dwordx2 {pv2}, {T1}, {srd}, {soff} offen sc1', 's_waitcnt vmcnt(0)']
        if two:
            L += [f'v_and_b32 {pv2[0]}, {pv2[0]}, {pv2[1]}', 's_nop 0']
        L += [f'v_readfirstlane_b32 {st2}, {pv2[0]}', f's_add_u32 {st1}, {st1}, 1', f's_cmp_ge_u32 {st1}, {SPIN_MAX}',
              f's_cbranch_scc1 {name}_d', f's_cmp_lg_u32 {st2}, 0', f's_cbranch_scc1 {name}_d', f's_sleep {sleep}', f's_branch {name}']
        for x in L:
            k.lines.append('  ' + x)
        k.raw(f'{name}_d:')
        k._join()
        k.vm = []

    def zcheck(nm, sleep):
        k.i(f'v_mov_b32 {T1}, {LCNT + 32}')
        k.i(f'ds_read_b32 {T3}, {T1}')
        k.i(f'v_readfirstlane_b32 {st2}, {T3}')
        k.i(f's_cmp_lg_u32 {st2}, 0')
        k.i(f's_cbranch_scc1 {nm}_s')
        gpoll(sdb, 0, 128, nm, two=True, sleep=sleep)
        k.i(f'v_mov_b32 {T1}, {LCNT + 32}')
        k.i(f'v_mov_b32 {T2}, 1')
        k.i(f'ds_write_b32 {T1}, {T2}')
        k.raw(f'{nm}_s:')
        k._join()
        k.lines.append('  s_waitcnt lgkmcnt(0)')
        k.lg = []

    def pollA():
        k.i(f's_cmp_lg_u32 {hwv}, 0')
        k.i('s_cbranch_scc1 m_pax')
        k.i('s_mov_b32 exec_lo, 1')
        k.i('s_mov_b32 exec_hi, 0')
        vmk = list(k.vm)
        zcheck('m_pa', 2)
        k.vm = vmk
        k.i('s_mov_b64 exec, -1')
        k.raw('m_pax:')
        k._join()
        subbar()

    def arrive(cnt, go, sel, target):
        nm = k.newlabel('ar')
        k.lines.append('  s_waitcnt vmcnt(0)')
        k.vm = []
        selk = k.s()
        k.i(f's_lshl_b32 {selk}, {sel}, 8')
        subbar()
        k.i(f's_cmp_lg_u32 {hwv}, 0')
        k.i(f's_cbranch_scc1 {nm}')
        k.i('s_mov_b32 exec_lo, 1')
        k.i('s_mov_b32 exec_hi, 0')
        zcheck(nm + 'z', 6)
        k.i(f's_add_u32 {selk}, {selk}, {WS_CNT + cnt}')
        k.i(f'v_mov_b32 {T1}, 0')
        k.i(f'v_mov_b32 {T2}, 1')
        for x in [f'buffer_atomic_add {T2}, {T1}, {sws}, {selk} offen sc0 sc1', 's_waitcnt vmcnt(0)', f'v_readfirstlane_b32 {st1}, {T2}',
                  f'v_mov_b32 {T2}, 1', f's_cmp_lg_u32 {st1}, {target - 1}', f's_cbranch_scc1 {nm}', f's_add_u32 {selk}, {selk}, {go - cnt}',
                  f'buffer_store_dword {T2}, {T1}, {sws}, {selk} offen sc1']:
            k.lines.append('  ' + x)
        k.raw(f'{nm}:')
        k._join()
        k.i('s_mov_b64 exec, -1')

    def tsj(i):
        if not k.TS:
            return
        nm = k.newlabel('tj')
        k.i(f's_cmp_eq_u32 {jt1}, 0')
        k.i(f's_cbranch_scc1 {nm}')
        k.ts_at(i)
        k.i(f's_branch {nm}x')
        k.raw(f'{nm}:')
        k.ts_at(4 + i)
        k.raw(f'{nm}x:')

    def job_gemv():
        pc, pw = k.s(2), k.s(2)
        k.i(f's_load_dwordx2 {pc}, s[0:1], {KA_C}')
        k.i(f's_load_dwordx2 {pw}, s[0:1], {KA_WMOD}')
        un, cb_, ks_, so = k.s(), k.s(), k.s(), k.s()
        k.i(f's_mov_b32 {un}, {ji0}')
        sc = k.srd(pc, D * 2)
        sw = k.srd(pw, D * 3840 * 2)
        k.i(f's_lshr_b32 {cb_}, {un}, 2')
        k.i(f's_and_b32 {ks_}, {un}, 3')
        rr, q, vo, vc = k.v(), k.v(), k.v(), k.v()
        k.i(f'v_lshrrev_b32 {rr}, 3, {tid}')
        k.i(f's_mul_i32 {so}, {ks_}, 160')
        k.i(f'v_add_u32 {rr}, {so}, {rr}')
        k.i(f'v_and_b32 {q}, 7, {tid}')
        k.i(f'v_mul_u32_u24 {vo}, 7680, {rr}')
        k.i(f'v_lshl_add_u32 {vo}, {q}, 4, {vo}')
        k.i(f's_lshl_b32 {so}, {cb_}, 7')
        k.i(f'v_add_u32 {vo}, {so}, {vo}')
        k.i(f'v_lshlrev_b32 {vc}, 1, {rr}')
        cv = k.v(5, align=1)
        wv = k.v(20)
        for i in range(5):
            k.i(f's_mov_b32 {so}, {32 * 7680 * i}')
            k.i(f'buffer_load_dwordx4 {wv[4 * i:4 * i + 4]}, {vo}, {sw}, {so} offen')
            if i == 0:
                for i2 in range(5):
                    k.i(f'buffer_load_ushort {cv[i2]}, {vc}, {sc}, 0 offen offset:{64 * i2}')
        acc = k.v(8, align=1)
        t1, t2 = k.v(), k.v()
        for i in range(5):
            c = cv[i]
            k.i(f'v_lshlrev_b32 {c}, 16, {c}')
            k.i(f'v_mul_f32 {t1}, {fhex(-LOG2E)}, {c}')
            k.i(f'v_exp_f32 {t1}, {t1}')
            k.i(f'v_add_f32 {t1}, 1.0, {t1}')
            k.i(f'v_rcp_f32 {t1}, {t1}')
            k.i(f'v_mul_f32 {c}, {c}, {t1}')
            round_bf16(k, c, c)
        for i in range(5):
            for j in range(4):
                w = wv[4 * i + j]
                k.i(f'v_lshlrev_b32 {t1}, 16, {w}')
                k.i(f'v_and_b32 {t2}, 0xffff0000, {w}')
                op = 'v_mul_f32' if i == 0 else 'v_fmac_f32'
                k.i(f'{op} {acc[2 * j]}, {t1}, {cv[i]}')
                k.i(f'{op} {acc[2 * j + 1]}, {t2}, {cv[i]}')
        tsj(0)
        for j in range(8):
            k.i(f'v_add_f32 {acc[j]}, {acc[j]}, {acc[j]} row_ror:8 {DPP}')
        la = k.v()
        k.i(f'v_lshrrev_b32 {la}, 4, {tid}')
        k.i(f'v_lshlrev_b32 {la}, 8, {la}')
        k.i(f'v_lshl_add_u32 {la}, {q}, 5, {la}')
        k.i(f'v_add_u32 {la}, {lbase}, {la}')
        a8 = k.v(8)
        for j in range(8):
            k.i(f'v_mov_b32 {a8[j]}, {acc[j]}')
        k.i('s_mov_b32 exec_lo, 0x00ff00ff')
        k.i('s_mov_b32 exec_hi, 0x00ff00ff')
        k.i(f'ds_write_b128 {la}, {a8[0:4]}')
        k.i(f'ds_write_b128 {la}, {a8[4:8]} offset:16')
        k.i('s_mov_b64 exec, -1')
        subbar()
        k.i(f's_cmp_lg_u32 {hwv}, 0')
        k.i('s_cbranch_scc1 p0_gemv_done')
        k.i(f'v_lshlrev_b32 {la}, 2, {tid}')
        lb2 = k.v()
        k.i(f'v_add_u32 {lb2}, {lbase}, {la}')
        pv = wv[0:16]
        for j in range(16):
            k.i(f'ds_read_b32 {pv[j]}, {lb2} offset:{256 * j}')
        for st in (8, 4, 2, 1):
            for j in range(st):
                k.i(f'v_add_f32 {pv[j]}, {pv[j]}, {pv[j + st]}')
        k.i(f's_mul_i32 {so}, {ks_}, 15360')
        k.i(f's_lshl_b32 {cb_}, {cb_}, 8')
        k.i(f's_add_u32 {so}, {so}, {cb_}')
        k.i(f's_add_u32 {so}, {so}, {WS_MODP}')
        k.i(f'buffer_store_dword {pv[0]}, {la}, {sws}, {so} offen sc1')
        k.i(f's_cmp_ge_u32 {un}, 80')
        k.i(f's_cbranch_scc1 p0_gemv_done')
        k.i(f's_and_b32 {cb_}, {un}, 1')
        k.i(f's_lshl_b32 {ks_}, {cb_}, 6')
        k.i(f's_lshl_b32 {cb_}, {cb_}, 2')
        k.i(f'v_mov_b32 {t1}, 1')
        k.i(f'v_mov_b32 {t2}, 0')
        k.i('s_mov_b32 exec_lo, 1')
        k.i('s_mov_b32 exec_hi, 0')
        k.wait(vm=0)
        k.lines.append(f'  buffer_atomic_add {t1}, {t2}, {sdb}, {ks_} offen sc0 sc1')
        k.lines.append('  s_waitcnt vmcnt(0)')
        k.lines.append(f'  v_readfirstlane_b32 {so}, {t1}')
        k.lines.append(f'  v_mov_b32 {t1}, 1')
        k.lines.append(f'  s_lshr_b32 {un}, {cb_}, 2')
        k.lines.append(f'  s_add_u32 {so}, {so}, {un}')
        k.lines.append(f'  s_cmp_lg_u32 {so}, 40')
        k.lines.append('  s_cbranch_scc1 p0_gemv_done')
        k.lines.append(f'  buffer_store_dword {t1}, {t2}, {sdb}, {cb_} offen offset:128 sc1')
        k.raw('p0_gemv_done:')
        k._join()
        tsj(1)
        k.i('s_mov_b64 exec, -1')
        k.lines.append('  s_waitcnt lgkmcnt(0)')
        k.lg = []
        subbar()
        k.i(f'v_mov_b32 {t1}, {LCNT + 24}')
        k.i(f'v_mov_b32 {t2}, 1')
        k.i(f'ds_write_b32 {t1}, {t2}')

    def job_fold():
        pq, pp = k.s(2), k.s(2)
        k.i(f's_load_dwordx2 {pq}, s[0:1], {KA_WQKV}')
        k.i(f's_load_dwordx2 {pp}, s[0:1], {KA_WPHI}')
        bb, hg4, J = k.s(), k.s(), k.s()
        k.i(f's_and_b32 {hg4}, {ji0}, 3')
        k.i(f's_lshr_b32 {J}, {ji0}, 2')
        PHI, ZERO = 32768, 40448
        t1, t2, t3, t4 = k.v(), k.v(), k.v(), k.v()
        da = k.v(8, align=1)
        for i in range(8):
            k.i(f'v_add_u32 {t1}, {256 * i}, {tid}')
            if i == 7:
                k.i(f'v_min_u32 {t1}, 1919, {t1}')
            k.i(f'v_mul_u32_u24 {t2}, 2185, {t1}')
            k.i(f'v_lshrrev_b32 {t2}, 17, {t2}')
            k.i(f'v_mul_u32_u24 {t3}, 60, {t2}')
            k.i(f'v_sub_u32 {t1}, {t1}, {t3}')
            k.i(f'v_mov_b32 {t3}, 1920')
            k.i(f'v_mov_b32 {t4}, -320')
            k.i(f'v_cmp_gt_u32 vcc, 40, {t1}')
            k.i(f'v_cndmask_b32 {t3}, {t3}, {t4}, vcc')
            k.i(f'v_mov_b32 {t4}, 1280')
            k.i(f'v_cmp_gt_u32 vcc, 20, {t1}')
            k.i(f'v_cndmask_b32 {t3}, {t3}, {t4}, vcc')
            k.i(f'v_lshl_add_u32 {t3}, {t1}, 4, {t3}')
            k.i(f'v_mul_u32_u24 {t2}, 3840, {t2}')
            k.i(f'v_add_u32 {da[i]}, {t2}, {t3}')
        sq = k.srd(pq, D * 1920 * 2)
        sph = k.srd(pp, 32 * 400 * 2)
        so, so2 = k.s(), k.s()
        k.i(f's_mul_i32 {so}, {J}, {32 * 3840}')
        k.i(f's_mul_i32 {so2}, {hg4}, 320')
        k.i(f's_add_u32 {so}, {so}, {so2}')
        k.i(f's_lshl_b32 {so2}, {hwv}, 10')
        for i in range(8):
            k.i(f's_add_u32 m0, {so2}, {4096 * i}')
            k.i(f'buffer_load_dwordx4 {da[i]}, {sq}, {so} offen lds', tag='t')
        k.i(f's_mul_i32 {so}, {hg4}, 6400')
        k.i(f's_add_u32 {so}, {so}, {so2}')
        k.i(f's_add_u32 m0, {so2}, {PHI}')
        k.i(f'buffer_load_dwordx4 {l16}, {sph}, {so} offen lds', tag='t')
        k.i(f's_cmp_eq_u32 {hwv}, 3')
        k.i('s_cbranch_scc1 p0_nophi')
        k.i(f's_add_u32 {so}, {so}, 4096')
        k.i(f's_add_u32 m0, {so2}, {PHI + 4096}')
        k.i(f'buffer_load_dwordx4 {l16}, {sph}, {so} offen lds', tag='t')
        k.raw('p0_nophi:')
        k._join()
        k.i(f'v_lshlrev_b32 {t1}, 2, {lane}')
        k.i(f'v_mov_b32 {t2}, 0')
        k.i(f'ds_write_b32 {t1}, {t2} offset:{ZERO}')
        w80 = k.s()
        k.i(f's_mul_i32 {w80}, {hwv}, 80')
        aa = k.v(3, align=1)
        k.i(f'v_lshrrev_b32 {t1}, 2, {n}')
        k.i(f'v_lshlrev_b32 {t1}, 3, {t1}')
        k.i(f'v_and_b32 {t2}, 3, {n}')
        k.i(f'v_add_u32 {t1}, {t1}, {t2}')
        k.i(f'v_mul_u32_u24 {t1}, 960, {t1}')
        k.i(f'v_add_u32 {t1}, {w80}, {t1}')
        for s_ in range(3):
            k.i(f'v_add_u32 {t2}, {4 * s_}, {G}')
            k.i(f'v_min_u32 {t2}, 9, {t2}')
            k.i(f'v_cmp_lt_u32 vcc, 4, {t2}')
            k.i(f'v_mov_b32 {t4}, 240')
            k.i(f'v_cndmask_b32 {t3}, 0, {t4}, vcc')
            k.i(f'v_lshl_add_u32 {t3}, {t2}, 4, {t3}')
            k.i(f'v_add_u32 {aa[s_]}, {t1}, {t3}')
        ba = k.v(6, align=1)
        rp, cc = k.v(), k.v()
        k.i(f'v_lshrrev_b32 {rp}, 2, {n}')
        k.i(f'v_and_b32 {cc}, 3, {n}')
        hb = k.v()
        k.i(f'v_and_b32 {hb}, 1, {cc}')
        k.i(f'v_mul_u32_u24 {hb}, 800, {hb}')
        k.i(f's_mul_i32 {so}, {hwv}, 1600')
        k.i(f's_add_u32 {so}, {so}, {PHI}')
        k.i(f'v_add_u32 {hb}, {so}, {hb}')
        zr = k.v()
        k.i(f'v_mov_b32 {zr}, {ZERO}')
        k8 = k.v()
        k.i(f'v_lshl_add_u32 {k8}, {G}, 3, {rp}')
        for s_ in range(3):
            for hf in range(2):
                k.i(f'v_add_u32 {t1}, {32 * s_ + 4 * hf}, {k8}')
                k.i(f'v_mul_u32_u24 {t2}, 3277, {t1}')
                k.i(f'v_lshrrev_b32 {t2}, 16, {t2}')
                k.i(f'v_mul_u32_u24 {t3}, 20, {t2}')
                k.i(f'v_sub_u32 {t3}, {t1}, {t3}')
                k.i(f'v_mul_u32_u24 {t3}, 40, {t3}')
                k.i(f'v_add_u32 {t3}, {t3}, {hb}')
                k.i(f'v_cmp_eq_u32 vcc, {t2}, {cc}')
                k.i(f'v_cndmask_b32 {ba[2 * s_ + hf]}, {zr}, {t3}, vcc')
        va = k.v(6, align=1)
        k.i(f'v_mul_u32_u24 {t1}, 960, {k8}')
        k.i(f'v_add_u32 {t1}, 640, {t1}')
        k.i(f'v_add_u32 {t1}, {w80}, {t1}')
        for c3 in range(3):
            k.i(f'v_add_u32 {t2}, {4 * c3}, {cc}')
            k.i(f'v_cmp_lt_u32 vcc, 5, {t2}')
            k.i(f'v_cndmask_b32 {t3}, 0, 1, vcc')
            k.i(f'v_sub_u32 {t3}, {t2}, {t3}')
            k.i(f'v_lshl_add_u32 {t3}, {t3}, 3, {t1}')
            k.i(f'v_add_u32 {t4}, 3840, {t3}')
            if c3 >= 1:
                k.i(f'v_cmp_eq_u32 vcc, {5 if c3 == 1 else 11}, {t2}')
                k.i(f'v_cndmask_b32 {va[2 * c3]}, {t3}, {zr}, vcc')
                k.i(f'v_cndmask_b32 {va[2 * c3 + 1]}, {t4}, {zr}, vcc')
            else:
                k.i(f'v_mov_b32 {va[0]}, {t3}')
                k.i(f'v_mov_b32 {va[1]}, {t4}')
        k.lines.append('  s_waitcnt vmcnt(0)')
        k.vm = []
        subbar()
        k.ts_at(0)
        A = k.v(24)
        B = k.v(60)
        Vf = k.v(12)
        for p in range(2):
            for s_ in range(3):
                k.i(f'ds_read_b128 {A[(p * 3 + s_) * 4:(p * 3 + s_) * 4 + 4]}, {aa[s_]} offset:{p * 3840}')
        for ct in range(5):
            for s_ in range(3):
                for hf in range(2):
                    b_ = (ct * 3 + s_) * 4 + 2 * hf
                    k.i(f'ds_read_b64_tr_b16 {B[b_:b_ + 2]}, {ba[2 * s_ + hf]} offset:{8 * ct}')
        for c3 in range(3):
            for hf in range(2):
                k.i(f'ds_read_b64_tr_b16 {Vf[c3 * 4 + 2 * hf:c3 * 4 + 2 * hf + 2]}, {va[2 * c3 + hf]}')
        k.i(f's_lshl_b32 {so}, {hg4}, 2')
        k.i(f's_add_u32 {so}, {so}, {hwv}')
        k.i(f's_mul_i32 {so}, {so}, 20')
        k.i(f's_add_u32 {so}, {so}, {J}')
        k.i(f's_lshl_b32 {so}, {so}, 13')
        k.i(f's_add_u32 {so}, {so}, {WS_WP}')
        k.i(f's_add_u32 {so2}, {so}, 4096')
        Dm = k.v(16)
        o = k.v(8)
        STF = 'sc1'
        for ct in range(5):
            d8 = Dm[(ct & 1) * 8:(ct & 1) * 8 + 8]
            for p in range(2):
                d = d8[p * 4:p * 4 + 4]
                for s_ in range(3):
                    k.i(f'v_mfma_f32_16x16x32_bf16 {d}, {A[(p * 3 + s_) * 4:(p * 3 + s_) * 4 + 4]}, {B[(ct * 3 + s_) * 4:(ct * 3 + s_) * 4 + 4]}, {0 if s_ == 0 else d}')
            if ct >= 1:
                pd = Dm[((ct - 1) & 1) * 8:((ct - 1) & 1) * 8 + 8]
                oo = o[((ct - 1) & 1) * 4:((ct - 1) & 1) * 4 + 4]
                for j in range(4):
                    k.i(f'v_cvt_pk_bf16_f32 {oo[j]}, {pd[2 * j]}, {pd[2 * j + 1]}')
                k.i(f'buffer_store_dwordx4 {oo}, {l16}, {sws}, {so} offen offset:{(ct - 1) * 1024} {STF}')
        for c3 in range(3):
            k.i(f'buffer_store_dwordx4 {Vf[c3 * 4:c3 * 4 + 4]}, {l16}, {sws}, {so2} offen offset:{(c3 + 1) * 1024} {STF}')
        oo = o[0:4]
        for j in range(4):
            k.i(f'v_cvt_pk_bf16_f32 {oo[j]}, {Dm[2 * j]}, {Dm[2 * j + 1]}')
        k.i(f'buffer_store_dwordx4 {oo}, {l16}, {sws}, {so2} offen {STF}')
        k.ts_at(1)
        arrive(FWC, FWG, hg4, 20)
        k.ts_at(2)

    def job_xn():
        tt = ji0
        sxx = k.srd(px, S * D * 2)
        nrow, j_, vo, t1, t2 = k.v(), k.v(), k.v(), k.v(), k.v()
        k.i(f'v_lshrrev_b32 {nrow}, 4, {tid}')
        k.i(f'v_and_b32 {j_}, 15, {tid}')
        k.i(f'v_mul_u32_u24 {vo}, 1280, {nrow}')
        k.i(f'v_lshl_add_u32 {vo}, {j_}, 4, {vo}')
        so = k.s()
        k.i(f's_mul_i32 {so}, {tt}, 20480')
        xr = k.v(20)
        for i in range(5):
            k.i(f'buffer_load_dwordx4 {xr[4 * i:4 * i + 4]}, {vo}, {sxx}, {so} offen offset:{256 * i}')
        so3 = k.s()
        k.i(f's_mul_i32 {so3}, {tt}, 896')
        k.i(f's_add_u32 {so3}, {so3}, {WS_KV}')
        k.i(f'v_min_u32 {t1}, 223, {tid}')
        k.i(f'v_lshlrev_b32 {t1}, 2, {t1}')
        k.i(f'v_mov_b32 {t2}, 0')
        k.i(f'buffer_store_dword {t2}, {t1}, {sws}, {so3} offen sc1')
        k.wait(vm=1)
        k.ts_at(0)
        xf = k.v(40)
        sm = k.v()
        for i in range(20):
            k.i(f'v_lshlrev_b32 {xf[2 * i]}, 16, {xr[i]}')
            k.i(f'v_and_b32 {xf[2 * i + 1]}, 0xffff0000, {xr[i]}')
        k.i(f'v_add_f32 {sm}, {xf[0]}, {xf[1]}')
        k.i(f'v_add_f32 {t1}, {xf[2]}, {xf[3]}')
        for i in range(4, 40, 2):
            k.i(f'v_add_f32 {sm}, {sm}, {xf[i]}')
            k.i(f'v_add_f32 {t1}, {t1}, {xf[i + 1]}')
        k.i(f'v_add_f32 {sm}, {sm}, {t1}')
        for r in (1, 2, 4, 8):
            k.i(f'v_add_f32 {sm}, {sm}, {sm} row_ror:{r} {DPP}')
        k.i(f'v_mul_f32 {sm}, {fhex(1.0 / 640)}, {sm}')
        for i in range(40):
            k.i(f'v_sub_f32 {xf[i]}, {xf[i]}, {sm}')
        k.i(f'v_mul_f32 {sm}, {xf[0]}, {xf[0]}')
        k.i(f'v_mul_f32 {t1}, {xf[1]}, {xf[1]}')
        for i in range(2, 40, 2):
            k.i(f'v_fmac_f32 {sm}, {xf[i]}, {xf[i]}')
            k.i(f'v_fmac_f32 {t1}, {xf[i + 1]}, {xf[i + 1]}')
        k.i(f'v_add_f32 {sm}, {sm}, {t1}')
        for r in (1, 2, 4, 8):
            k.i(f'v_add_f32 {sm}, {sm}, {sm} row_ror:{r} {DPP}')
        k.i(f'v_mov_b32 {t1}, {fhex(1e-5)}')
        k.i(f'v_fmac_f32 {t1}, {fhex(1.0 / 640)}, {sm}')
        k.i(f'v_rsq_f32 {t1}, {t1}')
        for i in range(40):
            k.i(f'v_mul_f32 {xf[i]}, {xf[i]}, {t1}')
        for i in range(20):
            k.i(f'v_cvt_pk_bf16_f32 {xr[i]}, {xf[2 * i]}, {xf[2 * i + 1]}')
        k.i(f'v_lshlrev_b32 {t1}, 8, {j_}')
        k.i(f'v_lshl_add_u32 {t1}, {nrow}, 4, {t1}')
        k.i(f'v_add_u32 {t1}, {XB}, {t1}')
        for i in range(5):
            k.i(f'ds_write_b128 {t1}, {xr[4 * i:4 * i + 4]} offset:{4096 * i}')
        subbar()
        k.i(f'v_lshlrev_b32 {t1}, 4, {tid}')
        k.i(f'v_add_u32 {t1}, {XB}, {t1}')
        for i in range(5):
            k.i(f'ds_read_b128 {xr[4 * i:4 * i + 4]}, {t1} offset:{4096 * i}')
        for i in range(20):
            k.i(f'v_lshlrev_b32 {xf[2 * i]}, 16, {xr[i]}')
            k.i(f'v_and_b32 {xf[2 * i + 1]}, 0xffff0000, {xr[i]}')
        cfa = k.v()
        k.i(f'v_lshlrev_b32 {cfa}, 5, {nrow}')
        k.i(f'v_add_u32 {cfa}, {XB + 20480}, {cfa}')
        cw_ = k.v()
        k.i(f'v_lshlrev_b32 {cw_}, 2, {tid}')
        k.i(f'v_add_u32 {cw_}, {XB + 20480}, {cw_}')
        k.ts_at(1)
        pollA()
        k.ts_at(2)
        cfs = k.v(80)
        k.i(f'v_lshlrev_b32 {t2}, 2, {tid}')
        for ks in range(4):
            k.i(f's_mov_b32 {so3}, {WS_MODP + ks * 15360}')
            for i in range(4):
                k.i(f'buffer_load_dword {cfs[ks * 5 + i]}, {t2}, {sws}, {so3} offen offset:{1024 * i}')
            k.i(f's_mov_b32 {so3}, {WS_MODP + ks * 15360 + 4096}')
            k.i(f'buffer_load_dword {cfs[ks * 5 + 4]}, {t2}, {sws}, {so3} offen')
        k.i(f'v_cmp_lt_u32 vcc, 127, {tid}')
        for i in range(5):
            a_ = cfs[i]
            k.i(f'v_add_f32 {a_}, {a_}, {cfs[5 + i]}')
            k.i(f'v_add_f32 {cfs[10 + i]}, {cfs[10 + i]}, {cfs[15 + i]}')
            k.i(f'v_add_f32 {a_}, {a_}, {cfs[10 + i]}')
            round_bf16(k, a_, a_)
            if i >= 2:
                k.i(f'v_add_f32 {t1}, 1.0, {a_}')
                round_bf16(k, t1, t1)
                if i == 2:
                    k.i(f'v_cndmask_b32 {a_}, {a_}, {t1}, vcc')
                else:
                    k.i(f'v_mov_b32 {a_}, {t1}')
            k.i(f'ds_write_b32 {cw_}, {a_} offset:{1024 * i}')
        subbar()
        for i in range(5):
            for q in range(2):
                k.i(f'ds_read_b128 {cfs[16 * i + 4 * q:16 * i + 4 * q + 4]}, {cfa} offset:{512 * i + 16 * q}')
                k.i(f'ds_read_b128 {cfs[16 * i + 8 + 4 * q:16 * i + 8 + 4 * q + 4]}, {cfa} offset:{2560 + 512 * i + 16 * q}')
        k.i(f's_lshr_b32 {so}, {tt}, 3')
        k.i(f's_mul_i32 {so}, {so}, 20')
        k.i(f's_add_u32 {so}, {so}, {hwv}')
        k.i(f's_lshl_b32 {so}, {so}, 13')
        k.i(f's_and_b32 {so3}, {tt}, 7')
        k.i(f's_lshl_b32 {so3}, {so3}, 10')
        k.i(f's_add_u32 {so}, {so}, {so3}')
        k.i(f's_add_u32 {so}, {so}, {WS_XN}')
        k.i(f'v_lshlrev_b32 {t2}, 4, {lane}')
        for i in range(5):
            for e in range(8):
                k.i(f'v_fma_f32 {xf[8 * i + e]}, {xf[8 * i + e]}, {cfs[16 * i + 8 + e]}, {cfs[16 * i + e]}')
            for q in range(4):
                k.i(f'v_cvt_pk_bf16_f32 {xr[4 * i + q]}, {xf[8 * i + 2 * q]}, {xf[8 * i + 2 * q + 1]}')
            k.i(f's_add_u32 {so3}, {so}, {4 * 8192 * i}')
            k.i(f'buffer_store_dwordx4 {xr[4 * i:4 * i + 4]}, {t2}, {sws}, {so3} offen sc1')
        k.i(f's_lshr_b32 {so3}, {tt}, 3')
        k.ts_at(3)
        arrive(FHC, FHG, so3, 8)
        k.ts_at(4)

    def job_rearr():
        sty, srowA, srowB, sdst, scol, ska, sstr = k.s(), k.s(), k.s(), k.s(), k.s(), k.s(), k.s()
        ks, cblk, u2, q_, p_, t_, t2_, rr_ = k.s(), k.s(), k.s(), k.s(), k.s(), k.s(), k.s(), k.s()
        so, st1 = k.s(), k.s()
        k.i(f's_lshl_b32 {rr_}, {ji0}, 2')
        k.i(f's_add_u32 {rr_}, {rr_}, {hwv}')
        k.i(f's_mov_b32 {u2}, {rr_}')
        k.i(f's_cmp_lt_u32 {rr_}, 540')
        k.i(f's_cbranch_scc1 p0_sd_wdf')
        k.i(f's_sub_u32 {u2}, {u2}, 540')
        k.i(f's_mov_b32 {sty}, 2')
        k.i(f's_mul_i32 {q_}, {u2}, 6554')
        k.i(f's_lshr_b32 {q_}, {q_}, 16')
        k.i(f's_mul_i32 {t_}, {q_}, 10')
        k.i(f's_sub_u32 {t_}, {u2}, {t_}')
        k.i(f's_lshl_b32 {scol}, {t_}, 7')
        k.i(f's_mul_i32 {sdst}, {q_}, 40')
        k.i(f's_lshl_b32 {t_}, {t_}, 2')
        k.i(f's_add_u32 {sdst}, {sdst}, {t_}')
        k.i(f's_lshl_b32 {sdst}, {sdst}, 10')
        k.i(f's_add_u32 {sdst}, {sdst}, {WS_WOF}')
        k.i(f's_mul_i32 {t_}, {q_}, 52')
        k.i(f's_lshr_b32 {t_}, {t_}, 8')
        k.i(f's_mul_i32 {srowA}, {t_}, 160')
        k.i(f's_mul_i32 {t_}, {t_}, 5')
        k.i(f's_sub_u32 {srowB}, {q_}, {t_}')
        k.i(f's_mov_b32 {ska}, {KA_WO}')
        k.i(f's_mov_b32 {sstr}, 1280')
        k.i(f's_branch p0_sd_done')
        k.raw('p0_sd_wdf:')
        k.i(f's_mul_i32 {q_}, {u2}, 6554')
        k.i(f's_lshr_b32 {q_}, {q_}, 16')
        k.i(f's_mul_i32 {t_}, {q_}, 10')
        k.i(f's_sub_u32 {t_}, {u2}, {t_}')
        k.i(f's_lshl_b32 {scol}, {t_}, 7')
        k.i(f's_mul_i32 {sdst}, {q_}, 40')
        k.i(f's_lshl_b32 {t_}, {t_}, 2')
        k.i(f's_add_u32 {sdst}, {sdst}, {t_}')
        k.i(f's_lshl_b32 {sdst}, {sdst}, 10')
        k.i(f's_add_u32 {sdst}, {sdst}, {WS_WDF}')
        k.i(f's_sub_u32 {t_}, {q_}, 8')
        k.i(f's_and_b32 {t_}, {t_}, 63')
        k.i(f's_mul_i32 {p_}, {t_}, 86')
        k.i(f's_lshr_b32 {p_}, {p_}, 8')
        k.i(f's_lshl_b32 {srowA}, {t_}, 1')
        k.i(f's_add_u32 {srowA}, {srowA}, {p_}')
        k.i(f's_add_u32 {srowB}, {srowA}, 1')
        k.i(f's_mul_i32 {t_}, {q_}, 14')
        k.i(f's_add_u32 {t2_}, {t_}, 13')
        k.i(f's_min_u32 {t2_}, {t2_}, 107')
        k.i(f's_add_u32 {t_}, {t_}, 6')
        k.i(f's_cmp_lt_u32 {q_}, 8')
        k.i(f's_cselect_b32 {srowA}, {t_}, {srowA}')
        k.i(f's_cselect_b32 {srowB}, {t2_}, {srowB}')
        k.i(f's_lshl_b32 {srowA}, {srowA}, 4')
        k.i(f's_lshl_b32 {srowB}, {srowB}, 4')
        k.i(f's_mov_b32 {sty}, 1')
        k.i(f's_mov_b32 {ska}, {KA_WD}')
        k.i(f's_mov_b32 {sstr}, 1280')
        k.i(f's_branch p0_sd_done')
        k.raw('p0_sd_done:')
        psd = k.s(2)
        k.i(f's_load_dwordx2 {psd}, s[0:1], {ska}')
        tmp = k.v(8, align=1)
        rho, r1, r2, r3, ad, cc = tmp[0], tmp[1], tmp[2], tmp[3], tmp[4], tmp[5]
        SA = k.v(4, align=1)
        k.i(f'v_and_b32 {cc}, 7, {lane}')
        k.i(f'v_lshlrev_b32 {cc}, 4, {cc}')
        msk = k.s(2)
        k.i(f's_cmp_eq_u32 {sty}, 2')
        k.i(f's_cselect_b64 {msk}, -1, 0')
        k.i(f's_lshl_b32 {st1}, {srowB}, 3')
        for i in range(4):
            k.i(f'v_lshrrev_b32 {rho}, 3, {lane}')
            k.i(f'v_add_u32 {rho}, {8 * i}, {rho}')
            if i < 2:
                k.i(f'v_add_u32 {r1}, {srowA}, {rho}')
            else:
                k.i(f'v_add_u32 {r1}, {srowB}, {rho}')
                k.i(f'v_subrev_u32 {r1}, 16, {r1}')
            k.i(f'v_and_b32 {r2}, 3, {rho}')
            k.i(f'v_add_u32 {r2}, {st1}, {r2}')
            if i >= 2:
                k.i(f'v_add_u32 {r2}, 4, {r2}')
            k.i(f'v_and_b32 {r2}, 63, {r2}')
            k.i(f'v_mul_u32_u24 {r3}, 52, {r2}')
            k.i(f'v_lshrrev_b32 {r3}, 8, {r3}')
            k.i(f'v_mad_u32_u24 {r2}, {r3}, 15, {r2}')
            k.i(f'v_bfe_u32 {r3}, {rho}, 2, 2')
            k.i(f'v_mad_u32_u24 {r2}, {r3}, 5, {r2}')
            k.i(f'v_add_u32 {r2}, {srowA}, {r2}')
            k.i(f'v_cndmask_b32 {r1}, {r1}, {r2}, {msk}')
            k.i(f'v_mul_lo_u32 {ad}, {r1}, {sstr}')
            k.i(f'v_add_u32 {SA[i]}, {ad}, {cc}')
        ssd = k.s(4)
        k.i(f's_mov_b32 {ssd[0]}, {psd[0]}')
        k.i(f's_and_b32 {ssd[1]}, {psd[1]}, 0xffff')
        k.i(f's_mov_b32 {ssd[2]}, {D * F * 2}')
        k.i(f's_cmp_eq_u32 {sty}, 2')
        k.i(f's_cselect_b32 {ssd[2]}, {D * D * 2}, {ssd[2]}')
        k.i(f's_mov_b32 {ssd[3]}, 0x00020000')
        k.i(f's_lshl_b32 {so}, {hwv}, 12')
        k.i(f's_add_u32 {so}, {so}, {lbase}')
        for i in range(4):
            k.i(f's_add_u32 m0, {so}, {1024 * i}')
            k.i(f'buffer_load_dwordx4 {SA[i]}, {ssd}, {scol} offen lds', tag='side')
        Wf = k.v(16)
        k.i(f'v_lshrrev_b32 {tmp[0]}, 2, {lane}')
        k.i(f'v_lshlrev_b32 {tmp[0]}, 7, {tmp[0]}')
        k.i(f'v_and_b32 {tmp[1]}, 3, {lane}')
        k.i(f'v_lshl_add_u32 {tmp[0]}, {tmp[1]}, 3, {tmp[0]}')
        k.i(f'v_add_u32 {tmp[0]}, {so}, {tmp[0]}')
        k.lines.append('  s_waitcnt vmcnt(0)')
        k.vm = []
        for c4 in range(4):
            for hf in range(2):
                k.i(f'ds_read_b64_tr_b16 {Wf[c4 * 4 + 2 * hf:c4 * 4 + 2 * hf + 2]}, {tmp[0]} offset:{hf * 2048 + c4 * 32}')
        k.wait(lg=0)
        STF = 'sc1'
        for c4 in range(4):
            k.i(f'buffer_store_dwordx4 {Wf[c4 * 4:c4 * 4 + 4]}, {l16}, {sws}, {sdst} offen offset:{1024 * c4} {STF}')
        tsj(2)

    k.raw('m_disp:')
    k.reset_state()
    tsj(3)
    for ty, nm in ((1, 'gemv'), (2, 'xn'), (3, 'fold'), (4, 'rearr'), (5, 'wait'), (6, 'zero'), (7, 'cpf')):
        k.i(f's_cmp_eq_u32 {jt0}, {ty}')
        k.i(f's_cbranch_scc1 m_job_{nm}')
    k.i('s_branch m_jobs_done')

    def next_job():
        k.i(f's_mov_b32 {jt0}, {jt1}')
        k.i(f's_mov_b32 {ji0}, {ji1}')
        k.i(f's_mov_b32 {jt1}, 0')
        k.lines.append('  s_waitcnt lgkmcnt(0)')
        k.nop(2)
        k.i('s_branch m_disp')

    for nm, fn in (('gemv', job_gemv), ('fold', job_fold), ('rearr', job_rearr)):
        k.raw(f'm_job_{nm}:')
        k.reset_state()
        k.release(mk_job)
        fn()
        next_job()
    k.raw('m_job_xn:')
    k.reset_state()
    k.release(mk_job)
    k.i(f'v_mov_b32 {t1}, {LCNT + 28}')
    k.i(f'v_mov_b32 {t2}, 1')
    k.i(f'ds_write_b32 {t1}, {t2}')
    job_xn()
    next_job()
    k.raw('m_job_wait:')
    k.reset_state()
    k.release(mk_job)
    lds_spin(LCNT + 24, 1, 'm_jw')
    next_job()
    k.raw('m_job_zero:')
    k.reset_state()
    k.release(mk_job)
    zz0 = k.v(4)
    for q in range(4):
        k.i(f'v_mov_b32 {zz0[q]}, 0')
    k.i(f'v_lshlrev_b32 {t3}, 4, {tid}')
    for i in range(8):
        k.i(f's_mov_b32 {so}, {WS_CNT + 4096 * i}')
        k.i(f'buffer_store_dwordx4 {zz0}, {t3}, {sws}, {so} offen sc1')
    k.wait(vm=0)
    subbar()
    k.i(f's_cmp_lg_u32 {hwv}, 0')
    k.i('s_cbranch_scc1 m_zx')
    k.i(f'v_mov_b32 {t1}, 0')
    k.i(f'v_mov_b32 {t2}, 1')
    k.i('s_mov_b32 exec_lo, 1')
    k.i('s_mov_b32 exec_hi, 0')
    for x in [f'buffer_atomic_add {t2}, {t1}, {sdb}, 0 offen sc0 sc1', 's_waitcnt vmcnt(0)', f'v_readfirstlane_b32 {st1}, {t2}',
              f'v_mov_b32 {t2}, 1', f's_cmp_lg_u32 {st1}, 40', 's_cbranch_scc1 m_zx', f'buffer_store_dword {t2}, {t1}, {sdb}, 0 offen offset:128 sc1']:
        k.lines.append('  ' + x)
    k.raw('m_zx:')
    k._join()
    k.i('s_mov_b64 exec, -1')
    next_job()
    k.raw('m_job_cpf:')
    k.reset_state()
    k.release(mk_job)
    pcr = k.s(2)
    k.lines.append(f'  s_getpc_b64 {pcr}')
    k.lines.append('m_pc0:')
    k.i(f'v_lshlrev_b32 {t1}, 7, {tid}')
    jk = k.v(2, align=1)
    for r_ in range(2):
        k.lines.append(f'  v_min_u32 {t2}, code_end-m_pc0-4, {t1}')
        k.lines.append(f'  global_load_dword {jk[r_]}, {t2}, {pcr}')
        k.i(f'v_add_u32 {t1}, 32768, {t1}')
    next_job()
    k.raw('m_jobs_done:')
    k.reset_state()
    k.release(mk_job)
    k.lines.append('  s_waitcnt vmcnt(0)')
    subbar()
    k.i(f's_cmp_lg_u32 {hwv}, 0')
    k.i('s_cbranch_scc1 m_jdx')
    k.i('s_mov_b32 exec_lo, 1')
    k.i('s_mov_b32 exec_hi, 0')
    k.i(f's_cmp_lg_u32 {half}, 0')
    k.i('s_cbranch_scc1 m_jdy')
    k.i(f'v_mov_b32 {t1}, {LCNT + 28}')
    k.i(f'v_mov_b32 {t2}, 1')
    k.i(f'ds_write_b32 {t1}, {t2}')
    k.raw('m_jdy:')
    k._join()
    zcheck('m_jdz', 12)
    k.i(f's_and_b32 {so}, s2, 15')
    k.i(f's_lshl_b32 {so}, {so}, 8')
    k.i(f's_add_u32 {so}, {so}, {WS_CNT + CD}')
    k.i(f'v_mov_b32 {t1}, 0')
    k.i(f'v_mov_b32 {t2}, 1')
    k.lines.append(f'  buffer_atomic_add {t2}, {t1}, {sws}, {so} offen sc1')
    k.i('s_mov_b64 exec, -1')
    k.raw('m_jdx:')
    k._join()
    k.lines.append('  s_waitcnt lgkmcnt(0)')
    k.lg = []
    k.i(f's_cmp_eq_u32 {sfl}, 1')
    k.i('s_cbranch_scc1 m_main')
    k.i(f's_mov_b32 {sfl}, 2')
    k.i('s_branch m_setup')
    k.raw('m_main:')
    k.reset_state()
    k.release(mk_job)
    k.ts()
    k.i(f's_cmp_ge_u32 {wave}, 4')
    k.i('s_cbranch_scc1 m_l1')
    nts0 = k.nts
    acc = k.v(64)
    Fr = k.v(64)
    R = k.v(40)
    th, ch = k.s(), k.s()
    k.i(f's_and_b32 {th}, {wave}, 1')
    k.i(f's_lshr_b32 {ch}, {wave}, 1')
    ha, wa = k.v(2, align=1), k.v(2, align=1)
    k.i(f's_lshl_b32 {so}, {th}, 12')
    k.i(f's_add_u32 {so}, {so}, 8192')
    k.i(f'v_add_u32 {ha[0]}, {so}, {l16}')
    k.i(f'v_add_u32 {ha[1]}, 65536, {ha[0]}')
    k.i(f's_lshl_b32 {so}, {ch}, 12')
    k.i(f'v_add_u32 {wa[0]}, {so}, {l16}')
    k.i(f'v_add_u32 {wa[1]}, 65536, {wa[0]}')

    def prep(J):
        L = []
        b = J & 1
        blk = J % 8
        for i in range(4):
            o = (blk & 3) * 16384 + i * 1024
            L.append(f'ds_read_b128 {Fr[(b * 8 + 4 + i) * 4:(b * 8 + 4 + i) * 4 + 4]}, {wa[blk >> 2]} offset:{o}')
            L.append(f'ds_read_b128 {Fr[(b * 8 + i) * 4:(b * 8 + i) * 4 + 4]}, {ha[blk >> 2]} offset:{o}')
        return L

    def mfmas(J):
        L = []
        b = J & 1
        for d in range(7):
            for ci in range(4):
                ti = d - ci
                if 0 <= ti < 4:
                    a = acc[(ci * 4 + ti) * 4:(ci * 4 + ti) * 4 + 4]
                    L.append(f'v_mfma_f32_16x16x32_bf16 {a}, {Fr[(b * 8 + 4 + ci) * 4:(b * 8 + 4 + ci) * 4 + 4]}, {Fr[(b * 8 + ti) * 4:(b * 8 + ti) * 4 + 4]}, {0 if J == 0 else a}')
        return L

    k.ts()
    k.barrier()
    k.ts()
    for x in prep(0):
        k.i(x)
    for J in range(20):
        if J == 10:
            k.ts()
        if J + 1 < 20:
            if (J + 1) % KPS == 0:
                k.barrier()
            interleave(k, mfmas(J), prep(J + 1), lead=4)
        else:
            for x in mfmas(J):
                k.i(x)
    k.ts()
    da = R[8]
    k.i(f's_mul_i32 {so}, {th}, {4 * 5120}')
    k.i(f's_add_u32 {so}, {so}, {LQK}')
    k.i(f'v_add_u32 {da}, {so}, {l16}')
    k.i(f's_cmp_eq_u32 {ch}, 1')
    k.i('s_cbranch_scc1 p1_dump1')
    stx = (list(k.vm), list(k.lg))
    for ci in range(4):
        for ti in range(4):
            k.i(f'ds_write_b128 {da}, {acc[(ci * 4 + ti) * 4:(ci * 4 + ti) * 4 + 4]} offset:{ti * 5120 + ci * 1024}')
    k.i('s_branch p1_dumped')
    k.raw('p1_dump1:')
    k._join()
    k.vm, k.lg = list(stx[0]), list(stx[1])
    for ti in range(4):
        k.i(f'ds_write_b128 {da}, {acc[ti * 4:ti * 4 + 4]} offset:{ti * 5120 + 4096}')
    va = R[9]
    k.i(f'v_mul_u32_u24 {va}, 96, {n}')
    k.i(f'v_lshl_add_u32 {va}, {G}, 3, {va}')
    k.i(f's_mul_i32 {so}, {th}, {64 * 96}')
    k.i(f's_add_u32 {so}, {so}, {LV}')
    k.i(f'v_add_u32 {va}, {so}, {va}')
    m1, m3 = k.s(2), k.s(2)
    k.i(f'v_cmp_eq_u32 {m1}, 1, {G}')
    k.i(f'v_cmp_eq_u32 {m3}, 3, {G}')
    for ci in range(1, 4):
        for ti in range(4):
            a = acc[(ci * 4 + ti) * 4:(ci * 4 + ti) * 4 + 4]
            if ci == 2:
                k.i(f'v_cndmask_b32 {a[0]}, {a[0]}, 1.0, {m1}')
            if ci == 3:
                k.i(f'v_cndmask_b32 {a[0]}, {a[0]}, 1.0, {m3}')
            o = R[12 + ((ci * 4 + ti) % 8) * 2:12 + ((ci * 4 + ti) % 8) * 2 + 2]
            k.i(f'v_cvt_pk_bf16_f32 {o[0]}, {a[0]}, {a[1]}')
            k.i(f'v_cvt_pk_bf16_f32 {o[1]}, {a[2]}, {a[3]}')
            k.i(f'ds_write_b64 {va}, {o} offset:{ti * 16 * 96 + (ci - 1) * 32}')
    k.raw('p1_dumped:')
    k._join()
    k.lines.append('  s_waitcnt lgkmcnt(0)')
    k.lg = []
    assert acc.base == RR.base
    k.i('s_branch m_j1')
    nts1 = k.nts
    k.reset_state()
    k.release(mk_p1)
    k.nts = nts0
    k.label('m_l1')
    lds_spin(LCNT + 28, 1, 'm_rf')
    lds_spin(LCNT + 32, 1, 'm_rz')
    k.i('s_mov_b32 exec_lo, 1')
    k.i('s_mov_b32 exec_hi, 0')
    k.i(f's_lshr_b32 {so}, {hp}, 2')
    k.i(f's_lshl_b32 {so}, {so}, 8')
    k.i(f's_add_u32 {so}, {so}, {WS_CNT + FWG}')
    k.i(f's_lshl_b32 {st2}, {mt}, 8')
    k.i(f's_add_u32 {st2}, {st2}, {WS_CNT + FHG}')
    k.i(f's_cmp_ge_u32 {hw}, 2')
    k.i(f's_cselect_b32 {so}, {st2}, {so}')
    gpoll(sws, so, 0, 'm_lp', sleep=1)
    k.i('s_mov_b64 exec, -1')
    k.i(f's_cmp_ge_u32 {hw}, 2')
    k.i('s_cbranch_scc1 m_l1h')
    for kind, npre, la in (('w', 8, 7), ('h', 3, LA)):
        if kind == 'h':
            k.raw('m_l1h:')
            k.reset_state()
            k.nts = nts0
        for s in range(npre):
            dma_stage(s)
        nxt = npre
        k.ts()
        for s in range(NST):
            if s == NST // 2:
                k.ts()
            k.wait_tag(f'w{s}')
            if s == 14:
                k.i(f'v_lshlrev_b32 {t1}, 8, {n}')
                k.i(f's_mov_b32 {so}, {WS_CNT + CD}')
                k.i(f's_mov_b32 {st1}, 0')
                k.raw(f'm_ad{kind}:')
                for x in [f'buffer_load_dword {t2}, {t1}, {sws}, {so} offen sc1', 's_waitcnt vmcnt(0)',
                          f'v_cmp_gt_u32 vcc, 32, {t2}', f's_add_u32 {st1}, {st1}, 1', f's_cmp_ge_u32 {st1}, {SPIN_MAX}',
                          f's_cbranch_scc1 m_add{kind}', 's_nop 1', f's_cbranch_vccnz m_ad{kind}']:
                    k.lines.append('  ' + x)
                k.raw(f'm_add{kind}:')
                k._join()
                k.vm = []
            k.barrier()
            if s == 0:
                k.ts()
            cnt = 0
            while nxt < NST and nxt <= min(s + la, s - 1 + NSL) and cnt < 2:
                dma_stage(nxt)
                nxt += 1
                cnt += 1
            if 16 <= s <= 18:
                wof_jj(hw, 4 * (s - 16))
        k.ts()
        assert k.nts == nts1
        if kind == 'w':
            k.i('s_branch m_j1')
    k.raw('m_j1:')
    k.reset_state()
    k.release(mk_p1)
    R = k.v(168)
    tmp = R[0:8]
    P, ph = R[8:28], R[28:40]
    cb, sb = R[152:160], R[160:168]
    k.i(f's_cmp_lg_u32 {sty}, 0')
    k.i('s_cbranch_scc1 m_noside')
    k.i(f's_lshl_b32 {so}, {wave}, 12')
    k.i(f's_add_u32 {so}, {so}, {LSIDE}')
    for i in range(4):
        k.i(f's_add_u32 m0, {so}, {1024 * i}')
        k.i(f'buffer_load_dwordx4 {SA[i]}, {ssd}, {scol} offen lds', tag='side')
    k.raw('m_noside:')
    k._join()
    fp = k.v(12, align=1)
    fa = k.v(3, align=1)
    k.i(f'v_mov_b32 {fa[1]}, 0')
    k.i(f'v_mov_b32 {fa[0]}, 0')
    k.i(f's_cmp_lt_u32 {wave}, 4')
    k.i('s_cbranch_scc1 m_nf1')
    vmk = list(k.vm)
    k.i(f's_mul_i32 {so}, {ks}, 160')
    k.i(f'v_and_b32 {fa[2]}, 255, v0')
    k.i(f'v_min_u32 {fa[0]}, 159, {fa[2]}')
    k.i(f'v_add_u32 {fa[1]}, {so}, {fa[0]}')
    k.i(f'v_lshlrev_b32 {fa[1]}, 2, {fa[1]}')
    k.i(f's_sub_u32 {st1}, s2, 216')
    k.i(f's_min_u32 {so}, {st1}, 4')
    k.i(f's_lshl_b32 {so}, {so}, 8')
    k.i(f'v_add_u32 {fa[2]}, {so}, {fa[2]}')
    k.i(f'v_cmp_lt_u32 vcc, 639, {fa[2]}')
    k.i(f'v_mov_b32 {fp[0]}, {3200 - 640}')
    k.i(f'v_mov_b32 {fp[1]}, 1280')
    k.i(f'v_cndmask_b32 {fp[0]}, {fp[1]}, {fp[0]}, vcc')
    k.i(f'v_add_u32 {fa[2]}, {fa[2]}, {fp[0]}')
    k.i(f'v_lshlrev_b32 {fa[2]}, 2, {fa[2]}')
    k.i(f's_cmp_ge_u32 s2, 216')
    k.i(f's_cselect_b64 vcc, -1, 0')
    k.i(f'v_add_u32 {fp[0]}, {3 * 2560}, {fa[1]}')
    k.i(f'v_cndmask_b32 {fa[1]}, {fp[0]}, {fa[2]}, vcc')
    for ks_ in range(4):
        k.i(f's_mov_b32 {so}, {WS_MODP + ks_ * 15360}')
        k.lines.append(f'  buffer_load_dword {fp[ks_]}, {fa[1]}, {sws}, {so} offen')
        k.lines.append(f'  buffer_load_dword {fp[4 + ks_]}, {fa[1]}, {sws}, {so} offen offset:2560')
    k.vm = vmk
    k.raw('m_nf1:')
    k._join()
    qa, ql, ka, qk_a, sgl, sq = E.qa, E.ql, E.ka, E.qk_a, E.sgl, E.sq
    tb, ta, aa, skv = E.tb, E.ta, E.aa, E.skv

    def softmax(P, ph, tmp):
        mx, s0, s1 = tmp[0], tmp[1], tmp[2]
        for i in range(20):
            k.i(f'v_mul_f32 {P[i]}, {P[i]}, {sgl}')
        k.i(f'v_max3_f32 {mx}, {P[0]}, {P[1]}, {P[2]}')
        k.i(f'v_max3_f32 {s0}, {P[3]}, {P[4]}, {P[5]}')
        for i in range(6, 18, 4):
            k.i(f'v_max3_f32 {mx}, {mx}, {P[i]}, {P[i + 1]}')
            k.i(f'v_max3_f32 {s0}, {s0}, {P[i + 2]}, {P[i + 3]}')
        k.i(f'v_max3_f32 {mx}, {mx}, {P[18]}, {P[19]}')
        k.i(f'v_max_f32 {mx}, {mx}, {s0}')
        for i in range(20):
            k.i(f'v_sub_f32 {P[i]}, {P[i]}, {mx}')
        for i in range(20):
            k.i(f'v_exp_f32 {P[i]}, {P[i]}')
        k.i(f'v_add_f32 {s0}, {P[0]}, {P[1]}')
        k.i(f'v_add_f32 {s1}, {P[2]}, {P[3]}')
        for i in range(4, 20, 2):
            k.i(f'v_add_f32 {s0}, {s0}, {P[i]}')
            k.i(f'v_add_f32 {s1}, {s1}, {P[i + 1]}')
        k.i(f'v_add_f32 {s0}, {s0}, {s1}')
        k.i(f'v_rcp_f32 {s0}, {s0}')
        for i in range(20):
            k.i(f'v_mul_f32 {P[i]}, {P[i]}, {s0}')
        for i in range(10):
            k.i(f'v_cvt_pk_bf16_f32 {ph[i]}, {P[2 * i]}, {P[2 * i + 1]}')

    k.i('s_barrier')
    k.ts()
    PQ, phq = R[40:60], R[60:72]
    for t in range(5):
        k.i(f'ds_read_b128 {P[4 * t:4 * t + 4]}, {qk_a} offset:{1024 * t}')
    for t in range(5):
        k.i(f'ds_read_b128 {PQ[4 * t:4 * t + 4]}, {qk_a} offset:{1024 * t + 512}')
    softmax(P, ph, tmp)
    k.i(f'ds_write_b128 {ka}, {ph[0:4]}')
    k.i(f'ds_write_b128 {ka}, {ph[4:8]} offset:16')
    k.i(f'ds_write_b64 {E.ka2}, {ph[8:10]}')
    k.barrier()
    k.ts()
    Bf, Af, Dd = R[104:120], R[120:152], R[8:16]
    for kk in range(4):
        for hf in range(2):
            k.i(f'ds_read_b64_tr_b16 {Bf[kk * 4 + 2 * hf:kk * 4 + 2 * hf + 2]}, {tb} offset:{(kk * 32 + hf * 16) * 160}')
        for dt in range(2):
            for hf in range(2):
                b = (kk * 2 + dt) * 4 + 2 * hf
                k.i(f'ds_read_b64_tr_b16 {Af[b:b + 2]}, {ta} offset:{(kk * 32 + hf * 16) * 96 + dt * 32}')
    for kk in range(4):
        for dt in range(2):
            d = Dd[dt * 4:dt * 4 + 4]
            k.i(f'v_mfma_f32_16x16x32_bf16 {d}, {Af[(kk * 2 + dt) * 4:(kk * 2 + dt) * 4 + 4]}, {Bf[kk * 4:kk * 4 + 4]}, {0 if kk == 0 else d}')
    for i in range(8):
        k.i(f'buffer_atomic_add_f32 {Dd[i]}, {aa[i]}, {sws}, {skv} offen')
    k.ts()
    softmax(PQ, phq, tmp)
    k.i(f'buffer_store_dwordx4 {phq[0:4]}, {qa}, {sws}, {sq} offen sc1')
    k.i(f'buffer_store_dwordx4 {phq[4:8]}, {qa}, {sws}, {sq} offen offset:256 sc1')
    k.i(f'buffer_store_dwordx2 {phq[8:10]}, {ql}, {sws}, {sq} offen sc1', tag='pub')
    k.ts()
    k.i(f's_cmp_lt_u32 {wave}, 4')
    k.i('s_cbranch_scc1 m_nf2')
    k.lines.append('  s_waitcnt vmcnt(11)')
    for o_ in (0, 4):
        k.i(f'v_add_f32 {fp[o_]}, {fp[o_]}, {fp[o_ + 1]}')
        k.i(f'v_add_f32 {fp[o_ + 2]}, {fp[o_ + 2]}, {fp[o_ + 3]}')
        k.i(f'v_add_f32 {fp[o_]}, {fp[o_]}, {fp[o_ + 2]}')
        round_bf16(k, fp[o_], fp[o_])
    k.i(f'v_add_f32 {fp[4]}, 1.0, {fp[4]}')
    round_bf16(k, fp[4], fp[4])
    k.i(f'v_lshlrev_b32 {fa[0]}, 2, {fa[0]}')
    k.i(f'v_add_u32 {fa[0]}, {LMOD}, {fa[0]}')
    k.i(f'ds_write_b32 {fa[0]}, {fp[0]}')
    k.i(f'ds_write_b32 {fa[0]}, {fp[4]} offset:640')
    k.i(f's_sub_u32 {st1}, s2, 216')
    k.i(f's_cmp_ge_u32 {st1}, 5')
    k.i('s_cbranch_scc1 m_nf3')
    k.lines.append(f'  buffer_store_dword {fp[0]}, {fa[1]}, {sws}, 0 offen offset:{WS_MOD} sc1')
    k.lines.append('  s_waitcnt vmcnt(0)')
    k.raw('m_nf3:')
    k.lines.append('  s_waitcnt lgkmcnt(0)')
    k.lg = []
    k.raw('m_nf2:')
    k._join()
    k.wait_tag('pub')
    k.i('s_barrier')
    k.ts()
    k.i(f's_cmp_lg_u32 {wave}, 7')
    k.i(f's_cbranch_scc1 m_arr')
    k.i('s_mov_b32 exec_lo, 1')
    k.i('s_mov_b32 exec_hi, 0')
    k.i(f's_and_b32 {so}, s2, 15')
    k.i(f's_lshl_b32 {so}, {so}, 8')
    k.i(f's_add_u32 {so}, {so}, {WS_CNT + C1G}')
    k.i(f'v_mov_b32 {t1}, 0')
    k.i(f'v_mov_b32 {t2}, 1')
    for x in [f'buffer_atomic_add {t2}, {t1}, {sws}, {so} offen sc0 sc1', 's_waitcnt vmcnt(0)',
              f'v_readfirstlane_b32 {st1}, {t2}', f'v_mov_b32 {t2}, 1', f's_cmp_lg_u32 {st1}, 15', 's_cbranch_scc1 m_arr',
              f's_mov_b32 {so}, {WS_CNT + C1T}',
              f'buffer_atomic_add {t2}, {t1}, {sws}, {so} offen sc0 sc1', 's_waitcnt vmcnt(0)',
              f'v_readfirstlane_b32 {st1}, {t2}', f's_cmp_lg_u32 {st1}, 15', 's_cbranch_scc1 m_arr',
              's_mov_b32 exec_lo, 0xff', f'v_mov_b32 {t2}, 1', f'v_lshlrev_b32 {t1}, 8, {lane}', f's_mov_b32 {so}, {WS_CNT + G1}',
              f'buffer_store_dword {t2}, {t1}, {sws}, {so} offen sc1']:
        k.lines.append('  ' + x)
    k.raw('m_arr:')
    k._join()
    k.i('s_mov_b64 exec, -1')
    tsx()
    k.vm = []
    k.i(f's_cmp_lg_u32 {sty}, 0')
    k.i(f's_cbranch_scc1 m_nostore')
    Wf = R[16:32]
    k.i(f'v_lshrrev_b32 {tmp[0]}, 2, {lane}')
    k.i(f'v_lshlrev_b32 {tmp[0]}, 7, {tmp[0]}')
    k.i(f'v_and_b32 {tmp[1]}, 3, {lane}')
    k.i(f'v_lshl_add_u32 {tmp[0]}, {tmp[1]}, 3, {tmp[0]}')
    k.i(f's_lshl_b32 {so}, {wave}, 12')
    k.i(f's_add_u32 {so}, {so}, {LSIDE}')
    k.i(f'v_add_u32 {tmp[0]}, {so}, {tmp[0]}')
    for c4 in range(4):
        for hf in range(2):
            k.i(f'ds_read_b64_tr_b16 {Wf[c4 * 4 + 2 * hf:c4 * 4 + 2 * hf + 2]}, {tmp[0]} offset:{hf * 2048 + c4 * 32}')
    Bs, Bo = R[72:76], R[76:80]
    k.i(f's_mul_i32 {st2}, {ks}, 160')
    k.i(f's_sub_u32 {so}, {srowA}, {st2}')
    k.i(f's_sub_u32 {st1}, {srowB}, {st2}')
    k.i(f's_lshl_b32 {so}, {so}, 2')
    k.i(f's_lshl_b32 {st1}, {st1}, 2')
    k.i(f'v_lshlrev_b32 {tmp[1]}, 4, {G}')
    k.i(f'v_add_u32 {tmp[1]}, {LMOD}, {tmp[1]}')
    k.i(f'v_add_u32 {tmp[2]}, {so}, {tmp[1]}')
    k.i(f'v_add_u32 {tmp[3]}, {st1}, {tmp[1]}')
    k.i(f'ds_read_b128 {sb[0:4]}, {tmp[2]}')
    k.i(f'ds_read_b128 {sb[4:8]}, {tmp[3]}')
    k.i(f'ds_read_b128 {cb[0:4]}, {tmp[2]} offset:640')
    k.i(f'ds_read_b128 {cb[4:8]}, {tmp[3]} offset:640')
    for q in range(4):
        k.i(f'v_cvt_pk_bf16_f32 {Bs[q]}, {sb[2 * q]}, {sb[2 * q + 1]}')
        k.i(f'v_mov_b32 {Bo[q]}, 0x3f803f80')
    Db, Dc = R[80:96], R[96:112]
    for c4 in range(4):
        k.i(f'v_mfma_f32_16x16x32_bf16 {Db[c4 * 4:c4 * 4 + 4]}, {Wf[c4 * 4:c4 * 4 + 4]}, {Bs}, 0')
    for c4 in range(4):
        for q in range(4):
            w = Wf[c4 * 4 + q]
            lo, hi = tmp[2 + (q & 1) * 2], tmp[3 + (q & 1) * 2]
            k.i(f'v_lshlrev_b32 {lo}, 16, {w}')
            k.i(f'v_and_b32 {hi}, 0xffff0000, {w}')
            k.i(f'v_mul_f32 {lo}, {lo}, {cb[2 * q]}')
            k.i(f'v_mul_f32 {hi}, {hi}, {cb[2 * q + 1]}')
            k.i(f'v_cvt_pk_bf16_f32 {w}, {lo}, {hi}')
    for c4 in range(4):
        k.i(f'v_mfma_f32_16x16x32_bf16 {Dc[c4 * 4:c4 * 4 + 4]}, {Wf[c4 * 4:c4 * 4 + 4]}, {Bo}, 0')
    k.i(f'v_lshlrev_b32 {tmp[1]}, 4, {G}')
    k.i(f's_lshl_b32 {so}, {wave}, 9')
    k.i(f's_add_u32 {so}, {so}, {LCS}')
    k.i(f'v_add_u32 {tmp[1]}, {so}, {tmp[1]}')
    k.i('s_mov_b32 exec_lo, 0x00010001')
    k.i('s_mov_b32 exec_hi, 0x00010001')
    for c4 in range(4):
        k.i(f'ds_write_b128 {tmp[1]}, {Dc[c4 * 4:c4 * 4 + 4]} offset:{c4 * 64}')
        k.i(f'ds_write_b128 {tmp[1]}, {Db[c4 * 4:c4 * 4 + 4]} offset:{256 + c4 * 64}')
    k.i('s_mov_b64 exec, -1')
    k.wait(lg=0)
    k.i(f's_cmp_eq_u32 {scol}, {26 * 128}')
    k.i(f's_cselect_b32 {so}, 4096, 0')
    k.i(f's_add_u32 {so}, {so}, {sdst}')
    for c4 in range(4):
        k.lines.append(f'  buffer_store_dwordx4 {Wf[c4 * 4:c4 * 4 + 4]}, {l16}, {sws}, {sdst if c4 < 3 else so} offen offset:{1024 * c4} sc1')
    k.raw('m_nostore:')
    k._join()
    tsx()
    k.i('s_barrier')
    tsx()
    if os.environ.get('EARLYWOF', '1') == '1':
        wof_jj(wave, 12)
    else:
        wof_jj(wave, 0)
        wof_jj(wave, 8)
        k.i(f's_cmp_ge_u32 {wave}, 4')
        k.i('s_cbranch_scc1 m_w3x')
        wof_jj(wave, 16)
        k.raw('m_w3x:')
        k._join()
        k.lines.append('  s_waitcnt vmcnt(0)')
    tsx()
    k.i(f's_cmp_ge_u32 {wave}, 2')
    k.i(f's_cselect_b32 {so}, 1000, s2')
    k.i(f's_cmp_ge_u32 {so}, 216')
    k.i(f's_cbranch_scc1 m_nocs')
    k.i(f'v_lshlrev_b32 {tmp[0]}, 2, v0')
    k.i(f'v_add_u32 {tmp[0]}, {LCS}, {tmp[0]}')
    for w in range(5):
        k.i(f'ds_read_b32 {tmp[1 + w]}, {tmp[0]} offset:{512 * w}')
    k.i(f'v_add_f32 {tmp[1]}, {tmp[1]}, {tmp[2]}')
    k.i(f'v_add_f32 {tmp[3]}, {tmp[3]}, {tmp[4]}')
    k.i(f'v_add_f32 {tmp[1]}, {tmp[1]}, {tmp[5]}')
    k.i(f'v_add_f32 {tmp[1]}, {tmp[1]}, {tmp[3]}')
    k.i(f's_lshl_b32 {so}, {ks}, 1')
    k.i(f's_add_u32 {so}, {so}, {wave}')
    k.i(f's_mul_i32 {so}, {so}, {3584 * 4}')
    k.i(f's_lshl_b32 {st1}, {p_}, 6')
    k.i(f's_add_u32 {so}, {so}, {st1}')
    k.i(f's_add_u32 {so}, {so}, {WS_CSB}')
    k.i(f'v_lshlrev_b32 {tmp[0]}, 2, {lane}')
    k.i(f's_cmp_eq_u32 {scol}, {26 * 128}')
    k.i(f's_cselect_b32 {st1}, 256, 0')
    k.i(f'v_mov_b32 {tmp[2]}, {st1}')
    k.i(f'v_cmp_lt_u32 vcc, 47, {lane}')
    k.i(f'v_cndmask_b32 {tmp[2]}, 0, {tmp[2]}, vcc')
    k.i(f'v_add_u32 {tmp[0]}, {tmp[0]}, {tmp[2]}')
    k.i(f'buffer_store_dword {tmp[1]}, {tmp[0]}, {sws}, {so} offen sc1')
    k.raw('m_nocs:')
    k.reset_state()
    k.release(mk_common)
    k.ts()

    RING2, SL2, PLB = 24576, 4096, 0
    W3 = [67584, 96256, 0, 28672]
    X3 = [124928, 133120, 141312, 149504, 57344]
    CSL = 157696
    W4 = [0, 20480, 40960, 61440, 81920]
    X4 = [102400, 118784, 135168]

    def signal(idx, cnt_off, go_off, sel):
        lab = k.newlabel('sig')
        k.wait(vm=0)
        tsz()
        k.i(f'v_mov_b32 {t1}, {LCNT + 4 * idx}')
        k.i(f'v_mov_b32 {t2}, 1')
        k.i('s_mov_b32 exec_lo, 1')
        k.i('s_mov_b32 exec_hi, 0')
        k.i(f'ds_add_rtn_u32 {t3}, {t1}, {t2}')
        k.i(f'v_readfirstlane_b32 {so}, {t3}')
        k.i(f's_cmp_lg_u32 {so}, 3')
        k.i(f's_cbranch_scc1 {lab}')
        k.i(f's_lshl_b32 {so}, {sel}, 8')
        k.i(f's_add_u32 {so}, {so}, {WS_CNT + cnt_off}')
        k.i(f'v_mov_b32 {t1}, 0')
        k.lines.append(f'  buffer_atomic_add {t2}, {t1}, {sws}, {so} offen sc0 sc1')
        k.lines.append('  s_waitcnt vmcnt(0)')
        k.lines.append(f'  v_readfirstlane_b32 {st1}, {t2}')
        k.lines.append(f'  v_mov_b32 {t2}, 1')
        k.lines.append(f'  s_cmp_lg_u32 {st1}, 15')
        k.lines.append(f'  s_cbranch_scc1 {lab}')
        k.lines.append(f'  s_add_u32 {so}, {so}, {go_off - cnt_off}')
        k.lines.append(f'  buffer_store_dword {t2}, {t1}, {sws}, {so} offen sc1')
        k.raw(f'{lab}:')
        k._join()
        k.i('s_mov_b64 exec, -1')
        k.vm = [dict(regs=set(), tag=None)]
        tsz()

    def poll(go_off, sel, pw=4):
        lab = k.newlabel('poll')
        k.i(f's_cmp_lg_u32 {wave}, {pw}')
        k.i(f's_cbranch_scc1 {lab}_x')
        k.i(f's_lshl_b32 {so}, {sel}, 8')
        k.i(f's_add_u32 {so}, {so}, {WS_CNT + go_off}')
        k.i(f'v_mov_b32 {t1}, 0')
        k.i(f's_mov_b32 {st1}, 0')
        k.i('s_mov_b32 exec_lo, 1')
        k.i('s_mov_b32 exec_hi, 0')
        k.raw(f'{lab}:')
        k.lines.append(f'  buffer_load_dword {t2}, {t1}, {sws}, {so} offen sc1')
        k.lines.append('  s_waitcnt vmcnt(0)')
        k.lines.append(f'  v_readfirstlane_b32 {st2}, {t2}')
        k.lines.append(f'  s_add_u32 {st1}, {st1}, 1')
        k.lines.append(f'  s_cmp_ge_u32 {st1}, {SPIN_MAX}')
        k.lines.append(f'  s_cbranch_scc1 {lab}_d')
        k.lines.append(f'  s_cmp_eq_u32 {st2}, 0')
        k.lines.append(f'  s_cbranch_scc1 {lab}')
        k.raw(f'{lab}_d:')
        k.i('s_mov_b64 exec, -1')
        k.raw(f'{lab}_x:')
        k._join()

    def x1_addr(ttg_, nt_, sreg, sspec):
        k.i(f's_lshr_b32 {so}, {ttg_}, 3')
        k.i(f's_mul_i32 {so}, {so}, 20')
        k.i(f's_lshr_b32 {st1}, {nt_}, 1')
        k.i(f's_mul_i32 {st1}, {st1}, 5')
        k.i(f's_add_u32 {so}, {so}, {st1}')
        k.i(f's_lshl_b32 {so}, {so}, 13')
        k.i(f's_add_u32 {so}, {so}, {WS_X1}')
        k.i(f's_and_b32 {st1}, {nt_}, 1')
        k.i(f's_and_b32 {st2}, {ttg_}, 7')
        k.i(f's_lshl_b32 {sreg}, {st1}, 14')
        k.i(f's_add_u32 {sreg}, {sreg}, {so}')
        k.i(f's_lshl_b32 {sspec}, {st2}, 10')
        k.i(f's_add_u32 {sreg}, {sreg}, {sspec}')
        k.i(f's_lshl_b32 {st1}, {st1}, 12')
        k.i(f's_lshl_b32 {st2}, {st2}, 9')
        k.i(f's_add_u32 {sspec}, {so}, {st1}')
        k.i(f's_add_u32 {sspec}, {sspec}, {st2}')
        k.i(f's_add_u32 {sspec}, {sspec}, {4 * 8192}')

    k.i(f's_cmp_ge_u32 {wave}, 4')
    k.i('s_cbranch_scc1 m_l2')
    nts2 = k.nts
    sxx = k.srd(px, S * D * 2)
    ttg = k.s()
    tp, kh2 = k.s(), k.s()
    k.i(f's_and_b32 {tp}, {wave}, 1')
    k.i(f's_lshr_b32 {kh2}, {wave}, 1')
    AF = k.v(32)
    PQf = k.v(32)
    PLf = k.v(16)
    O = k.v(32)
    Xf = k.v(32)
    WA = k.v(20)
    acc = k.v(40)
    xv, gav = AF[0:10], PQf[0:20]
    carry = k.v(2, align=1)
    a0, a1, woa = k.v(), k.v(), k.v(2, align=1)
    aL = k.v(8, align=1)
    k.i(f's_lshl_b32 {ttg}, {mt2}, 2')
    k.i(f's_lshl_b32 {so}, {tp}, 1')
    k.i(f's_add_u32 {ttg}, {ttg}, {so}')
    k.i(f's_add_u32 {ttg}, {ttg}, {kh2}')
    k.i(f's_mul_i32 {st1}, {kh2}, 1920')
    k.i(f's_add_u32 {st1}, {st1}, {RING2}')
    k.i(f'v_add_u32 {a0}, {st1}, {l16}')
    k.i(f'v_lshrrev_b32 {t1}, 2, {n}')
    k.i(f'v_and_b32 {t2}, 3, {n}')
    k.i(f'v_cmp_eq_u32 vcc, 0, {t2}')
    k.i(f'v_cndmask_b32 {t1}, 4, {t1}, vcc')
    k.i(f'v_lshlrev_b32 {t1}, 4, {t1}')
    k.i(f'v_add_u32 {t1}, {st1}, {t1}')
    k.i(f'v_add_u32 {t1}, 1280, {t1}')
    k.i(f'v_lshl_add_u32 {a1}, {G}, 7, {t1}')
    k.i(f'v_add_u32 {t1}, 512, {t1}')
    k.i(f'v_lshlrev_b32 {t2}, 4, {n}')
    k.i(f'v_add_u32 {t2}, {st1}, {t2}')
    k.i(f'v_add_u32 {t2}, 1024, {t2}')
    k.i(f's_add_u32 {st1}, {st1}, {1280 + 512 + 112}')
    k.i(f'v_mov_b32 {t3}, {st1}')
    for rho in range(4):
        k.i(f'v_cmp_eq_u32 vcc, {rho}, {G}')
        k.i(f'v_cndmask_b32 {aL[2 * rho]}, {t3}, {t2}, vcc')
        k.i(f'v_cndmask_b32 {aL[2 * rho + 1]}, {t3}, {t1}, vcc')
    spqc = k.s()
    k.i(f's_lshl_b32 {so}, {tp}, 12')
    k.i(f's_lshl_b32 {st1}, {kh2}, 10')
    k.i(f's_add_u32 {so}, {so}, {st1}')
    k.i(f's_mul_i32 {spqc}, {mt2}, 163840')
    k.i(f's_add_u32 {spqc}, {spqc}, {so}')
    k.i(f's_add_u32 {spqc}, {spqc}, {WS_PHIQ}')

    def ldq(s):
        L = []
        if s % 4 == 0:
            L.append(f's_add_u32 {st2}, {spqc}, {(16 + s // 4) * 8192}')
            for t in range(2):
                q = (((s // 4) & 1) * 2 + t) * 4
                L.append(f'buffer_load_dwordx4 {PLf[q:q + 4]}, {l16}, {sws}, {st2} offen offset:{2048 * t}')
        L.append(f's_add_u32 {st2}, {spqc}, {s * 8192}')
        for t in range(2):
            L.append(f'buffer_load_dwordx4 {PQf[((s % 4) * 2 + t) * 4:((s % 4) * 2 + t) * 4 + 4]}, {l16}, {sws}, {st2} offen offset:{2048 * t}')
        return L

    k.i(f's_mul_i32 {so}, {kh2}, 5120')
    k.i(f's_add_u32 {so}, {so}, {WOFB}')
    k.i(f'v_add_u32 {woa[0]}, {so}, {l16}')
    k.i(f'v_add_u32 {woa[1]}, 51200, {woa[0]}')
    k.i('s_barrier')
    k.ts()
    for s in range(3):
        for x in ldq(s):
            k.i(x)

    def rd2(s):
        L = []
        b = s & 1
        sl = (s % 4) * SL2
        A = AF[b * 16:b * 16 + 16]
        rho = s & 3
        L.append(f'ds_read_b128 {A[8:12]}, {aL[2 * rho]} offset:{sl}')
        L.append(f'ds_read_b128 {A[12:16]}, {aL[2 * rho + 1]} offset:{sl}')
        L.append(f'ds_read_b128 {A[4:8]}, {a1} offset:{sl}')
        L.append(f'ds_read_b128 {A[0:4]}, {a0} offset:{sl}')
        return L

    def om(s):
        L = []
        b = s & 1
        A = AF[b * 16:b * 16 + 16]
        for t in range(2):
            q = (((s // 4) & 1) * 2 + t) * 4
            for tl in range(2):
                o = O[((b * 2 + t) * 2 + tl) * 4:((b * 2 + t) * 2 + tl) * 4 + 4]
                L.append(f'v_mfma_f32_16x16x32_bf16 {o}, {A[8 + tl * 4:8 + tl * 4 + 4]}, {PLf[q:q + 4]}, 0')
        for t in range(2):
            for tl in (1, 0):
                o = O[((b * 2 + t) * 2 + tl) * 4:((b * 2 + t) * 2 + tl) * 4 + 4]
                L.append(f'v_mfma_f32_16x16x32_bf16 {o}, {A[tl * 4:tl * 4 + 4]}, {PQf[((s % 4) * 2 + t) * 4:((s % 4) * 2 + t) * 4 + 4]}, {o}')
        return L

    def xf(j, t):
        return Xf[((j % 4) * 2 + t) * 4:((j % 4) * 2 + t) * 4 + 4]

    def ov(s):
        L = []
        b = s & 1
        os_ = [O[(b * 2 + t) * 8:(b * 2 + t) * 8 + 8] for t in range(2)]
        for o in os_:
            L.append(f'v_add_f32 {o[5]}, {fhex(1e-6)}, {o[5]}')
        for o in os_:
            L.append(f'v_rcp_f32 {o[5]}, {o[5]}')
        for t, o in enumerate(os_):
            for q in range(4):
                L.append(f'v_mul_f32 {o[q]}, {o[q]}, {o[5]}')
            L.append(f'v_mul_f32 {o[4] if s & 1 else o[6]}, {o[4]}, {o[5]}')
        for t, o in enumerate(os_):
            if s & 1:
                vals = [carry[t]] + [o[q] for q in range(5)]
                idx0 = 5 * s - 1
            else:
                vals = [o[q] for q in range(4)]
                idx0 = 5 * s
            for p in range(len(vals) // 2):
                idx = idx0 + 2 * p
                L.append(f'v_cvt_pk_bf16_f32 {xf(idx >> 3, t)[(idx & 7) >> 1]}, {vals[2 * p]}, {vals[2 * p + 1]}')
            if not s & 1:
                L.append(f'v_mov_b32 {carry[t]}, {o[6]}')
        return L

    def wrd(j):
        off = ((2 * j + 2) % 20) * 5120
        areg, o = (woa[0], off) if off < 51200 else (woa[1], off - 51200)
        return [f'ds_read_b128 {WA[ct * 4:ct * 4 + 4]}, {areg} offset:{o + ct * 1024}' for ct in range(5)]

    def wm(j):
        return [f'v_mfma_f32_16x16x32_bf16 {acc[(ct * 2 + t) * 4:(ct * 2 + t) * 4 + 4]}, {WA[ct * 4:ct * 4 + 4]}, {xf(j, t)}, {0 if j == 0 else acc[(ct * 2 + t) * 4:(ct * 2 + t) * 4 + 4]}' for ct in range(5) for t in range(2)]

    def done_after(s):
        return (5 * s + (5 if s & 1 else 4)) // 8

    k.i('s_barrier')
    k.ts()
    for x in rd2(0) + wrd(0):
        k.i(x)
    jm = 0
    nlate = 5
    for s in range(18):
        if s == 8:
            k.ts()
        if s == 15:
            k.i(f's_mul_i32 {so}, {ttg}, {16 * 1280}')
            k.i(f's_mul_i32 {st1}, {nt2}, 160')
            k.i(f's_add_u32 {so}, {so}, {st1}')
            k.i(f'v_mul_u32_u24 {t2}, 1280, {n}')
            k.i(f'v_lshl_add_u32 {t2}, {G}, 3, {t2}')
            for ct in range(5):
                k.i(f'buffer_load_dwordx2 {xv[2 * ct:2 * ct + 2]}, {t2}, {sxx}, {so} offen offset:{32 * ct}')
            k.i(f'v_lshlrev_b32 {t2}, 4, {G}')
            k.i(f's_mul_i32 {st1}, {nt2}, 320')
            k.i(f's_add_u32 {so}, {st1}, {WS_MOD + 2 * 2560}')
            for ct in range(5):
                k.i(f'buffer_load_dwordx4 {gav[4 * ct:4 * ct + 4]}, {t2}, {sws}, {so} offen offset:{64 * ct}')
        fill = []
        if s + 1 < 16:
            tsy(s in (9, 10))
            if nlate < len(k.lg):
                k.wait(lg=nlate)
            tsy(s in (9, 10))
            k.i('s_barrier')
            tsy(s in (9, 10))
            tsy(s in (9, 10))
            fill += rd2(s + 1)
        if s + 3 < 16:
            fill += ldq(s + 3)
        lim = done_after(s - 2) if s >= 2 else 0
        Mw, late = [], []
        if jm < lim:
            Mw = wm(jm)
            jm += 1
            if jm < 10:
                late = wrd(jm)
        assert jm >= lim
        Mo = om(s) if s < 16 else []
        V = ov(s - 1) if 1 <= s <= 16 else []
        M = Mo + Mw
        if os.environ.get('X_NOC'):
            M, V = M[:1], []
        if os.environ.get('X_NORD'):
            fill, late = [], []
        if M:
            interleave(k, M, fill + V)
        else:
            for x in fill + V:
                k.i(x)
        for x in late:
            k.i(x)
        nlate = len(late)
    assert jm == 10
    k.i(f's_mul_i32 {so}, {wave}, 5120')
    k.i(f'v_add_u32 {t1}, {so}, {l16}')
    k.i(f's_xor_b32 {st1}, {wave}, 2')
    k.i(f's_mul_i32 {st1}, {st1}, 5120')
    k.i(f'v_add_u32 {t3}, {st1}, {l16}')
    mk2 = k.s(2)
    k.i(f's_cmp_eq_u32 {kh2}, 1')
    k.i(f's_cselect_b64 {mk2}, -1, 0')
    Sd, Kp = O[0:20], Xf[0:20]
    for ct in range(5):
        for r in range(4):
            a0_, a1_ = acc[(ct * 2) * 4 + r], acc[(ct * 2 + 1) * 4 + r]
            k.i(f'v_cndmask_b32 {Sd[4 * ct + r]}, {a1_}, {a0_}, {mk2}')
            k.i(f'v_cndmask_b32 {Kp[4 * ct + r]}, {a0_}, {a1_}, {mk2}')
        k.i(f'ds_write_b128 {t1}, {Sd[4 * ct:4 * ct + 4]} offset:{1024 * ct}')
    k.ts()
    k.barrier()
    for ct in range(5):
        k.i(f'ds_read_b128 {acc[4 * ct:4 * ct + 4]}, {t3} offset:{1024 * ct}')
    for i in range(20):
        k.i(f'v_add_f32 {acc[i]}, {acc[i]}, {Kp[i]}')
    cp = O[20:28]
    k.i(f'v_cmp_lt_u32 vcc, 111, v0')
    k.i(f'v_mov_b32 {t3}, {1792 - 112}')
    k.i(f'v_cndmask_b32 {t2}, 0, {t3}, vcc')
    k.i(f'v_add_u32 {t2}, {t2}, v0')
    k.i(f's_mul_i32 {so}, {nt3}, 112')
    k.i(f'v_add_u32 {t2}, {so}, {t2}')
    k.i(f'v_lshlrev_b32 {t2}, 2, {t2}')
    s12 = AF[10:12]
    xe = AF[12:16]
    k.i(f'v_mov_b32 {s12[0]}, 0')
    k.i(f'v_mov_b32 {s12[1]}, 0')
    xo = AF[16:28]
    for ct in range(5):
        for q in range(2):
            k.i(f'v_lshlrev_b32 {xe[2 * q]}, 16, {xv[2 * ct + q]}')
            k.i(f'v_and_b32 {xe[2 * q + 1]}, 0xffff0000, {xv[2 * ct + q]}')
        for r in range(4):
            k.i(f'v_fmac_f32 {xe[r]}, {acc[4 * ct + r]}, {gav[4 * ct + r]}')
        for q in range(2):
            k.i(f'v_cvt_pk_bf16_f32 {xo[2 * ct + q]}, {xe[2 * q]}, {xe[2 * q + 1]}')
        for q in range(2):
            k.i(f'v_lshlrev_b32 {xe[2 * q]}, 16, {xo[2 * ct + q]}')
            k.i(f'v_and_b32 {xe[2 * q + 1]}, 0xffff0000, {xo[2 * ct + q]}')
        for r in range(4):
            k.i(f'v_add_f32 {s12[0]}, {s12[0]}, {xe[r]}')
            k.i(f'v_fmac_f32 {s12[1]}, {xe[r]}, {xe[r]}')
    sreg, sspec = k.s(), k.s()
    x1_addr(ttg, nt2, sreg, sspec)
    l8 = AF[28]
    k.i(f'v_lshlrev_b32 {l8}, 3, {lane}')
    k.i(f'buffer_store_dwordx4 {xo[0:4]}, {l16}, {sws}, {sreg} offen sc1')
    k.i(f's_add_u32 {sreg}, {sreg}, 8192')
    k.i(f'buffer_store_dwordx4 {xo[4:8]}, {l16}, {sws}, {sreg} offen sc1')
    k.i(f'buffer_store_dwordx2 {xo[8:10]}, {l8}, {sws}, {sspec} offen sc1')
    xsum4(k, s12[0], t1)
    xsum4(k, s12[1], t1)
    k.i(f's_lshl_b32 {so}, {ttg}, 10')
    k.i(f's_lshl_b32 {st1}, {nt2}, 3')
    k.i(f's_add_u32 {so}, {so}, {st1}')
    k.i(f's_add_u32 {so}, {so}, {WS_ST}')
    k.i(f'v_lshlrev_b32 {t1}, 6, {n}')
    k.i('s_mov_b32 exec_lo, 0xffff')
    k.i('s_mov_b32 exec_hi, 0')
    k.i(f'buffer_store_dwordx2 {s12}, {t1}, {sws}, {so} offen sc1')
    k.i('s_mov_b64 exec, -1')
    for p in range(8):
        k.i(f's_mov_b32 {so}, {WS_CSB + p * 3584 * 4}')
        k.i(f'buffer_load_dword {cp[p]}, {t2}, {sws}, {so} offen sc1')
    k.i('s_barrier')
    k.ts()
    sel = k.s()
    k.i(f's_lshr_b32 {sel}, {mt2}, 1')
    signal(0, C2, G2, sel)
    k.i(f'v_add_f32 {cp[0]}, {cp[0]}, {cp[2]}')
    k.i(f'v_add_f32 {cp[4]}, {cp[4]}, {cp[6]}')
    k.i(f'v_add_f32 {cp[1]}, {cp[1]}, {cp[3]}')
    k.i(f'v_add_f32 {cp[5]}, {cp[5]}, {cp[7]}')
    k.i(f'v_add_f32 {cp[0]}, {cp[0]}, {cp[4]}')
    k.i(f'v_add_f32 {cp[1]}, {cp[1]}, {cp[5]}')
    k.i(f'v_mov_b32 {t2}, 0')
    k.i(f'v_cmp_lt_u32 vcc, 63, v0')
    k.i(f'v_cndmask_b32 {t2}, {t2}, 64, vcc')
    k.i(f'v_mov_b32 {t3}, -48')
    k.i(f'v_cmp_lt_u32 vcc, 111, v0')
    k.i(f'v_cndmask_b32 {t2}, {t2}, {t3}, vcc')
    k.i(f'v_cmp_lt_u32 vcc, 175, v0')
    k.i(f'v_cndmask_b32 {t2}, {t2}, 0, vcc')
    k.i(f'v_add_u32 {t2}, {t2}, v0')
    k.i(f'v_lshlrev_b32 {t2}, 2, {t2}')
    k.i(f'v_add_u32 {t2}, {CSL}, {t2}')
    k.i(f'ds_write_b32 {t2}, {cp[0]}')
    k.i(f'ds_write_b32 {t2}, {cp[1]} offset:1024')

    k.release(mk_common)
    l8 = k.v()
    k.i(f'v_lshlrev_b32 {l8}, 3, {lane}')
    th3, cg = k.s(), k.s()
    k.i(f's_and_b32 {th3}, {wave}, 1')
    k.i(f's_lshr_b32 {cg}, {wave}, 1')
    acc = k.v(112)
    Fr = k.v(88)
    stv = k.v(16)
    mu, sd, rr = k.v(4, align=1), k.v(4, align=1), k.v(4, align=1)
    cb8 = stv[8:16]
    wa = k.v(2, align=1)
    xa = k.v(2, align=1)
    xs = k.v(2, align=1)
    csa = k.v()
    k.i(f's_mul_i32 {so}, {cg}, 7168')
    k.i(f'v_add_u32 {wa[0]}, {so}, {l16}')
    k.i(f'v_add_u32 {wa[1]}, 67584, {wa[0]}')
    k.i(f's_lshl_b32 {so}, {th3}, 12')
    k.i(f's_add_u32 {so}, {so}, 57344')
    k.i(f'v_add_u32 {xa[0]}, {so}, {l16}')
    k.i(f'v_add_u32 {xa[1]}, {124928 - 57344}, {xa[0]}')
    k.i(f's_lshl_b32 {so}, {th3}, 11')
    k.i(f's_add_u32 {so}, {so}, 57344')
    k.i(f'v_add_u32 {xs[0]}, {so}, {l8}')
    k.i(f'v_add_u32 {xs[1]}, {124928 - 57344}, {xs[0]}')
    k.i(f's_mul_i32 {so}, {cg}, 448')
    k.i(f's_add_u32 {so}, {so}, {CSL}')
    k.i(f'v_lshlrev_b32 {csa}, 4, {G}')
    k.i(f'v_add_u32 {csa}, {so}, {csa}')
    k.i(f'v_lshlrev_b32 {t1}, 6, {n}')
    k.i(f'v_lshl_add_u32 {t1}, {G}, 4, {t1}')
    k.i(f's_lshl_b32 {so}, {mt3}, 1')
    k.i(f's_add_u32 {so}, {so}, {th3}')
    mt4o = k.s()
    k.i(f's_mov_b32 {mt4o}, {so}')
    k.i(f's_lshl_b32 {so}, {so}, 12')
    k.i(f's_add_u32 {so}, {so}, {WS_ST}')
    k.barrier()
    k.ts()
    for tt in range(4):
        k.i(f'buffer_load_dwordx4 {stv[4 * tt:4 * tt + 4]}, {t1}, {sws}, {so} offen offset:{1024 * tt} sc1')

    def xfr(J, tt):
        b = ((J & 1) * 11 + tt) * 4
        return Fr[b:b + 4]

    def wfr(J, i):
        b = ((J & 1) * 11 + 4 + i) * 4
        return Fr[b:b + 4]

    def prep3(J):
        L = []
        wb = W3[(J // 2) % 4] + (J & 1) * 14336
        wreg, wo_ = (wa[0], wb) if wb < 67584 else (wa[1], wb - 67584)
        xb = X3[J % 5]
        xi, xo_ = (0, xb - 57344) if xb < 124928 else (1, xb - 124928)
        xl = []
        for tt in range(4):
            if J % 5 == 4:
                xl.append([f'ds_read_b64 {xfr(J, tt)[0:2]}, {xs[xi]} offset:{xo_ + tt * 512}',
                           f'ds_read_b64 {xfr(J, tt)[2:4]}, {xs[xi]} offset:{xo_ + 4096 + tt * 512}'])
            else:
                xl.append([f'ds_read_b128 {xfr(J, tt)}, {xa[xi]} offset:{xo_ + tt * 1024}'])
        L.append(f'ds_read_b128 {wfr(J, 0)}, {wreg} offset:{wo_}')
        for tt in range(4):
            L += xl[tt]
        for i in range(1, 7):
            L.append(f'ds_read_b128 {wfr(J, i)}, {wreg} offset:{wo_ + i * 1024}')
        return L

    def mf3(J):
        L = []
        for i in range(7):
            for tt in range(4):
                a = acc[(i * 4 + tt) * 4:(i * 4 + tt) * 4 + 4]
                L.append(f'v_mfma_f32_16x16x32_bf16 {a}, {wfr(J, i)}, {xfr(J, tt)}, {0 if J == 0 else a}')
        return L

    def stats_code():
        L = []
        for tt in range(4):
            a = stv[4 * tt:4 * tt + 4]
            L.append(f'v_add_f32 {a[0]}, {a[0]}, {a[2]}')
            L.append(f'v_add_f32 {a[1]}, {a[1]}, {a[3]}')
            for x in (a[0], a[1]):
                L.append(f'v_mov_b32 {a[2]}, {x}')
                L.append(f'v_permlane32_swap_b32 {x}, {a[2]}')
                L.append(f'v_add_f32 {x}, {x}, {a[2]}')
                L.append(f'v_mov_b32 {a[2]}, {x}')
                L.append(f'v_permlane16_swap_b32 {x}, {a[2]}')
                L.append(f'v_add_f32 {x}, {x}, {a[2]}')
            L.append(f'v_mul_f32 {mu[tt]}, {fhex(1.0 / 640)}, {a[0]}')
            L.append(f'v_mul_f32 {a[1]}, {fhex(1.0 / 640)}, {a[1]}')
            L.append(f'v_fma_f32 {a[1]}, -{mu[tt]}, {mu[tt]}, {a[1]}')
            L.append(f'v_max_f32 {a[1]}, 0, {a[1]}')
            L.append(f'v_add_f32 {a[1]}, {fhex(1e-5)}, {a[1]}')
            L.append(f'v_sqrt_f32 {sd[tt]}, {a[1]}')
            L.append(f'v_rsq_f32 {rr[tt]}, {a[1]}')
        return L

    def init_code(i):
        L = []
        for tt in range(4):
            a = acc[(i * 4 + tt) * 4:(i * 4 + tt) * 4 + 4]
            for r in range(4):
                L.append(f'v_fmac_f32 {a[r]}, {cb8[4 + r]}, {sd[tt]}')
            for r in range(4):
                L.append(f'v_fma_f32 {a[r]}, -{mu[tt]}, {cb8[r]}, {a[r]}')
        return L

    k.barrier()
    k.ts()
    for x in prep3(0):
        k.i(x)
    st_l = stats_code()
    for J in range(20):
        if J == 10:
            k.ts()
        M = mf3(J)
        if J + 1 < 20:
            k.barrier()
            fill = prep3(J + 1)
        else:
            fill = []
        if J in (2, 3):
            h = len(st_l) // 2
            fill = fill + (st_l[:h] if J == 2 else st_l[h:])
            interleave(k, M, fill, lead=2)
        elif 4 <= J < 11:
            i = J - 4
            M = M[4 * i:] + M[:4 * i]
            pre = [f'ds_read_b128 {cb8[0:4]}, {csa} offset:{i * 64}', f'ds_read_b128 {cb8[4:8]}, {csa} offset:{1024 + i * 64}']
            interleave(k, M[:12], pre + fill[:8])
            interleave(k, M[12:], fill[8:] + init_code(i))
        else:
            interleave(k, M, fill, lead=6)
    k.ts()
    k.raw('m_p3epi:')
    KK = -2.0 * 0.7978845608028654 * LOG2E
    c1, c3, ir2 = stv[0:4], stv[4:8], stv[8:12]
    for tt in range(4):
        k.i(f'v_mul_f32 {c1[tt]}, {fhex(KK)}, {rr[tt]}')
        k.i(f'v_mul_f32 {c3[tt]}, {rr[tt]}, {rr[tt]}')
        k.i(f'v_mul_f32 {c3[tt]}, {c3[tt]}, {c1[tt]}')
        k.i(f'v_mul_f32 {c3[tt]}, {fhex(0.044715)}, {c3[tt]}')
        k.i(f'v_mul_f32 {ir2[tt]}, {sd[tt]}, {sd[tt]}')
    EXB = 151552
    k.i(f's_lshl_b32 {so}, {th3}, 12')
    k.i(f's_add_u32 {so}, {so}, {EXB}')
    k.i(f'v_add_u32 {t1}, {so}, {l16}')
    sact, sasp = k.s(), k.s()
    k.i(f's_mul_i32 {sact}, {mt4o}, 56')
    k.i(f's_lshr_b32 {st1}, {nt3}, 1')
    k.i(f's_add_u32 {sasp}, {sact}, {st1}')
    k.i(f's_lshl_b32 {sasp}, {sasp}, 12')
    k.i(f's_and_b32 {st1}, {nt3}, 1')
    k.i(f's_lshl_b32 {st1}, {st1}, 11')
    k.i(f's_add_u32 {sasp}, {sasp}, {st1}')
    k.i(f's_add_u32 {sasp}, {sasp}, {WS_ACT}')
    k.i(f's_mul_i32 {st1}, {nt3}, 3')
    k.i(f's_add_u32 {sact}, {sact}, {st1}')
    k.i(f's_add_u32 {sact}, {sact}, 8')
    k.i(f's_lshl_b32 {sact}, {sact}, 12')
    k.i(f's_add_u32 {sact}, {sact}, {WS_ACT}')
    k.barrier()
    T = Fr[0:16]
    OUT = Fr[16:48]
    UX = Fr[48:64]
    CP = Fr[64:88]
    for tt in range(4):
        for j_, src in enumerate((c1, c3, ir2)):
            k.i(f'v_mov_b32 {CP[tt * 6 + 2 * j_]}, {src[tt]}')
            k.i(f'v_mov_b32 {CP[tt * 6 + 2 * j_ + 1]}, {src[tt]}')

    def geglu(g, u, tt, o2, ti):
        t = T[(ti % 4) * 4:(ti % 4) * 4 + 4]
        cc = CP[tt * 6:tt * 6 + 6]
        for h in (0, 2):
            k.i(f'v_pk_mul_f32 {t[h:h + 2]}, {g[h:h + 2]}, {g[h:h + 2]}')
        for h in (0, 2):
            k.i(f'v_pk_fma_f32 {t[h:h + 2]}, {t[h:h + 2]}, {cc[2:4]}, {cc[0:2]}')
        for h in (0, 2):
            k.i(f'v_pk_mul_f32 {t[h:h + 2]}, {t[h:h + 2]}, {g[h:h + 2]}')
        for r in range(4):
            k.i(f'v_exp_f32 {t[r]}, {t[r]}')
        for h in (0, 2):
            k.i(f'v_pk_mul_f32 {u[h:h + 2]}, {u[h:h + 2]}, {g[h:h + 2]}')
        for h in (0, 2):
            k.i(f'v_pk_fma_f32 {t[h:h + 2]}, {t[h:h + 2]}, {cc[4:6]}, {cc[4:6]}')
        for r in range(4):
            k.i(f'v_rcp_f32 {t[r]}, {t[r]}')
        for h in (0, 2):
            k.i(f'v_pk_mul_f32 {u[h:h + 2]}, {u[h:h + 2]}, {t[h:h + 2]}')
        k.i(f'v_cvt_pk_bf16_f32 {o2[0]}, {u[0]}, {u[1]}')
        k.i(f'v_cvt_pk_bf16_f32 {o2[1]}, {u[2]}, {u[3]}')

    def A(i, tt):
        return acc[(i * 4 + tt) * 4:(i * 4 + tt) * 4 + 4]

    k.i(f's_cmp_eq_u32 {cg}, 1')
    k.i('s_cbranch_scc1 p3_epi1')
    stx = (list(k.vm), list(k.lg))
    cnt = 0
    for tt in range(4):
        o = OUT[tt * 4:tt * 4 + 4]
        geglu(A(0, tt), A(4, tt), tt, o[0:2], cnt)
        geglu(A(1, tt), A(5, tt), tt, o[2:4], cnt + 1)
        cnt += 2
        k.i(f'buffer_store_dwordx4 {o}, {l16}, {sws}, {sact} offen offset:{1024 * tt} sc1')
        if tt == 0:
            k.i('s_barrier')
            for t2_ in range(4):
                k.i(f'ds_read_b128 {UX[t2_ * 4:t2_ * 4 + 4]}, {t1} offset:{1024 * t2_}')
    k.i(f's_add_u32 {sact}, {sact}, 4096')
    for tt in range(4):
        o = OUT[16 + tt * 4:16 + tt * 4 + 4]
        geglu(A(2, tt), A(6, tt), tt, o[0:2], cnt)
        geglu(A(3, tt), UX[tt * 4:tt * 4 + 4], tt, o[2:4], cnt + 1)
        cnt += 2
        k.i(f'buffer_store_dwordx4 {o}, {l16}, {sws}, {sact} offen offset:{1024 * tt} sc1')
    k.i('s_branch p3_epid')
    k.raw('p3_epi1:')
    k._join()
    k.vm, k.lg = list(stx[0]), list(stx[1])
    for tt in range(4):
        k.i(f'ds_write_b128 {t1}, {A(0, tt)} offset:{1024 * tt}')
    k.barrier()
    k.i(f's_add_u32 {sact}, {sact}, 8192')
    cnt = 0
    for tt in range(4):
        o = OUT[tt * 4:tt * 4 + 4]
        geglu(A(1, tt), A(4, tt), tt, o[0:2], cnt)
        geglu(A(2, tt), A(5, tt), tt, o[2:4], cnt + 1)
        cnt += 2
        k.i(f'buffer_store_dwordx4 {o}, {l16}, {sws}, {sact} offen offset:{1024 * tt} sc1')
    for tp in range(2):
        o = OUT[16 + tp * 4:16 + tp * 4 + 4]
        geglu(A(3, 2 * tp), A(6, 2 * tp), 2 * tp, o[0:2], cnt)
        geglu(A(3, 2 * tp + 1), A(6, 2 * tp + 1), 2 * tp + 1, o[2:4], cnt + 1)
        cnt += 2
        k.i(f'buffer_store_dwordx4 {o}, {l16}, {sws}, {sasp} offen offset:{1024 * tp} sc1')
    k.raw('p3_epid:')
    k._join()
    k.lines.append('  s_waitcnt lgkmcnt(0)')
    k.lg = []
    k.force_wait = True
    k.ts()
    signal(1, 8192, 12288, mt3)
    k.force_wait = False

    k.release(mk_common)
    l8 = k.v()
    k.i(f'v_lshlrev_b32 {l8}, 3, {lane}')
    th4, kh = k.s(), k.s()
    k.i(f's_and_b32 {th4}, {wave}, 1')
    k.i(f's_lshr_b32 {kh}, {wave}, 1')
    acc = k.v(40)
    Fr = k.v(56)
    wa = k.v(2, align=1)
    xa, xsp = k.v(), k.v()
    k.i(f's_mul_i32 {so}, {kh}, 5120')
    k.i(f'v_add_u32 {wa[0]}, {so}, {l16}')
    k.i(f'v_add_u32 {wa[1]}, 61440, {wa[0]}')
    k.i(f's_lshl_b32 {so}, {kh}, 12')
    k.i(f's_add_u32 {so}, {so}, {X4[0]}')
    k.i(f's_lshl_b32 {st1}, {th4}, 11')
    k.i(f's_add_u32 {st1}, {st1}, {so}')
    k.i(f'v_add_u32 {xa}, {st1}, {l16}')
    k.i(f's_lshl_b32 {st1}, {th4}, 10')
    k.i(f's_add_u32 {st1}, {st1}, {so}')
    k.i(f'v_add_u32 {xsp}, {st1}, {l16}')
    xv = k.v(12)
    gbv = k.v(20)
    ttg = k.s()
    k.i(f's_lshl_b32 {ttg}, {mt2}, 2')
    k.i(f's_lshl_b32 {so}, {th4}, 1')
    k.i(f's_add_u32 {ttg}, {ttg}, {so}')
    k.i(f's_add_u32 {ttg}, {ttg}, {kh}')
    sreg, sspec = k.s(), k.s()
    x1_addr(ttg, nt2, sreg, sspec)
    k.i(f'buffer_load_dwordx4 {xv[0:4]}, {l16}, {sws}, {sreg} offen sc1')
    k.i(f's_add_u32 {sreg}, {sreg}, 8192')
    k.i(f'buffer_load_dwordx4 {xv[4:8]}, {l16}, {sws}, {sreg} offen sc1')
    k.i(f'buffer_load_dwordx2 {xv[8:10]}, {l8}, {sws}, {sspec} offen sc1')
    k.i(f'v_lshlrev_b32 {t2}, 4, {G}')
    k.i(f's_mul_i32 {st1}, {nt2}, 320')
    k.i(f's_add_u32 {so}, {st1}, {WS_MOD + 5 * 2560}')
    for ct in range(5):
        k.i(f'buffer_load_dwordx4 {gbv[4 * ct:4 * ct + 4]}, {t2}, {sws}, {so} offen offset:{64 * ct}')
    sout = k.srd(po, S * D * 2)
    k.barrier()
    k.ts()
    NS4 = 14
    steps = [(s, h) for s in range(NS4) for h in range(2) if 4 * s + 2 * h < 54]

    def prep4(idx):
        s, h = steps[idx]
        b = idx & 1
        L = []
        wb = W4[s % 5] + h * 10240
        wreg, wo_ = (wa[0], wb) if wb < 61440 else (wa[1], wb - 61440)
        xo_ = (s % 3) * 16384 + h * 8192
        L.append(f'ds_read_b128 {Fr[(b * 7 + 2) * 4:(b * 7 + 2) * 4 + 4]}, {wreg} offset:{wo_}')
        for t in range(2):
            x = Fr[(b * 7 + t) * 4:(b * 7 + t) * 4 + 4]
            if s < 2:
                L.append(f'ds_read_b64 {x[0:2]}, {xsp} offset:{xo_ + t * 8}')
                L.append(f'ds_read_b64 {x[2:4]}, {xsp} offset:{xo_ + 2048 + t * 8}')
            else:
                L.append(f'ds_read_b128 {x}, {xa} offset:{xo_ + t * 1024}')
        for ct in range(1, 5):
            L.append(f'ds_read_b128 {Fr[(b * 7 + 2 + ct) * 4:(b * 7 + 2 + ct) * 4 + 4]}, {wreg} offset:{wo_ + ct * 1024}')
        return L

    def mf4(idx):
        b = idx & 1
        L = []
        for ct in range(5):
            for t in range(2):
                a = acc[(ct * 2 + t) * 4:(ct * 2 + t) * 4 + 4]
                L.append(f'v_mfma_f32_16x16x32_bf16 {a}, {Fr[(b * 7 + 2 + ct) * 4:(b * 7 + 2 + ct) * 4 + 4]}, {Fr[(b * 7 + t) * 4:(b * 7 + t) * 4 + 4]}, {0 if idx == 0 else a}')
        return L

    k.barrier()
    k.ts()
    for x in prep4(0):
        k.i(x)
    for idx in range(len(steps)):
        if idx == 14:
            k.ts()
        if idx + 1 < len(steps):
            if steps[idx + 1][1] == 0:
                k.barrier()
            interleave(k, mf4(idx), prep4(idx + 1), lead=2)
        else:
            for x in mf4(idx):
                k.i(x)
    k.ts()
    k.i(f's_mul_i32 {so}, {wave}, 5120')
    k.i(f'v_add_u32 {t1}, {so}, {l16}')
    k.i(f's_xor_b32 {st1}, {wave}, 2')
    k.i(f's_mul_i32 {st1}, {st1}, 5120')
    k.i(f'v_add_u32 {t3}, {st1}, {l16}')
    mk = k.s(2)
    k.i(f's_cmp_eq_u32 {kh}, 1')
    k.i(f's_cselect_b64 {mk}, -1, 0')
    Sd = Fr[0:20]
    Kp = Fr[20:40]
    for ct in range(5):
        for r in range(4):
            a0_, a1_ = acc[(ct * 2) * 4 + r], acc[(ct * 2 + 1) * 4 + r]
            k.i(f'v_cndmask_b32 {Sd[4 * ct + r]}, {a1_}, {a0_}, {mk}')
            k.i(f'v_cndmask_b32 {Kp[4 * ct + r]}, {a0_}, {a1_}, {mk}')
        k.i(f'ds_write_b128 {t1}, {Sd[4 * ct:4 * ct + 4]} offset:{1024 * ct}')
    k.barrier()
    Rv = acc[0:20]
    for ct in range(5):
        k.i(f'ds_read_b128 {Rv[4 * ct:4 * ct + 4]}, {t3} offset:{1024 * ct}')
    k.i(f's_mul_i32 {so}, {ttg}, {16 * 1280}')
    k.i(f's_mul_i32 {st1}, {nt2}, 160')
    k.i(f's_add_u32 {so}, {so}, {st1}')
    k.i(f'v_mul_u32_u24 {t1}, 1280, {n}')
    k.i(f'v_lshl_add_u32 {t1}, {G}, 3, {t1}')
    xe = Fr[40:44]
    for ct in range(5):
        for q in range(2):
            k.i(f'v_lshlrev_b32 {xe[2 * q]}, 16, {xv[2 * ct + q]}')
            k.i(f'v_and_b32 {xe[2 * q + 1]}, 0xffff0000, {xv[2 * ct + q]}')
        for r in range(4):
            k.i(f'v_add_f32 {Kp[4 * ct + r]}, {Kp[4 * ct + r]}, {Rv[4 * ct + r]}')
        for r in range(4):
            k.i(f'v_fmac_f32 {xe[r]}, {Kp[4 * ct + r]}, {gbv[4 * ct + r]}')
        o = Fr[44 + 2 * ct:44 + 2 * ct + 2]
        for q in range(2):
            k.i(f'v_cvt_pk_bf16_f32 {o[q]}, {xe[2 * q]}, {xe[2 * q + 1]}')
        k.i(f'buffer_store_dwordx2 {o}, {t1}, {sout}, {so} offen offset:{32 * ct}')
    k.ts_end()
    k.i('s_endpgm')

    k.reset_state()
    k.release(mk_common)
    k.nts = nts2
    k.label('m_l2')
    lw = k.s()
    k.i(f's_sub_u32 {lw}, {wave}, 4')
    skv2, spq = k.s(), k.s()
    kvw = k.v(2, align=1)
    KR = k.v(40)
    ob = k.v(8)
    k.i(f's_lshr_b32 {st2}, {lw}, 1')
    k.i(f's_and_b32 {st1}, {lw}, 1')
    k.i(f's_mul_i32 {skv2}, {st2}, {16 * KVS}')
    k.i(f's_mul_i32 {so}, {st1}, 1792')
    k.i(f's_add_u32 {skv2}, {skv2}, {so}')
    k.i(f's_add_u32 {skv2}, {skv2}, {WS_KV}')
    k.i(f's_mul_i32 {st1}, {st1}, 112')
    k.i(f's_mul_i32 {st2}, {st2}, 1920')
    k.i(f's_add_u32 {st2}, {st2}, {RING2}')
    u1, u2_, u3 = KR[0], KR[1], KR[2]
    for i in range(2):
        k.i(f'v_add_u32 {t1}, {st1}, {lane}')
        k.i(f'v_add_u32 {t1}, {64 * i}, {t1}')
        k.i(f'v_mul_u32_u24 {t2}, 6554, {t1}')
        k.i(f'v_lshrrev_b32 {t2}, 16, {t2}')
        k.i(f'v_mul_u32_u24 {t3}, 10, {t2}')
        k.i(f'v_sub_u32 {t3}, {t1}, {t3}')
        k.i(f'v_mul_u32_u24 {u1}, 52, {t2}')
        k.i(f'v_lshrrev_b32 {u1}, 8, {u1}')
        k.i(f'v_mul_u32_u24 {u2_}, 5, {u1}')
        k.i(f'v_sub_u32 {u2_}, {t2}, {u2_}')
        k.i(f'v_lshrrev_b32 {u3}, 1, {t3}')
        k.i(f'v_lshl_add_u32 {kvw[i]}, {u1}, 2, {u2_}')
        k.i(f'v_lshlrev_b32 {kvw[i]}, 4, {kvw[i]}')
        k.i(f'v_lshl_add_u32 {kvw[i]}, {u3}, 8, {kvw[i]}')
        k.i(f'v_cmp_lt_u32 vcc, 20, {t2}')
        k.i(f'v_cndmask_b32 {u1}, {u1}, 5, vcc')
        k.i(f'v_lshlrev_b32 {u1}, 4, {u1}')
        k.i(f'v_lshl_add_u32 {u1}, {u3}, 7, {u1}')
        k.i(f'v_add_u32 {u1}, 1280, {u1}')
        k.i(f'v_cmp_eq_u32 vcc, 4, {u2_}')
        k.i(f'v_cndmask_b32 {kvw[i]}, {kvw[i]}, {u1}, vcc')
        k.i(f'v_cmp_lt_u32 vcc, 19, {t2}')
        k.i(f'v_cndmask_b32 {kvw[i]}, {kvw[i]}, {u1}, vcc')
        k.i(f'v_and_b32 {t3}, 1, {t3}')
        k.i(f'v_lshl_add_u32 {kvw[i]}, {t3}, 3, {kvw[i]}')
        k.i(f'v_add_u32 {kvw[i]}, {st2}, {kvw[i]}')
    dpq = k.s()
    k.i(f's_and_b32 {dpq}, {lw}, 1')
    k.i(f's_lshl_b32 {dpq}, {dpq}, 12')
    k.i(f's_mul_i32 {spq}, {mt2}, 163840')
    k.i(f's_add_u32 {spq}, {spq}, {dpq}')
    k.i(f's_add_u32 {spq}, {spq}, {WS_PHIQ}')
    sw3, dlo, dhi, sx3, dx3 = k.s(), k.s(), k.s(), k.s(), k.s()
    cw3, cx3 = k.s(), k.s()
    if os.environ.get('ROT3', '0') == '1':
        k.i(f's_add_u32 {cx3}, {nt3}, {mt3}')
        k.i(f's_and_b32 {cx3}, {cx3}, 3')
        k.i(f's_mul_i32 {cx3}, {cx3}, 5')
    else:
        k.i(f's_mov_b32 {cx3}, 0')
    k.i(f's_lshr_b32 {cw3}, {lw}, 1')
    k.i(f's_add_u32 {cw3}, {cw3}, {cx3}')
    k.i(f's_and_b32 {sw3}, {lw}, 1')
    k.i(f's_mul_i32 {sw3}, {sw3}, {112 * 1024}')
    k.i(f's_mul_i32 {so}, {nt3}, 7168')
    k.i(f's_add_u32 {sw3}, {sw3}, {so}')
    k.i(f's_add_u32 {sw3}, {sw3}, {WS_WGU}')
    k.i(f's_lshr_b32 {so}, {lw}, 1')
    k.i(f's_mul_i32 {so}, {so}, 14336')
    k.i(f's_and_b32 {st1}, {lw}, 1')
    k.i(f's_lshl_b32 {dlo}, {st1}, 12')
    k.i(f's_add_u32 {dlo}, {dlo}, {so}')
    k.i(f's_mul_i32 {dhi}, {st1}, 3072')
    k.i(f's_add_u32 {dhi}, {dhi}, 8192')
    k.i(f's_add_u32 {dhi}, {dhi}, {so}')
    k.i(f's_lshl_b32 {dx3}, {lw}, 11')
    k.i(f's_mul_i32 {sx3}, {mt3}, {20 * 8192}')
    k.i(f's_add_u32 {sx3}, {sx3}, {dx3}')
    k.i(f's_add_u32 {sx3}, {sx3}, {WS_X1}')

    def w3(p):
        k.i(f's_mul_i32 {so}, {cw3}, {2 * 112 * 1024}')
        k.i(f's_add_u32 {so}, {so}, {sw3}')
        k.i(f's_add_u32 {cw3}, {cw3}, 2')
        k.i(f's_cmp_ge_u32 {cw3}, 20')
        k.i(f's_cselect_b32 {st1}, 20, 0')
        k.i(f's_sub_u32 {cw3}, {cw3}, {st1}')
        k.i(f's_add_u32 m0, {dlo}, {W3[p % 4]}')
        for cc in range(4):
            k.i(f'buffer_load_dwordx4 {l16}, {sws}, {so} offen offset:{1024 * cc} lds', tag=f'w3_{p}')
        k.i(f's_add_u32 {so}, {so}, 4096')
        k.i(f's_add_u32 m0, {dhi}, {W3[p % 4]}')
        for cc in range(3):
            k.i(f'buffer_load_dwordx4 {l16}, {sws}, {so} offen offset:{1024 * cc} lds', tag=f'w3_{p}')

    def x3(J):
        k.i(f's_lshl_b32 {so}, {cx3}, 13')
        k.i(f's_add_u32 {so}, {so}, {sx3}')
        k.i(f's_add_u32 {cx3}, {cx3}, 1')
        k.i(f's_cmp_eq_u32 {cx3}, 20')
        k.i(f's_cselect_b32 {cx3}, 0, {cx3}')
        k.i(f's_add_u32 m0, {dx3}, {X3[J % 5]}')
        for i in range(2):
            k.i(f'buffer_load_dwordx4 {l16}, {sws}, {so} offen offset:{1024 * i} lds', tag=f'x3_{J}')

    sw4, sx4, dw4, dx4 = k.s(), k.s(), k.s(), k.s()
    r4 = k.s()
    if os.environ.get('ROT', '1') == '1':
        k.i(f's_mul_i32 {r4}, {nt2}, 6')
        k.i(f's_and_b32 {so}, {mt2}, 3')
        k.i(f's_mul_i32 {so}, {so}, 11')
        k.i(f's_add_u32 {r4}, {r4}, {so}')
    else:
        k.i(f's_mov_b32 {r4}, 0')
    k.i(f's_add_u32 {r4}, {r4}, {lw}')

    def e4(s):
        if s < 2:
            k.i(f's_add_u32 {st2}, {r4}, {4 * s}')
            k.i(f's_and_b32 {st2}, {st2}, 7')
        else:
            k.i(f's_add_u32 {st2}, {r4}, {4 * s - 8}')
            for _ in range(2):
                k.i(f's_cmp_ge_u32 {st2}, 46')
                k.i(f's_cselect_b32 {st1}, 46, 0')
                k.i(f's_sub_u32 {st2}, {st2}, {st1}')
            k.i(f's_add_u32 {st2}, {st2}, 8')

    k.i(f's_mul_i32 {sw4}, {nt2}, 5120')
    k.i(f's_add_u32 {sw4}, {sw4}, {WS_WDF}')
    k.i(f's_mul_i32 {dw4}, {lw}, 5120')
    k.i(f's_lshl_b32 {dx4}, {lw}, 12')
    k.i(f's_mul_i32 {sx4}, {mt2}, {56 * 4096}')
    k.i(f's_add_u32 {sx4}, {sx4}, {WS_ACT}')

    def w4(s):
        e4(s)
        k.i(f's_mul_i32 {so}, {st2}, 40960')
        k.i(f's_add_u32 {so}, {so}, {sw4}')
        k.i(f's_add_u32 m0, {dw4}, {W4[s % 5]}')
        for cc in range(4):
            k.i(f'buffer_load_dwordx4 {l16}, {sws}, {so} offen offset:{1024 * cc} lds', tag=f'w4_{s}')
        k.i(f's_add_u32 {so}, {so}, 4096')
        k.i(f's_add_u32 m0, {dw4}, {W4[s % 5] + 4096}')
        k.i(f'buffer_load_dwordx4 {l16}, {sws}, {so} offen lds', tag=f'w4_{s}')

    def x4(s):
        e4(s)
        k.i(f's_lshl_b32 {so}, {st2}, 12')
        k.i(f's_add_u32 {so}, {so}, {sx4}')
        k.i(f's_add_u32 m0, {dx4}, {X4[s % 3]}')
        for cc in range(4):
            k.i(f'buffer_load_dwordx4 {l16}, {sws}, {so} offen offset:{1024 * cc} lds', tag=f'x4_{s}')

    def ldk(s):
        k.i(f's_add_u32 {so}, {skv2}, {s * KVS}')
        for i in range(2):
            k.i(f'buffer_load_dwordx4 {KR[((s % 5) * 2 + i) * 4:((s % 5) * 2 + i) * 4 + 4]}, {l16}, {sws}, {so} offen offset:{1024 * i}')

    def stk(s):
        for i in range(2):
            kr = KR[((s % 5) * 2 + i) * 4:((s % 5) * 2 + i) * 4 + 4]
            o = ob[((s & 1) * 2 + i) * 2:((s & 1) * 2 + i) * 2 + 2]
            k.i(f'v_cvt_pk_bf16_f32 {o[0]}, {kr[0]}, {kr[1]}')
            k.i(f'v_cvt_pk_bf16_f32 {o[1]}, {kr[2]}, {kr[3]}')
            k.i(f'ds_write_b64 {kvw[i]}, {o} offset:{(s % 4) * SL2}')

    poll(G1, sx, 6)
    k.i('s_barrier')
    k.ts()
    for s in range(5):
        ldk(s)
    k.i(f's_mul_i32 {so}, {lw}, {SL2}')
    k.i(f'v_and_b32 {t1}, 1, {lane}')
    k.i(f'v_mul_u32_u24 {t1}, 1920, {t1}')
    k.i(f'v_add_u32 {t1}, {so}, {t1}')
    zz = k.v(4)
    for q in range(4):
        k.i(f'v_mov_b32 {zz[q]}, 0')
    stk(0)
    k.i(f'ds_write_b128 {t1}, {zz} offset:{RING2 + 1280 + 512 + 112}')
    for s in range(16):
        if s + 1 < 16:
            if s == 0:
                k.wait(lg=0)
            stk(s + 1) if s > 0 else None
        if s > 0:
            k.wait(lg=2 if s + 1 < 16 else 0)
        k.i('s_barrier')
        if s == 0:
            stk(1)
        if s in (0, 8):
            k.ts()
        if s == 5:
            k.i(f's_cmp_lg_u32 {wave}, 7')
            k.i('s_cbranch_scc1 m_nowr')
            k.i(f's_and_b32 {so}, s2, 15')
            k.i(f's_lshl_b32 {so}, {so}, 8')
            k.i(f's_add_u32 {so}, {so}, {WS_CNT + CW}')
            k.i(f'v_mov_b32 {t1}, 0')
            k.i(f'v_mov_b32 {t2}, 1')
            k.i('s_mov_b32 exec_lo, 1')
            k.i('s_mov_b32 exec_hi, 0')
            k.lines.append(f'  buffer_atomic_add {t2}, {t1}, {sws}, {so} offen sc1')
            k.i('s_mov_b64 exec, -1')
            k.raw('m_nowr:')
            k._join()
        if s + 5 < 16:
            ldk(s + 5)
        if s == 11:
            k.lines.append('  s_waitcnt lgkmcnt(0)')
            k.i(f'v_lshlrev_b32 {t1}, 8, {n}')
            k.i(f's_mov_b32 {so}, {WS_CNT + CW}')
            k.i(f's_mov_b32 {st1}, 0')
            k.raw('m_wr:')
            for x in [f'buffer_load_dword {t2}, {t1}, {sws}, {so} offen sc1', 's_waitcnt vmcnt(0)',
                      f'v_cmp_gt_u32 vcc, 16, {t2}', f's_add_u32 {st1}, {st1}, 1', f's_cmp_ge_u32 {st1}, {SPIN_MAX}',
                      's_cbranch_scc1 m_wrd', 's_nop 1', 's_cbranch_vccnz m_wr']:
                k.lines.append('  ' + x)
            k.raw('m_wrd:')
            k._join()
            k.vm = []
            if os.environ.get('TOUCH3', '0') == '1':
                for i_ in range(2):
                    k.i(f's_lshl_b32 {so}, {lw}, 9')
                    k.i(f's_and_b32 {st1}, {mt3}, 7')
                    k.i(f's_add_u32 {so}, {so}, {st1}')
                    k.i(f's_add_u32 {so}, {so}, {2048 * i_}')
                    k.i(f'v_lshlrev_b32 {t1}, 3, {lane}')
                    k.i(f'v_add_u32 {t1}, {so}, {t1}')
                    k.i(f'v_min_u32 {t1}, 2239, {t1}')
                    k.i(f'v_mul_u32_u24 {t2}, 4682, {t1}')
                    k.i(f'v_lshrrev_b32 {t2}, 18, {t2}')
                    k.i(f'v_mul_u32_u24 {t3}, 56, {t2}')
                    k.i(f'v_sub_u32 {t1}, {t1}, {t3}')
                    k.i(f'v_mul_u32_u24 {t2}, {112 * 1024}, {t2}')
                    k.i(f'v_lshl_add_u32 {t1}, {t1}, 7, {t2}')
                    k.i(f's_mul_i32 {so}, {nt3}, 7168')
                    k.i(f's_add_u32 {so}, {so}, {WS_WGU}')
                    if i_ == 1:
                        k.i(f's_cmp_lg_u32 {lw}, 0')
                        k.i('s_cbranch_scc1 m_not3')
                    k.lines.append(f'  buffer_load_dword {zz[i_]}, {t1}, {sws}, {so} offen')
                k.raw('m_not3:')
                k._join()
    k.raw('m_l2j:')
    k.reset_state()
    if True:
        if True:
            w3(0)
    k.ts()
    k.i('s_barrier')
    k.i('s_barrier')
    NPRE3 = int(os.environ.get('NPRE3', 2))
    for p in range(1, NPRE3):
        w3(p)
    k.ts()
    poll(G2, mt3)
    k.i('s_barrier')
    k.ts()
    LAX = 4
    TOUCH4 = os.environ.get('TOUCH4', '1') == '1'
    stq = k.s()
    k.i(f's_lshl_b32 {stq}, {lw}, 8')
    k.i(f's_and_b32 {so}, {mt2}, 3')
    k.i(f's_add_u32 {stq}, {stq}, {so}')
    for J in range(LAX):
        x3(J)
    for J in range(20):
        if J % 2 == 0:
            k.wait_tag(f'w3_{J // 2}')
        k.wait_tag(f'x3_{J}')
        k.i('s_barrier')
        if J == 0:
            k.ts()
        if J == 10:
            k.ts()
        if J + LAX < 20:
            x3(J + LAX)
        if J < 2 and NPRE3 + J < 4:
            w3(NPRE3 + J)
        if TOUCH4 and J >= 2 and J % 2 == 1 and J <= 17:
            pass
        if TOUCH4 and J in (3, 7, 11):
            i_ = (J - 3) // 4
            k.i(f's_add_u32 {so}, {stq}, {i_ * 4 * 64 * 4}')
            k.i(f'v_lshlrev_b32 {t1}, 2, {lane}')
            k.i(f'v_add_u32 {t1}, {so}, {t1}')
            k.i(f'v_min_u32 {t1}, 2159, {t1}')
            k.i(f'v_mul_u32_u24 {t2}, 1639, {t1}')
            k.i(f'v_lshrrev_b32 {t2}, 16, {t2}')
            k.i(f'v_mul_u32_u24 {t3}, 40, {t2}')
            k.i(f'v_sub_u32 {t1}, {t1}, {t3}')
            k.i(f'v_mul_u32_u24 {t2}, 40960, {t2}')
            k.i(f'v_lshl_add_u32 {t1}, {t1}, 7, {t2}')
            k.i(f'buffer_load_dword {t3}, {t1}, {sws}, {sw4} offen')
        if J % 2 == 0 and J >= 2 and J // 2 + 3 < 10:
            w3(J // 2 + 3)
        if J == 8 and os.environ.get('CPF', '1') == '1':
            mk_ = k.mark()
            k.i(f's_cmp_lg_u32 {wave}, 5')
            k.i('s_cbranch_scc1 m_nocpf')
            code_pf('m_p3epi', 'm_l2', 'a')
            k.raw('m_nocpf:')
            k._join()
            k.release(mk_)
        if J == 16:
            w4(0)
        if J == 17:
            w4(1)
    k.ts()
    k.i('s_barrier')
    k.i('s_barrier')
    w4(2)
    w4(3)
    w4(4)
    k.ts()
    k.i(f's_lshr_b32 {st2}, {mt2}, 1')
    sel = k.s()
    k.i(f's_mov_b32 {sel}, {st2}')
    poll(12288, sel)
    k.i('s_barrier')
    k.ts()
    x4(0)
    x4(1)
    for s in range(NS4):
        k.wait_tag(f'w4_{s}')
        k.wait_tag(f'x4_{s}')
        k.i('s_barrier')
        if s in (0, 7):
            k.ts()
        if s + 2 < NS4:
            x4(s + 2)
        if s >= 1 and s + 4 < NS4:
            w4(s + 4)
    k.ts()
    k.i('s_barrier')
    k.ts_end()
    k.label('p1_end')
    k.i('s_endpgm')
    return k, 256, 512, 163840


GENS = [gen_main]
```

```python
import os, sys
from g2_common import *
if os.environ.get('TS'):
    Kernel.TS = True
import g8_main
gens = [g8_main.gen_main]
HEADER = '''; adaLN + hedgehog linear attention + GEGLU FFN, gfx950. Generated by my own generator scripts.
; Kernarg: 0 A_x, 8 A_wqkv, 16 A_w_phi, 24 A_wo, 32 B_x, 40 B_w_gate, 48 B_w_up, 56 B_w_down, 64 c, 72 w_mod, 80 out, 88 debug, 96 ws'''.split('\n')
n = int(sys.argv[2]) if len(sys.argv) > 2 else len(gens)
ks, launches = [], []
for g in gens[:n]:
    k, grid, block, lds = g()
    ks.append(k)
    launches.append((k.name, grid, block, lds))
    print(k.name, 'vgpr', k.hi_v, 'agpr', k.hi_a, 'sgpr', k.hi_s, 'instr', k.ninstr, 'lds', lds, file=sys.stderr)
open(sys.argv[1], 'w').write(build_file(HEADER, launches, ks))
```

```python
import os
from g2_common import *

SPIN_MAX = 400000
KNAME = 'adaLN_cond__linear_kernel_hedgehog__geglu_ffn__prompt_kernel'
C2, G2, C3, G3, C1G, C1T, G1, CW = 0, 4096, 8192, 12288, 16384, 20480, 24576, 28672


def R_(base, n):
    return R('v', base, n)


def gen_main():
    k = Kernel(KNAME)
    TSX = os.environ.get('TSX')

    def tsx():
        if TSX == '1':
            k.ts()

    def tsz():
        if TSX == '3':
            k.ts()

    def tsy(c=True):
        if TSX == '2' and c:
            k.ts()

    c = common_prologue(k, 256, 'p1_end', 0)
    lane, G, n, l16, wave = c.lane, c.G, c.n, c.l16, c.wave
    KPS, LA, NST, NSL = 1, int(os.environ.get('P1_LA', 4)), 20, 8
    LQK, LV, LPK, LSIDE, LCS = 0, 129024, 40960, 141824, 0
    WOFB = 57344
    LMOD = 162304
    LWDF = 40960
    LCNT = 163840 - 64
    sx, sy, so, st1, st2 = k.s(), k.s(), k.s(), k.s(), k.s()
    mt2, nt2, mt3, nt3 = k.s(), k.s(), k.s(), k.s()
    px, po = k.s(2), k.s(2)
    rot2 = k.s()
    swo_p = k.s()
    sdw = k.s()
    t1, t2, t3 = k.v(), k.v(), k.v()
    sws = k.s(4)
    mk_common = k.mark()

    def code_pf(lab_from, lab_to, tag):
        pc = k.s(2)
        k.lines.append(f'  s_getpc_b64 {pc}')
        k.lines.append(f'm_pc{tag}:')
        k.lines.append(f'  s_add_u32 {pc[0]}, {pc[0]}, {lab_from}-m_pc{tag}')
        k.lines.append(f'  s_addc_u32 {pc[1]}, {pc[1]}, ({lab_from}-m_pc{tag})>>32')
        k.i(f'v_lshlrev_b32 {t1}, 12, {lane}')
        k.i(f's_lshl_b32 {so}, {sy}, 7')
        k.i(f'v_add_u32 {t1}, {so}, {t1}')
        k.lines.append(f'  v_cmp_gt_u32 vcc, {lab_to}-{lab_from}-4, {t1}')
        k.lines.append(f'  s_and_saveexec_b64 {k.s(2)}, vcc')
        k.lines.append(f'  s_cbranch_execz m_pcx{tag}')
        k.lines.append(f'  global_load_dword {t2}, {t1}, {pc}')
        k.lines.append(f'm_pcx{tag}:')
        k.i('s_mov_b64 exec, -1')

    mt, hp = k.s(), k.s()
    k.i(f's_and_b32 {sx}, s2, 7')
    k.i(f's_lshr_b32 {sy}, s2, 3')
    k.i(f's_lshr_b32 {mt}, {sx}, 1')
    k.i(f's_lshl_b32 {mt}, {mt}, 2')
    k.i(f's_and_b32 {hp}, {sy}, 3')
    k.i(f's_add_u32 {mt}, {mt}, {hp}')
    k.i(f's_and_b32 {hp}, {sx}, 1')
    k.i(f's_lshl_b32 {hp}, {hp}, 3')
    k.i(f's_lshr_b32 {so}, {sy}, 2')
    k.i(f's_add_u32 {hp}, {hp}, {so}')
    hw, sg_, sm0 = k.s(), k.s(), k.s()
    k.i(f's_and_b32 {hw}, {wave}, 3')
    k.i(f's_mul_i32 {sg_}, {hp}, 163840')
    k.i(f's_add_u32 {sg_}, {sg_}, {WS_WP}')
    k.i(f's_mul_i32 {so}, {mt}, 163840')
    k.i(f's_add_u32 {so}, {so}, {WS_XN - 8192}')
    k.i(f's_cmp_ge_u32 {hw}, 2')
    k.i(f's_cselect_b32 {sg_}, {so}, {sg_}')
    k.i(f's_lshl_b32 {sm0}, {hw}, 12')
    k.i(f's_add_u32 {sg_}, {sg_}, {sm0}')
    k.i(f's_mov_b32 {sws[0]}, {c.ws[0]}')
    k.i(f's_and_b32 {sws[1]}, {c.ws[1]}, 0xffff')
    k.i(f's_mov_b32 {sws[2]}, {WS_END}')
    k.i(f's_mov_b32 {sws[3]}, 0x00020000')

    cur1 = k.s()
    if os.environ.get('ROT1', '0') == '1':
        k.i(f's_and_b32 {cur1}, {hp}, 7')
        k.i(f's_mul_i32 {cur1}, {cur1}, 5')
        k.i(f's_lshr_b32 {cur1}, {cur1}, 1')
        k.i(f's_and_b32 {so}, {mt}, 3')
        k.i(f's_mul_i32 {so}, {so}, 5')
        k.i(f's_add_u32 {cur1}, {cur1}, {so}')
        k.i(f's_cmp_ge_u32 {cur1}, 20')
        k.i(f's_cselect_b32 {so}, 20, 0')
        k.i(f's_sub_u32 {cur1}, {cur1}, {so}')
        k.i(f's_lshl_b32 {cur1}, {cur1}, 13')
    else:
        k.i(f's_mov_b32 {cur1}, 0')

    def dma_stage(s):
        k.i(f's_add_u32 {st1}, {sg_}, {cur1}')
        k.i(f's_add_u32 {cur1}, {cur1}, 8192')
        k.i(f's_cmp_eq_u32 {cur1}, 163840')
        k.i(f's_cselect_b32 {cur1}, 0, {cur1}')
        k.i(f's_add_u32 m0, {sm0}, {(s % 8) * 16384}')
        for i in range(4):
            k.i(f'buffer_load_dwordx4 {l16}, {sws}, {st1} offen offset:{1024 * i} lds', tag=f'w{s}')

    FHC, FHG, FWC, FWG, CD = C2 + 128, G2 + 128, C3 + 128, G3 + 128, CW + 128
    XB = 131072
    WS_REP = 0x00C0000
    tid = k.v()
    hwv, half, lbase, sbt = hw, k.s(), k.s(), k.s()
    jt0, ji0, jt1, ji1, sfl = k.s(), k.s(), k.s(), k.s(), k.s()
    pdb = k.s(2)
    sdb = k.s(4)
    k.i(f's_load_dwordx2 {pdb}, s[0:1], {KA_DBG}')
    k.i(f's_load_dwordx2 {px}, s[0:1], {KA_X}')
    k.i(f's_load_dwordx2 {po}, s[0:1], {KA_OUT}')
    k.i(f'v_and_b32 {tid}, 255, v0')
    k.i(f's_lshr_b32 {half}, {wave}, 2')
    k.i(f's_lshl_b32 {lbase}, {half}, 14')
    k.i(f's_add_u32 {lbase}, {lbase}, 40960')
    k.i(f's_mov_b32 {sbt}, 0')
    k.i(f'v_lshlrev_b32 {t1}, 2, {n}')
    k.i(f'v_add_u32 {t1}, {LCNT}, {t1}')
    k.i(f'v_mov_b32 {t2}, 0')
    k.i(f'ds_write_b32 {t1}, {t2}')
    def setj(t0, i0, t1_, i1):
        k.i(f's_mov_b32 {jt0}, {t0}')
        k.i(f's_add_u32 {ji0}, s2, {i0}')
        k.i(f's_mov_b32 {jt1}, {t1_}')
        k.i(f's_add_u32 {ji1}, s2, {i1}')
    k.i(f's_mov_b32 {sfl}, 0')
    k.i(f's_cmp_eq_u32 {half}, 1')
    k.i('s_cbranch_scc1 m_jh1')
    setj(1, 0, 1, 80)
    k.i('s_cmp_lt_u32 s2, 48')
    k.i('s_cbranch_scc1 m_jd')
    setj(2, -48, 0, 0)
    k.i('s_cmp_lt_u32 s2, 80')
    k.i(f's_cselect_b32 {sfl}, 1, 0')
    k.i('s_cmp_lt_u32 s2, 176')
    k.i('s_cbranch_scc1 m_jd')
    setj(3, -176, 0, 0)
    k.i('s_branch m_jd')
    k.raw('m_jh1:')
    k.i(f's_mov_b32 {sfl}, 1')
    setj(5, 0, 1, 128)
    k.i('s_cmp_eq_u32 s2, 0')
    k.i(f's_cselect_b32 {sfl}, 0, 1')
    k.i('s_cmp_lt_u32 s2, 48')
    k.i('s_cbranch_scc1 m_jd')
    setj(1, 0, 0, 0)
    k.i(f's_mov_b32 {sfl}, 0')
    k.i('s_cmp_lt_u32 s2, 80')
    k.i('s_cbranch_scc1 m_jd')
    k.i(f's_mov_b32 {sfl}, 1')
    setj(1, 96, 0, 0)
    k.i('s_cmp_lt_u32 s2, 144')
    k.i('s_cbranch_scc1 m_jd')
    setj(4, -9, 0, 0)
    k.i('s_cmp_lt_u32 s2, 194')
    k.i('s_cbranch_scc1 m_jd')
    setj(0, 0, 0, 0)
    k.i('s_cmp_lt_u32 s2, 248')
    k.i('s_cbranch_scc1 m_jd')
    k.i(f's_mov_b32 {sfl}, 0')
    setj(7, 0, 0, 0)
    k.raw('m_jd:')
    k.i(f's_mov_b32 {sdb[0]}, {pdb[0]}')
    k.i(f's_and_b32 {sdb[1]}, {pdb[1]}, 0xffff')
    k.i(f's_mov_b32 {sdb[2]}, 256')
    k.i(f's_mov_b32 {sdb[3]}, 0x00020000')
    rv0 = k.v()
    srep = k.s()
    k.i(f's_and_b32 {srep}, s2, 31')
    k.i(f's_lshl_b32 {srep}, {srep}, 8')
    k.i(f's_add_u32 {srep}, {srep}, {WS_REP}')
    k.i(f'v_mov_b32 {t2}, 0')
    k.lines.append(f'  buffer_load_dword {rv0}, {t2}, {sws}, {srep} offen sc1')
    init_at = len(k.lines)
    k.barrier()
    k.i(f's_cmp_eq_u32 {sfl}, 0')
    k.i('s_cbranch_scc1 m_disp')
    k.raw('m_setup:')
    k.reset_state()
    k.i(f's_lshl_b32 {mt2}, {sx}, 2')
    k.i(f's_and_b32 {nt2}, {sy}, 3')
    k.i(f's_add_u32 {mt2}, {mt2}, {nt2}')
    k.i(f's_lshr_b32 {nt2}, {sy}, 2')
    k.i(f's_lshr_b32 {mt3}, {sx}, 2')
    k.i(f's_lshl_b32 {mt3}, {mt3}, 3')
    k.i(f's_and_b32 {nt3}, {sy}, 7')
    k.i(f's_add_u32 {mt3}, {mt3}, {nt3}')
    k.i(f's_and_b32 {nt3}, {sx}, 3')
    k.i(f's_lshl_b32 {nt3}, {nt3}, 2')
    k.i(f's_lshr_b32 {so}, {sy}, 3')
    k.i(f's_add_u32 {nt3}, {nt3}, {so}')
    k.i(f's_mov_b32 {rot2}, 0')
    sty, srowA, srowB, sdst, scol, ks, p_ = k.s(), k.s(), k.s(), k.s(), k.s(), k.s(), k.s()
    ssd = k.s(4)
    mk_tmp = k.mark()
    ska, sstr, cblk, u2, q_, t_, t2_ = k.s(), k.s(), k.s(), k.s(), k.s(), k.s(), k.s()
    k.i(f's_mul_i32 {ks}, s2, 1214')
    k.i(f's_lshr_b32 {ks}, {ks}, 16')
    k.i(f's_mul_i32 {t_}, {ks}, 54')
    k.i(f's_sub_u32 {cblk}, s2, {t_}')
    k.i(f's_mov_b32 {sdw}, 0')
    k.i(f's_cmp_lt_u32 {wave}, 5')
    k.i(f's_cbranch_scc1 m_sd_wgu')
    k.i(f's_mul_i32 {u2}, s2, 3')
    k.i(f's_add_u32 {u2}, {u2}, {wave}')
    k.i(f's_sub_u32 {u2}, {u2}, 5')
    k.i(f's_min_u32 {ks}, {ks}, 3')
    k.i(f's_cmp_lt_u32 {u2}, 540')
    k.i(f's_cselect_b32 {sty}, 1, 3')
    k.i(f's_min_u32 {u2}, {u2}, 539')
    k.i(f's_mul_i32 {q_}, {u2}, 6554')
    k.i(f's_lshr_b32 {q_}, {q_}, 16')
    k.i(f's_mul_i32 {t_}, {q_}, 10')
    k.i(f's_sub_u32 {t_}, {u2}, {t_}')
    k.i(f's_lshl_b32 {scol}, {t_}, 7')
    k.i(f's_mul_i32 {sdst}, {q_}, 40')
    k.i(f's_lshl_b32 {t_}, {t_}, 2')
    k.i(f's_add_u32 {sdst}, {sdst}, {t_}')
    k.i(f's_lshl_b32 {sdst}, {sdst}, 10')
    k.i(f's_add_u32 {sdst}, {sdst}, {WS_WDF}')
    k.i(f's_cmp_eq_u32 {sty}, 1')
    k.i(f's_cselect_b32 {sdw}, {sdst}, 0')
    k.i(f's_sub_u32 {t_}, {q_}, 8')
    k.i(f's_and_b32 {t_}, {t_}, 63')
    k.i(f's_mul_i32 {p_}, {t_}, 86')
    k.i(f's_lshr_b32 {p_}, {p_}, 8')
    k.i(f's_lshl_b32 {srowA}, {t_}, 1')
    k.i(f's_add_u32 {srowA}, {srowA}, {p_}')
    k.i(f's_add_u32 {srowB}, {srowA}, 1')
    k.i(f's_mul_i32 {t_}, {q_}, 14')
    k.i(f's_add_u32 {t2_}, {t_}, 13')
    k.i(f's_min_u32 {t2_}, {t2_}, 107')
    k.i(f's_add_u32 {t_}, {t_}, 6')
    k.i(f's_cmp_lt_u32 {q_}, 8')
    k.i(f's_cselect_b32 {srowA}, {t_}, {srowA}')
    k.i(f's_cselect_b32 {srowB}, {t2_}, {srowB}')
    k.i(f's_mov_b32 {ska}, {KA_WD}')
    k.i(f's_mov_b32 {sstr}, 1280')
    k.i(f's_branch m_sd_done')
    k.raw('m_sd_wgu:')
    k.i(f's_cmp_ge_u32 s2, 216')
    k.i(f's_cselect_b32 {t_}, 100, {wave}')
    k.i(f's_cmp_lt_u32 {t_}, 5')
    k.i(f's_cselect_b32 {sty}, 0, 3')
    k.i(f's_min_u32 {ks}, {ks}, 3')
    k.i(f's_lshl_b32 {t2_}, {wave}, 2')
    k.i(f's_lshr_b32 {t2_}, 0x47520, {t2_}')
    k.i(f's_and_b32 {t2_}, {t2_}, 15')
    k.i(f's_mul_i32 {srowA}, {ks}, 10')
    k.i(f's_add_u32 {srowA}, {srowA}, {t2_}')
    k.i(f's_cmp_eq_u32 {wave}, 4')
    k.i(f's_cselect_b32 {t2_}, 5, 1')
    k.i(f's_add_u32 {srowB}, {srowA}, {t2_}')
    k.i(f's_cmp_ge_u32 {cblk}, 27')
    k.i(f's_cselect_b32 {ska}, {KA_WU}, {KA_WG}')
    k.i(f's_cselect_b32 {t_}, 27, 0')
    k.i(f's_cselect_b32 {t2_}, 112, 0')
    k.i(f's_sub_u32 {t_}, {cblk}, {t_}')
    k.i(f's_lshl_b32 {scol}, {t_}, 7')
    k.i(f's_lshl_b32 {t_}, {t_}, 2')
    k.i(f's_add_u32 {p_}, {t_}, {t2_}')
    k.i(f's_mul_i32 {sdst}, {ks}, 5')
    k.i(f's_add_u32 {sdst}, {sdst}, {wave}')
    k.i(f's_mul_i32 {sdst}, {sdst}, 224')
    k.i(f's_add_u32 {sdst}, {sdst}, {p_}')
    k.i(f's_lshl_b32 {sdst}, {sdst}, 10')
    k.i(f's_add_u32 {sdst}, {sdst}, {WS_WGU}')
    k.i(f's_mov_b32 {sstr}, {F * 2}')
    k.raw('m_sd_done:')
    k.i(f's_load_dwordx2 {ssd[0:2]}, s[0:1], {ska}')
    k.i(f's_lshl_b32 {srowA}, {srowA}, 4')
    k.i(f's_lshl_b32 {srowB}, {srowB}, 4')
    SA = k.v(4, align=1)
    k.i(f'v_and_b32 {t3}, 7, {lane}')
    k.i(f'v_lshlrev_b32 {t3}, 4, {t3}')
    k.i(f'v_lshrrev_b32 {t1}, 3, {lane}')
    for i in range(4):
        k.i(f'v_add_u32 {t2}, {srowA if i < 2 else srowB}, {t1}')
        if i & 1:
            k.i(f'v_add_u32 {t2}, 8, {t2}')
        k.i(f'v_mul_lo_u32 {t2}, {t2}, {sstr}')
        k.i(f'v_add_u32 {SA[i]}, {t2}, {t3}')
    k.ns = mk_tmp[2]
    E = Ctx()
    PR = k.v(16, align=1)
    E.sq, E.skv = k.s(), k.s()
    hh, ft = k.s(), k.s()

    def epi_addr(tmp):
        hq, qa, ql, ka = tmp[0], PR[0], PR[1], PR[2]
        sq = E.sq
        E.qa, E.ql, E.ka, E.qk_a, E.sgl, E.ka2 = qa, ql, ka, PR[3], PR[14], PR[15]
        hd, sg = tmp[2], tmp[3]
        k.i(f'v_and_b32 {hd}, 1, {G}')
        k.i(f'v_lshrrev_b32 {sg}, 1, {G}')
        k.i(f'v_lshlrev_b32 {PR[14]}, 31, {sg}')
        k.i(f'v_xor_b32 {PR[14]}, {fhex(LOG2E)}, {PR[14]}')
        k.i(f's_lshl_b32 {so}, {hp}, 1')
        k.i(f'v_add_u32 {hq}, {so}, {hd}')
        k.i(f'v_and_b32 {tmp[4]}, 15, {hq}')
        k.i(f'v_lshrrev_b32 {tmp[5]}, 4, {hq}')
        k.i(f'v_lshlrev_b32 {tmp[5]}, 10, {tmp[5]}')
        k.i(f'v_lshl_add_u32 {tmp[5]}, {n}, 4, {tmp[5]}')
        k.i(f'v_lshl_add_u32 {qa}, {tmp[4]}, 13, {tmp[5]}')
        k.i(f'v_lshl_add_u32 {qa}, {sg}, 9, {qa}')
        k.i(f'v_lshrrev_b32 {ql}, 2, {tmp[4]}')
        k.i(f'v_add_u32 {ql}, 16, {ql}')
        k.i(f'v_lshl_add_u32 {ql}, {ql}, 13, {tmp[5]}')
        k.i(f'v_and_b32 {tmp[4]}, 3, {hq}')
        k.i(f'v_lshl_add_u32 {ql}, {tmp[4]}, 8, {ql}')
        k.i(f'v_lshl_add_u32 {ql}, {sg}, 3, {ql}')
        k.i(f'v_mul_u32_u24 {ka}, 160, {n}')
        k.i(f'v_mul_u32_u24 {tmp[4]}, 80, {hd}')
        k.i(f'v_add_u32 {ka}, {ka}, {tmp[4]}')
        k.i(f's_mul_i32 {so}, {wave}, 2560')
        k.i(f's_add_u32 {so}, {so}, {LPK}')
        k.i(f'v_add_u32 {ka}, {so}, {ka}')
        k.i(f'v_lshl_add_u32 {PR[15]}, {sg}, 3, {ka}')
        k.i(f'v_add_u32 {PR[15]}, 64, {PR[15]}')
        k.i(f'v_lshl_add_u32 {ka}, {sg}, 5, {ka}')
        k.i(f's_lshl_b32 {sq}, {mt}, 1')
        k.i(f's_lshr_b32 {so}, {wave}, 2')
        k.i(f's_add_u32 {sq}, {sq}, {so}')
        k.i(f's_mul_i32 {sq}, {sq}, 163840')
        k.i(f's_and_b32 {so}, {wave}, 3')
        k.i(f's_lshl_b32 {so}, {so}, 11')
        k.i(f's_add_u32 {sq}, {sq}, {so}')
        k.i(f's_add_u32 {sq}, {sq}, {WS_PHIQ}')
        k.i(f's_mul_i32 {so}, {wave}, 5120')
        k.i(f's_add_u32 {so}, {so}, {LQK}')
        k.i(f'v_lshlrev_b32 {PR[3]}, 8, {hd}')
        k.i(f'v_lshl_add_u32 {PR[3]}, {n}, 4, {PR[3]}')
        k.i(f'v_add_u32 {PR[3]}, {so}, {PR[3]}')
        k.i(f's_cmp_ge_u32 {wave}, 3')
        k.i(f's_cselect_b32 {hh}, 1, 0')
        k.i(f's_mul_i32 {ft}, {hh}, 3')
        k.i(f's_sub_u32 {ft}, {wave}, {ft}')
        tb, ta = PR[4], PR[5]
        E.tb, E.ta = tb, ta
        rr_, cc_ = tmp[4], tmp[5]
        k.i(f'v_lshrrev_b32 {rr_}, 2, {lane}')
        k.i(f'v_and_b32 {cc_}, 3, {lane}')
        k.i(f'v_mul_u32_u24 {tb}, 160, {rr_}')
        k.i(f'v_lshl_add_u32 {tb}, {cc_}, 3, {tb}')
        k.i(f's_mul_i32 {so}, {hh}, 80')
        k.i(f's_lshl_b32 {st1}, {ft}, 5')
        k.i(f's_add_u32 {so}, {so}, {st1}')
        k.i(f's_add_u32 {so}, {so}, {LPK}')
        k.i(f'v_add_u32 {tb}, {so}, {tb}')
        k.i(f'v_mul_u32_u24 {ta}, 96, {rr_}')
        k.i(f'v_lshl_add_u32 {ta}, {cc_}, 3, {ta}')
        k.i(f's_lshl_b32 {so}, {hh}, 5')
        k.i(f's_add_u32 {so}, {so}, {LV}')
        k.i(f'v_add_u32 {ta}, {so}, {ta}')
        aa = PR[6:14]
        E.aa = aa
        fo, dr = tmp[6], tmp[7]
        k.i(f's_lshl_b32 {so}, {ft}, 4')
        k.i(f'v_add_u32 {fo}, {so}, {n}')
        k.i(f'v_cmp_lt_u32 vcc, 39, {fo}')
        k.i(f'v_lshlrev_b32 {fo}, 2, {fo}')
        big = tmp[1]
        k.i(f'v_mov_b32 {big}, 0x7f000000')
        k.i(f'v_cndmask_b32 {fo}, {fo}, {big}, vcc')
        k.i(f's_lshl_b32 {so}, {hh}, 3')
        for dt in range(2):
            for r in range(4):
                a = aa[dt * 4 + r]
                k.i(f'v_lshlrev_b32 {dr}, 2, {G}')
                k.i(f'v_add_u32 {dr}, {16 * dt + r}, {dr}')
                k.i(f'v_subrev_u32 {dr}, {so}, {dr}')
                k.i(f'v_cmp_lt_u32 vcc, 20, {dr}')
                k.i(f'v_mul_u32_u24 {a}, 160, {dr}')
                k.i(f'v_add_u32 {a}, {a}, {fo}')
                k.i(f'v_cndmask_b32 {a}, {a}, {big}, vcc')
        skv = E.skv
        k.i(f's_lshl_b32 {skv}, {hp}, 1')
        k.i(f's_add_u32 {skv}, {skv}, {hh}')
        k.i(f's_mul_i32 {skv}, {skv}, {KVS}')
        k.i(f's_add_u32 {skv}, {skv}, {WS_KV}')

    swo = swo_p
    k.i(f's_mul_i32 {swo}, {nt2}, 5120')
    k.i(f's_add_u32 {swo}, {swo}, {WS_WOF}')

    def wof_jj(sbase, add):
        k.i(f's_add_u32 {st2}, {sbase}, {add}')
        k.i(f's_lshr_b32 {so}, {st2}, 1')
        k.i(f's_and_b32 {st1}, {st2}, 1')
        k.i(f's_mul_i32 {st1}, {st1}, 10')
        k.i(f's_add_u32 {so}, {so}, {st1}')
        k.i(f's_mul_i32 {so}, {so}, 40960')
        k.i(f's_add_u32 {so}, {so}, {swo}')
        k.i(f's_add_u32 {st2}, {st2}, 2')
        k.i(f's_cmp_ge_u32 {st2}, 20')
        k.i(f's_cselect_b32 {st1}, 20, 0')
        k.i(f's_sub_u32 {st2}, {st2}, {st1}')
        k.i(f's_mul_i32 {st1}, {st2}, 5120')
        k.i(f's_add_u32 {st1}, {st1}, {WOFB}')
        k.i(f's_and_b32 {st2}, {mt2}, 3')
        k.i(f's_lshl_b32 {st2}, {st2}, 10')
        for cc in range(5):
            k.i(f's_add_u32 m0, {st1}, {st2}')
            k.i(f's_add_u32 {rot2}, {so}, {st2}')
            k.i(f'buffer_load_dwordx4 {l16}, {sws}, {rot2} offen lds', tag='wof')
            if cc < 4:
                k.i(f's_add_u32 {st2}, {st2}, 1024')
                k.i(f's_cmp_eq_u32 {st2}, 5120')
                k.i(f's_cselect_b32 {st2}, 0, {st2}')

    mk_p1 = k.mark()
    RR = k.v(168)
    epi_addr(RR[0:8])
    k.i(f's_and_b32 {ssd[1]}, {ssd[1]}, 0xffff')
    k.i(f's_mov_b32 {ssd[2]}, {D * F * 2}')
    k.i(f's_mov_b32 {ssd[3]}, 0x00020000')
    k.release(mk_p1)
    k.wait(lg=0)
    ini = [f'  s_mov_b32 {ssd[0]}, {sws[0]}', f'  s_mov_b32 {ssd[1]}, {sws[1]}', f'  s_mov_b32 {ssd[2]}, 0', f'  s_mov_b32 {ssd[3]}, 0x00020000']
    ini += [f'  v_mov_b32 {SA[i]}, 0' for i in range(4)] + [f'  v_mov_b32 {PR[i]}, 0' for i in range(16)]
    k.lines[init_at:init_at] = ini
    k.i(f's_cmp_eq_u32 {sfl}, 2')
    k.i('s_cbranch_scc1 m_main')
    mk_job = k.mark()

    def lds_spin(addr, target_s, name):
        k.i(f'v_mov_b32 {t1}, {addr}') if isinstance(addr, int) else None
        k.i(f's_mov_b32 {st1}, 0')
        k.raw(f'{name}:')
        for x in [f'ds_read_b32 {t3}, {t1}', 's_waitcnt lgkmcnt(0)', f'v_readfirstlane_b32 {st2}, {t3}', f's_add_u32 {st1}, {st1}, 1',
                  f's_cmp_ge_u32 {st1}, {SPIN_MAX * 2}', f's_cbranch_scc1 {name}_d', f's_cmp_ge_u32 {st2}, {target_s}', f's_cbranch_scc1 {name}_d', 's_sleep 1', f's_branch {name}']:
            k.lines.append('  ' + x)
        k.raw(f'{name}_d:')
        k._join()
        k.lg = []

    T1, T2, T3 = t1, t2, t3

    def subbar():
        nm = k.newlabel('sb')
        if k.lg:
            k._emit_wait(lg=0)
        k.i(f's_add_u32 {sbt}, {sbt}, 4')
        k.i(f's_lshl_b32 {st1}, {half}, 2')
        k.i(f's_add_u32 {st1}, {st1}, {LCNT + 16}')
        k.i(f'v_mov_b32 {T1}, {st1}')
        k.i(f'v_mov_b32 {T2}, 1')
        k.i('s_mov_b32 exec_lo, 1')
        k.i('s_mov_b32 exec_hi, 0')
        k.i(f'ds_add_u32 {T1}, {T2}')
        lds_spin(None, sbt, nm)
        k.i('s_mov_b64 exec, -1')

    def gpoll(srd, soff, voff, name, two=False, sleep=4):
        k.i(f'v_mov_b32 {T1}, {voff}')
        k.i(f's_mov_b32 {st1}, 0')
        pv2 = k.v(2)
        k.raw(f'{name}:')
        L = [f'buffer_load_dwordx2 {pv2}, {T1}, {srd}, {soff} offen sc1', 's_waitcnt vmcnt(0)']
        if two:
            L += [f'v_and_b32 {pv2[0]}, {pv2[0]}, {pv2[1]}', 's_nop 0']
        L += [f'v_readfirstlane_b32 {st2}, {pv2[0]}', f's_add_u32 {st1}, {st1}, 1', f's_cmp_ge_u32 {st1}, {SPIN_MAX}',
              f's_cbranch_scc1 {name}_d', f's_cmp_lg_u32 {st2}, 0', f's_cbranch_scc1 {name}_d', f's_sleep {sleep}', f's_branch {name}']
        for x in L:
            k.lines.append('  ' + x)
        k.raw(f'{name}_d:')
        k._join()
        k.vm = []

    def zcheck(nm, sleep):
        k.i(f'v_mov_b32 {T1}, {LCNT + 32}')
        k.i(f'ds_read_b32 {T3}, {T1}')
        k.i(f'v_readfirstlane_b32 {st2}, {T3}')
        k.i(f's_cmp_lg_u32 {st2}, 0')
        k.i(f's_cbranch_scc1 {nm}_s')
        pv2 = k.v(2)
        k.i(f'v_mov_b32 {T1}, 0')
        k.i(f's_mov_b32 {st1}, 0')
        k.raw(f'{nm}:')
        for x in [f'buffer_load_dword {T3}, {T1}, {sws}, {srep} offen sc1', 's_waitcnt vmcnt(0)', f'v_sub_u32 {T3}, {T3}, {rv0}', 's_nop 0',
                  f'v_readfirstlane_b32 {st2}, {T3}', f's_cmp_eq_u32 {st2}, 2', f's_cbranch_scc1 {nm}_d',
                  f's_add_u32 {st1}, {st1}, 1', f's_cmp_ge_u32 {st1}, {SPIN_MAX}', f's_cbranch_scc1 {nm}_d',
                  f's_and_b32 {st2}, {st1}, 15', f's_cmp_lg_u32 {st2}, 0', f's_cbranch_scc1 {nm}_n',
                  f'buffer_load_dwordx2 {pv2}, {T1}, {sdb}, 0 offen offset:128 sc1', 's_waitcnt vmcnt(0)',
                  f'v_and_b32 {pv2[0]}, {pv2[0]}, {pv2[1]}', 's_nop 0', f'v_readfirstlane_b32 {st2}, {pv2[0]}',
                  f's_cmp_lg_u32 {st2}, 0', f's_cbranch_scc1 {nm}_d', f'{nm}_n:', f's_sleep {sleep}', f's_branch {nm}']:
            k.lines.append(x if x.endswith(':') else '  ' + x)
        k.raw(f'{nm}_d:')
        k._join()
        k.i(f'v_mov_b32 {T1}, {LCNT + 32}')
        k.i(f'v_mov_b32 {T2}, 1')
        k.i(f'ds_write_b32 {T1}, {T2}')
        k.raw(f'{nm}_s:')
        k._join()
        k.lines.append('  s_waitcnt lgkmcnt(0)')
        k.lg = []

    def pollA():
        k.i(f's_cmp_lg_u32 {hwv}, 0')
        k.i('s_cbranch_scc1 m_pax')
        k.i('s_mov_b32 exec_lo, 1')
        k.i('s_mov_b32 exec_hi, 0')
        vmk = list(k.vm)
        zcheck('m_pa', 1)
        k.vm = vmk
        k.i('s_mov_b64 exec, -1')
        k.raw('m_pax:')
        k._join()
        subbar()

    def arrive(cnt, go, sel, target):
        nm = k.newlabel('ar')
        k.lines.append('  s_waitcnt vmcnt(0)')
        k.vm = []
        selk = k.s()
        k.i(f's_lshl_b32 {selk}, {sel}, 8')
        subbar()
        k.i(f's_cmp_lg_u32 {hwv}, 0')
        k.i(f's_cbranch_scc1 {nm}')
        k.i('s_mov_b32 exec_lo, 1')
        k.i('s_mov_b32 exec_hi, 0')
        zcheck(nm + 'z', 2)
        k.i(f's_add_u32 {selk}, {selk}, {WS_CNT + cnt}')
        k.i(f'v_mov_b32 {T1}, 0')
        k.i(f'v_mov_b32 {T2}, 1')
        for x in [f'buffer_atomic_add {T2}, {T1}, {sws}, {selk} offen sc0 sc1', 's_waitcnt vmcnt(0)', f'v_readfirstlane_b32 {st1}, {T2}',
                  f'v_mov_b32 {T2}, 1', f's_cmp_lg_u32 {st1}, {target - 1}', f's_cbranch_scc1 {nm}', f's_add_u32 {selk}, {selk}, {go - cnt}',
                  f'buffer_store_dword {T2}, {T1}, {sws}, {selk} offen sc1']:
            k.lines.append('  ' + x)
        k.raw(f'{nm}:')
        k._join()
        k.i('s_mov_b64 exec, -1')

    def tsj(i):
        if not k.TS:
            return
        nm = k.newlabel('tj')
        k.i(f's_cmp_eq_u32 {jt1}, 0')
        k.i(f's_cbranch_scc1 {nm}')
        k.ts_at(i)
        k.i(f's_branch {nm}x')
        k.raw(f'{nm}:')
        k.ts_at(4 + i)
        k.raw(f'{nm}x:')

    def job_gemv():
        pc, pw = k.s(2), k.s(2)
        k.i(f's_load_dwordx2 {pc}, s[0:1], {KA_C}')
        k.i(f's_load_dwordx2 {pw}, s[0:1], {KA_WMOD}')
        un, cb_, ks_, so = k.s(), k.s(), k.s(), k.s()
        k.i(f's_mov_b32 {un}, {ji0}')
        sc = k.srd(pc, D * 2)
        sw = k.srd(pw, D * 3840 * 2)
        k.i(f's_lshr_b32 {cb_}, {un}, 2')
        k.i(f's_and_b32 {ks_}, {un}, 3')
        rr, q, vo, vc = k.v(), k.v(), k.v(), k.v()
        k.i(f'v_lshrrev_b32 {rr}, 3, {tid}')
        k.i(f's_mul_i32 {so}, {ks_}, 160')
        k.i(f'v_add_u32 {rr}, {so}, {rr}')
        k.i(f'v_and_b32 {q}, 7, {tid}')
        k.i(f'v_mul_u32_u24 {vo}, 7680, {rr}')
        k.i(f'v_lshl_add_u32 {vo}, {q}, 4, {vo}')
        k.i(f's_lshl_b32 {so}, {cb_}, 7')
        k.i(f'v_add_u32 {vo}, {so}, {vo}')
        k.i(f'v_lshlrev_b32 {vc}, 1, {rr}')
        cv = k.v(5, align=1)
        wv = k.v(20)
        for i in range(5):
            k.i(f's_mov_b32 {so}, {32 * 7680 * i}')
            k.i(f'buffer_load_dwordx4 {wv[4 * i:4 * i + 4]}, {vo}, {sw}, {so} offen')
            if i == 0:
                for i2 in range(5):
                    k.i(f'buffer_load_ushort {cv[i2]}, {vc}, {sc}, 0 offen offset:{64 * i2}')
        acc = k.v(8, align=1)
        t1, t2 = k.v(), k.v()
        for i in range(5):
            c = cv[i]
            k.i(f'v_lshlrev_b32 {c}, 16, {c}')
            k.i(f'v_mul_f32 {t1}, {fhex(-LOG2E)}, {c}')
            k.i(f'v_exp_f32 {t1}, {t1}')
            k.i(f'v_add_f32 {t1}, 1.0, {t1}')
            k.i(f'v_rcp_f32 {t1}, {t1}')
            k.i(f'v_mul_f32 {c}, {c}, {t1}')
            round_bf16(k, c, c)
        for i in range(5):
            for j in range(4):
                w = wv[4 * i + j]
                k.i(f'v_lshlrev_b32 {t1}, 16, {w}')
                k.i(f'v_and_b32 {t2}, 0xffff0000, {w}')
                op = 'v_mul_f32' if i == 0 else 'v_fmac_f32'
                k.i(f'{op} {acc[2 * j]}, {t1}, {cv[i]}')
                k.i(f'{op} {acc[2 * j + 1]}, {t2}, {cv[i]}')
        tsj(0)
        for j in range(8):
            k.i(f'v_add_f32 {acc[j]}, {acc[j]}, {acc[j]} row_ror:8 {DPP}')
        la = k.v()
        k.i(f'v_lshrrev_b32 {la}, 4, {tid}')
        k.i(f'v_lshlrev_b32 {la}, 8, {la}')
        k.i(f'v_lshl_add_u32 {la}, {q}, 5, {la}')
        k.i(f'v_add_u32 {la}, {lbase}, {la}')
        a8 = k.v(8)
        for j in range(8):
            k.i(f'v_mov_b32 {a8[j]}, {acc[j]}')
        k.i('s_mov_b32 exec_lo, 0x00ff00ff')
        k.i('s_mov_b32 exec_hi, 0x00ff00ff')
        k.i(f'ds_write_b128 {la}, {a8[0:4]}')
        k.i(f'ds_write_b128 {la}, {a8[4:8]} offset:16')
        k.i('s_mov_b64 exec, -1')
        subbar()
        k.i(f's_cmp_lg_u32 {hwv}, 0')
        k.i('s_cbranch_scc1 p0_gemv_done')
        k.i(f'v_lshlrev_b32 {la}, 2, {tid}')
        lb2 = k.v()
        k.i(f'v_add_u32 {lb2}, {lbase}, {la}')
        pv = wv[0:16]
        for j in range(16):
            k.i(f'ds_read_b32 {pv[j]}, {lb2} offset:{256 * j}')
        for st in (8, 4, 2, 1):
            for j in range(st):
                k.i(f'v_add_f32 {pv[j]}, {pv[j]}, {pv[j + st]}')
        k.i(f's_mul_i32 {so}, {ks_}, 15360')
        k.i(f's_lshl_b32 {cb_}, {cb_}, 8')
        k.i(f's_add_u32 {so}, {so}, {cb_}')
        k.i(f's_add_u32 {so}, {so}, {WS_MODP}')
        k.i(f'buffer_store_dword {pv[0]}, {la}, {sws}, {so} offen sc1')
        k.i(f's_cmp_ge_u32 {un}, 80')
        k.i(f's_cbranch_scc1 p0_gemv_done')
        k.i(f's_and_b32 {cb_}, {un}, 1')
        k.i(f's_lshl_b32 {ks_}, {cb_}, 6')
        k.i(f's_lshl_b32 {cb_}, {cb_}, 2')
        k.i(f'v_mov_b32 {t1}, 1')
        k.i(f'v_mov_b32 {t2}, 0')
        k.i('s_mov_b32 exec_lo, 1')
        k.i('s_mov_b32 exec_hi, 0')
        k.wait(vm=0)
        k.lines.append(f'  buffer_atomic_add {t1}, {t2}, {sdb}, {ks_} offen sc0 sc1')
        k.lines.append('  s_waitcnt vmcnt(0)')
        k.lines.append(f'  v_readfirstlane_b32 {so}, {t1}')
        k.lines.append(f'  v_mov_b32 {t1}, 1')
        k.lines.append(f'  s_lshr_b32 {un}, {cb_}, 2')
        k.lines.append(f'  s_add_u32 {so}, {so}, {un}')
        k.lines.append(f'  s_cmp_lg_u32 {so}, 40')
        k.lines.append('  s_cbranch_scc1 p0_gemv_done')
        k.lines.append(f'  buffer_store_dword {t1}, {t2}, {sdb}, {cb_} offen offset:128 sc1')
        for x_ in ['s_mov_b32 exec_lo, -1', f'v_mov_b32 {T2}, 1', f'v_lshlrev_b32 {T1}, 8, {lane}', f's_mov_b32 {st1}, {WS_REP}', f'buffer_atomic_add {T2}, {T1}, {sws}, {st1} offen sc1']:
            k.lines.append('  ' + x_)
        k.raw('p0_gemv_done:')
        k._join()
        tsj(1)
        k.i('s_mov_b64 exec, -1')
        k.lines.append('  s_waitcnt lgkmcnt(0)')
        k.lg = []
        subbar()
        k.i(f'v_mov_b32 {t1}, {LCNT + 24}')
        k.i(f'v_mov_b32 {t2}, 1')
        k.i(f'ds_write_b32 {t1}, {t2}')

    def job_fold():
        pq, pp = k.s(2), k.s(2)
        k.i(f's_load_dwordx2 {pq}, s[0:1], {KA_WQKV}')
        k.i(f's_load_dwordx2 {pp}, s[0:1], {KA_WPHI}')
        bb, hg4, J = k.s(), k.s(), k.s()
        k.i(f's_and_b32 {hg4}, {ji0}, 3')
        k.i(f's_lshr_b32 {J}, {ji0}, 2')
        PHI, ZERO = 32768, 40448
        t1, t2, t3, t4 = k.v(), k.v(), k.v(), k.v()
        da = k.v(8, align=1)
        for i in range(8):
            k.i(f'v_add_u32 {t1}, {256 * i}, {tid}')
            if i == 7:
                k.i(f'v_min_u32 {t1}, 1919, {t1}')
            k.i(f'v_mul_u32_u24 {t2}, 2185, {t1}')
            k.i(f'v_lshrrev_b32 {t2}, 17, {t2}')
            k.i(f'v_mul_u32_u24 {t3}, 60, {t2}')
            k.i(f'v_sub_u32 {t1}, {t1}, {t3}')
            k.i(f'v_mov_b32 {t3}, 1920')
            k.i(f'v_mov_b32 {t4}, -320')
            k.i(f'v_cmp_gt_u32 vcc, 40, {t1}')
            k.i(f'v_cndmask_b32 {t3}, {t3}, {t4}, vcc')
            k.i(f'v_mov_b32 {t4}, 1280')
            k.i(f'v_cmp_gt_u32 vcc, 20, {t1}')
            k.i(f'v_cndmask_b32 {t3}, {t3}, {t4}, vcc')
            k.i(f'v_lshl_add_u32 {t3}, {t1}, 4, {t3}')
            k.i(f'v_mul_u32_u24 {t2}, 3840, {t2}')
            k.i(f'v_add_u32 {da[i]}, {t2}, {t3}')
        sq = k.srd(pq, D * 1920 * 2)
        sph = k.srd(pp, 32 * 400 * 2)
        so, so2 = k.s(), k.s()
        k.i(f's_mul_i32 {so}, {J}, {32 * 3840}')
        k.i(f's_mul_i32 {so2}, {hg4}, 320')
        k.i(f's_add_u32 {so}, {so}, {so2}')
        k.i(f's_lshl_b32 {so2}, {hwv}, 10')
        for i in range(8):
            k.i(f's_add_u32 m0, {so2}, {4096 * i}')
            k.i(f'buffer_load_dwordx4 {da[i]}, {sq}, {so} offen lds', tag='t')
        k.i(f's_mul_i32 {so}, {hg4}, 6400')
        k.i(f's_add_u32 {so}, {so}, {so2}')
        k.i(f's_add_u32 m0, {so2}, {PHI}')
        k.i(f'buffer_load_dwordx4 {l16}, {sph}, {so} offen lds', tag='t')
        k.i(f's_cmp_eq_u32 {hwv}, 3')
        k.i('s_cbranch_scc1 p0_nophi')
        k.i(f's_add_u32 {so}, {so}, 4096')
        k.i(f's_add_u32 m0, {so2}, {PHI + 4096}')
        k.i(f'buffer_load_dwordx4 {l16}, {sph}, {so} offen lds', tag='t')
        k.raw('p0_nophi:')
        k._join()
        k.i(f'v_lshlrev_b32 {t1}, 2, {lane}')
        k.i(f'v_mov_b32 {t2}, 0')
        k.i(f'ds_write_b32 {t1}, {t2} offset:{ZERO}')
        w80 = k.s()
        k.i(f's_mul_i32 {w80}, {hwv}, 80')
        aa = k.v(3, align=1)
        k.i(f'v_lshrrev_b32 {t1}, 2, {n}')
        k.i(f'v_lshlrev_b32 {t1}, 3, {t1}')
        k.i(f'v_and_b32 {t2}, 3, {n}')
        k.i(f'v_add_u32 {t1}, {t1}, {t2}')
        k.i(f'v_mul_u32_u24 {t1}, 960, {t1}')
        k.i(f'v_add_u32 {t1}, {w80}, {t1}')
        for s_ in range(3):
            k.i(f'v_add_u32 {t2}, {4 * s_}, {G}')
            k.i(f'v_min_u32 {t2}, 9, {t2}')
            k.i(f'v_cmp_lt_u32 vcc, 4, {t2}')
            k.i(f'v_mov_b32 {t4}, 240')
            k.i(f'v_cndmask_b32 {t3}, 0, {t4}, vcc')
            k.i(f'v_lshl_add_u32 {t3}, {t2}, 4, {t3}')
            k.i(f'v_add_u32 {aa[s_]}, {t1}, {t3}')
        ba = k.v(6, align=1)
        rp, cc = k.v(), k.v()
        k.i(f'v_lshrrev_b32 {rp}, 2, {n}')
        k.i(f'v_and_b32 {cc}, 3, {n}')
        hb = k.v()
        k.i(f'v_and_b32 {hb}, 1, {cc}')
        k.i(f'v_mul_u32_u24 {hb}, 800, {hb}')
        k.i(f's_mul_i32 {so}, {hwv}, 1600')
        k.i(f's_add_u32 {so}, {so}, {PHI}')
        k.i(f'v_add_u32 {hb}, {so}, {hb}')
        zr = k.v()
        k.i(f'v_mov_b32 {zr}, {ZERO}')
        k8 = k.v()
        k.i(f'v_lshl_add_u32 {k8}, {G}, 3, {rp}')
        for s_ in range(3):
            for hf in range(2):
                k.i(f'v_add_u32 {t1}, {32 * s_ + 4 * hf}, {k8}')
                k.i(f'v_mul_u32_u24 {t2}, 3277, {t1}')
                k.i(f'v_lshrrev_b32 {t2}, 16, {t2}')
                k.i(f'v_mul_u32_u24 {t3}, 20, {t2}')
                k.i(f'v_sub_u32 {t3}, {t1}, {t3}')
                k.i(f'v_mul_u32_u24 {t3}, 40, {t3}')
                k.i(f'v_add_u32 {t3}, {t3}, {hb}')
                k.i(f'v_cmp_eq_u32 vcc, {t2}, {cc}')
                k.i(f'v_cndmask_b32 {ba[2 * s_ + hf]}, {zr}, {t3}, vcc')
        va = k.v(6, align=1)
        k.i(f'v_mul_u32_u24 {t1}, 960, {k8}')
        k.i(f'v_add_u32 {t1}, 640, {t1}')
        k.i(f'v_add_u32 {t1}, {w80}, {t1}')
        for c3 in range(3):
            k.i(f'v_add_u32 {t2}, {4 * c3}, {cc}')
            k.i(f'v_cmp_lt_u32 vcc, 5, {t2}')
            k.i(f'v_cndmask_b32 {t3}, 0, 1, vcc')
            k.i(f'v_sub_u32 {t3}, {t2}, {t3}')
            k.i(f'v_lshl_add_u32 {t3}, {t3}, 3, {t1}')
            k.i(f'v_add_u32 {t4}, 3840, {t3}')
            if c3 >= 1:
                k.i(f'v_cmp_eq_u32 vcc, {5 if c3 == 1 else 11}, {t2}')
                k.i(f'v_cndmask_b32 {va[2 * c3]}, {t3}, {zr}, vcc')
                k.i(f'v_cndmask_b32 {va[2 * c3 + 1]}, {t4}, {zr}, vcc')
            else:
                k.i(f'v_mov_b32 {va[0]}, {t3}')
                k.i(f'v_mov_b32 {va[1]}, {t4}')
        k.lines.append('  s_waitcnt vmcnt(0)')
        k.vm = []
        subbar()
        k.ts_at(0)
        A = k.v(24)
        B = k.v(60)
        Vf = k.v(12)
        for p in range(2):
            for s_ in range(3):
                k.i(f'ds_read_b128 {A[(p * 3 + s_) * 4:(p * 3 + s_) * 4 + 4]}, {aa[s_]} offset:{p * 3840}')
        for ct in range(5):
            for s_ in range(3):
                for hf in range(2):
                    b_ = (ct * 3 + s_) * 4 + 2 * hf
                    k.i(f'ds_read_b64_tr_b16 {B[b_:b_ + 2]}, {ba[2 * s_ + hf]} offset:{8 * ct}')
        for c3 in range(3):
            for hf in range(2):
                k.i(f'ds_read_b64_tr_b16 {Vf[c3 * 4 + 2 * hf:c3 * 4 + 2 * hf + 2]}, {va[2 * c3 + hf]}')
        k.i(f's_lshl_b32 {so}, {hg4}, 2')
        k.i(f's_add_u32 {so}, {so}, {hwv}')
        k.i(f's_mul_i32 {so}, {so}, 20')
        k.i(f's_add_u32 {so}, {so}, {J}')
        k.i(f's_lshl_b32 {so}, {so}, 13')
        k.i(f's_add_u32 {so}, {so}, {WS_WP}')
        k.i(f's_add_u32 {so2}, {so}, 4096')
        Dm = k.v(16)
        o = k.v(8)
        STF = 'sc1'
        for ct in range(5):
            d8 = Dm[(ct & 1) * 8:(ct & 1) * 8 + 8]
            for p in range(2):
                d = d8[p * 4:p * 4 + 4]
                for s_ in range(3):
                    k.i(f'v_mfma_f32_16x16x32_bf16 {d}, {A[(p * 3 + s_) * 4:(p * 3 + s_) * 4 + 4]}, {B[(ct * 3 + s_) * 4:(ct * 3 + s_) * 4 + 4]}, {0 if s_ == 0 else d}')
            if ct >= 1:
                pd = Dm[((ct - 1) & 1) * 8:((ct - 1) & 1) * 8 + 8]
                oo = o[((ct - 1) & 1) * 4:((ct - 1) & 1) * 4 + 4]
                for j in range(4):
                    k.i(f'v_cvt_pk_bf16_f32 {oo[j]}, {pd[2 * j]}, {pd[2 * j + 1]}')
                k.i(f'buffer_store_dwordx4 {oo}, {l16}, {sws}, {so} offen offset:{(ct - 1) * 1024} {STF}')
        for c3 in range(3):
            k.i(f'buffer_store_dwordx4 {Vf[c3 * 4:c3 * 4 + 4]}, {l16}, {sws}, {so2} offen offset:{(c3 + 1) * 1024} {STF}')
        oo = o[0:4]
        for j in range(4):
            k.i(f'v_cvt_pk_bf16_f32 {oo[j]}, {Dm[2 * j]}, {Dm[2 * j + 1]}')
        k.i(f'buffer_store_dwordx4 {oo}, {l16}, {sws}, {so2} offen {STF}')
        k.ts_at(1)
        arrive(FWC, FWG, hg4, 20)
        k.ts_at(2)

    def job_xn():
        tt = ji0
        sxx = k.srd(px, S * D * 2)
        nrow, j_, vo, t1, t2 = k.v(), k.v(), k.v(), k.v(), k.v()
        k.i(f'v_lshrrev_b32 {nrow}, 4, {tid}')
        k.i(f'v_and_b32 {j_}, 15, {tid}')
        k.i(f'v_mul_u32_u24 {vo}, 1280, {nrow}')
        k.i(f'v_lshl_add_u32 {vo}, {j_}, 4, {vo}')
        so = k.s()
        k.i(f's_mul_i32 {so}, {tt}, 20480')
        xr = k.v(20)
        for i in range(5):
            k.i(f'buffer_load_dwordx4 {xr[4 * i:4 * i + 4]}, {vo}, {sxx}, {so} offen offset:{256 * i}')
        so3 = k.s()
        k.i(f's_mul_i32 {so3}, {tt}, 896')
        k.i(f's_add_u32 {so3}, {so3}, {WS_KV}')
        k.i(f'v_min_u32 {t1}, 223, {tid}')
        k.i(f'v_lshlrev_b32 {t1}, 2, {t1}')
        k.i(f'v_mov_b32 {t2}, 0')
        k.i(f'buffer_store_dword {t2}, {t1}, {sws}, {so3} offen sc1')
        k.wait(vm=1)
        k.ts_at(0)
        xf = k.v(40)
        sm = k.v()
        for i in range(20):
            k.i(f'v_lshlrev_b32 {xf[2 * i]}, 16, {xr[i]}')
            k.i(f'v_and_b32 {xf[2 * i + 1]}, 0xffff0000, {xr[i]}')
        k.i(f'v_add_f32 {sm}, {xf[0]}, {xf[1]}')
        k.i(f'v_add_f32 {t1}, {xf[2]}, {xf[3]}')
        for i in range(4, 40, 2):
            k.i(f'v_add_f32 {sm}, {sm}, {xf[i]}')
            k.i(f'v_add_f32 {t1}, {t1}, {xf[i + 1]}')
        k.i(f'v_add_f32 {sm}, {sm}, {t1}')
        for r in (1, 2, 4, 8):
            k.i(f'v_add_f32 {sm}, {sm}, {sm} row_ror:{r} {DPP}')
        k.i(f'v_mul_f32 {sm}, {fhex(1.0 / 640)}, {sm}')
        for i in range(40):
            k.i(f'v_sub_f32 {xf[i]}, {xf[i]}, {sm}')
        k.i(f'v_mul_f32 {sm}, {xf[0]}, {xf[0]}')
        k.i(f'v_mul_f32 {t1}, {xf[1]}, {xf[1]}')
        for i in range(2, 40, 2):
            k.i(f'v_fmac_f32 {sm}, {xf[i]}, {xf[i]}')
            k.i(f'v_fmac_f32 {t1}, {xf[i + 1]}, {xf[i + 1]}')
        k.i(f'v_add_f32 {sm}, {sm}, {t1}')
        for r in (1, 2, 4, 8):
            k.i(f'v_add_f32 {sm}, {sm}, {sm} row_ror:{r} {DPP}')
        k.i(f'v_mov_b32 {t1}, {fhex(1e-5)}')
        k.i(f'v_fmac_f32 {t1}, {fhex(1.0 / 640)}, {sm}')
        k.i(f'v_rsq_f32 {t1}, {t1}')
        for i in range(40):
            k.i(f'v_mul_f32 {xf[i]}, {xf[i]}, {t1}')
        for i in range(20):
            k.i(f'v_cvt_pk_bf16_f32 {xr[i]}, {xf[2 * i]}, {xf[2 * i + 1]}')
        k.i(f'v_lshlrev_b32 {t1}, 8, {j_}')
        k.i(f'v_lshl_add_u32 {t1}, {nrow}, 4, {t1}')
        k.i(f'v_add_u32 {t1}, {XB}, {t1}')
        for i in range(5):
            k.i(f'ds_write_b128 {t1}, {xr[4 * i:4 * i + 4]} offset:{4096 * i}')
        subbar()
        k.i(f'v_lshlrev_b32 {t1}, 4, {tid}')
        k.i(f'v_add_u32 {t1}, {XB}, {t1}')
        for i in range(5):
            k.i(f'ds_read_b128 {xr[4 * i:4 * i + 4]}, {t1} offset:{4096 * i}')
        for i in range(20):
            k.i(f'v_lshlrev_b32 {xf[2 * i]}, 16, {xr[i]}')
            k.i(f'v_and_b32 {xf[2 * i + 1]}, 0xffff0000, {xr[i]}')
        cfa = k.v()
        k.i(f'v_lshlrev_b32 {cfa}, 5, {nrow}')
        k.i(f'v_add_u32 {cfa}, {XB + 20480}, {cfa}')
        cw_ = k.v()
        k.i(f'v_lshlrev_b32 {cw_}, 2, {tid}')
        k.i(f'v_add_u32 {cw_}, {XB + 20480}, {cw_}')
        k.ts_at(1)
        pollA()
        k.ts_at(2)
        cfs = k.v(80)
        k.i(f'v_lshlrev_b32 {t2}, 2, {tid}')
        for ks in range(4):
            k.i(f's_mov_b32 {so3}, {WS_MODP + ks * 15360}')
            for i in range(4):
                k.i(f'buffer_load_dword {cfs[ks * 5 + i]}, {t2}, {sws}, {so3} offen offset:{1024 * i}')
            k.i(f's_mov_b32 {so3}, {WS_MODP + ks * 15360 + 4096}')
            k.i(f'buffer_load_dword {cfs[ks * 5 + 4]}, {t2}, {sws}, {so3} offen')
        k.i(f'v_cmp_lt_u32 vcc, 127, {tid}')
        for i in range(5):
            a_ = cfs[i]
            k.i(f'v_add_f32 {a_}, {a_}, {cfs[5 + i]}')
            k.i(f'v_add_f32 {cfs[10 + i]}, {cfs[10 + i]}, {cfs[15 + i]}')
            k.i(f'v_add_f32 {a_}, {a_}, {cfs[10 + i]}')
            round_bf16(k, a_, a_)
            if i >= 2:
                k.i(f'v_add_f32 {t1}, 1.0, {a_}')
                round_bf16(k, t1, t1)
                if i == 2:
                    k.i(f'v_cndmask_b32 {a_}, {a_}, {t1}, vcc')
                else:
                    k.i(f'v_mov_b32 {a_}, {t1}')
            k.i(f'ds_write_b32 {cw_}, {a_} offset:{1024 * i}')
        subbar()
        for i in range(5):
            for q in range(2):
                k.i(f'ds_read_b128 {cfs[16 * i + 4 * q:16 * i + 4 * q + 4]}, {cfa} offset:{512 * i + 16 * q}')
                k.i(f'ds_read_b128 {cfs[16 * i + 8 + 4 * q:16 * i + 8 + 4 * q + 4]}, {cfa} offset:{2560 + 512 * i + 16 * q}')
        k.i(f's_lshr_b32 {so}, {tt}, 3')
        k.i(f's_mul_i32 {so}, {so}, 20')
        k.i(f's_add_u32 {so}, {so}, {hwv}')
        k.i(f's_lshl_b32 {so}, {so}, 13')
        k.i(f's_and_b32 {so3}, {tt}, 7')
        k.i(f's_lshl_b32 {so3}, {so3}, 10')
        k.i(f's_add_u32 {so}, {so}, {so3}')
        k.i(f's_add_u32 {so}, {so}, {WS_XN}')
        k.i(f'v_lshlrev_b32 {t2}, 4, {lane}')
        for i in range(5):
            for e in range(8):
                k.i(f'v_fma_f32 {xf[8 * i + e]}, {xf[8 * i + e]}, {cfs[16 * i + 8 + e]}, {cfs[16 * i + e]}')
            for q in range(4):
                k.i(f'v_cvt_pk_bf16_f32 {xr[4 * i + q]}, {xf[8 * i + 2 * q]}, {xf[8 * i + 2 * q + 1]}')
            k.i(f's_add_u32 {so3}, {so}, {4 * 8192 * i}')
            k.i(f'buffer_store_dwordx4 {xr[4 * i:4 * i + 4]}, {t2}, {sws}, {so3} offen sc1')
        k.i(f's_lshr_b32 {so3}, {tt}, 3')
        k.ts_at(3)
        arrive(FHC, FHG, so3, 8)
        k.ts_at(4)

    def job_rearr():
        sty, srowA, srowB, sdst, scol, ska, sstr = k.s(), k.s(), k.s(), k.s(), k.s(), k.s(), k.s()
        ks, cblk, u2, q_, p_, t_, t2_, rr_ = k.s(), k.s(), k.s(), k.s(), k.s(), k.s(), k.s(), k.s()
        so, st1 = k.s(), k.s()
        k.i(f's_lshl_b32 {rr_}, {ji0}, 2')
        k.i(f's_add_u32 {rr_}, {rr_}, {hwv}')
        k.i(f's_mov_b32 {u2}, {rr_}')
        k.i(f's_cmp_lt_u32 {rr_}, 540')
        k.i(f's_cbranch_scc1 p0_sd_wdf')
        k.i(f's_sub_u32 {u2}, {u2}, 540')
        k.i(f's_mov_b32 {sty}, 2')
        k.i(f's_mul_i32 {q_}, {u2}, 6554')
        k.i(f's_lshr_b32 {q_}, {q_}, 16')
        k.i(f's_mul_i32 {t_}, {q_}, 10')
        k.i(f's_sub_u32 {t_}, {u2}, {t_}')
        k.i(f's_lshl_b32 {scol}, {t_}, 7')
        k.i(f's_mul_i32 {sdst}, {q_}, 40')
        k.i(f's_lshl_b32 {t_}, {t_}, 2')
        k.i(f's_add_u32 {sdst}, {sdst}, {t_}')
        k.i(f's_lshl_b32 {sdst}, {sdst}, 10')
        k.i(f's_add_u32 {sdst}, {sdst}, {WS_WOF}')
        k.i(f's_mul_i32 {t_}, {q_}, 52')
        k.i(f's_lshr_b32 {t_}, {t_}, 8')
        k.i(f's_mul_i32 {srowA}, {t_}, 160')
        k.i(f's_mul_i32 {t_}, {t_}, 5')
        k.i(f's_sub_u32 {srowB}, {q_}, {t_}')
        k.i(f's_mov_b32 {ska}, {KA_WO}')
        k.i(f's_mov_b32 {sstr}, 1280')
        k.i(f's_branch p0_sd_done')
        k.raw('p0_sd_wdf:')
        k.i(f's_mul_i32 {q_}, {u2}, 6554')
        k.i(f's_lshr_b32 {q_}, {q_}, 16')
        k.i(f's_mul_i32 {t_}, {q_}, 10')
        k.i(f's_sub_u32 {t_}, {u2}, {t_}')
        k.i(f's_lshl_b32 {scol}, {t_}, 7')
        k.i(f's_mul_i32 {sdst}, {q_}, 40')
        k.i(f's_lshl_b32 {t_}, {t_}, 2')
        k.i(f's_add_u32 {sdst}, {sdst}, {t_}')
        k.i(f's_lshl_b32 {sdst}, {sdst}, 10')
        k.i(f's_add_u32 {sdst}, {sdst}, {WS_WDF}')
        k.i(f's_sub_u32 {t_}, {q_}, 8')
        k.i(f's_and_b32 {t_}, {t_}, 63')
        k.i(f's_mul_i32 {p_}, {t_}, 86')
        k.i(f's_lshr_b32 {p_}, {p_}, 8')
        k.i(f's_lshl_b32 {srowA}, {t_}, 1')
        k.i(f's_add_u32 {srowA}, {srowA}, {p_}')
        k.i(f's_add_u32 {srowB}, {srowA}, 1')
        k.i(f's_mul_i32 {t_}, {q_}, 14')
        k.i(f's_add_u32 {t2_}, {t_}, 13')
        k.i(f's_min_u32 {t2_}, {t2_}, 107')
        k.i(f's_add_u32 {t_}, {t_}, 6')
        k.i(f's_cmp_lt_u32 {q_}, 8')
        k.i(f's_cselect_b32 {srowA}, {t_}, {srowA}')
        k.i(f's_cselect_b32 {srowB}, {t2_}, {srowB}')
        k.i(f's_lshl_b32 {srowA}, {srowA}, 4')
        k.i(f's_lshl_b32 {srowB}, {srowB}, 4')
        k.i(f's_mov_b32 {sty}, 1')
        k.i(f's_mov_b32 {ska}, {KA_WD}')
        k.i(f's_mov_b32 {sstr}, 1280')
        k.i(f's_branch p0_sd_done')
        k.raw('p0_sd_done:')
        psd = k.s(2)
        k.i(f's_load_dwordx2 {psd}, s[0:1], {ska}')
        tmp = k.v(8, align=1)
        rho, r1, r2, r3, ad, cc = tmp[0], tmp[1], tmp[2], tmp[3], tmp[4], tmp[5]
        SA = k.v(4, align=1)
        k.i(f'v_and_b32 {cc}, 7, {lane}')
        k.i(f'v_lshlrev_b32 {cc}, 4, {cc}')
        msk = k.s(2)
        k.i(f's_cmp_eq_u32 {sty}, 2')
        k.i(f's_cselect_b64 {msk}, -1, 0')
        k.i(f's_lshl_b32 {st1}, {srowB}, 3')
        for i in range(4):
            k.i(f'v_lshrrev_b32 {rho}, 3, {lane}')
            k.i(f'v_add_u32 {rho}, {8 * i}, {rho}')
            if i < 2:
                k.i(f'v_add_u32 {r1}, {srowA}, {rho}')
            else:
                k.i(f'v_add_u32 {r1}, {srowB}, {rho}')
                k.i(f'v_subrev_u32 {r1}, 16, {r1}')
            k.i(f'v_and_b32 {r2}, 3, {rho}')
            k.i(f'v_add_u32 {r2}, {st1}, {r2}')
            if i >= 2:
                k.i(f'v_add_u32 {r2}, 4, {r2}')
            k.i(f'v_and_b32 {r2}, 63, {r2}')
            k.i(f'v_mul_u32_u24 {r3}, 52, {r2}')
            k.i(f'v_lshrrev_b32 {r3}, 8, {r3}')
            k.i(f'v_mad_u32_u24 {r2}, {r3}, 15, {r2}')
            k.i(f'v_bfe_u32 {r3}, {rho}, 2, 2')
            k.i(f'v_mad_u32_u24 {r2}, {r3}, 5, {r2}')
            k.i(f'v_add_u32 {r2}, {srowA}, {r2}')
            k.i(f'v_cndmask_b32 {r1}, {r1}, {r2}, {msk}')
            k.i(f'v_mul_lo_u32 {ad}, {r1}, {sstr}')
            k.i(f'v_add_u32 {SA[i]}, {ad}, {cc}')
        ssd = k.s(4)
        k.i(f's_mov_b32 {ssd[0]}, {psd[0]}')
        k.i(f's_and_b32 {ssd[1]}, {psd[1]}, 0xffff')
        k.i(f's_mov_b32 {ssd[2]}, {D * F * 2}')
        k.i(f's_cmp_eq_u32 {sty}, 2')
        k.i(f's_cselect_b32 {ssd[2]}, {D * D * 2}, {ssd[2]}')
        k.i(f's_mov_b32 {ssd[3]}, 0x00020000')
        k.i(f's_lshl_b32 {so}, {hwv}, 12')
        k.i(f's_add_u32 {so}, {so}, {lbase}')
        for i in range(4):
            k.i(f's_add_u32 m0, {so}, {1024 * i}')
            k.i(f'buffer_load_dwordx4 {SA[i]}, {ssd}, {scol} offen lds', tag='side')
        Wf = k.v(16)
        k.i(f'v_lshrrev_b32 {tmp[0]}, 2, {lane}')
        k.i(f'v_lshlrev_b32 {tmp[0]}, 7, {tmp[0]}')
        k.i(f'v_and_b32 {tmp[1]}, 3, {lane}')
        k.i(f'v_lshl_add_u32 {tmp[0]}, {tmp[1]}, 3, {tmp[0]}')
        k.i(f'v_add_u32 {tmp[0]}, {so}, {tmp[0]}')
        k.lines.append('  s_waitcnt vmcnt(0)')
        k.vm = []
        for c4 in range(4):
            for hf in range(2):
                k.i(f'ds_read_b64_tr_b16 {Wf[c4 * 4 + 2 * hf:c4 * 4 + 2 * hf + 2]}, {tmp[0]} offset:{hf * 2048 + c4 * 32}')
        k.wait(lg=0)
        STF = 'sc1'
        for c4 in range(4):
            k.i(f'buffer_store_dwordx4 {Wf[c4 * 4:c4 * 4 + 4]}, {l16}, {sws}, {sdst} offen offset:{1024 * c4} {STF}')
        tsj(2)

    k.raw('m_disp:')
    k.reset_state()
    tsj(3)
    for ty, nm in ((1, 'gemv'), (2, 'xn'), (3, 'fold'), (4, 'rearr'), (5, 'wait'), (7, 'cpf')):
        k.i(f's_cmp_eq_u32 {jt0}, {ty}')
        k.i(f's_cbranch_scc1 m_job_{nm}')
    k.i('s_branch m_jobs_done')

    def next_job():
        k.i(f's_mov_b32 {jt0}, {jt1}')
        k.i(f's_mov_b32 {ji0}, {ji1}')
        k.i(f's_mov_b32 {jt1}, 0')
        k.lines.append('  s_waitcnt lgkmcnt(0)')
        k.nop(2)
        k.i('s_branch m_disp')

    for nm, fn in (('gemv', job_gemv), ('fold', job_fold), ('rearr', job_rearr)):
        k.raw(f'm_job_{nm}:')
        k.reset_state()
        k.release(mk_job)
        fn()
        next_job()
    k.raw('m_job_xn:')
    k.reset_state()
    k.release(mk_job)
    k.i(f'v_mov_b32 {t1}, {LCNT + 28}')
    k.i(f'v_mov_b32 {t2}, 1')
    k.i(f'ds_write_b32 {t1}, {t2}')
    job_xn()
    next_job()
    k.raw('m_job_wait:')
    k.reset_state()
    k.release(mk_job)
    k.i('s_cmp_lg_u32 s2, 0')
    k.i('s_cbranch_scc1 m_jw0')
    zz0 = k.v(4)
    for q in range(4):
        k.i(f'v_mov_b32 {zz0[q]}, 0')
    k.i(f'v_lshlrev_b32 {t3}, 4, {tid}')
    for i in range(8):
        k.i(f's_mov_b32 {so}, {WS_CNT + 4096 * i}')
        k.i(f'buffer_store_dwordx4 {zz0}, {t3}, {sws}, {so} offen sc1')
    k.wait(vm=0)
    subbar()
    k.i(f's_cmp_lg_u32 {hwv}, 0')
    k.i('s_cbranch_scc1 m_zx')
    k.i(f'v_mov_b32 {t1}, 0')
    k.i(f'v_mov_b32 {t2}, 1')
    k.i('s_mov_b32 exec_lo, 1')
    k.i('s_mov_b32 exec_hi, 0')
    for x in [f'buffer_atomic_add {t2}, {t1}, {sdb}, 0 offen sc0 sc1', 's_waitcnt vmcnt(0)', f'v_readfirstlane_b32 {st1}, {t2}',
              f'v_mov_b32 {t2}, 1', f's_cmp_lg_u32 {st1}, 40', 's_cbranch_scc1 m_zx', f'buffer_store_dword {t2}, {t1}, {sdb}, 0 offen offset:128 sc1', 's_mov_b32 exec_lo, -1', f'v_mov_b32 {T2}, 1', f'v_lshlrev_b32 {T1}, 8, {lane}', f's_mov_b32 {st1}, {WS_REP}', f'buffer_atomic_add {T2}, {T1}, {sws}, {st1} offen sc1']:
        k.lines.append('  ' + x)
    k.raw('m_zx:')
    k._join()
    k.i('s_mov_b64 exec, -1')
    k.raw('m_jw0:')
    k._join()
    k.vm = []
    lds_spin(LCNT + 24, 1, 'm_jw')
    next_job()
    k.raw('m_job_cpf:')
    k.reset_state()
    k.release(mk_job)
    pcr = k.s(2)
    k.lines.append(f'  s_getpc_b64 {pcr}')
    k.lines.append('m_pc0:')
    k.i(f'v_lshlrev_b32 {t1}, 7, {tid}')
    jk = k.v(2, align=1)
    for r_ in range(2):
        k.lines.append(f'  v_min_u32 {t2}, code_end-m_pc0-4, {t1}')
        k.lines.append(f'  global_load_dword {jk[r_]}, {t2}, {pcr}')
        k.i(f'v_add_u32 {t1}, 32768, {t1}')
    next_job()
    k.raw('m_jobs_done:')
    k.reset_state()
    k.release(mk_job)
    k.lines.append('  s_waitcnt vmcnt(0)')
    subbar()
    k.i(f's_cmp_lg_u32 {hwv}, 0')
    k.i('s_cbranch_scc1 m_jdx')
    k.i('s_mov_b32 exec_lo, 1')
    k.i('s_mov_b32 exec_hi, 0')
    k.i(f's_cmp_lg_u32 {half}, 0')
    k.i('s_cbranch_scc1 m_jdy')
    k.i(f'v_mov_b32 {t1}, {LCNT + 28}')
    k.i(f'v_mov_b32 {t2}, 1')
    k.i(f'ds_write_b32 {t1}, {t2}')
    k.raw('m_jdy:')
    k._join()
    zcheck('m_jdz', 4)
    k.i(f's_and_b32 {so}, s2, 15')
    k.i(f's_lshl_b32 {so}, {so}, 8')
    k.i(f's_add_u32 {so}, {so}, {WS_CNT + CD}')
    k.i(f'v_mov_b32 {t1}, 0')
    k.i(f'v_mov_b32 {t2}, 1')
    k.lines.append(f'  buffer_atomic_add {t2}, {t1}, {sws}, {so} offen sc1')
    k.i('s_mov_b64 exec, -1')
    k.raw('m_jdx:')
    k._join()
    k.lines.append('  s_waitcnt lgkmcnt(0)')
    k.lg = []
    k.i(f's_cmp_eq_u32 {sfl}, 1')
    k.i('s_cbranch_scc1 m_main')
    k.i(f's_mov_b32 {sfl}, 2')
    k.i('s_branch m_setup')
    k.raw('m_main:')
    k.reset_state()
    k.release(mk_job)
    k.ts()
    k.i(f's_cmp_ge_u32 {wave}, 4')
    k.i('s_cbranch_scc1 m_l1')
    nts0 = k.nts
    acc = k.v(64)
    Fr = k.v(64)
    R = k.v(40)
    th, ch = k.s(), k.s()
    k.i(f's_and_b32 {th}, {wave}, 1')
    k.i(f's_lshr_b32 {ch}, {wave}, 1')
    ha, wa = k.v(2, align=1), k.v(2, align=1)
    k.i(f's_lshl_b32 {so}, {th}, 12')
    k.i(f's_add_u32 {so}, {so}, 8192')
    k.i(f'v_add_u32 {ha[0]}, {so}, {l16}')
    k.i(f'v_add_u32 {ha[1]}, 65536, {ha[0]}')
    k.i(f's_lshl_b32 {so}, {ch}, 12')
    k.i(f'v_add_u32 {wa[0]}, {so}, {l16}')
    k.i(f'v_add_u32 {wa[1]}, 65536, {wa[0]}')

    def prep(J):
        L = []
        b = J & 1
        blk = J % 8
        for i in range(4):
            o = (blk & 3) * 16384 + i * 1024
            L.append(f'ds_read_b128 {Fr[(b * 8 + 4 + i) * 4:(b * 8 + 4 + i) * 4 + 4]}, {wa[blk >> 2]} offset:{o}')
            L.append(f'ds_read_b128 {Fr[(b * 8 + i) * 4:(b * 8 + i) * 4 + 4]}, {ha[blk >> 2]} offset:{o}')
        return L

    def mfmas(J):
        L = []
        b = J & 1
        for d in range(7):
            for ci in range(4):
                ti = d - ci
                if 0 <= ti < 4:
                    a = acc[(ci * 4 + ti) * 4:(ci * 4 + ti) * 4 + 4]
                    L.append(f'v_mfma_f32_16x16x32_bf16 {a}, {Fr[(b * 8 + 4 + ci) * 4:(b * 8 + 4 + ci) * 4 + 4]}, {Fr[(b * 8 + ti) * 4:(b * 8 + ti) * 4 + 4]}, {0 if J == 0 else a}')
        return L

    k.ts()
    k.barrier()
    k.ts()
    for x in prep(0):
        k.i(x)
    for J in range(20):
        if J == 10:
            k.ts()
        if J + 1 < 20:
            if (J + 1) % KPS == 0:
                k.barrier()
            interleave(k, mfmas(J), prep(J + 1), lead=4)
        else:
            for x in mfmas(J):
                k.i(x)
    k.ts()
    da = R[8]
    k.i(f's_mul_i32 {so}, {th}, {4 * 5120}')
    k.i(f's_add_u32 {so}, {so}, {LQK}')
    k.i(f'v_add_u32 {da}, {so}, {l16}')
    k.i(f's_cmp_eq_u32 {ch}, 1')
    k.i('s_cbranch_scc1 p1_dump1')
    stx = (list(k.vm), list(k.lg))
    for ci in range(4):
        for ti in range(4):
            k.i(f'ds_write_b128 {da}, {acc[(ci * 4 + ti) * 4:(ci * 4 + ti) * 4 + 4]} offset:{ti * 5120 + ci * 1024}')
    k.i('s_branch p1_dumped')
    k.raw('p1_dump1:')
    k._join()
    k.vm, k.lg = list(stx[0]), list(stx[1])
    for ti in range(4):
        k.i(f'ds_write_b128 {da}, {acc[ti * 4:ti * 4 + 4]} offset:{ti * 5120 + 4096}')
    va = R[9]
    k.i(f'v_mul_u32_u24 {va}, 96, {n}')
    k.i(f'v_lshl_add_u32 {va}, {G}, 3, {va}')
    k.i(f's_mul_i32 {so}, {th}, {64 * 96}')
    k.i(f's_add_u32 {so}, {so}, {LV}')
    k.i(f'v_add_u32 {va}, {so}, {va}')
    m1, m3 = k.s(2), k.s(2)
    k.i(f'v_cmp_eq_u32 {m1}, 1, {G}')
    k.i(f'v_cmp_eq_u32 {m3}, 3, {G}')
    for ci in range(1, 4):
        for ti in range(4):
            a = acc[(ci * 4 + ti) * 4:(ci * 4 + ti) * 4 + 4]
            if ci == 2:
                k.i(f'v_cndmask_b32 {a[0]}, {a[0]}, 1.0, {m1}')
            if ci == 3:
                k.i(f'v_cndmask_b32 {a[0]}, {a[0]}, 1.0, {m3}')
            o = R[12 + ((ci * 4 + ti) % 8) * 2:12 + ((ci * 4 + ti) % 8) * 2 + 2]
            k.i(f'v_cvt_pk_bf16_f32 {o[0]}, {a[0]}, {a[1]}')
            k.i(f'v_cvt_pk_bf16_f32 {o[1]}, {a[2]}, {a[3]}')
            k.i(f'ds_write_b64 {va}, {o} offset:{ti * 16 * 96 + (ci - 1) * 32}')
    k.raw('p1_dumped:')
    k._join()
    k.lines.append('  s_waitcnt lgkmcnt(0)')
    k.lg = []
    assert acc.base == RR.base
    k.i('s_branch m_j1')
    nts1 = k.nts
    k.reset_state()
    k.release(mk_p1)
    k.nts = nts0
    k.label('m_l1')
    lds_spin(LCNT + 28, 1, 'm_rf')
    lds_spin(LCNT + 32, 1, 'm_rz')
    k.i('s_mov_b32 exec_lo, 1')
    k.i('s_mov_b32 exec_hi, 0')
    k.i(f's_lshr_b32 {so}, {hp}, 2')
    k.i(f's_lshl_b32 {so}, {so}, 8')
    k.i(f's_add_u32 {so}, {so}, {WS_CNT + FWG}')
    k.i(f's_lshl_b32 {st2}, {mt}, 8')
    k.i(f's_add_u32 {st2}, {st2}, {WS_CNT + FHG}')
    k.i(f's_cmp_ge_u32 {hw}, 2')
    k.i(f's_cselect_b32 {so}, {st2}, {so}')
    gpoll(sws, so, 0, 'm_lp', sleep=1)
    k.i('s_mov_b64 exec, -1')
    k.i(f's_cmp_ge_u32 {hw}, 2')
    k.i('s_cbranch_scc1 m_l1h')
    for kind, npre, la in (('w', 8, 7), ('h', 3, LA)):
        if kind == 'h':
            k.raw('m_l1h:')
            k.reset_state()
            k.nts = nts0
        for s in range(npre):
            dma_stage(s)
        nxt = npre
        k.ts()
        for s in range(NST):
            if s == NST // 2:
                k.ts()
            k.wait_tag(f'w{s}')
            if s == 14 and kind == 'w':
                k.i(f'v_lshlrev_b32 {t1}, 8, {n}')
                k.i(f's_mov_b32 {so}, {WS_CNT + CD}')
                k.i(f's_mov_b32 {st1}, 0')
                k.raw(f'm_ad{kind}:')
                for x in [f'buffer_load_dword {t2}, {t1}, {sws}, {so} offen sc1', 's_waitcnt vmcnt(0)',
                          f'v_cmp_gt_u32 vcc, 32, {t2}', f's_add_u32 {st1}, {st1}, 1', f's_cmp_ge_u32 {st1}, {SPIN_MAX}',
                          f's_cbranch_scc1 m_add{kind}', 's_nop 1', f's_cbranch_vccnz m_ad{kind}']:
                    k.lines.append('  ' + x)
                k.raw(f'm_add{kind}:')
                k._join()
                k.vm = []
            k.barrier()
            if s == 0:
                k.ts()
            cnt = 0
            while nxt < NST and nxt <= min(s + la, s - 1 + NSL) and cnt < 2:
                dma_stage(nxt)
                nxt += 1
                cnt += 1
            if 16 <= s <= 18:
                wof_jj(hw, 4 * (s - 16))
        k.ts()
        assert k.nts == nts1
        if kind == 'w':
            k.i('s_branch m_j1')
    k.raw('m_j1:')
    k.reset_state()
    k.release(mk_p1)
    R = k.v(168)
    tmp = R[0:8]
    P, ph = R[8:28], R[28:40]
    cb, sb = R[152:160], R[160:168]
    k.i(f's_cmp_lg_u32 {sty}, 0')
    k.i('s_cbranch_scc1 m_noside')
    k.i(f's_lshl_b32 {so}, {wave}, 12')
    k.i(f's_add_u32 {so}, {so}, {LSIDE}')
    for i in range(4):
        k.i(f's_add_u32 m0, {so}, {1024 * i}')
        k.i(f'buffer_load_dwordx4 {SA[i]}, {ssd}, {scol} offen lds', tag='side')
    k.raw('m_noside:')
    k._join()
    fp = k.v(12, align=1)
    fa = k.v(3, align=1)
    k.i(f'v_mov_b32 {fa[1]}, 0')
    k.i(f'v_mov_b32 {fa[0]}, 0')
    k.i(f's_cmp_lt_u32 {wave}, 4')
    k.i('s_cbranch_scc1 m_nf1')
    vmk = list(k.vm)
    k.i(f's_mul_i32 {so}, {ks}, 160')
    k.i(f'v_and_b32 {fa[2]}, 255, v0')
    k.i(f'v_min_u32 {fa[0]}, 159, {fa[2]}')
    k.i(f'v_add_u32 {fa[1]}, {so}, {fa[0]}')
    k.i(f'v_lshlrev_b32 {fa[1]}, 2, {fa[1]}')
    k.i(f's_sub_u32 {st1}, s2, 216')
    k.i(f's_min_u32 {so}, {st1}, 4')
    k.i(f's_lshl_b32 {so}, {so}, 8')
    k.i(f'v_add_u32 {fa[2]}, {so}, {fa[2]}')
    k.i(f'v_cmp_lt_u32 vcc, 639, {fa[2]}')
    k.i(f'v_mov_b32 {fp[0]}, {3200 - 640}')
    k.i(f'v_mov_b32 {fp[1]}, 1280')
    k.i(f'v_cndmask_b32 {fp[0]}, {fp[1]}, {fp[0]}, vcc')
    k.i(f'v_add_u32 {fa[2]}, {fa[2]}, {fp[0]}')
    k.i(f'v_lshlrev_b32 {fa[2]}, 2, {fa[2]}')
    k.i(f's_cmp_ge_u32 s2, 216')
    k.i(f's_cselect_b64 vcc, -1, 0')
    k.i(f'v_add_u32 {fp[0]}, {3 * 2560}, {fa[1]}')
    k.i(f'v_cndmask_b32 {fa[1]}, {fp[0]}, {fa[2]}, vcc')
    for ks_ in range(4):
        k.i(f's_mov_b32 {so}, {WS_MODP + ks_ * 15360}')
        k.lines.append(f'  buffer_load_dword {fp[ks_]}, {fa[1]}, {sws}, {so} offen')
        k.lines.append(f'  buffer_load_dword {fp[4 + ks_]}, {fa[1]}, {sws}, {so} offen offset:2560')
    k.vm = vmk
    k.raw('m_nf1:')
    k._join()
    qa, ql, ka, qk_a, sgl, sq = E.qa, E.ql, E.ka, E.qk_a, E.sgl, E.sq
    tb, ta, aa, skv = E.tb, E.ta, E.aa, E.skv

    def softmax(P, ph, tmp):
        mx, s0, s1 = tmp[0], tmp[1], tmp[2]
        for i in range(20):
            k.i(f'v_mul_f32 {P[i]}, {P[i]}, {sgl}')
        k.i(f'v_max3_f32 {mx}, {P[0]}, {P[1]}, {P[2]}')
        k.i(f'v_max3_f32 {s0}, {P[3]}, {P[4]}, {P[5]}')
        for i in range(6, 18, 4):
            k.i(f'v_max3_f32 {mx}, {mx}, {P[i]}, {P[i + 1]}')
            k.i(f'v_max3_f32 {s0}, {s0}, {P[i + 2]}, {P[i + 3]}')
        k.i(f'v_max3_f32 {mx}, {mx}, {P[18]}, {P[19]}')
        k.i(f'v_max_f32 {mx}, {mx}, {s0}')
        for i in range(20):
            k.i(f'v_sub_f32 {P[i]}, {P[i]}, {mx}')
        for i in range(20):
            k.i(f'v_exp_f32 {P[i]}, {P[i]}')
        k.i(f'v_add_f32 {s0}, {P[0]}, {P[1]}')
        k.i(f'v_add_f32 {s1}, {P[2]}, {P[3]}')
        for i in range(4, 20, 2):
            k.i(f'v_add_f32 {s0}, {s0}, {P[i]}')
            k.i(f'v_add_f32 {s1}, {s1}, {P[i + 1]}')
        k.i(f'v_add_f32 {s0}, {s0}, {s1}')
        k.i(f'v_rcp_f32 {s0}, {s0}')
        for i in range(20):
            k.i(f'v_mul_f32 {P[i]}, {P[i]}, {s0}')
        for i in range(10):
            k.i(f'v_cvt_pk_bf16_f32 {ph[i]}, {P[2 * i]}, {P[2 * i + 1]}')

    k.i('s_barrier')
    k.ts()
    PQ, phq = R[40:60], R[60:72]
    for t in range(5):
        k.i(f'ds_read_b128 {P[4 * t:4 * t + 4]}, {qk_a} offset:{1024 * t}')
    for t in range(5):
        k.i(f'ds_read_b128 {PQ[4 * t:4 * t + 4]}, {qk_a} offset:{1024 * t + 512}')
    softmax(P, ph, tmp)
    k.i(f'ds_write_b128 {ka}, {ph[0:4]}')
    k.i(f'ds_write_b128 {ka}, {ph[4:8]} offset:16')
    k.i(f'ds_write_b64 {E.ka2}, {ph[8:10]}')
    k.barrier()
    k.ts()
    Bf, Af, Dd = R[104:120], R[120:152], R[8:16]
    for kk in range(4):
        for hf in range(2):
            k.i(f'ds_read_b64_tr_b16 {Bf[kk * 4 + 2 * hf:kk * 4 + 2 * hf + 2]}, {tb} offset:{(kk * 32 + hf * 16) * 160}')
        for dt in range(2):
            for hf in range(2):
                b = (kk * 2 + dt) * 4 + 2 * hf
                k.i(f'ds_read_b64_tr_b16 {Af[b:b + 2]}, {ta} offset:{(kk * 32 + hf * 16) * 96 + dt * 32}')
    for kk in range(4):
        for dt in range(2):
            d = Dd[dt * 4:dt * 4 + 4]
            k.i(f'v_mfma_f32_16x16x32_bf16 {d}, {Af[(kk * 2 + dt) * 4:(kk * 2 + dt) * 4 + 4]}, {Bf[kk * 4:kk * 4 + 4]}, {0 if kk == 0 else d}')
    for i in range(8):
        k.i(f'buffer_atomic_add_f32 {Dd[i]}, {aa[i]}, {sws}, {skv} offen')
    k.ts()
    softmax(PQ, phq, tmp)
    k.i(f'buffer_store_dwordx4 {phq[0:4]}, {qa}, {sws}, {sq} offen sc1')
    k.i(f'buffer_store_dwordx4 {phq[4:8]}, {qa}, {sws}, {sq} offen offset:256 sc1')
    k.i(f'buffer_store_dwordx2 {phq[8:10]}, {ql}, {sws}, {sq} offen sc1', tag='pub')
    k.ts()
    k.i(f's_cmp_lt_u32 {wave}, 4')
    k.i('s_cbranch_scc1 m_nf2')
    k.lines.append('  s_waitcnt vmcnt(11)')
    for o_ in (0, 4):
        k.i(f'v_add_f32 {fp[o_]}, {fp[o_]}, {fp[o_ + 1]}')
        k.i(f'v_add_f32 {fp[o_ + 2]}, {fp[o_ + 2]}, {fp[o_ + 3]}')
        k.i(f'v_add_f32 {fp[o_]}, {fp[o_]}, {fp[o_ + 2]}')
        round_bf16(k, fp[o_], fp[o_])
    k.i(f'v_add_f32 {fp[4]}, 1.0, {fp[4]}')
    round_bf16(k, fp[4], fp[4])
    k.i(f'v_lshlrev_b32 {fa[0]}, 2, {fa[0]}')
    k.i(f'v_add_u32 {fa[0]}, {LMOD}, {fa[0]}')
    k.i(f'ds_write_b32 {fa[0]}, {fp[0]}')
    k.i(f'ds_write_b32 {fa[0]}, {fp[4]} offset:640')
    k.i(f's_sub_u32 {st1}, s2, 216')
    k.i(f's_cmp_ge_u32 {st1}, 5')
    k.i('s_cbranch_scc1 m_nf3')
    k.lines.append(f'  buffer_store_dword {fp[0]}, {fa[1]}, {sws}, 0 offen offset:{WS_MOD} sc1')
    k.lines.append('  s_waitcnt vmcnt(0)')
    k.raw('m_nf3:')
    k.lines.append('  s_waitcnt lgkmcnt(0)')
    k.lg = []
    k.raw('m_nf2:')
    k._join()
    k.wait_tag('pub')
    k.i('s_barrier')
    k.ts()
    k.i(f's_cmp_lg_u32 {wave}, 7')
    k.i(f's_cbranch_scc1 m_arr')
    k.i('s_mov_b32 exec_lo, 1')
    k.i('s_mov_b32 exec_hi, 0')
    k.i(f's_and_b32 {so}, s2, 15')
    k.i(f's_lshl_b32 {so}, {so}, 8')
    k.i(f's_add_u32 {so}, {so}, {WS_CNT + C1G}')
    k.i(f'v_mov_b32 {t1}, 0')
    k.i(f'v_mov_b32 {t2}, 1')
    for x in [f'buffer_atomic_add {t2}, {t1}, {sws}, {so} offen sc0 sc1', 's_waitcnt vmcnt(0)',
              f'v_readfirstlane_b32 {st1}, {t2}', f'v_mov_b32 {t2}, 1', f's_cmp_lg_u32 {st1}, 15', 's_cbranch_scc1 m_arr',
              f's_mov_b32 {so}, {WS_CNT + C1T}',
              f'buffer_atomic_add {t2}, {t1}, {sws}, {so} offen sc0 sc1', 's_waitcnt vmcnt(0)',
              f'v_readfirstlane_b32 {st1}, {t2}', f's_cmp_lg_u32 {st1}, 15', 's_cbranch_scc1 m_arr',
              's_mov_b32 exec_lo, 0xff', f'v_mov_b32 {t2}, 1', f'v_lshlrev_b32 {t1}, 8, {lane}', f's_mov_b32 {so}, {WS_CNT + G1}',
              f'buffer_store_dword {t2}, {t1}, {sws}, {so} offen sc1']:
        k.lines.append('  ' + x)
    k.raw('m_arr:')
    k._join()
    k.i('s_mov_b64 exec, -1')
    tsx()
    k.vm = []
    if int(os.environ.get('SELF', '0')) & 1:
        k.i(f's_lshr_b32 {so}, {mt}, 1')
        k.i(f's_cmp_lg_u32 {so}, {sx}')
        k.i('s_cbranch_scc1 m_nst1')
        k.lines.append(f'  buffer_load_dword v244, {qa}, {sws}, {sq} offen')
        k.lines.append(f'  buffer_load_dword v245, {qa}, {sws}, {sq} offen offset:256')
        k.lines.append(f'  buffer_load_dword v246, {ql}, {sws}, {sq} offen')
        k.raw('m_nst1:')
        k._join()
    def wdf_issue():
        k.i(f's_cmp_lg_u32 {sty}, 1')
        k.i('s_cbranch_scc1 m_nowd')
        k.i(f's_lshl_b32 {so}, {wave}, 12')
        k.i(f's_add_u32 {so}, {so}, {LWDF - 5 * 4096}')
        for i in range(4):
            k.i(f's_add_u32 m0, {so}, {1024 * i}')
            k.lines.append('  s_nop 0')
            k.lines.append(f'  buffer_load_dwordx4 {SA[i]}, {ssd}, {scol} offen lds')
        k.raw('m_nowd:')
        k._join()

    if os.environ.get('WDFAT', '0') == '0':
        wdf_issue()
    k.i(f's_cmp_lg_u32 {sty}, 0')
    k.i(f's_cbranch_scc1 m_nostore')
    Wf = R[16:32]
    k.i(f'v_lshrrev_b32 {tmp[0]}, 2, {lane}')
    k.i(f'v_lshlrev_b32 {tmp[0]}, 7, {tmp[0]}')
    k.i(f'v_and_b32 {tmp[1]}, 3, {lane}')
    k.i(f'v_lshl_add_u32 {tmp[0]}, {tmp[1]}, 3, {tmp[0]}')
    k.i(f's_lshl_b32 {so}, {wave}, 12')
    k.i(f's_add_u32 {so}, {so}, {LSIDE}')
    k.i(f'v_add_u32 {tmp[0]}, {so}, {tmp[0]}')
    for c4 in range(4):
        for hf in range(2):
            k.i(f'ds_read_b64_tr_b16 {Wf[c4 * 4 + 2 * hf:c4 * 4 + 2 * hf + 2]}, {tmp[0]} offset:{hf * 2048 + c4 * 32}')
    Bs, Bo = R[72:76], R[76:80]
    k.i(f's_mul_i32 {st2}, {ks}, 160')
    k.i(f's_sub_u32 {so}, {srowA}, {st2}')
    k.i(f's_sub_u32 {st1}, {srowB}, {st2}')
    k.i(f's_lshl_b32 {so}, {so}, 2')
    k.i(f's_lshl_b32 {st1}, {st1}, 2')
    k.i(f'v_lshlrev_b32 {tmp[1]}, 4, {G}')
    k.i(f'v_add_u32 {tmp[1]}, {LMOD}, {tmp[1]}')
    k.i(f'v_add_u32 {tmp[2]}, {so}, {tmp[1]}')
    k.i(f'v_add_u32 {tmp[3]}, {st1}, {tmp[1]}')
    k.i(f'ds_read_b128 {sb[0:4]}, {tmp[2]}')
    k.i(f'ds_read_b128 {sb[4:8]}, {tmp[3]}')
    k.i(f'ds_read_b128 {cb[0:4]}, {tmp[2]} offset:640')
    k.i(f'ds_read_b128 {cb[4:8]}, {tmp[3]} offset:640')
    for q in range(4):
        k.i(f'v_cvt_pk_bf16_f32 {Bs[q]}, {sb[2 * q]}, {sb[2 * q + 1]}')
        k.i(f'v_mov_b32 {Bo[q]}, 0x3f803f80')
    Db, Dc = R[80:96], R[96:112]
    for c4 in range(4):
        k.i(f'v_mfma_f32_16x16x32_bf16 {Db[c4 * 4:c4 * 4 + 4]}, {Wf[c4 * 4:c4 * 4 + 4]}, {Bs}, 0')
    for c4 in range(4):
        for q in range(4):
            w = Wf[c4 * 4 + q]
            lo, hi = tmp[2 + (q & 1) * 2], tmp[3 + (q & 1) * 2]
            k.i(f'v_lshlrev_b32 {lo}, 16, {w}')
            k.i(f'v_and_b32 {hi}, 0xffff0000, {w}')
            k.i(f'v_mul_f32 {lo}, {lo}, {cb[2 * q]}')
            k.i(f'v_mul_f32 {hi}, {hi}, {cb[2 * q + 1]}')
            k.i(f'v_cvt_pk_bf16_f32 {w}, {lo}, {hi}')
    for c4 in range(4):
        k.i(f'v_mfma_f32_16x16x32_bf16 {Dc[c4 * 4:c4 * 4 + 4]}, {Wf[c4 * 4:c4 * 4 + 4]}, {Bo}, 0')
    k.i(f'v_lshlrev_b32 {tmp[1]}, 4, {G}')
    k.i(f's_lshl_b32 {so}, {wave}, 9')
    k.i(f's_add_u32 {so}, {so}, {LCS}')
    k.i(f'v_add_u32 {tmp[1]}, {so}, {tmp[1]}')
    k.i('s_mov_b32 exec_lo, 0x00010001')
    k.i('s_mov_b32 exec_hi, 0x00010001')
    for c4 in range(4):
        k.i(f'ds_write_b128 {tmp[1]}, {Dc[c4 * 4:c4 * 4 + 4]} offset:{c4 * 64}')
        k.i(f'ds_write_b128 {tmp[1]}, {Db[c4 * 4:c4 * 4 + 4]} offset:{256 + c4 * 64}')
    k.i('s_mov_b64 exec, -1')
    k.wait(lg=0)
    k.i(f's_cmp_eq_u32 {scol}, {26 * 128}')
    k.i(f's_cselect_b32 {so}, 4096, 0')
    k.i(f's_add_u32 {so}, {so}, {sdst}')
    for c4 in range(4):
        k.lines.append(f'  buffer_store_dwordx4 {Wf[c4 * 4:c4 * 4 + 4]}, {l16}, {sws}, {sdst if c4 < 3 else so} offen offset:{1024 * c4} sc1')
    k.raw('m_nostore:')
    k._join()
    tsx()
    k.i('s_barrier')
    tsx()
    if os.environ.get('EARLYWOF', '1') == '1':
        k.i(f's_cmp_eq_u32 {wave}, 4')
        k.i('s_cbranch_scc1 m_w4s')
        wof_jj(wave, 12)
        k.raw('m_w4s:')
        k._join()
        if os.environ.get('WDFAT', '0') == '1':
            wdf_issue()
    else:
        wof_jj(wave, 0)
        wof_jj(wave, 8)
        k.i(f's_cmp_ge_u32 {wave}, 4')
        k.i('s_cbranch_scc1 m_w3x')
        wof_jj(wave, 16)
        k.raw('m_w3x:')
        k._join()
        k.lines.append('  s_waitcnt vmcnt(0)')
    tsx()
    k.i(f's_cmp_ge_u32 {wave}, 2')
    k.i(f's_cselect_b32 {so}, 1000, s2')
    k.i(f's_cmp_ge_u32 {so}, 216')
    k.i(f's_cbranch_scc1 m_nocs')
    k.i(f'v_lshlrev_b32 {tmp[0]}, 2, v0')
    k.i(f'v_add_u32 {tmp[0]}, {LCS}, {tmp[0]}')
    for w in range(5):
        k.i(f'ds_read_b32 {tmp[1 + w]}, {tmp[0]} offset:{512 * w}')
    k.i(f'v_add_f32 {tmp[1]}, {tmp[1]}, {tmp[2]}')
    k.i(f'v_add_f32 {tmp[3]}, {tmp[3]}, {tmp[4]}')
    k.i(f'v_add_f32 {tmp[1]}, {tmp[1]}, {tmp[5]}')
    k.i(f'v_add_f32 {tmp[1]}, {tmp[1]}, {tmp[3]}')
    k.i(f's_lshl_b32 {so}, {ks}, 1')
    k.i(f's_add_u32 {so}, {so}, {wave}')
    k.i(f's_mul_i32 {so}, {so}, {3584 * 4}')
    k.i(f's_lshl_b32 {st1}, {p_}, 6')
    k.i(f's_add_u32 {so}, {so}, {st1}')
    k.i(f's_add_u32 {so}, {so}, {WS_CSB}')
    k.i(f'v_lshlrev_b32 {tmp[0]}, 2, {lane}')
    k.i(f's_cmp_eq_u32 {scol}, {26 * 128}')
    k.i(f's_cselect_b32 {st1}, 256, 0')
    k.i(f'v_mov_b32 {tmp[2]}, {st1}')
    k.i(f'v_cmp_lt_u32 vcc, 47, {lane}')
    k.i(f'v_cndmask_b32 {tmp[2]}, 0, {tmp[2]}, vcc')
    k.i(f'v_add_u32 {tmp[0]}, {tmp[0]}, {tmp[2]}')
    k.i(f'buffer_store_dword {tmp[1]}, {tmp[0]}, {sws}, {so} offen sc1')
    k.raw('m_nocs:')
    k.reset_state()
    k.release(mk_common)
    k.ts()

    RING2, SL2, PLB = 24576, 4096, 0
    W3 = [67584, 96256, 0, 28672]
    X3 = [124928, 133120, 141312, 149504, 57344]
    CSL = 157696
    W4 = [0, 20480, 40960, 61440, 81920]
    X4 = [102400, 118784, 135168]

    def signal(idx, cnt_off, go_off, sel):
        lab = k.newlabel('sig')
        k.wait(vm=0)
        tsz()
        k.i(f'v_mov_b32 {t1}, {LCNT + 4 * idx}')
        k.i(f'v_mov_b32 {t2}, 1')
        k.i('s_mov_b32 exec_lo, 1')
        k.i('s_mov_b32 exec_hi, 0')
        k.i(f'ds_add_rtn_u32 {t3}, {t1}, {t2}')
        k.i(f'v_readfirstlane_b32 {so}, {t3}')
        k.i(f's_cmp_lg_u32 {so}, 3')
        k.i(f's_cbranch_scc1 {lab}')
        k.i(f's_lshl_b32 {so}, {sel}, 8')
        k.i(f's_add_u32 {so}, {so}, {WS_CNT + cnt_off}')
        k.i(f'v_mov_b32 {t1}, 0')
        k.lines.append(f'  buffer_atomic_add {t2}, {t1}, {sws}, {so} offen sc0 sc1')
        k.lines.append('  s_waitcnt vmcnt(0)')
        k.lines.append(f'  v_readfirstlane_b32 {st1}, {t2}')
        k.lines.append(f'  v_mov_b32 {t2}, 1')
        k.lines.append(f'  s_cmp_lg_u32 {st1}, 15')
        k.lines.append(f'  s_cbranch_scc1 {lab}')
        k.lines.append(f'  s_add_u32 {so}, {so}, {go_off - cnt_off}')
        k.lines.append(f'  buffer_store_dword {t2}, {t1}, {sws}, {so} offen sc1')
        k.raw(f'{lab}:')
        k._join()
        k.i('s_mov_b64 exec, -1')
        k.vm = [dict(regs=set(), tag=None)]
        tsz()

    def poll(go_off, sel, pw=4):
        lab = k.newlabel('poll')
        k.i(f's_cmp_lg_u32 {wave}, {pw}')
        k.i(f's_cbranch_scc1 {lab}_x')
        k.i(f's_lshl_b32 {so}, {sel}, 8')
        k.i(f's_add_u32 {so}, {so}, {WS_CNT + go_off}')
        k.i(f'v_mov_b32 {t1}, 0')
        k.i(f's_mov_b32 {st1}, 0')
        k.i('s_mov_b32 exec_lo, 1')
        k.i('s_mov_b32 exec_hi, 0')
        k.raw(f'{lab}:')
        k.lines.append(f'  buffer_load_dword {t2}, {t1}, {sws}, {so} offen sc1')
        k.lines.append('  s_waitcnt vmcnt(0)')
        k.lines.append(f'  v_readfirstlane_b32 {st2}, {t2}')
        k.lines.append(f'  s_add_u32 {st1}, {st1}, 1')
        k.lines.append(f'  s_cmp_ge_u32 {st1}, {SPIN_MAX}')
        k.lines.append(f'  s_cbranch_scc1 {lab}_d')
        k.lines.append(f'  s_cmp_eq_u32 {st2}, 0')
        k.lines.append(f'  s_cbranch_scc1 {lab}')
        k.raw(f'{lab}_d:')
        k.i('s_mov_b64 exec, -1')
        k.raw(f'{lab}_x:')
        k._join()

    def x1_addr(ttg_, nt_, sreg, sspec):
        k.i(f's_lshr_b32 {so}, {ttg_}, 3')
        k.i(f's_mul_i32 {so}, {so}, 20')
        k.i(f's_lshr_b32 {st1}, {nt_}, 1')
        k.i(f's_mul_i32 {st1}, {st1}, 5')
        k.i(f's_add_u32 {so}, {so}, {st1}')
        k.i(f's_lshl_b32 {so}, {so}, 13')
        k.i(f's_add_u32 {so}, {so}, {WS_X1}')
        k.i(f's_and_b32 {st1}, {nt_}, 1')
        k.i(f's_and_b32 {st2}, {ttg_}, 7')
        k.i(f's_lshl_b32 {sreg}, {st1}, 14')
        k.i(f's_add_u32 {sreg}, {sreg}, {so}')
        k.i(f's_lshl_b32 {sspec}, {st2}, 10')
        k.i(f's_add_u32 {sreg}, {sreg}, {sspec}')
        k.i(f's_lshl_b32 {st1}, {st1}, 12')
        k.i(f's_lshl_b32 {st2}, {st2}, 9')
        k.i(f's_add_u32 {sspec}, {so}, {st1}')
        k.i(f's_add_u32 {sspec}, {sspec}, {st2}')
        k.i(f's_add_u32 {sspec}, {sspec}, {4 * 8192}')

    k.i(f's_cmp_ge_u32 {wave}, 4')
    k.i('s_cbranch_scc1 m_l2')
    nts2 = k.nts
    sxx = k.srd(px, S * D * 2)
    ttg = k.s()
    tp, kh2 = k.s(), k.s()
    k.i(f's_and_b32 {tp}, {wave}, 1')
    k.i(f's_lshr_b32 {kh2}, {wave}, 1')
    AF = k.v(32)
    PQf = k.v(32)
    PLf = k.v(16)
    O = k.v(32)
    Xf = k.v(32)
    WA = k.v(20)
    acc = k.v(40)
    xv, gav = AF[0:10], PQf[0:20]
    carry = k.v(2, align=1)
    a0, a1, woa = k.v(), k.v(), k.v(2, align=1)
    aL = k.v(8, align=1)
    k.i(f's_lshl_b32 {ttg}, {mt2}, 2')
    k.i(f's_lshl_b32 {so}, {tp}, 1')
    k.i(f's_add_u32 {ttg}, {ttg}, {so}')
    k.i(f's_add_u32 {ttg}, {ttg}, {kh2}')
    k.i(f's_mul_i32 {st1}, {kh2}, 1920')
    k.i(f's_add_u32 {st1}, {st1}, {RING2}')
    k.i(f'v_add_u32 {a0}, {st1}, {l16}')
    k.i(f'v_lshrrev_b32 {t1}, 2, {n}')
    k.i(f'v_and_b32 {t2}, 3, {n}')
    k.i(f'v_cmp_eq_u32 vcc, 0, {t2}')
    k.i(f'v_cndmask_b32 {t1}, 4, {t1}, vcc')
    k.i(f'v_lshlrev_b32 {t1}, 4, {t1}')
    k.i(f'v_add_u32 {t1}, {st1}, {t1}')
    k.i(f'v_add_u32 {t1}, 1280, {t1}')
    k.i(f'v_lshl_add_u32 {a1}, {G}, 7, {t1}')
    k.i(f'v_add_u32 {t1}, 512, {t1}')
    k.i(f'v_lshlrev_b32 {t2}, 4, {n}')
    k.i(f'v_add_u32 {t2}, {st1}, {t2}')
    k.i(f'v_add_u32 {t2}, 1024, {t2}')
    k.i(f's_add_u32 {st1}, {st1}, {1280 + 512 + 112}')
    k.i(f'v_mov_b32 {t3}, {st1}')
    for rho in range(4):
        k.i(f'v_cmp_eq_u32 vcc, {rho}, {G}')
        k.i(f'v_cndmask_b32 {aL[2 * rho]}, {t3}, {t2}, vcc')
        k.i(f'v_cndmask_b32 {aL[2 * rho + 1]}, {t3}, {t1}, vcc')
    spqc = k.s()
    k.i(f's_lshl_b32 {so}, {tp}, 12')
    k.i(f's_lshl_b32 {st1}, {kh2}, 10')
    k.i(f's_add_u32 {so}, {so}, {st1}')
    k.i(f's_mul_i32 {spqc}, {mt2}, 163840')
    k.i(f's_add_u32 {spqc}, {spqc}, {so}')
    k.i(f's_add_u32 {spqc}, {spqc}, {WS_PHIQ}')

    def ldq(s):
        L = []
        if s % 4 == 0:
            L.append(f's_add_u32 {st2}, {spqc}, {(16 + s // 4) * 8192}')
            for t in range(2):
                q = (((s // 4) & 1) * 2 + t) * 4
                L.append(f'buffer_load_dwordx4 {PLf[q:q + 4]}, {l16}, {sws}, {st2} offen offset:{2048 * t}')
        L.append(f's_add_u32 {st2}, {spqc}, {s * 8192}')
        for t in range(2):
            L.append(f'buffer_load_dwordx4 {PQf[((s % 4) * 2 + t) * 4:((s % 4) * 2 + t) * 4 + 4]}, {l16}, {sws}, {st2} offen offset:{2048 * t}')
        return L

    k.i(f's_mul_i32 {so}, {kh2}, 5120')
    k.i(f's_add_u32 {so}, {so}, {WOFB}')
    k.i(f'v_add_u32 {woa[0]}, {so}, {l16}')
    k.i(f'v_add_u32 {woa[1]}, 51200, {woa[0]}')
    k.i('s_barrier')
    k.ts()
    for s in range(3):
        for x in ldq(s):
            k.i(x)

    def rd2(s):
        L = []
        b = s & 1
        sl = (s % 4) * SL2
        A = AF[b * 16:b * 16 + 16]
        rho = s & 3
        L.append(f'ds_read_b128 {A[8:12]}, {aL[2 * rho]} offset:{sl}')
        L.append(f'ds_read_b128 {A[12:16]}, {aL[2 * rho + 1]} offset:{sl}')
        L.append(f'ds_read_b128 {A[4:8]}, {a1} offset:{sl}')
        L.append(f'ds_read_b128 {A[0:4]}, {a0} offset:{sl}')
        return L

    def om(s):
        L = []
        b = s & 1
        A = AF[b * 16:b * 16 + 16]
        for t in range(2):
            q = (((s // 4) & 1) * 2 + t) * 4
            for tl in range(2):
                o = O[((b * 2 + t) * 2 + tl) * 4:((b * 2 + t) * 2 + tl) * 4 + 4]
                L.append(f'v_mfma_f32_16x16x32_bf16 {o}, {A[8 + tl * 4:8 + tl * 4 + 4]}, {PLf[q:q + 4]}, 0')
        for t in range(2):
            for tl in (1, 0):
                o = O[((b * 2 + t) * 2 + tl) * 4:((b * 2 + t) * 2 + tl) * 4 + 4]
                L.append(f'v_mfma_f32_16x16x32_bf16 {o}, {A[tl * 4:tl * 4 + 4]}, {PQf[((s % 4) * 2 + t) * 4:((s % 4) * 2 + t) * 4 + 4]}, {o}')
        return L

    def xf(j, t):
        return Xf[((j % 4) * 2 + t) * 4:((j % 4) * 2 + t) * 4 + 4]

    def ov(s):
        L = []
        b = s & 1
        os_ = [O[(b * 2 + t) * 8:(b * 2 + t) * 8 + 8] for t in range(2)]
        for o in os_:
            L.append(f'v_add_f32 {o[5]}, {fhex(1e-6)}, {o[5]}')
        for o in os_:
            L.append(f'v_rcp_f32 {o[5]}, {o[5]}')
        for t, o in enumerate(os_):
            for q in range(4):
                L.append(f'v_mul_f32 {o[q]}, {o[q]}, {o[5]}')
            L.append(f'v_mul_f32 {o[4] if s & 1 else o[6]}, {o[4]}, {o[5]}')
        for t, o in enumerate(os_):
            if s & 1:
                vals = [carry[t]] + [o[q] for q in range(5)]
                idx0 = 5 * s - 1
            else:
                vals = [o[q] for q in range(4)]
                idx0 = 5 * s
            for p in range(len(vals) // 2):
                idx = idx0 + 2 * p
                L.append(f'v_cvt_pk_bf16_f32 {xf(idx >> 3, t)[(idx & 7) >> 1]}, {vals[2 * p]}, {vals[2 * p + 1]}')
            if not s & 1:
                L.append(f'v_mov_b32 {carry[t]}, {o[6]}')
        return L

    def wrd(j):
        off = ((2 * j + 2) % 20) * 5120
        areg, o = (woa[0], off) if off < 51200 else (woa[1], off - 51200)
        return [f'ds_read_b128 {WA[ct * 4:ct * 4 + 4]}, {areg} offset:{o + ct * 1024}' for ct in range(5)]

    def wm(j):
        return [f'v_mfma_f32_16x16x32_bf16 {acc[(ct * 2 + t) * 4:(ct * 2 + t) * 4 + 4]}, {WA[ct * 4:ct * 4 + 4]}, {xf(j, t)}, {0 if j == 0 else acc[(ct * 2 + t) * 4:(ct * 2 + t) * 4 + 4]}' for ct in range(5) for t in range(2)]

    def done_after(s):
        return (5 * s + (5 if s & 1 else 4)) // 8

    k.i('s_barrier')
    k.ts()
    for x in rd2(0) + wrd(0):
        k.i(x)
    jm = 0
    nlate = 5
    for s in range(18):
        if s == 8:
            k.ts()
        if s == 15:
            k.i(f's_mul_i32 {so}, {ttg}, {16 * 1280}')
            k.i(f's_mul_i32 {st1}, {nt2}, 160')
            k.i(f's_add_u32 {so}, {so}, {st1}')
            k.i(f'v_mul_u32_u24 {t2}, 1280, {n}')
            k.i(f'v_lshl_add_u32 {t2}, {G}, 3, {t2}')
            for ct in range(5):
                k.i(f'buffer_load_dwordx2 {xv[2 * ct:2 * ct + 2]}, {t2}, {sxx}, {so} offen offset:{32 * ct}')
            k.i(f'v_lshlrev_b32 {t2}, 4, {G}')
            k.i(f's_mul_i32 {st1}, {nt2}, 320')
            k.i(f's_add_u32 {so}, {st1}, {WS_MOD + 2 * 2560}')
            for ct in range(5):
                k.i(f'buffer_load_dwordx4 {gav[4 * ct:4 * ct + 4]}, {t2}, {sws}, {so} offen offset:{64 * ct}')
        fill = []
        if s + 1 < 16:
            tsy(s in (9, 10))
            if nlate < len(k.lg):
                k.wait(lg=nlate)
            tsy(s in (9, 10))
            k.i('s_barrier')
            tsy(s in (9, 10))
            tsy(s in (9, 10))
            fill += rd2(s + 1)
        if s + 3 < 16:
            fill += ldq(s + 3)
        lim = done_after(s - 2) if s >= 2 else 0
        Mw, late = [], []
        if jm < lim:
            Mw = wm(jm)
            jm += 1
            if jm < 10:
                late = wrd(jm)
        assert jm >= lim
        Mo = om(s) if s < 16 else []
        V = ov(s - 1) if 1 <= s <= 16 else []
        M = Mo + Mw
        if os.environ.get('X_NOC'):
            M, V = M[:1], []
        if os.environ.get('X_NORD'):
            fill, late = [], []
        if M:
            interleave(k, M, fill + V)
        else:
            for x in fill + V:
                k.i(x)
        for x in late:
            k.i(x)
        nlate = len(late)
    assert jm == 10
    k.i(f's_mul_i32 {so}, {wave}, 5120')
    k.i(f'v_add_u32 {t1}, {so}, {l16}')
    k.i(f's_xor_b32 {st1}, {wave}, 2')
    k.i(f's_mul_i32 {st1}, {st1}, 5120')
    k.i(f'v_add_u32 {t3}, {st1}, {l16}')
    mk2 = k.s(2)
    k.i(f's_cmp_eq_u32 {kh2}, 1')
    k.i(f's_cselect_b64 {mk2}, -1, 0')
    Sd, Kp = O[0:20], Xf[0:20]
    for ct in range(5):
        for r in range(4):
            a0_, a1_ = acc[(ct * 2) * 4 + r], acc[(ct * 2 + 1) * 4 + r]
            k.i(f'v_cndmask_b32 {Sd[4 * ct + r]}, {a1_}, {a0_}, {mk2}')
            k.i(f'v_cndmask_b32 {Kp[4 * ct + r]}, {a0_}, {a1_}, {mk2}')
        k.i(f'ds_write_b128 {t1}, {Sd[4 * ct:4 * ct + 4]} offset:{1024 * ct}')
    k.ts()
    k.barrier()
    for ct in range(5):
        k.i(f'ds_read_b128 {acc[4 * ct:4 * ct + 4]}, {t3} offset:{1024 * ct}')
    for i in range(20):
        k.i(f'v_add_f32 {acc[i]}, {acc[i]}, {Kp[i]}')
    cp = O[20:28]
    k.i(f'v_cmp_lt_u32 vcc, 111, v0')
    k.i(f'v_mov_b32 {t3}, {1792 - 112}')
    k.i(f'v_cndmask_b32 {t2}, 0, {t3}, vcc')
    k.i(f'v_add_u32 {t2}, {t2}, v0')
    k.i(f's_mul_i32 {so}, {nt3}, 112')
    k.i(f'v_add_u32 {t2}, {so}, {t2}')
    k.i(f'v_lshlrev_b32 {t2}, 2, {t2}')
    s12 = AF[10:12]
    xe = AF[12:16]
    k.i(f'v_mov_b32 {s12[0]}, 0')
    k.i(f'v_mov_b32 {s12[1]}, 0')
    xo = AF[16:28]
    for ct in range(5):
        for q in range(2):
            k.i(f'v_lshlrev_b32 {xe[2 * q]}, 16, {xv[2 * ct + q]}')
            k.i(f'v_and_b32 {xe[2 * q + 1]}, 0xffff0000, {xv[2 * ct + q]}')
        for r in range(4):
            k.i(f'v_fmac_f32 {xe[r]}, {acc[4 * ct + r]}, {gav[4 * ct + r]}')
        for q in range(2):
            k.i(f'v_cvt_pk_bf16_f32 {xo[2 * ct + q]}, {xe[2 * q]}, {xe[2 * q + 1]}')
        for q in range(2):
            k.i(f'v_lshlrev_b32 {xe[2 * q]}, 16, {xo[2 * ct + q]}')
            k.i(f'v_and_b32 {xe[2 * q + 1]}, 0xffff0000, {xo[2 * ct + q]}')
        for r in range(4):
            k.i(f'v_add_f32 {s12[0]}, {s12[0]}, {xe[r]}')
            k.i(f'v_fmac_f32 {s12[1]}, {xe[r]}, {xe[r]}')
    sreg, sspec = k.s(), k.s()
    x1_addr(ttg, nt2, sreg, sspec)
    l8 = AF[28]
    k.i(f'v_lshlrev_b32 {l8}, 3, {lane}')
    k.i(f'buffer_store_dwordx4 {xo[0:4]}, {l16}, {sws}, {sreg} offen sc1')
    k.i(f's_add_u32 {sreg}, {sreg}, 8192')
    k.i(f'buffer_store_dwordx4 {xo[4:8]}, {l16}, {sws}, {sreg} offen sc1')
    k.i(f'buffer_store_dwordx2 {xo[8:10]}, {l8}, {sws}, {sspec} offen sc1')
    xsum4(k, s12[0], t1)
    xsum4(k, s12[1], t1)
    k.i(f's_lshl_b32 {so}, {ttg}, 10')
    k.i(f's_lshl_b32 {st1}, {nt2}, 3')
    k.i(f's_add_u32 {so}, {so}, {st1}')
    k.i(f's_add_u32 {so}, {so}, {WS_ST}')
    k.i(f'v_lshlrev_b32 {t1}, 6, {n}')
    k.i('s_mov_b32 exec_lo, 0xffff')
    k.i('s_mov_b32 exec_hi, 0')
    k.i(f'buffer_store_dwordx2 {s12}, {t1}, {sws}, {so} offen sc1')
    k.i('s_mov_b64 exec, -1')
    for p in range(8):
        k.i(f's_mov_b32 {so}, {WS_CSB + p * 3584 * 4}')
        k.i(f'buffer_load_dword {cp[p]}, {t2}, {sws}, {so} offen sc1')
    k.i('s_barrier')
    k.ts()
    sel = k.s()
    k.i(f's_lshr_b32 {sel}, {mt2}, 1')
    signal(0, C2, G2, sel)
    if int(os.environ.get('SELF', '0')) & 2:
        k.lines.append(f'  buffer_load_dword {xe[0]}, {l16}, {sws}, {sreg} offen')
        k.i(f's_sub_u32 {sreg}, {sreg}, 8192')
        k.lines.append(f'  buffer_load_dword {xe[1]}, {l16}, {sws}, {sreg} offen')
        k.lines.append(f'  buffer_load_dword {xe[2]}, {l8}, {sws}, {sspec} offen')
        TCH2 = True
    k.i(f'v_add_f32 {cp[0]}, {cp[0]}, {cp[2]}')
    k.i(f'v_add_f32 {cp[4]}, {cp[4]}, {cp[6]}')
    k.i(f'v_add_f32 {cp[1]}, {cp[1]}, {cp[3]}')
    k.i(f'v_add_f32 {cp[5]}, {cp[5]}, {cp[7]}')
    k.i(f'v_add_f32 {cp[0]}, {cp[0]}, {cp[4]}')
    k.i(f'v_add_f32 {cp[1]}, {cp[1]}, {cp[5]}')
    k.i(f'v_mov_b32 {t2}, 0')
    k.i(f'v_cmp_lt_u32 vcc, 63, v0')
    k.i(f'v_cndmask_b32 {t2}, {t2}, 64, vcc')
    k.i(f'v_mov_b32 {t3}, -48')
    k.i(f'v_cmp_lt_u32 vcc, 111, v0')
    k.i(f'v_cndmask_b32 {t2}, {t2}, {t3}, vcc')
    k.i(f'v_cmp_lt_u32 vcc, 175, v0')
    k.i(f'v_cndmask_b32 {t2}, {t2}, 0, vcc')
    k.i(f'v_add_u32 {t2}, {t2}, v0')
    k.i(f'v_lshlrev_b32 {t2}, 2, {t2}')
    k.i(f'v_add_u32 {t2}, {CSL}, {t2}')
    k.i(f'ds_write_b32 {t2}, {cp[0]}')
    k.i(f'ds_write_b32 {t2}, {cp[1]} offset:1024')

    k.release(mk_common)
    l8 = k.v()
    k.i(f'v_lshlrev_b32 {l8}, 3, {lane}')
    th3, cg = k.s(), k.s()
    k.i(f's_and_b32 {th3}, {wave}, 1')
    k.i(f's_lshr_b32 {cg}, {wave}, 1')
    acc = k.v(112)
    Fr = k.v(88)
    stv = k.v(16)
    mu, sd, rr = k.v(4, align=1), k.v(4, align=1), k.v(4, align=1)
    cb8 = stv[8:16]
    wa = k.v(2, align=1)
    xa = k.v(2, align=1)
    xs = k.v(2, align=1)
    csa = k.v()
    k.i(f's_mul_i32 {so}, {cg}, 7168')
    k.i(f'v_add_u32 {wa[0]}, {so}, {l16}')
    k.i(f'v_add_u32 {wa[1]}, 67584, {wa[0]}')
    k.i(f's_lshl_b32 {so}, {th3}, 12')
    k.i(f's_add_u32 {so}, {so}, 57344')
    k.i(f'v_add_u32 {xa[0]}, {so}, {l16}')
    k.i(f'v_add_u32 {xa[1]}, {124928 - 57344}, {xa[0]}')
    k.i(f's_lshl_b32 {so}, {th3}, 11')
    k.i(f's_add_u32 {so}, {so}, 57344')
    k.i(f'v_add_u32 {xs[0]}, {so}, {l8}')
    k.i(f'v_add_u32 {xs[1]}, {124928 - 57344}, {xs[0]}')
    k.i(f's_mul_i32 {so}, {cg}, 448')
    k.i(f's_add_u32 {so}, {so}, {CSL}')
    k.i(f'v_lshlrev_b32 {csa}, 4, {G}')
    k.i(f'v_add_u32 {csa}, {so}, {csa}')
    k.i(f'v_lshlrev_b32 {t1}, 6, {n}')
    k.i(f'v_lshl_add_u32 {t1}, {G}, 4, {t1}')
    k.i(f's_lshl_b32 {so}, {mt3}, 1')
    k.i(f's_add_u32 {so}, {so}, {th3}')
    mt4o = k.s()
    k.i(f's_mov_b32 {mt4o}, {so}')
    k.i(f's_lshl_b32 {so}, {so}, 12')
    k.i(f's_add_u32 {so}, {so}, {WS_ST}')
    k.lines.append('  s_waitcnt vmcnt(0)')
    k.barrier()
    k.ts()
    for tt in range(4):
        k.i(f'buffer_load_dwordx4 {stv[4 * tt:4 * tt + 4]}, {t1}, {sws}, {so} offen offset:{1024 * tt} sc1')

    def xfr(J, tt):
        b = ((J & 1) * 11 + tt) * 4
        return Fr[b:b + 4]

    def wfr(J, i):
        b = ((J & 1) * 11 + 4 + i) * 4
        return Fr[b:b + 4]

    def prep3(J):
        L = []
        wb = W3[(J // 2) % 4] + (J & 1) * 14336
        wreg, wo_ = (wa[0], wb) if wb < 67584 else (wa[1], wb - 67584)
        xb = X3[J % 5]
        xi, xo_ = (0, xb - 57344) if xb < 124928 else (1, xb - 124928)
        xl = []
        for tt in range(4):
            if J % 5 == 4:
                xl.append([f'ds_read_b64 {xfr(J, tt)[0:2]}, {xs[xi]} offset:{xo_ + tt * 512}',
                           f'ds_read_b64 {xfr(J, tt)[2:4]}, {xs[xi]} offset:{xo_ + 4096 + tt * 512}'])
            else:
                xl.append([f'ds_read_b128 {xfr(J, tt)}, {xa[xi]} offset:{xo_ + tt * 1024}'])
        L.append(f'ds_read_b128 {wfr(J, 0)}, {wreg} offset:{wo_}')
        for tt in range(4):
            L += xl[tt]
        for i in range(1, 7):
            L.append(f'ds_read_b128 {wfr(J, i)}, {wreg} offset:{wo_ + i * 1024}')
        return L

    def mf3(J):
        L = []
        for i in range(7):
            for tt in range(4):
                a = acc[(i * 4 + tt) * 4:(i * 4 + tt) * 4 + 4]
                L.append(f'v_mfma_f32_16x16x32_bf16 {a}, {wfr(J, i)}, {xfr(J, tt)}, {0 if J == 0 else a}')
        return L

    def stats_code():
        L = []
        for tt in range(4):
            a = stv[4 * tt:4 * tt + 4]
            L.append(f'v_add_f32 {a[0]}, {a[0]}, {a[2]}')
            L.append(f'v_add_f32 {a[1]}, {a[1]}, {a[3]}')
            for x in (a[0], a[1]):
                L.append(f'v_mov_b32 {a[2]}, {x}')
                L.append(f'v_permlane32_swap_b32 {x}, {a[2]}')
                L.append(f'v_add_f32 {x}, {x}, {a[2]}')
                L.append(f'v_mov_b32 {a[2]}, {x}')
                L.append(f'v_permlane16_swap_b32 {x}, {a[2]}')
                L.append(f'v_add_f32 {x}, {x}, {a[2]}')
            L.append(f'v_mul_f32 {mu[tt]}, {fhex(1.0 / 640)}, {a[0]}')
            L.append(f'v_mul_f32 {a[1]}, {fhex(1.0 / 640)}, {a[1]}')
            L.append(f'v_fma_f32 {a[1]}, -{mu[tt]}, {mu[tt]}, {a[1]}')
            L.append(f'v_max_f32 {a[1]}, 0, {a[1]}')
            L.append(f'v_add_f32 {a[1]}, {fhex(1e-5)}, {a[1]}')
            L.append(f'v_sqrt_f32 {sd[tt]}, {a[1]}')
            L.append(f'v_rsq_f32 {rr[tt]}, {a[1]}')
        return L

    def init_code(i):
        L = []
        for tt in range(4):
            a = acc[(i * 4 + tt) * 4:(i * 4 + tt) * 4 + 4]
            for r in range(4):
                L.append(f'v_fmac_f32 {a[r]}, {cb8[4 + r]}, {sd[tt]}')
            for r in range(4):
                L.append(f'v_fma_f32 {a[r]}, -{mu[tt]}, {cb8[r]}, {a[r]}')
        return L

    k.barrier()
    k.ts()
    for x in prep3(0):
        k.i(x)
    st_l = stats_code()
    for J in range(20):
        if J == 10:
            k.ts()
        M = mf3(J)
        if J + 1 < 20:
            k.barrier()
            fill = prep3(J + 1)
        else:
            fill = []
        if J in (2, 3):
            h = len(st_l) // 2
            fill = fill + (st_l[:h] if J == 2 else st_l[h:])
            interleave(k, M, fill, lead=2)
        elif 4 <= J < 11:
            i = J - 4
            M = M[4 * i:] + M[:4 * i]
            pre = [f'ds_read_b128 {cb8[0:4]}, {csa} offset:{i * 64}', f'ds_read_b128 {cb8[4:8]}, {csa} offset:{1024 + i * 64}']
            interleave(k, M[:12], pre + fill[:8])
            interleave(k, M[12:], fill[8:] + init_code(i))
        else:
            interleave(k, M, fill, lead=6)
    k.ts()
    k.raw('m_p3epi:')
    KK = -2.0 * 0.7978845608028654 * LOG2E
    c1, c3, ir2 = stv[0:4], stv[4:8], stv[8:12]
    for tt in range(4):
        k.i(f'v_mul_f32 {c1[tt]}, {fhex(KK)}, {rr[tt]}')
        k.i(f'v_mul_f32 {c3[tt]}, {rr[tt]}, {rr[tt]}')
        k.i(f'v_mul_f32 {c3[tt]}, {c3[tt]}, {c1[tt]}')
        k.i(f'v_mul_f32 {c3[tt]}, {fhex(0.044715)}, {c3[tt]}')
        k.i(f'v_mul_f32 {ir2[tt]}, {sd[tt]}, {sd[tt]}')
    EXB = 151552
    k.i(f's_lshl_b32 {so}, {th3}, 12')
    k.i(f's_add_u32 {so}, {so}, {EXB}')
    k.i(f'v_add_u32 {t1}, {so}, {l16}')
    sact, sasp = k.s(), k.s()
    k.i(f's_mul_i32 {sact}, {mt4o}, 56')
    k.i(f's_lshr_b32 {st1}, {nt3}, 1')
    k.i(f's_add_u32 {sasp}, {sact}, {st1}')
    k.i(f's_lshl_b32 {sasp}, {sasp}, 12')
    k.i(f's_and_b32 {st1}, {nt3}, 1')
    k.i(f's_lshl_b32 {st1}, {st1}, 11')
    k.i(f's_add_u32 {sasp}, {sasp}, {st1}')
    k.i(f's_add_u32 {sasp}, {sasp}, {WS_ACT}')
    k.i(f's_mul_i32 {st1}, {nt3}, 3')
    k.i(f's_add_u32 {sact}, {sact}, {st1}')
    k.i(f's_add_u32 {sact}, {sact}, 8')
    k.i(f's_lshl_b32 {sact}, {sact}, 12')
    k.i(f's_add_u32 {sact}, {sact}, {WS_ACT}')
    k.barrier()
    T = Fr[0:16]
    OUT = Fr[16:48]
    UX = Fr[48:64]
    CP = Fr[64:88]
    for tt in range(4):
        for j_, src in enumerate((c1, c3, ir2)):
            k.i(f'v_mov_b32 {CP[tt * 6 + 2 * j_]}, {src[tt]}')
            k.i(f'v_mov_b32 {CP[tt * 6 + 2 * j_ + 1]}, {src[tt]}')

    def geglu(g, u, tt, o2, ti):
        t = T[(ti % 4) * 4:(ti % 4) * 4 + 4]
        cc = CP[tt * 6:tt * 6 + 6]
        for h in (0, 2):
            k.i(f'v_pk_mul_f32 {t[h:h + 2]}, {g[h:h + 2]}, {g[h:h + 2]}')
        for h in (0, 2):
            k.i(f'v_pk_fma_f32 {t[h:h + 2]}, {t[h:h + 2]}, {cc[2:4]}, {cc[0:2]}')
        for h in (0, 2):
            k.i(f'v_pk_mul_f32 {t[h:h + 2]}, {t[h:h + 2]}, {g[h:h + 2]}')
        for r in range(4):
            k.i(f'v_exp_f32 {t[r]}, {t[r]}')
        for h in (0, 2):
            k.i(f'v_pk_mul_f32 {u[h:h + 2]}, {u[h:h + 2]}, {g[h:h + 2]}')
        for h in (0, 2):
            k.i(f'v_pk_fma_f32 {t[h:h + 2]}, {t[h:h + 2]}, {cc[4:6]}, {cc[4:6]}')
        for r in range(4):
            k.i(f'v_rcp_f32 {t[r]}, {t[r]}')
        for h in (0, 2):
            k.i(f'v_pk_mul_f32 {u[h:h + 2]}, {u[h:h + 2]}, {t[h:h + 2]}')
        k.i(f'v_cvt_pk_bf16_f32 {o2[0]}, {u[0]}, {u[1]}')
        k.i(f'v_cvt_pk_bf16_f32 {o2[1]}, {u[2]}, {u[3]}')

    def A(i, tt):
        return acc[(i * 4 + tt) * 4:(i * 4 + tt) * 4 + 4]

    k.i(f's_cmp_eq_u32 {cg}, 1')
    k.i('s_cbranch_scc1 p3_epi1')
    stx = (list(k.vm), list(k.lg))
    cnt = 0
    for tt in range(4):
        o = OUT[tt * 4:tt * 4 + 4]
        geglu(A(0, tt), A(4, tt), tt, o[0:2], cnt)
        geglu(A(1, tt), A(5, tt), tt, o[2:4], cnt + 1)
        cnt += 2
        k.i(f'buffer_store_dwordx4 {o}, {l16}, {sws}, {sact} offen offset:{1024 * tt} sc1')
        if tt == 0:
            k.i('s_barrier')
            for t2_ in range(4):
                k.i(f'ds_read_b128 {UX[t2_ * 4:t2_ * 4 + 4]}, {t1} offset:{1024 * t2_}')
    k.i(f's_add_u32 {sact}, {sact}, 4096')
    for tt in range(4):
        o = OUT[16 + tt * 4:16 + tt * 4 + 4]
        geglu(A(2, tt), A(6, tt), tt, o[0:2], cnt)
        geglu(A(3, tt), UX[tt * 4:tt * 4 + 4], tt, o[2:4], cnt + 1)
        cnt += 2
        k.i(f'buffer_store_dwordx4 {o}, {l16}, {sws}, {sact} offen offset:{1024 * tt} sc1')
    k.i('s_branch p3_epid')
    k.raw('p3_epi1:')
    k._join()
    k.vm, k.lg = list(stx[0]), list(stx[1])
    for tt in range(4):
        k.i(f'ds_write_b128 {t1}, {A(0, tt)} offset:{1024 * tt}')
    k.barrier()
    k.i(f's_add_u32 {sact}, {sact}, 8192')
    cnt = 0
    for tt in range(4):
        o = OUT[tt * 4:tt * 4 + 4]
        geglu(A(1, tt), A(4, tt), tt, o[0:2], cnt)
        geglu(A(2, tt), A(5, tt), tt, o[2:4], cnt + 1)
        cnt += 2
        k.i(f'buffer_store_dwordx4 {o}, {l16}, {sws}, {sact} offen offset:{1024 * tt} sc1')
    for tp in range(2):
        o = OUT[16 + tp * 4:16 + tp * 4 + 4]
        geglu(A(3, 2 * tp), A(6, 2 * tp), 2 * tp, o[0:2], cnt)
        geglu(A(3, 2 * tp + 1), A(6, 2 * tp + 1), 2 * tp + 1, o[2:4], cnt + 1)
        cnt += 2
        k.i(f'buffer_store_dwordx4 {o}, {l16}, {sws}, {sasp} offen offset:{1024 * tp} sc1')
    k.raw('p3_epid:')
    k._join()
    k.lines.append('  s_waitcnt lgkmcnt(0)')
    k.lg = []
    k.force_wait = True
    k.ts()
    signal(1, 8192, 12288, mt3)
    if int(os.environ.get('SELF', '0')) & 4:
        k.i(f's_lshr_b32 {so}, {mt3}, 1')
        k.i(f's_cmp_lg_u32 {so}, {sx}')
        k.i('s_cbranch_scc1 m_nst3')
        k.i(f'v_lshlrev_b32 {t1}, 7, {lane}')
        k.i(f's_cmp_eq_u32 {cg}, 0')
        k.i(f's_cselect_b32 {st1}, 4096, 0')
        k.i(f's_sub_u32 {so}, {sact}, {st1}')
        k.i(f's_sub_u32 {st2}, {sasp}, {sact}')
        k.i(f's_sub_u32 {st2}, {st2}, 4096')
        k.i(f'v_add_u32 {t2}, {st2}, {t1}')
        k.i(f'v_cmp_lt_u32 vcc, 31, {lane}')
        k.i(f's_cmp_eq_u32 {cg}, 0')
        k.i(f's_cselect_b64 vcc, 0, vcc')
        k.i(f'v_cndmask_b32 {t1}, {t1}, {t2}, vcc')
        k.i(f'v_add_u32 {t1}, {so}, {t1}')
        k.i(f's_cselect_b32 {st1}, -1, 0xffff')
        k.i(f's_mov_b32 exec_hi, {st1}')
        k.lines.append(f'  buffer_load_dword {t3}, {t1}, {sws}, 0 offen')
        k.i('s_mov_b64 exec, -1')
        k.lines.append('  s_waitcnt vmcnt(0)')
        k.raw('m_nst3:')
        k._join()
    k.force_wait = False

    k.release(mk_common)
    l8 = k.v()
    k.i(f'v_lshlrev_b32 {l8}, 3, {lane}')
    th4, kh = k.s(), k.s()
    k.i(f's_and_b32 {th4}, {wave}, 1')
    k.i(f's_lshr_b32 {kh}, {wave}, 1')
    acc = k.v(40)
    Fr = k.v(56)
    wa = k.v(2, align=1)
    xa, xsp = k.v(), k.v()
    k.i(f's_mul_i32 {so}, {kh}, 5120')
    k.i(f'v_add_u32 {wa[0]}, {so}, {l16}')
    k.i(f'v_add_u32 {wa[1]}, 61440, {wa[0]}')
    k.i(f's_lshl_b32 {so}, {kh}, 12')
    k.i(f's_add_u32 {so}, {so}, {X4[0]}')
    k.i(f's_lshl_b32 {st1}, {th4}, 11')
    k.i(f's_add_u32 {st1}, {st1}, {so}')
    k.i(f'v_add_u32 {xa}, {st1}, {l16}')
    k.i(f's_lshl_b32 {st1}, {th4}, 10')
    k.i(f's_add_u32 {st1}, {st1}, {so}')
    k.i(f'v_add_u32 {xsp}, {st1}, {l16}')
    xv = k.v(12)
    gbv = k.v(20)
    ttg = k.s()
    k.i(f's_lshl_b32 {ttg}, {mt2}, 2')
    k.i(f's_lshl_b32 {so}, {th4}, 1')
    k.i(f's_add_u32 {ttg}, {ttg}, {so}')
    k.i(f's_add_u32 {ttg}, {ttg}, {kh}')
    sreg, sspec = k.s(), k.s()
    x1_addr(ttg, nt2, sreg, sspec)
    k.i(f'buffer_load_dwordx4 {xv[0:4]}, {l16}, {sws}, {sreg} offen sc1')
    k.i(f's_add_u32 {sreg}, {sreg}, 8192')
    k.i(f'buffer_load_dwordx4 {xv[4:8]}, {l16}, {sws}, {sreg} offen sc1')
    k.i(f'buffer_load_dwordx2 {xv[8:10]}, {l8}, {sws}, {sspec} offen sc1')
    k.i(f'v_lshlrev_b32 {t2}, 4, {G}')
    k.i(f's_mul_i32 {st1}, {nt2}, 320')
    k.i(f's_add_u32 {so}, {st1}, {WS_MOD + 5 * 2560}')
    for ct in range(5):
        k.i(f'buffer_load_dwordx4 {gbv[4 * ct:4 * ct + 4]}, {t2}, {sws}, {so} offen offset:{64 * ct}')
    sout = k.srd(po, S * D * 2)
    k.barrier()
    k.ts()
    NS4 = 14
    steps = [(s, h) for s in range(NS4) for h in range(2) if 4 * s + 2 * h < 54]

    def prep4(idx):
        s, h = steps[idx]
        b = idx & 1
        L = []
        wb = W4[s % 5] + h * 10240
        wreg, wo_ = (wa[0], wb) if wb < 61440 else (wa[1], wb - 61440)
        xo_ = (s % 3) * 16384 + h * 8192
        L.append(f'ds_read_b128 {Fr[(b * 7 + 2) * 4:(b * 7 + 2) * 4 + 4]}, {wreg} offset:{wo_}')
        for t in range(2):
            x = Fr[(b * 7 + t) * 4:(b * 7 + t) * 4 + 4]
            if s < 2:
                L.append(f'ds_read_b64 {x[0:2]}, {xsp} offset:{xo_ + t * 8}')
                L.append(f'ds_read_b64 {x[2:4]}, {xsp} offset:{xo_ + 2048 + t * 8}')
            else:
                L.append(f'ds_read_b128 {x}, {xa} offset:{xo_ + t * 1024}')
        for ct in range(1, 5):
            L.append(f'ds_read_b128 {Fr[(b * 7 + 2 + ct) * 4:(b * 7 + 2 + ct) * 4 + 4]}, {wreg} offset:{wo_ + ct * 1024}')
        return L

    def mf4(idx):
        b = idx & 1
        L = []
        for ct in range(5):
            for t in range(2):
                a = acc[(ct * 2 + t) * 4:(ct * 2 + t) * 4 + 4]
                L.append(f'v_mfma_f32_16x16x32_bf16 {a}, {Fr[(b * 7 + 2 + ct) * 4:(b * 7 + 2 + ct) * 4 + 4]}, {Fr[(b * 7 + t) * 4:(b * 7 + t) * 4 + 4]}, {0 if idx == 0 else a}')
        return L

    k.barrier()
    k.ts()
    for x in prep4(0):
        k.i(x)
    for idx in range(len(steps)):
        if idx == 14:
            k.ts()
        if idx + 1 < len(steps):
            if steps[idx + 1][1] == 0:
                k.barrier()
            interleave(k, mf4(idx), prep4(idx + 1), lead=2)
        else:
            for x in mf4(idx):
                k.i(x)
    k.ts()
    k.i(f's_mul_i32 {so}, {wave}, 5120')
    k.i(f'v_add_u32 {t1}, {so}, {l16}')
    k.i(f's_xor_b32 {st1}, {wave}, 2')
    k.i(f's_mul_i32 {st1}, {st1}, 5120')
    k.i(f'v_add_u32 {t3}, {st1}, {l16}')
    mk = k.s(2)
    k.i(f's_cmp_eq_u32 {kh}, 1')
    k.i(f's_cselect_b64 {mk}, -1, 0')
    Sd = Fr[0:20]
    Kp = Fr[20:40]
    for ct in range(5):
        for r in range(4):
            a0_, a1_ = acc[(ct * 2) * 4 + r], acc[(ct * 2 + 1) * 4 + r]
            k.i(f'v_cndmask_b32 {Sd[4 * ct + r]}, {a1_}, {a0_}, {mk}')
            k.i(f'v_cndmask_b32 {Kp[4 * ct + r]}, {a0_}, {a1_}, {mk}')
        k.i(f'ds_write_b128 {t1}, {Sd[4 * ct:4 * ct + 4]} offset:{1024 * ct}')
    k.barrier()
    Rv = acc[0:20]
    for ct in range(5):
        k.i(f'ds_read_b128 {Rv[4 * ct:4 * ct + 4]}, {t3} offset:{1024 * ct}')
    k.i(f's_mul_i32 {so}, {ttg}, {16 * 1280}')
    k.i(f's_mul_i32 {st1}, {nt2}, 160')
    k.i(f's_add_u32 {so}, {so}, {st1}')
    k.i(f'v_mul_u32_u24 {t1}, 1280, {n}')
    k.i(f'v_lshl_add_u32 {t1}, {G}, 3, {t1}')
    xe = Fr[40:44]
    for ct in range(5):
        for q in range(2):
            k.i(f'v_lshlrev_b32 {xe[2 * q]}, 16, {xv[2 * ct + q]}')
            k.i(f'v_and_b32 {xe[2 * q + 1]}, 0xffff0000, {xv[2 * ct + q]}')
        for r in range(4):
            k.i(f'v_add_f32 {Kp[4 * ct + r]}, {Kp[4 * ct + r]}, {Rv[4 * ct + r]}')
        for r in range(4):
            k.i(f'v_fmac_f32 {xe[r]}, {Kp[4 * ct + r]}, {gbv[4 * ct + r]}')
        o = Fr[44 + 2 * ct:44 + 2 * ct + 2]
        for q in range(2):
            k.i(f'v_cvt_pk_bf16_f32 {o[q]}, {xe[2 * q]}, {xe[2 * q + 1]}')
        k.i(f'buffer_store_dwordx2 {o}, {t1}, {sout}, {so} offen offset:{32 * ct}')
    k.ts_end()
    k.i('s_endpgm')

    k.reset_state()
    k.release(mk_common)
    k.nts = nts2
    k.label('m_l2')
    lw = k.s()
    k.i(f's_sub_u32 {lw}, {wave}, 4')
    skv2, spq = k.s(), k.s()
    kvw = k.v(2, align=1)
    KR = k.v(40)
    ob = k.v(8)
    k.i(f's_lshr_b32 {st2}, {lw}, 1')
    k.i(f's_and_b32 {st1}, {lw}, 1')
    k.i(f's_mul_i32 {skv2}, {st2}, {16 * KVS}')
    k.i(f's_mul_i32 {so}, {st1}, 1792')
    k.i(f's_add_u32 {skv2}, {skv2}, {so}')
    k.i(f's_add_u32 {skv2}, {skv2}, {WS_KV}')
    k.i(f's_mul_i32 {st1}, {st1}, 112')
    k.i(f's_mul_i32 {st2}, {st2}, 1920')
    k.i(f's_add_u32 {st2}, {st2}, {RING2}')
    u1, u2_, u3 = KR[0], KR[1], KR[2]
    for i in range(2):
        k.i(f'v_add_u32 {t1}, {st1}, {lane}')
        k.i(f'v_add_u32 {t1}, {64 * i}, {t1}')
        k.i(f'v_mul_u32_u24 {t2}, 6554, {t1}')
        k.i(f'v_lshrrev_b32 {t2}, 16, {t2}')
        k.i(f'v_mul_u32_u24 {t3}, 10, {t2}')
        k.i(f'v_sub_u32 {t3}, {t1}, {t3}')
        k.i(f'v_mul_u32_u24 {u1}, 52, {t2}')
        k.i(f'v_lshrrev_b32 {u1}, 8, {u1}')
        k.i(f'v_mul_u32_u24 {u2_}, 5, {u1}')
        k.i(f'v_sub_u32 {u2_}, {t2}, {u2_}')
        k.i(f'v_lshrrev_b32 {u3}, 1, {t3}')
        k.i(f'v_lshl_add_u32 {kvw[i]}, {u1}, 2, {u2_}')
        k.i(f'v_lshlrev_b32 {kvw[i]}, 4, {kvw[i]}')
        k.i(f'v_lshl_add_u32 {kvw[i]}, {u3}, 8, {kvw[i]}')
        k.i(f'v_cmp_lt_u32 vcc, 20, {t2}')
        k.i(f'v_cndmask_b32 {u1}, {u1}, 5, vcc')
        k.i(f'v_lshlrev_b32 {u1}, 4, {u1}')
        k.i(f'v_lshl_add_u32 {u1}, {u3}, 7, {u1}')
        k.i(f'v_add_u32 {u1}, 1280, {u1}')
        k.i(f'v_cmp_eq_u32 vcc, 4, {u2_}')
        k.i(f'v_cndmask_b32 {kvw[i]}, {kvw[i]}, {u1}, vcc')
        k.i(f'v_cmp_lt_u32 vcc, 19, {t2}')
        k.i(f'v_cndmask_b32 {kvw[i]}, {kvw[i]}, {u1}, vcc')
        k.i(f'v_and_b32 {t3}, 1, {t3}')
        k.i(f'v_lshl_add_u32 {kvw[i]}, {t3}, 3, {kvw[i]}')
        k.i(f'v_add_u32 {kvw[i]}, {st2}, {kvw[i]}')
    dpq = k.s()
    k.i(f's_and_b32 {dpq}, {lw}, 1')
    k.i(f's_lshl_b32 {dpq}, {dpq}, 12')
    k.i(f's_mul_i32 {spq}, {mt2}, 163840')
    k.i(f's_add_u32 {spq}, {spq}, {dpq}')
    k.i(f's_add_u32 {spq}, {spq}, {WS_PHIQ}')
    sw3, dlo, dhi, sx3, dx3 = k.s(), k.s(), k.s(), k.s(), k.s()
    cw3, cx3 = k.s(), k.s()
    if os.environ.get('ROT3', '0') == '1':
        k.i(f's_add_u32 {cx3}, {nt3}, {mt3}')
        k.i(f's_and_b32 {cx3}, {cx3}, 3')
        k.i(f's_mul_i32 {cx3}, {cx3}, 5')
    else:
        k.i(f's_mov_b32 {cx3}, 0')
    k.i(f's_lshr_b32 {cw3}, {lw}, 1')
    k.i(f's_add_u32 {cw3}, {cw3}, {cx3}')
    k.i(f's_and_b32 {sw3}, {lw}, 1')
    k.i(f's_mul_i32 {sw3}, {sw3}, {112 * 1024}')
    k.i(f's_mul_i32 {so}, {nt3}, 7168')
    k.i(f's_add_u32 {sw3}, {sw3}, {so}')
    k.i(f's_add_u32 {sw3}, {sw3}, {WS_WGU}')
    k.i(f's_lshr_b32 {so}, {lw}, 1')
    k.i(f's_mul_i32 {so}, {so}, 14336')
    k.i(f's_and_b32 {st1}, {lw}, 1')
    k.i(f's_lshl_b32 {dlo}, {st1}, 12')
    k.i(f's_add_u32 {dlo}, {dlo}, {so}')
    k.i(f's_mul_i32 {dhi}, {st1}, 3072')
    k.i(f's_add_u32 {dhi}, {dhi}, 8192')
    k.i(f's_add_u32 {dhi}, {dhi}, {so}')
    k.i(f's_lshl_b32 {dx3}, {lw}, 11')
    k.i(f's_mul_i32 {sx3}, {mt3}, {20 * 8192}')
    k.i(f's_add_u32 {sx3}, {sx3}, {dx3}')
    k.i(f's_add_u32 {sx3}, {sx3}, {WS_X1}')

    def w3(p):
        k.i(f's_mul_i32 {so}, {cw3}, {2 * 112 * 1024}')
        k.i(f's_add_u32 {so}, {so}, {sw3}')
        k.i(f's_add_u32 {cw3}, {cw3}, 2')
        k.i(f's_cmp_ge_u32 {cw3}, 20')
        k.i(f's_cselect_b32 {st1}, 20, 0')
        k.i(f's_sub_u32 {cw3}, {cw3}, {st1}')
        k.i(f's_add_u32 m0, {dlo}, {W3[p % 4]}')
        for cc in range(4):
            k.i(f'buffer_load_dwordx4 {l16}, {sws}, {so} offen offset:{1024 * cc} lds', tag=f'w3_{p}')
        k.i(f's_add_u32 {so}, {so}, 4096')
        k.i(f's_add_u32 m0, {dhi}, {W3[p % 4]}')
        for cc in range(3):
            k.i(f'buffer_load_dwordx4 {l16}, {sws}, {so} offen offset:{1024 * cc} lds', tag=f'w3_{p}')

    def x3(J):
        k.i(f's_lshl_b32 {so}, {cx3}, 13')
        k.i(f's_add_u32 {so}, {so}, {sx3}')
        k.i(f's_add_u32 {cx3}, {cx3}, 1')
        k.i(f's_cmp_eq_u32 {cx3}, 20')
        k.i(f's_cselect_b32 {cx3}, 0, {cx3}')
        k.i(f's_add_u32 m0, {dx3}, {X3[J % 5]}')
        for i in range(2):
            k.i(f'buffer_load_dwordx4 {l16}, {sws}, {so} offen offset:{1024 * i} lds', tag=f'x3_{J}')

    sw4, sx4, dw4, dx4 = k.s(), k.s(), k.s(), k.s()
    r4 = k.s()
    if os.environ.get('ROT', '1') == '1':
        k.i(f's_mul_i32 {r4}, {nt2}, 6')
        k.i(f's_and_b32 {so}, {mt2}, 3')
        k.i(f's_mul_i32 {so}, {so}, 11')
        k.i(f's_add_u32 {r4}, {r4}, {so}')
    else:
        k.i(f's_mov_b32 {r4}, 0')
    k.i(f's_add_u32 {r4}, {r4}, {lw}')

    def e4(s):
        if s < 2:
            k.i(f's_add_u32 {st2}, {r4}, {4 * s}')
            k.i(f's_and_b32 {st2}, {st2}, 7')
        else:
            k.i(f's_add_u32 {st2}, {r4}, {4 * s - 8}')
            for _ in range(2):
                k.i(f's_cmp_ge_u32 {st2}, 46')
                k.i(f's_cselect_b32 {st1}, 46, 0')
                k.i(f's_sub_u32 {st2}, {st2}, {st1}')
            k.i(f's_add_u32 {st2}, {st2}, 8')

    k.i(f's_mul_i32 {sw4}, {nt2}, 5120')
    k.i(f's_add_u32 {sw4}, {sw4}, {WS_WDF}')
    k.i(f's_mul_i32 {dw4}, {lw}, 5120')
    k.i(f's_lshl_b32 {dx4}, {lw}, 12')
    k.i(f's_mul_i32 {sx4}, {mt2}, {56 * 4096}')
    k.i(f's_add_u32 {sx4}, {sx4}, {WS_ACT}')

    def w4(s):
        e4(s)
        k.i(f's_mul_i32 {so}, {st2}, 40960')
        k.i(f's_add_u32 {so}, {so}, {sw4}')
        k.i(f's_add_u32 m0, {dw4}, {W4[s % 5]}')
        for cc in range(4):
            k.i(f'buffer_load_dwordx4 {l16}, {sws}, {so} offen offset:{1024 * cc} lds', tag=f'w4_{s}')
        k.i(f's_add_u32 {so}, {so}, 4096')
        k.i(f's_add_u32 m0, {dw4}, {W4[s % 5] + 4096}')
        k.i(f'buffer_load_dwordx4 {l16}, {sws}, {so} offen lds', tag=f'w4_{s}')

    def x4(s):
        e4(s)
        k.i(f's_lshl_b32 {so}, {st2}, 12')
        k.i(f's_add_u32 {so}, {so}, {sx4}')
        k.i(f's_add_u32 m0, {dx4}, {X4[s % 3]}')
        for cc in range(4):
            k.i(f'buffer_load_dwordx4 {l16}, {sws}, {so} offen offset:{1024 * cc} lds', tag=f'x4_{s}')

    def ldk(s):
        k.i(f's_add_u32 {so}, {skv2}, {s * KVS}')
        for i in range(2):
            k.i(f'buffer_load_dwordx4 {KR[((s % 5) * 2 + i) * 4:((s % 5) * 2 + i) * 4 + 4]}, {l16}, {sws}, {so} offen offset:{1024 * i}')

    def stk(s):
        for i in range(2):
            kr = KR[((s % 5) * 2 + i) * 4:((s % 5) * 2 + i) * 4 + 4]
            o = ob[((s & 1) * 2 + i) * 2:((s & 1) * 2 + i) * 2 + 2]
            k.i(f'v_cvt_pk_bf16_f32 {o[0]}, {kr[0]}, {kr[1]}')
            k.i(f'v_cvt_pk_bf16_f32 {o[1]}, {kr[2]}, {kr[3]}')
            k.i(f'ds_write_b64 {kvw[i]}, {o} offset:{(s % 4) * SL2}')

    poll(G1, sx, 4)
    k.i('s_barrier')
    k.ts()
    for s in range(5):
        ldk(s)
    k.i(f's_cmp_lg_u32 {wave}, 4')
    k.i('s_cbranch_scc1 m_w4t')
    vmk = list(k.vm)
    wof_jj(wave, 12)
    k.vm = vmk
    k.raw('m_w4t:')
    k._join()
    k.i(f's_mul_i32 {so}, {lw}, {SL2}')
    k.i(f'v_and_b32 {t1}, 1, {lane}')
    k.i(f'v_mul_u32_u24 {t1}, 1920, {t1}')
    k.i(f'v_add_u32 {t1}, {so}, {t1}')
    zz = k.v(4)
    for q in range(4):
        k.i(f'v_mov_b32 {zz[q]}, 0')
    stk(0)
    k.i(f'ds_write_b128 {t1}, {zz} offset:{RING2 + 1280 + 512 + 112}')
    for s in range(16):
        if s + 1 < 16:
            if s == 0:
                k.wait(lg=0)
            stk(s + 1) if s > 0 else None
        if s > 0:
            k.wait(lg=2 if s + 1 < 16 else 0)
        k.i('s_barrier')
        if s == 0:
            stk(1)
        if s in (0, 8):
            k.ts()
        if s == 5:
            k.i(f's_cmp_lg_u32 {wave}, 7')
            k.i('s_cbranch_scc1 m_nowr')
            k.i(f's_and_b32 {so}, s2, 15')
            k.i(f's_lshl_b32 {so}, {so}, 8')
            k.i(f's_add_u32 {so}, {so}, {WS_CNT + CW}')
            k.i(f'v_mov_b32 {t1}, 0')
            k.i(f'v_mov_b32 {t2}, 1')
            k.i('s_mov_b32 exec_lo, 1')
            k.i('s_mov_b32 exec_hi, 0')
            k.lines.append(f'  buffer_atomic_add {t2}, {t1}, {sws}, {so} offen sc1')
            k.i('s_mov_b64 exec, -1')
            k.raw('m_nowr:')
            k._join()
        if s + 5 < 16:
            ldk(s + 5)
        if s == 15:
            k.i(f's_cmp_eq_u32 {sdw}, 0')
            k.i('s_cbranch_scc1 m_nowp')
            lgk, vmk = list(k.lg), list(k.vm)
            Wd = k.v(16)
            k.i(f'v_lshrrev_b32 {t1}, 2, {lane}')
            k.i(f'v_lshlrev_b32 {t1}, 7, {t1}')
            k.i(f'v_and_b32 {t2}, 3, {lane}')
            k.i(f'v_lshl_add_u32 {t1}, {t2}, 3, {t1}')
            k.i(f's_lshl_b32 {so}, {wave}, 12')
            k.i(f's_add_u32 {so}, {so}, {LWDF - 5 * 4096}')
            k.i(f'v_add_u32 {t1}, {so}, {t1}')
            for c4 in range(4):
                for hf in range(2):
                    k.i(f'ds_read_b64_tr_b16 {Wd[c4 * 4 + 2 * hf:c4 * 4 + 2 * hf + 2]}, {t1} offset:{hf * 2048 + c4 * 32}')
            k.wait(lg=0)
            for c4 in range(4):
                k.lines.append(f'  buffer_store_dwordx4 {Wd[c4 * 4:c4 * 4 + 4]}, {l16}, {sws}, {sdw} offen offset:{1024 * c4} sc1')
            k.raw('m_nowp:')
            k._join()
            k.lg, k.vm = lgk, vmk
        if s == 15:
            k.lines.append('  s_waitcnt lgkmcnt(0)')
            k.i(f'v_lshlrev_b32 {t1}, 8, {n}')
            k.i(f's_mov_b32 {so}, {WS_CNT + CW}')
            k.i(f's_mov_b32 {st1}, 0')
            k.raw('m_wr:')
            for x in [f'buffer_load_dword {t2}, {t1}, {sws}, {so} offen sc1', 's_waitcnt vmcnt(0)',
                      f'v_cmp_gt_u32 vcc, 16, {t2}', f's_add_u32 {st1}, {st1}, 1', f's_cmp_ge_u32 {st1}, {SPIN_MAX}',
                      's_cbranch_scc1 m_wrd', 's_nop 1', 's_cbranch_vccnz m_wr']:
                k.lines.append('  ' + x)
            k.raw('m_wrd:')
            k._join()
            k.vm = []
            if os.environ.get('TOUCH3', '0') == '1':
                for i_ in range(2):
                    k.i(f's_lshl_b32 {so}, {lw}, 9')
                    k.i(f's_and_b32 {st1}, {mt3}, 7')
                    k.i(f's_add_u32 {so}, {so}, {st1}')
                    k.i(f's_add_u32 {so}, {so}, {2048 * i_}')
                    k.i(f'v_lshlrev_b32 {t1}, 3, {lane}')
                    k.i(f'v_add_u32 {t1}, {so}, {t1}')
                    k.i(f'v_min_u32 {t1}, 2239, {t1}')
                    k.i(f'v_mul_u32_u24 {t2}, 4682, {t1}')
                    k.i(f'v_lshrrev_b32 {t2}, 18, {t2}')
                    k.i(f'v_mul_u32_u24 {t3}, 56, {t2}')
                    k.i(f'v_sub_u32 {t1}, {t1}, {t3}')
                    k.i(f'v_mul_u32_u24 {t2}, {112 * 1024}, {t2}')
                    k.i(f'v_lshl_add_u32 {t1}, {t1}, 7, {t2}')
                    k.i(f's_mul_i32 {so}, {nt3}, 7168')
                    k.i(f's_add_u32 {so}, {so}, {WS_WGU}')
                    if i_ == 1:
                        k.i(f's_cmp_lg_u32 {lw}, 0')
                        k.i('s_cbranch_scc1 m_not3')
                    k.lines.append(f'  buffer_load_dword {zz[i_]}, {t1}, {sws}, {so} offen')
                k.raw('m_not3:')
                k._join()
    k.raw('m_l2j:')
    k.reset_state()
    if True:
        if True:
            w3(0)
    k.ts()
    k.i('s_barrier')
    k.i(f's_cmp_lg_u32 {wave}, 7')
    k.i('s_cbranch_scc1 m_nw2')
    k.i(f's_and_b32 {so}, s2, 15')
    k.i(f's_lshl_b32 {so}, {so}, 8')
    k.i(f's_add_u32 {so}, {so}, {WS_CNT + C1G + 128}')
    k.i(f'v_mov_b32 {t1}, 0')
    k.i(f'v_mov_b32 {t2}, 1')
    k.i('s_mov_b32 exec_lo, 1')
    k.i('s_mov_b32 exec_hi, 0')
    k.lines.append(f'  buffer_atomic_add {t2}, {t1}, {sws}, {so} offen sc1')
    k.i('s_mov_b64 exec, -1')
    k.raw('m_nw2:')
    k._join()
    k.i('s_barrier')
    NPRE3 = int(os.environ.get('NPRE3', 2))
    for p in range(1, NPRE3):
        w3(p)
    k.ts()
    poll(G2, mt3)
    k.i('s_barrier')
    k.ts()
    LAX = 4
    TOUCH4 = os.environ.get('TOUCH4', '1') == '1'
    stq = k.s()
    k.i(f's_lshl_b32 {stq}, {lw}, 8')
    k.i(f's_and_b32 {so}, {mt2}, 3')
    k.i(f's_add_u32 {stq}, {stq}, {so}')
    for J in range(LAX):
        x3(J)
    for J in range(20):
        if J % 2 == 0:
            k.wait_tag(f'w3_{J // 2}')
        k.wait_tag(f'x3_{J}')
        k.i('s_barrier')
        if J == 0:
            k.ts()
        if J == 10:
            k.ts()
        if J + LAX < 20:
            x3(J + LAX)
        if J < 2 and NPRE3 + J < 4:
            w3(NPRE3 + J)
        if TOUCH4 and J >= 2 and J % 2 == 1 and J <= 17:
            pass
        if False:
            pass
        TJ0 = int(os.environ.get('TJ0', 3))
        if J == TJ0 - 1:
            vmk6 = list(k.vm)
            k.i(f's_cmp_lg_u32 {wave}, 6')
            k.i('s_cbranch_scc1 m_w2d')
            k.i(f'v_lshlrev_b32 {t1}, 8, {n}')
            k.i(f's_mov_b32 {so}, {WS_CNT + C1G + 128}')
            k.i(f's_mov_b32 {st1}, 0')
            k.raw('m_w2:')
            for x in [f'buffer_load_dword {t2}, {t1}, {sws}, {so} offen sc1', 's_waitcnt vmcnt(0)',
                      f'v_cmp_gt_u32 vcc, 16, {t2}', f's_add_u32 {st1}, {st1}, 1', f's_cmp_ge_u32 {st1}, {SPIN_MAX}',
                      's_cbranch_scc1 m_w2d', 's_sleep 4', 's_cbranch_vccnz m_w2']:
                k.lines.append('  ' + x)
            k.raw('m_w2d:')
            k._join()
            k.vm = vmk6
        if TOUCH4 and J in (TJ0, TJ0 + 4, TJ0 + 8):
            i_ = (J - TJ0) // 4
            k.i(f's_add_u32 {so}, {stq}, {i_ * 4 * 64 * 4}')
            k.i(f'v_lshlrev_b32 {t1}, 2, {lane}')
            k.i(f'v_add_u32 {t1}, {so}, {t1}')
            k.i(f'v_min_u32 {t1}, 2159, {t1}')
            k.i(f'v_mul_u32_u24 {t2}, 1639, {t1}')
            k.i(f'v_lshrrev_b32 {t2}, 16, {t2}')
            k.i(f'v_mul_u32_u24 {t3}, 40, {t2}')
            k.i(f'v_sub_u32 {t1}, {t1}, {t3}')
            k.i(f'v_mul_u32_u24 {t2}, 40960, {t2}')
            k.i(f'v_lshl_add_u32 {t1}, {t1}, 7, {t2}')
            k.i(f'buffer_load_dword {t3}, {t1}, {sws}, {sw4} offen')
        if J % 2 == 0 and J >= 2 and J // 2 + 3 < 10:
            w3(J // 2 + 3)
        if J == 8 and os.environ.get('CPF', '1') == '1':
            mk_ = k.mark()
            k.i(f's_cmp_lg_u32 {wave}, 5')
            k.i('s_cbranch_scc1 m_nocpf')
            code_pf('m_p3epi', 'm_l2', 'a')
            k.raw('m_nocpf:')
            k._join()
            k.release(mk_)
        if J == 16:
            w4(0)
        if J == 17:
            w4(1)
    k.ts()
    k.i('s_barrier')
    k.i('s_barrier')
    w4(2)
    w4(3)
    w4(4)
    k.ts()
    k.i(f's_lshr_b32 {st2}, {mt2}, 1')
    sel = k.s()
    k.i(f's_mov_b32 {sel}, {st2}')
    poll(12288, sel)
    k.i('s_barrier')
    k.ts()
    x4(0)
    x4(1)
    for s in range(NS4):
        k.wait_tag(f'w4_{s}')
        k.wait_tag(f'x4_{s}')
        k.i('s_barrier')
        if s in (0, 7):
            k.ts()
        if s + 2 < NS4:
            x4(s + 2)
        if s >= 1 and s + 4 < NS4:
            w4(s + 4)
    k.ts()
    k.i('s_barrier')
    k.ts_end()
    k.label('p1_end')
    k.i('s_endpgm')
    return k, 256, 512, 163840


GENS = [gen_main]
```

```python
import os, sys
from g2_common import *
if os.environ.get('TS'):
    Kernel.TS = True
import g8_main
gens = [g8_main.gen_main]
HEADER = '''; adaLN + hedgehog linear attention + GEGLU FFN, gfx950. Generated by my own generator scripts.
; Kernarg: 0 A_x, 8 A_wqkv, 16 A_w_phi, 24 A_wo, 32 B_x, 40 B_w_gate, 48 B_w_up, 56 B_w_down, 64 c, 72 w_mod, 80 out, 88 debug, 96 ws'''.split('\n')
n = int(sys.argv[2]) if len(sys.argv) > 2 else len(gens)
ks, launches = [], []
for g in gens[:n]:
    k, grid, block, lds = g()
    idx = [i for i, l in enumerate(k.lines[:80]) if l.strip().startswith('s_load_dwordx2') and 's[0:1]' in l]
    first = [i for i in idx if k.lines[i].endswith(', 96')][-1]
    mv = [i for i in idx if i > first][:3]
    ls = [k.lines[i] for i in mv]
    for i in reversed(mv):
        del k.lines[i]
    k.lines[first + 1:first + 1] = ls
    ks.append(k)
    launches.append((k.name, grid, block, lds))
    print(k.name, 'vgpr', k.hi_v, 'agpr', k.hi_a, 'sgpr', k.hi_s, 'instr', k.ninstr, 'lds', lds, file=sys.stderr)
open(sys.argv[1], 'w').write(build_file(HEADER, launches, ks))
```
